```python
import torch

def _softmax(x, axis=-1):
    return torch.softmax(x, dim=axis)
def _gelu(x):
    return torch.nn.functional.gelu(x, approximate="tanh")
def _silu(x):
    return torch.nn.functional.silu(x)
def _sigmoid(x):
    return torch.sigmoid(x)
def _layernorm(x, axis=-1, eps=1e-5):
    m = x.mean(dim=axis, keepdim=True)
    v = x.var(dim=axis, keepdim=True, unbiased=False)
    return (x - m) / torch.sqrt(v + eps)
def _scatter_add(tgt, idx, src, axis=0):
    return tgt.clone().index_add_(axis, idx, src)
def _segment_sum(src, seg, n):
    out = torch.zeros((n,) + src.shape[1:], dtype=src.dtype)
    return out.index_add_(0, seg, src)
def _pad(x, pw):
    flat = tuple(v for pair in reversed(pw) for v in pair)
    return torch.nn.functional.pad(x, flat)

kernel_name = 'recurrent_scan__linear_attn_block__swiglu_ffn__prompt'

def setup_inputs():

    _w = (lambda a: (lambda t: t.to(torch.bfloat16) if t.is_floating_point() else t)(torch.as_tensor(a)))
    def _A_setup():
        B, S, D = 1, 2048, 1024
        return {
            "x": _w((lambda *s: torch.randn(*s, dtype=torch.bfloat16) * 0.05)(B, S, D)),
            "wqkv": _w((lambda *s: torch.randn(*s, dtype=torch.bfloat16) * 0.1)(D, 3 * D)),
            "wo": _w((lambda *s: torch.randn(*s, dtype=torch.bfloat16) * 0.05)(D, D)),
        }
    _A_in = _A_setup()

    def _B_setup():
        B, S, D, F = 1, 2048, 1024, 3584
        return {
            "x": _w((lambda *s: torch.randn(*s, dtype=torch.bfloat16) * 0.05)(B, S, D)),
            "w_gate": _w((lambda *s: torch.randn(*s, dtype=torch.bfloat16) * 0.05)(D, F)),
            "w_up": _w((lambda *s: torch.randn(*s, dtype=torch.bfloat16) * 0.05)(D, F)),
            "w_down": _w((lambda *s: torch.randn(*s, dtype=torch.bfloat16) * 0.05)(F, D)),
        }
    _B_in = _B_setup()

    return {
        "A_x": _A_in["x"],
        "A_wqkv": _A_in["wqkv"],
        "A_wo": _A_in["wo"],
        "B_x": _B_in["x"],
        "B_w_gate": _B_in["w_gate"],
        "B_w_up": _B_in["w_up"],
        "B_w_down": _B_in["w_down"],
    }

def reference(A_x, A_wqkv, A_wo, B_x, B_w_gate, B_w_up, B_w_down):
    def _A_ref(x, wqkv, wo):
        B, S, D = x.shape
        H = 32; Dh = D // H
        qkv = (lambda x, *d: x.permute(*d))((x @ wqkv).reshape(B, S, 3, H, Dh), 2, 0, 3, 1, 4)
        q, k, v = qkv[0], qkv[1], qkv[2]
        phi = lambda t: torch.where(t > 0, t + 1, torch.exp(t)) + 1e-6
        pq, pk = phi(q), phi(k)
        kv = torch.einsum("bhsd,bhse->bhde", pk, v)
        z = torch.einsum("bhsd->bhd", pk)
        num = torch.einsum("bhqd,bhde->bhqe", pq, kv)
        den = torch.einsum("bhqd,bhd->bhq", pq, z)[..., None] + 1e-6
        o = num / den
        return (lambda x, *d: x.permute(*d))(o, 0, 2, 1, 3).reshape(B, S, D) @ wo

    def _B_ref(x, w_gate, w_up, w_down):
        g = _silu(x @ w_gate)
        u = x @ w_up
        return (g * u) @ w_down

    x = A_x
    xn = _layernorm(x, axis=-1)
    s = _A_ref(xn, A_wqkv, A_wo)
    g = _silu(_B_ref(xn, B_w_gate, B_w_up, B_w_down))
    return x + s * g
```

```python
import re

class Asm:
    def __init__(self):
        self.lines = []
    def __call__(self, s):
        for l in s.strip("\n").split("\n"):
            l = l.strip()
            if l:
                self.lines.append("    " + l)
    def label(self, name):
        self.lines.append(name + ":")
    def raw(self, s):
        self.lines.append(s)
    def comment(self, s):
        self.lines.append("    ; " + s)
    def text(self):
        return "\n".join(self.lines) + "\n"

def vr(b, n=1):
    return "v%d" % b if n == 1 else "v[%d:%d]" % (b, b + n - 1)
def ar(b, n=1):
    return "a%d" % b if n == 1 else "a[%d:%d]" % (b, b + n - 1)
def sr(b, n=1):
    return "s%d" % b if n == 1 else "s[%d:%d]" % (b, b + n - 1)

class Reg:
    def __init__(self, kind, base, n=4):
        self.kind, self.base, self.n = kind, base, n
    def __str__(self):
        return (vr if self.kind == 'v' else ar)(self.base, self.n)
    def sub(self, off, n=1):
        return Reg(self.kind, self.base + off, n)

_REG = re.compile(r'^(-|abs\()?([vas])(?:(\d+)|\[(\d+):(\d+)\])\)?$')
def regs_of(op):
    op = op.strip()
    if op in ("vcc",): return {("s", 106), ("s", 107)}
    if op in ("exec",): return {("s", 126), ("s", 127)}
    if op == "m0": return {("s", 124)}
    m = _REG.match(op)
    if not m: return set()
    k = m.group(2)
    if m.group(3) is not None:
        return {(k, int(m.group(3)))}
    return {(k, i) for i in range(int(m.group(4)), int(m.group(5)) + 1)}

TRANS = ("v_exp_f32", "v_log_f32", "v_rcp_f32", "v_rsq_f32", "v_sqrt_f32", "v_sin_f32", "v_cos_f32")

class Ins:
    def __init__(self, text, lineno):
        self.text = text; self.lineno = lineno
        t = text.split(";")[0].strip()
        parts = t.split(None, 1)
        self.op = parts[0]
        rest = parts[1] if len(parts) > 1 else ""
        ops = []; depth = 0; cur = ""
        for ch in rest:
            if ch in "[(": depth += 1
            if ch in "])": depth -= 1
            if ch == "," and depth == 0:
                ops.append(cur.strip()); cur = ""
            else:
                cur += ch
        if cur.strip(): ops.append(cur.strip())
        self.mods = ""
        if ops:
            lp = ops[-1].split(None, 1)
            ops[-1] = lp[0]
            self.mods = lp[1] if len(lp) > 1 else ""
        self.ops = ops
        op = self.op
        self.is_mfma = op.startswith("v_mfma")
        self.is_valu = op.startswith("v_") and not self.is_mfma
        self.is_salu = op.startswith("s_")
        self.is_vmem = op.startswith(("buffer_", "global_", "flat_"))
        self.is_ds = op.startswith("ds_")
        self.is_trans = op.startswith(TRANS)
        self.is_dpp = "_dpp" in op or "row_" in self.mods or "quad_perm" in self.mods
        self.is_perm = op.startswith("v_permlane")
        R = [regs_of(o) for o in ops]
        self.w = set(); self.r = set(); self.srcC = set(); self.srcAB = set(); self.store_data = set()
        if self.is_mfma:
            self.w = R[0]; self.srcAB = R[1] | R[2]; self.srcC = R[3]; self.r = self.srcAB | self.srcC
        elif self.is_valu:
            if op.startswith("v_cmp"):
                self.w = R[0]; self.r = set().union(*R[1:])
                if op.startswith("v_cmpx"): self.w |= regs_of("exec")
            elif self.is_perm and "swap" in op:
                self.w = R[0] | R[1]; self.r = R[0] | R[1]
            elif op.startswith(("v_add_co", "v_sub_co", "v_addc_co", "v_subb_co")):
                self.w = R[0] | R[1]; self.r = set().union(*R[2:])
            else:
                self.w = R[0]; self.r = set().union(*R[1:]) if len(R) > 1 else set()
                if op.startswith(("v_fmac", "v_dot2c", "v_writelane")): self.r |= R[0]
                if self.is_dpp: self.r |= R[0]
        elif self.is_vmem:
            if "lds" in self.mods.split() or "_lds_" in op:
                self.r = set().union(*R) | regs_of("m0")
                self.lds_dma = True
            elif "_load" in op:
                self.w = R[0]; self.r = set().union(*R[1:])
            elif "_store" in op:
                self.r = set().union(*R)
                self.store_data = R[0] if op.startswith("buffer_") else R[1]
            elif "atomic" in op:
                self.r = set().union(*R)
                if "sc0" in self.mods.split(): self.w = R[0]
        elif self.is_ds:
            if op.startswith(("ds_read", "ds_bpermute", "ds_swizzle", "ds_permute")):
                self.w = R[0]; self.r = set().union(*R[1:])
            else:
                self.r = set().union(*R)
        elif self.is_salu:
            if op.startswith(("s_cmp", "s_cbranch", "s_branch", "s_waitcnt", "s_barrier", "s_nop", "s_sleep", "s_endpgm", "s_setprio", "s_bitcmp")):
                self.r = set().union(*R) if R else set()
            else:
                self.w = R[0] if R else set(); self.r = set().union(*R[1:]) if len(R) > 1 else set()
                if "saveexec" in op: self.w |= regs_of("exec")
    def states(self):
        if self.op == "s_nop": return int(self.ops[0], 0) + 1
        return 1

def mfma_passes(op):
    if "16x16x32" in op or "16x16x16" in op: return 4
    if "32x32x16" in op or "32x32x8" in op: return 8
    raise ValueError(op)

def check_hazards(text, wrap_loops=True):
    lines = text.split("\n")
    ins = []; labels = {}
    for n, l in enumerate(lines):
        s = l.split(";")[0].strip()
        if not s or s.startswith("."): continue
        if s.endswith(":"):
            labels[s[:-1]] = len(ins); continue
        ins.append(Ins(s, n + 1))
    problems = []
    def need(prod, cons):
        n = 0
        vw = {x for x in prod.w if x[0] in "va"}
        sw = {x for x in prod.w if x[0] == "s"}
        if prod.is_valu:
            if cons.is_mfma and vw & cons.r: n = max(n, 2)
            if cons.is_valu and cons.is_dpp and vw & cons.r: n = max(n, 2)
            if cons.is_perm and vw & cons.r: n = max(n, 2)
            if cons.op.startswith(("v_readlane", "v_readfirstlane")) and vw & cons.r: n = max(n, 1)
            if prod.is_trans and cons.is_valu and not cons.is_trans and vw & cons.r: n = max(n, 1)
            if sw:
                if cons.is_vmem and sw & cons.r: n = max(n, 5)
                if cons.is_valu and sw & cons.r: n = max(n, 2)
                if cons.op.startswith(("v_readlane", "v_writelane")) and sw & cons.r: n = max(n, 4)
                if sw & regs_of("exec"):
                    if cons.is_mfma: n = max(n, 4)
                    if cons.is_dpp: n = max(n, 5)
                    if cons.is_perm or cons.op.startswith(("v_readlane", "v_readfirstlane", "v_writelane")): n = max(n, 4)
        if prod.is_mfma:
            p = mfma_passes(prod.op)
            big = {4: 8, 8: 12}[p]
            if cons.is_mfma:
                if prod.w & cons.srcAB: n = max(n, big)
                if prod.w & cons.srcC and prod.w != cons.srcC: n = max(n, {4: 6, 8: 10}[p])
            elif (cons.is_valu or cons.is_vmem or cons.is_ds) and prod.w & (cons.r | cons.w): n = max(n, big)
            if cons.is_valu and prod.srcC & cons.w: n = max(n, {4: 3, 8: 7}[p])
        if prod.is_salu and ("s", 124) in prod.w and cons.is_vmem and ("s", 124) in cons.r: n = max(n, 1)
        if prod.is_vmem and prod.store_data and ("x4" in prod.op or "x3" in prod.op):
            if prod.store_data & cons.w: n = max(n, 2 if cons.is_valu else 1)
        return n
    def scan(seq, start=0):
        for j in range(start, len(seq)):
            dist = 0
            for i in range(j - 1, max(-1, j - 22), -1):
                nd = need(seq[i], seq[j])
                if nd > dist:
                    problems.append("line %d '%s' -> line %d '%s': need %d have %d" % (seq[i].lineno, seq[i].text, seq[j].lineno, seq[j].text, nd, dist))
                dist += seq[i].states()
                if dist > 20: break
                if seq[i].op in ("s_endpgm", "s_branch"): break
    scan(ins)
    for j, x in enumerate(ins):
        if x.op.startswith(("s_cbranch", "s_branch")) and x.ops[0] in labels:
            t = labels[x.ops[0]]
            pre = ins[max(0, j - 21): j + 1]
            seq = [p for p in pre if True]
            tail = ins[t: t + 22]
            seq2 = [i_ for i_ in seq]
            seq2[-1] = Ins("s_nop 0", x.lineno)
            scan(seq2 + tail, start=len(seq2))
    return sorted(set(problems))

import subprocess, os, tempfile
def ins_sizes(text):
    d = tempfile.mkdtemp()
    s = os.path.join(d, "a.s"); o = os.path.join(d, "a.o")
    open(s, "w").write(text)
    r = subprocess.run(["clang", "-x", "assembler", "-target", "amdgcn-amd-amdhsa", "-mcpu=gfx950", "-c", s, "-o", o], capture_output=True, text=True)
    if r.returncode: raise RuntimeError(r.stderr[:4000])
    out = subprocess.run(["llvm-objdump", "-d", "--mcpu=gfx950", o], capture_output=True, text=True).stdout
    res = []
    for l in out.split("\n"):
        if "//" in l and l.startswith("\t"):
            enc = l.split("//")[1].split(":")
            addr = int(enc[0].strip(), 16)
            words = [w for w in enc[1].split() if re.fullmatch(r"[0-9A-F]{8}", w)]
            res.append((addr, 4 * len(words), l.split("//")[0].strip()))
    return res

_E64_OK = ("v_add_u32", "v_mov_b32", "v_lshlrev_b32", "v_lshrrev_b32", "v_and_b32", "v_or_b32", "v_xor_b32", "v_add_f32", "v_sub_f32",
           "v_mul_f32", "v_max_f32", "v_min_f32", "v_exp_f32", "v_rcp_f32", "v_sub_u32", "v_subrev_u32", "v_min_u32", "v_mul_u32_u24",
           "v_sqrt_f32", "v_rsq_f32")
def is_ins_line(l):
    s = l.split(";")[0].strip()
    return bool(s) and not s.startswith(".") and not s.endswith(":")

NO_NOP = [False]
def align_kernel(body):
    hdr = '.amdgcn_target "amdgcn-amd-amdhsa--gfx950"\n.text\n'
    extra = "".join("\n%s:" % n for n in ("ln_kernel", "g1_kernel", "g2_kernel") if (n + ":") not in body)
    sizes = ins_sizes(hdr + body + extra + "\n")
    lines = body.split("\n")
    out = []; off = 0; k = 0; on = False; last = None
    nfix = 0
    for l in lines:
        st = l.strip()
        if st.startswith("; @align on"): on = True
        if st.startswith("; @align off"): on = False
        if st.endswith(":") and not st.startswith(";"):
            last = None if False else last
        if is_ins_line(l):
            sz = sizes[k][1]; k += 1
            if on and sz == 8 and off % 8 == 4:
                fixed = False
                if last is not None:
                    pl, psz = out[last[0]], last[1]
                    op = pl.split()[0]
                    if psz == 4 and op in _E64_OK:
                        out[last[0]] = pl.replace(op, op + "_e64", 1); off += 4; fixed = True
                if not fixed and not NO_NOP[0]:
                    out.append("    s_nop 0"); off += 4
                nfix += 1
            out.append(l); last = (len(out) - 1, sz); off += sz
        else:
            out.append(l)
    assert k == len(sizes), (k, len(sizes))
    return "\n".join(out), off
```

```python
import sys, struct
from asmlib import *

XF_OFF = 0x0
HF_OFF = 0x400000
HF_SIZE = 144 * 131072
KVP_OFF = 0x1600000
KVP_SIZE = 32 * 8 * 6144
STAMP_OFF = 0x2000000

def f2u(x): return struct.unpack("<I", struct.pack("<f", x))[0]
LOG2E = 1.4426950408889634

OPT = dict(stamp=0, align=1)

def kd(name, vgpr, sgpr, accum):
    return f""".section .rodata,"a"
.p2align 6
.amdhsa_kernel {name}
  .amdhsa_next_free_vgpr {vgpr}
  .amdhsa_next_free_sgpr {sgpr}
  .amdhsa_accum_offset {accum}
  .amdhsa_group_segment_fixed_size 0
  .amdhsa_kernarg_size 80
  .amdhsa_user_sgpr_count 2
  .amdhsa_user_sgpr_kernarg_segment_ptr 1
  .amdhsa_system_sgpr_workgroup_id_x 1
.end_amdhsa_kernel
.text
"""

def head(A, name):
    A.raw(f".globl {name}\n.p2align 8\n.type {name},@function\n{name}:")
    if OPT["align"]: A.raw("    ; @align on")

def srd(A, d, lo, hi, size, off=0):
    if off:
        A(f"s_add_u32 s{d}, s{lo}, 0x{off:x}")
        A(f"s_addc_u32 s{d+1}, s{hi}, 0")
    else:
        A(f"s_mov_b32 s{d}, s{lo}")
        A(f"s_mov_b32 s{d+1}, s{hi}")
    A(f"s_mov_b32 s{d+2}, 0x{size:x}")
    A(f"s_mov_b32 s{d+3}, 0x00020000")

NSTAMP = 8
def stamp(A, idx):
    if not OPT["stamp"]: return
    A(f"s_memtime s[{80+2*idx}:{81+2*idx}]")
    A("s_waitcnt lgkmcnt(0)")

def stamp_dump(A, kidx, ws_lo, ws_hi, swave, n):
    if not OPT["stamp"]: return
    A("s_memrealtime s[96:97]")
    A("s_waitcnt lgkmcnt(0)")
    srd(A, 76, ws_lo, ws_hi, 0x10000, STAMP_OFF + kidx * 0x10000)
    A(f"s_lshl_b32 s98, s2, 2")
    A(f"s_add_u32 s98, s98, s{swave}")
    A(f"s_lshl_b32 s98, s98, 6")
    A(f"v_mov_b32 v0, s98")
    for i in range(n):
        A(f"v_mov_b32 v1, s{80+2*i}")
        A(f"buffer_store_dword v1, v0, s[76:79], 0 offen offset:{4*i}")
    A(f"v_mov_b32 v1, s96")
    A(f"buffer_store_dword v1, v0, s[76:79], 0 offen offset:{4*14}")
    A(f"v_mov_b32 v1, s99")
    A(f"buffer_store_dword v1, v0, s[76:79], 0 offen offset:{4*15}")

def stamp_start(A):
    if not OPT["stamp"]: return
    A("s_memrealtime s[96:97]")
    A("s_waitcnt lgkmcnt(0)")
    A("s_mov_b32 s99, s96")
    stamp(A, 0)

def gen_ln():
    A = Asm(); head(A, "ln_kernel")
    A("""
    s_cmp_ge_u32 s2, 256
    s_cbranch_scc1 LN_end
    s_load_dwordx2 s[4:5], s[0:1], 0
    s_load_dwordx2 s[6:7], s[0:1], 72
    v_and_b32 v1, 63, v0
    v_lshrrev_b32 v2, 6, v0
    v_and_b32 v3, 7, v0
    v_lshrrev_b32 v4, 3, v1
    s_lshl_b32 s3, s2, 14
    v_lshlrev_b32 v5, 11, v3
    v_lshl_add_u32 v5, v2, 9, v5
    v_lshl_add_u32 v5, v4, 4, v5
    v_add_u32 v5, s3, v5
    s_waitcnt lgkmcnt(0)
    """)
    srd(A, 8, 4, 5, 0x400000)
    srd(A, 12, 6, 7, 0x400000, XF_OFF)
    for n in range(4):
        A(f"buffer_load_dwordx4 v[{8+4*n}:{11+4*n}], v5, s[8:11], 0 offen offset:{128*n}")
    A("""
    s_lshr_b32 s16, s2, 1
    s_lshl_b32 s16, s16, 10
    s_and_b32 s17, s2, 1
    s_lshl_b32 s17, s17, 7
    s_add_u32 s16, s16, s17
    v_lshrrev_b32 v6, 2, v4
    v_lshl_add_u32 v6, v2, 3, v6
    v_lshlrev_b32 v6, 17, v6
    v_and_b32 v7, 3, v4
    v_lshl_add_u32 v6, v7, 8, v6
    v_lshl_add_u32 v6, v3, 4, v6
    v_add_u32 v6, s16, v6
    """)
    A("""
    v_lshlrev_b32 v57, 6, v3
    v_lshrrev_b32 v56, 4, v0
    v_lshl_add_u32 v56, v56, 2, v57
    """)
    for n in range(4):
        A(f"s_waitcnt vmcnt({3-n})")
        for q in range(4):
            s = 8 + 4 * n + q; d = 24 + 8 * n + 2 * q
            A(f"v_lshlrev_b32 v{d}, 16, v{s}")
            A(f"v_and_b32 v{d+1}, 0xffff0000, v{s}")
    A("v_pk_add_f32 v[58:59], v[24:25], v[26:27]")
    A("v_pk_add_f32 v[60:61], v[28:29], v[30:31]")
    for q in range(4, 16, 2):
        A(f"v_pk_add_f32 v[58:59], v[58:59], v[{24+2*q}:{25+2*q}]")
        A(f"v_pk_add_f32 v[60:61], v[60:61], v[{26+2*q}:{27+2*q}]")
    def finish_reduce(ldsoff):
        A(f"""
        v_pk_add_f32 v[58:59], v[58:59], v[60:61]
        v_add_f32 v58, v58, v59
        s_nop 1
        v_add_f32_dpp v58, v58, v58 row_ror:8 row_mask:0xf bank_mask:0xf
        ds_write_b32 v56, v58 offset:{ldsoff}
        s_waitcnt lgkmcnt(0)
        s_barrier
        ds_read_b128 v[64:67], v57 offset:{ldsoff}
        ds_read_b128 v[68:71], v57 offset:{ldsoff+16}
        ds_read_b128 v[72:75], v57 offset:{ldsoff+32}
        ds_read_b128 v[76:79], v57 offset:{ldsoff+48}
        s_waitcnt lgkmcnt(0)
        v_pk_add_f32 v[64:65], v[64:65], v[66:67]
        v_pk_add_f32 v[68:69], v[68:69], v[70:71]
        v_pk_add_f32 v[72:73], v[72:73], v[74:75]
        v_pk_add_f32 v[76:77], v[76:77], v[78:79]
        v_pk_add_f32 v[64:65], v[64:65], v[68:69]
        v_pk_add_f32 v[72:73], v[72:73], v[76:77]
        v_pk_add_f32 v[64:65], v[64:65], v[72:73]
        v_add_f32 v64, v64, v65
        v_mul_f32 v64, 0x{f2u(1.0/1024):x}, v64
        """)
    finish_reduce(0)
    A("""
    v_sub_f32 v62, 0, v64
    v_cvt_pk_bf16_f32 v80, v64, v64
    v_mov_b32 v63, v62
    v_lshlrev_b32 v80, 16, v80
    v_mov_b32 v58, 0
    v_mov_b32 v59, 0
    v_mov_b32 v60, 0
    v_mov_b32 v61, 0
    """)
    for q in range(0, 16, 2):
        A(f"v_pk_add_f32 v[82:83], v[{24+2*q}:{25+2*q}], v[62:63]")
        A(f"v_pk_add_f32 v[84:85], v[{26+2*q}:{27+2*q}], v[62:63]")
        A(f"v_pk_fma_f32 v[58:59], v[82:83], v[82:83], v[58:59]")
        A(f"v_pk_fma_f32 v[60:61], v[84:85], v[84:85], v[60:61]")
    finish_reduce(512)
    A(f"""
    v_cvt_pk_bf16_f32 v64, v64, v64
    v_lshlrev_b32 v64, 16, v64
    v_add_f32 v64, 0x{f2u(1e-5):x}, v64
    v_cvt_pk_bf16_f32 v64, v64, v64
    v_lshlrev_b32 v64, 16, v64
    v_sqrt_f32 v64, v64
    s_nop 0
    v_cvt_pk_bf16_f32 v64, v64, v64
    v_lshlrev_b32 v64, 16, v64
    v_rcp_f32 v64, v64
    v_sub_f32 v62, 0, v80
    v_mov_b32 v63, v62
    v_mov_b32 v65, v64
    s_mov_b32 s20, 0
    """)
    for n in range(4):
        for q in range(4):
            d = 24 + 8 * n + 2 * q; o = 8 + 4 * n + q
            A(f"v_pk_add_f32 v[{d}:{d+1}], v[{d}:{d+1}], v[62:63]")
            A(f"v_cvt_pk_bf16_f32 v{o}, v{d}, v{d+1}")
            A(f"v_lshlrev_b32 v{d}, 16, v{o}")
            A(f"v_and_b32 v{d+1}, 0xffff0000, v{o}")
            A(f"v_pk_mul_f32 v[{d}:{d+1}], v[{d}:{d+1}], v[64:65]")
            A(f"v_cvt_pk_bf16_f32 v{o}, v{d}, v{d+1}")
        A(f"buffer_store_dwordx4 v[{8+4*n}:{11+4*n}], v6, s[12:15], s20 offen")
        A(f"s_add_u32 s20, s20, 0x40000")
    A.label("LN_end")
    A("s_endpgm")
    return A.text(), kd("ln_kernel", 88, 32, 88)

G1_S = 5
G1_SLOT = 20480
G1_KVL = G1_S * G1_SLOT
G1_FIN = G1_KVL + 24576
G1_LDS = G1_FIN + 3072

def code_prefetch(A, kname, nkb_per_wave, sT, sW, vlane, vtmp, vdst):
    A(f"s_getpc_b64 s[{sT}:{sT+1}]")
    A(f"s_and_b32 s{sT}, s{sT}, 0xffffff00")
    A(f"s_mul_i32 s{sT+2}, s{sW}, {4096*nkb_per_wave}")
    A(f"v_lshlrev_b32 v{vtmp}, 6, v{vlane}")
    A(f"v_add_u32 v{vtmp}, s{sT+2}, v{vtmp}")
    n = 0
    for j in range(nkb_per_wave):
        if j: A(f"v_add_u32 v{vtmp}, 0x1000, v{vtmp}")
        A(f"global_load_dword v{vdst}, v{vtmp}, s[{sT}:{sT+1}]")
        n += 1
    return n

def gen_g1():
    A = Asm(); head(A, "g1_kernel")
    vX, vD, vA0, vA1, vAG, vB0, vB1, vBG, vL16 = 1, [2, 3, 4, 5, 6], 7, 8, 9, 10, 11, 12, 13
    vT = 14
    names = ["k0", "k1", "v0", "v1", "q0", "q1"]
    for t in range(7): names += [f"g{t}", f"u{t}"]
    acc = {}
    nv = 24; na = 0
    for nm in ["k0", "k1", "v0", "v1"] + [f"g{t}" for t in range(7)]:
        for i in range(4):
            acc[(nm, i)] = Reg('v', nv); nv += 4
    for t in range(7):
        for i in range(4):
            if t * 4 + i < 14:
                acc[(f"u{t}", i)] = Reg('v', nv); nv += 4
            else:
                acc[(f"u{t}", i)] = Reg('a', na); na += 4
    for nm in ["q0", "q1"]:
        for i in range(4):
            acc[(nm, i)] = Reg('a', na); na += 4
    assert nv == 256 and na == 88
    XR = lambda s, i: Reg('a', 88 + 16 * s + 4 * i)
    WR = lambda p: Reg('a', 152 + 4 * p)
    PT = lambda t: Reg('a', 184 + 4 * t)
    sSX, sSD, sSH, sSK = 16, [20, 24, 28, 32, 36], 40, 44
    sW, sHD, sRB, sXo, sWoA, sWoB, sStA, sStB, sM, sR, sCnt = 48, 49, 50, 51, 52, 53, 54, 55, 56, 57, 58
    sSLOT, sREND, sMEND, sM0 = 59, 60, 61, 62
    sT = 64
    A(f"""
    s_cmp_ge_u32 s2, 256
    s_cbranch_scc1 G1_end
    """)
    stamp_start(A)
    A(f"""
    s_load_dwordx2 s[4:5], s[0:1], 8
    s_load_dwordx4 s[8:11], s[0:1], 32
    s_load_dwordx4 s[12:15], s[0:1], 64
    v_lshrrev_b32 v{vT}, 6, v0
    v_and_b32 v0, 63, v0
    v_readfirstlane_b32 s{sW}, v{vT}
    s_and_b32 s{sT}, s2, 7
    s_lshr_b32 s{sT+1}, s2, 3
    s_and_b32 s{sRB}, s{sT+1}, 7
    s_lshr_b32 s{sT+1}, s{sT+1}, 3
    s_lshl_b32 s{sHD}, s{sT}, 2
    s_add_u32 s{sHD}, s{sHD}, s{sT+1}
    v_lshlrev_b32 v{vL16}, 4, v0
    """)
    A(f"""
    s_lshl_b32 s{sT}, s{sRB}, 14
    s_lshl_b32 s{sT+1}, s{sW}, 12
    s_add_u32 s{sT}, s{sT}, s{sT+1}
    v_add_u32 v{vX}, s{sT}, v{vL16}
    """)
    A(f"""
    v_lshrrev_b32 v{vT}, 4, v0
    v_bfe_u32 v{vT+1}, v0, 2, 2
    v_lshl_add_u32 v{vT+2}, v{vT}, 3, v{vT+1}
    v_mul_u32_u24 v{vT+2}, 6144, v{vT+2}
    v_bfe_u32 v{vT+3}, v0, 1, 1
    v_and_b32 v{vT+4}, 1, v{vT}
    v_xor_b32 v{vT+3}, v{vT+3}, v{vT+4}
    v_lshl_add_u32 v{vT+2}, v{vT+3}, 5, v{vT+2}
    v_and_b32 v{vT+3}, 1, v0
    v_lshl_add_u32 v{vT+2}, v{vT+3}, 4, v{vT+2}
    s_mul_i32 s{sT+2}, s{sW}, 5
    s_and_b32 s{sT+3}, s{sHD}, 1
    s_lshl_b32 s{sT+3}, s{sT+3}, 1
    s_mul_i32 s{sT+4}, s{sHD}, 224
    s_waitcnt lgkmcnt(0)
    """)
    srd(A, sSX, 14, 15, 0x400000, XF_OFF)
    for i in range(5):
        d = sSD[i]
        A(f"""
        s_add_u32 s{sT+5}, s{sT+2}, {i}
        s_cmp_lt_u32 s{sT+5}, 6
        s_cbranch_scc0 G1_gu{i}
        s_lshr_b32 s{sT+6}, s{sT+5}, 1
        s_lshl_b32 s{sT+6}, s{sT+6}, 11
        s_and_b32 s{sT+7}, s{sT+5}, 1
        s_mul_i32 s{sT+7}, s{sT+7}, 24576
        s_add_u32 s{sT+6}, s{sT+6}, s{sT+7}
        s_lshl_b32 s{sT+7}, s{sHD}, 6
        s_add_u32 s{sT+6}, s{sT+6}, s{sT+7}
        v_add_u32 v{vD[i]}, s{sT+6}, v{vT+2}
        s_mov_b32 s{d}, s4
        s_mov_b32 s{d+1}, s5
        s_mov_b32 s{d+2}, {1024*6144}
        s_mov_b32 s{sStA if i == 0 else sStB}, {32*6144}
        s_branch G1_dn{i}
        """)
        A.label(f"G1_gu{i}")
        A(f"""
        s_sub_u32 s{sT+6}, s{sT+5}, 6
        s_sub_u32 s{sT+7}, s{sT+5}, 13
        s_cmp_lt_u32 s{sT+5}, 13
        s_cselect_b32 s{sT+6}, s{sT+6}, s{sT+7}
        s_cselect_b32 s{d}, s8, s10
        s_cselect_b32 s{d+1}, s9, s11
        s_mov_b32 s{d+2}, {1024*7168}
        s_mov_b32 s{sStA if i == 0 else sStB}, {32*7168}
        s_lshl_b32 s{sT+6}, s{sT+6}, 6
        v_add_u32 v{vT+3}, s{sT+6}, v0
        v_mul_u32_u24 v{vT+4}, 4682, v{vT+3}
        v_lshrrev_b32 v{vT+4}, 16, v{vT+4}
        v_mul_u32_u24 v{vT+5}, 14, v{vT+4}
        v_sub_u32 v{vT+5}, v{vT+3}, v{vT+5}
        v_add_u32 v{vT+5}, s{sT+3}, v{vT+5}
        v_subrev_u32 v{vT+6}, 14, v{vT+5}
        v_min_u32 v{vT+5}, v{vT+5}, v{vT+6}
        v_bfe_u32 v{vT+6}, v{vT+4}, 2, 2
        v_lshrrev_b32 v{vT+7}, 4, v{vT+4}
        v_and_b32 v{vT+4}, 3, v{vT+4}
        v_lshl_add_u32 v{vT+4}, v{vT+6}, 3, v{vT+4}
        v_lshl_add_u32 v{vT+4}, v{vT+7}, 2, v{vT+4}
        v_mul_u32_u24 v{vT+4}, 7168, v{vT+4}
        v_lshl_add_u32 v{vT+4}, v{vT+5}, 4, v{vT+4}
        v_add_u32 v{vD[i]}, s{sT+4}, v{vT+4}
        """)
        A.label(f"G1_dn{i}")
        A(f"s_mov_b32 s{d+3}, 0x00020000")
    def dma(i):
        return [f"s_add_u32 m0, s{sM}, 0x{1024*(i+1):x}",
                f"buffer_load_dwordx4 v{vD[i]}, s[{sSD[i]}:{sSD[i]+3}], s{sWoA if i == 0 else sWoB} offen lds"]
    def xload(s, i):
        return f"buffer_load_dwordx4 {XR(s, i)}, v{vX}, s[{sSX}:{sSX+3}], s{sXo} offen offset:{1024*i}"
    A(f"""
    s_mul_i32 s{sM0}, s{sW}, 5120
    s_sub_u32 s{sM0}, s{sM0}, 1024
    s_mov_b32 s{sM}, s{sM0}
    s_mov_b32 s{sWoA}, 0
    s_mov_b32 s{sWoB}, 0
    s_mov_b32 s{sXo}, 0
    s_mov_b32 s{sSLOT}, {G1_SLOT}
    """)
    for t in range(4):
        for i in range(5):
            m, l = dma(i); A(m); A("s_nop 0"); A(l)
        if t < 3:
            A(f"s_add_u32 s{sM}, s{sM}, s{sSLOT}")
            A(f"s_add_u32 s{sWoA}, s{sWoA}, s{sStA}")
            A(f"s_add_u32 s{sWoB}, s{sWoB}, s{sStB}")
            for i in range(4): A(xload(t, i))
            A(f"s_add_u32 s{sXo}, s{sXo}, 0x20000")
    NPF = code_prefetch(A, "g1", 2, sT + 8, sW, 0, vT + 8, vT + 9)
    A(f"""
    v_lshrrev_b32 v{vT+3}, 2, v0
    v_and_b32 v{vT+4}, 3, v0
    v_lshlrev_b32 v{vT+4}, 3, v{vT+4}
    v_lshl_add_u32 v{vB0}, v{vT+3}, 6, v{vT+4}
    v_and_b32 v{vT+5}, 1, v{vT}
    v_lshl_add_u32 v{vB0}, v{vT+5}, 5, v{vB0}
    v_xor_b32 v{vB1}, 32, v{vB0}
    v_mul_u32_u24 v{vBG}, 224, v{vT+3}
    v_add_u32 v{vBG}, v{vBG}, v{vT+4}
    v_mov_b32 v{vA0}, v{vB0}
    v_mov_b32 v{vA1}, v{vB1}
    v_mov_b32 v{vAG}, v{vBG}
    s_mov_b32 s{sR}, 0
    s_mov_b32 s{sCnt}, 0
    s_mov_b32 s{sREND}, {G1_S*G1_SLOT}
    s_add_u32 s{sMEND}, s{sM0}, s{sREND}
    """)
    srd(A, sSH, 14, 15, HF_SIZE, HF_OFF)
    srd(A, sSK, 14, 15, KVP_SIZE, KVP_OFF)
    for r in range(24, 256, 2):
        A(f"v_pk_mov_b32 v[{r}:{r+1}], 0, 0")
    for r in range(88):
        A(f"v_accvgpr_write_b32 a{r}, 0")
    def wread(f, a, pos):
        nm = names[f]
        if nm[0] in "qkv":
            p = "qkv".index(nm[0]); j = int(nm[1])
            addr = vA1 if j else vA0; off = 2048 * p + 1024 * a
        else:
            tl = int(nm[1]); addr = vAG
            off = (6144 if nm[0] == 'g' else 13312) + 3584 * a + 32 * tl
        return f"ds_read_b64_tr_b16 {WR(pos).sub(2*a, 2)}, v{addr} offset:{off}"
    def mfma(f, i, s, pos):
        nm = names[f]; d = acc[(nm, i)]
        if nm[0] in "kv":
            return f"v_mfma_f32_16x16x32_bf16 {d}, {XR(s, i)}, {WR(pos)}, {d}"
        return f"v_mfma_f32_16x16x32_bf16 {d}, {WR(pos)}, {XR(s, i)}, {d}"
    LA = 6
    A(f"s_waitcnt vmcnt({18 + 5 + NPF})")
    A("s_barrier")
    stamp(A, 1)
    for f in range(LA):
        for a in range(2): A(wread(f, a, f % 8))
    A.label("G1_loop")
    for s in range(4):
        for f in range(20):
            F = 20 * s + f
            pos = F % 8
            if f == 14:
                A("s_waitcnt vmcnt(18) lgkmcnt(8)"); A("s_barrier")
            elif f % 2 == 0:
                A("s_waitcnt lgkmcnt(8)")
                extra = {0: f"s_add_u32 s{sR}, s{sR}, s{sSLOT}",
                         2: f"s_add_u32 s{sWoA}, s{sWoA}, s{sStA}",
                         4: f"s_add_u32 s{sWoB}, s{sWoB}, s{sStB}",
                         6: f"s_add_u32 s{sM}, s{sM}, s{sSLOT}",
                         8: f"s_add_u32 s{sCnt}, s{sCnt}, 1"}.get(f)
                if extra: A(extra)
            nf = (f + LA) % 20
            A(mfma(f, 0, s, pos))
            A(wread(nf, 0, (F + LA) % 8))
            A(mfma(f, 1, s, pos))
            A(wread(nf, 1, (F + LA) % 8))
            if f >= 15:
                m, l = dma(f - 15)
                A(m); A(mfma(f, 2, s, pos)); A(l); A(mfma(f, 3, s, pos))
            elif f in (3, 5, 7, 9):
                A(mfma(f, 2, s, pos)); A(xload((s + 3) % 4, (f - 3) // 2)); A(mfma(f, 3, s, pos))
            elif f == 1:
                A(mfma(f, 2, s, pos))
                A(f"s_cmp_eq_u32 s{sR}, s{sREND}"); A(f"s_cselect_b32 s{sR}, 0, s{sR}")
                A(mfma(f, 3, s, pos))
            elif f == 10:
                A(mfma(f, 2, s, pos))
                A(f"s_cmp_eq_u32 s{sM}, s{sMEND}"); A(f"s_cselect_b32 s{sM}, s{sM0}, s{sM}")
                A(mfma(f, 3, s, pos))
            elif f == 11:
                A(mfma(f, 2, s, pos)); A(f"s_add_u32 s{sXo}, s{sXo}, 0x20000"); A(mfma(f, 3, s, pos))
            elif f == 13:
                A(mfma(f, 2, s, pos))
                A(f"v_add_u32 v{vA0}, s{sR}, v{vB0}")
                A(f"v_add_u32 v{vA1}, s{sR}, v{vB1}")
                A(mfma(f, 3, s, pos))
                A(f"v_add_u32_e64 v{vAG}, s{sR}, v{vBG}")
            else:
                A(mfma(f, 2, s, pos)); A(mfma(f, 3, s, pos))
    A(f"s_cmp_lt_u32 s{sCnt}, 32")
    A("s_cbranch_scc1 G1_loop")
    stamp(A, 2)
    sNL, sPL, sEPS = 66, 68, 70
    A(f"""
    s_mov_b32 s{sNL}, 0x{f2u(-LOG2E):x}
    s_mov_b32 s{sNL+1}, 0x{f2u(-LOG2E):x}
    s_mov_b32 s{sPL}, 0x{f2u(LOG2E):x}
    s_mov_b32 s{sPL+1}, 0x{f2u(LOG2E):x}
    s_mov_b32 s{sEPS}, 0x{f2u(1e-6):x}
    """)
    def phi_tile(src, tmp, dst):
        b = src
        A(f"v_pk_mul_f32 v[{tmp}:{tmp+1}], v[{b}:{b+1}], s[{sPL}:{sPL+1}]")
        A(f"v_pk_mul_f32 v[{tmp+2}:{tmp+3}], v[{b+2}:{b+3}], s[{sPL}:{sPL+1}]")
        for j in range(4): A(f"v_exp_f32_e64 v{tmp+j}, v{tmp+j} clamp")
        for j in range(4): A(f"v_max_f32 v{b+j}, s{sEPS}, v{b+j}")
        A(f"v_pk_add_f32 v[{b}:{b+1}], v[{b}:{b+1}], v[{tmp}:{tmp+1}]")
        A(f"v_pk_add_f32 v[{b+2}:{b+3}], v[{b+2}:{b+3}], v[{tmp+2}:{tmp+3}]")
        A(f"v_cvt_pk_bf16_f32 v{dst}, v{b}, v{b+1}")
        A(f"v_cvt_pk_bf16_f32 v{dst+1}, v{b+2}, v{b+3}")
    kb = acc[("k0", 0)].base; vb = acc[("v0", 0)].base
    vONE = vT + 4
    for j in range(4): A(f"v_mov_b32 v{vONE+j}, 0x3f803f80")
    for dt in range(2):
        for i in range(4):
            src = kb + 16 * dt + 4 * i
            dst = kb + 16 * dt + 8 * (i // 2) + 2 * (i % 2)
            phi_tile(src, vT, dst)
    for et in range(2):
        for i in range(4):
            src = vb + 16 * et + 4 * i
            dst = vb + 16 * et + 8 * (i // 2) + 2 * (i % 2)
            A(f"v_cvt_pk_bf16_f32 v{dst}, v{src}, v{src+1}")
            A(f"v_cvt_pk_bf16_f32 v{dst+1}, v{src+2}, v{src+3}")
    A("s_nop 1")
    for u in range(2):
        for dt in range(2):
            for et in range(3):
                a = kb + 16 * dt + 8 * u
                b = vb + 16 * et + 8 * u if et < 2 else vONE
                p = PT(dt * 3 + et)
                A(f"v_mfma_f32_16x16x32_bf16 {p}, v[{a}:{a+3}], v[{b}:{b+3}], {'0' if u == 0 else p}")
    A(f"""
    s_mul_i32 s{sT}, s{sW}, 6144
    s_add_u32 s{sT}, s{sT}, {G1_KVL}
    v_add_u32 v{vT}, s{sT}, v{vL16}
    s_lshl_b32 s{sT}, s{sW}, 10
    s_add_u32 s{sT+1}, s{sT}, {G1_KVL}
    v_add_u32 v{vT+1}, s{sT+1}, v{vL16}
    s_lshl_b32 s{sT+1}, s{sHD}, 3
    s_add_u32 s{sT+1}, s{sT+1}, s{sRB}
    s_mul_i32 s{sT+1}, s{sT+1}, 6144
    v_add_u32 v{vT+2}, s{sT}, v{vL16}
    s_nop 1
    """)
    for t in range(6):
        A(f"ds_write_b128 v{vT}, {PT(t)} offset:{1024*t}")
    A("s_waitcnt lgkmcnt(0)")
    A("s_barrier")
    tb = kb
    for sw in range(4):
        A(f"ds_read_b128 v[{tb+4*sw}:{tb+4*sw+3}], v{vT+1} offset:{6144*sw}")
    A(f"s_cmp_lt_u32 s{sW}, 2")
    A("s_cbranch_scc0 G1_kv1")
    for sw in range(4):
        A(f"ds_read_b128 v[{tb+16+4*sw}:{tb+16+4*sw+3}], v{vT+1} offset:{6144*sw+4096}")
    A("s_waitcnt lgkmcnt(0)")
    def sum4(b):
        A(f"v_pk_add_f32 v[{b}:{b+1}], v[{b}:{b+1}], v[{b+4}:{b+5}]")
        A(f"v_pk_add_f32 v[{b+2}:{b+3}], v[{b+2}:{b+3}], v[{b+6}:{b+7}]")
        A(f"v_pk_add_f32 v[{b+8}:{b+9}], v[{b+8}:{b+9}], v[{b+12}:{b+13}]")
        A(f"v_pk_add_f32 v[{b+10}:{b+11}], v[{b+10}:{b+11}], v[{b+14}:{b+15}]")
        A(f"v_pk_add_f32 v[{b}:{b+1}], v[{b}:{b+1}], v[{b+8}:{b+9}]")
        A(f"v_pk_add_f32 v[{b+2}:{b+3}], v[{b+2}:{b+3}], v[{b+10}:{b+11}]")
    sum4(tb + 16)
    A(f"s_add_u32 s{sT+2+6}, s{sT+1}, 4096")
    A(f"buffer_store_dwordx4 v[{tb+16}:{tb+19}], v{vT+2}, s[{sSK}:{sSK+3}], s{sT+8} offen sc1")
    A.label("G1_kv1")
    A("s_waitcnt lgkmcnt(0)")
    sum4(tb)
    A(f"buffer_store_dwordx4 v[{tb}:{tb+3}], v{vT+2}, s[{sSK}:{sSK+3}], s{sT+1} offen sc1")
    stamp(A, 3)
    sCB, sCL = 71, 72
    A(f"""
    s_mul_i32 s{sCB}, s{sHD}, 7
    s_add_u32 s{sCB}, s{sCB}, 1
    s_lshr_b32 s{sCB}, s{sCB}, 1
    s_and_b32 s{sT}, s{sHD}, 1
    s_lshl_b32 s{sCL}, s{sT}, 2
    s_sub_u32 s{sCL}, 3, s{sCL}
    s_add_u32 s{sCL}, s{sCL}, s{sCB}
    s_lshl_b32 s{sCB}, s{sCB}, 17
    s_lshl_b32 s{sCL}, s{sCL}, 17
    s_lshl_b32 s{sT}, s{sT}, 3
    s_add_u32 s{sCL}, s{sCL}, s{sT}
    """)
    tq = tb + 32
    def swiglu_tile(tl, i, tmp, dst):
        g = acc[(f"g{tl}", i)].base
        ur = acc[(f"u{tl}", i)]
        if ur.kind == 'a':
            u = tmp + 4
            for j in range(4): A(f"v_accvgpr_read_b32 v{u+j}, a{ur.base+j}")
        else:
            u = ur.base
        A(f"v_pk_mul_f32 v[{tmp}:{tmp+1}], v[{g}:{g+1}], s[{sNL}:{sNL+1}]")
        A(f"v_pk_mul_f32 v[{tmp+2}:{tmp+3}], v[{g+2}:{g+3}], s[{sNL}:{sNL+1}]")
        for j in range(4): A(f"v_exp_f32 v{tmp+j}, v{tmp+j}")
        A(f"v_pk_mul_f32 v[{g}:{g+1}], v[{g}:{g+1}], v[{u}:{u+1}]")
        A(f"v_pk_mul_f32 v[{g+2}:{g+3}], v[{g+2}:{g+3}], v[{u+2}:{u+3}]")
        A(f"v_pk_add_f32 v[{tmp}:{tmp+1}], v[{tmp}:{tmp+1}], 1.0 op_sel_hi:[1,0]")
        A(f"v_pk_add_f32 v[{tmp+2}:{tmp+3}], v[{tmp+2}:{tmp+3}], 1.0 op_sel_hi:[1,0]")
        for j in range(4): A(f"v_rcp_f32 v{tmp+j}, v{tmp+j}")
        A(f"v_pk_mul_f32 v[{g}:{g+1}], v[{g}:{g+1}], v[{tmp}:{tmp+1}]")
        A(f"v_pk_mul_f32 v[{g+2}:{g+3}], v[{g+2}:{g+3}], v[{tmp+2}:{tmp+3}]")
        A(f"v_cvt_pk_bf16_f32 v{dst}, v{g}, v{g+1}")
        A(f"v_cvt_pk_bf16_f32 v{dst+1}, v{g+2}, v{g+3}")
    nst = 0
    signalled = False
    def signal(n_after):
        A(f"s_waitcnt vmcnt({n_after})")
        A("s_barrier")
        A(f"s_cmp_eq_u32 s{sW}, 0")
        A("s_cbranch_scc0 G1_nosig")
        A(f"s_lshl_b32 s{sT}, s{sHD}, 2")
        A(f"v_mov_b32 v{vT+4}, s{sT}")
        A(f"v_mov_b32 v{vT+5}, 1")
        A("s_mov_b64 exec, 1")
        A(f"global_atomic_add v{vT+4}, v{vT+5}, s[12:13] sc1")
        A("s_mov_b64 exec, -1")
        A.label("G1_nosig")
    for p in range(3):
        for i in range(4):
            o = tq + 16 + 4 * ((p * 4 + i) % 2)
            swiglu_tile(2 * p, i, tq, o)
            swiglu_tile(2 * p + 1, i, tq + 8, o + 2)
            A(f"buffer_store_dwordx4 v[{o}:{o+3}], v{vX}, s[{sSH}:{sSH+3}], s{sCB} offen offset:{1024*i}")
            nst += 1
            if p == 0 and i == 2:
                signal(nst)
        A(f"s_add_u32 s{sCB}, s{sCB}, 0x20000")
    for i in range(4):
        o = tq + 16 + 4 * (i % 2)
        swiglu_tile(6, i, tq + 8 * (i % 2), o)
        A(f"buffer_store_dwordx2 v[{o}:{o+1}], v{vX}, s[{sSH}:{sSH+3}], s{sCL} offen offset:{1024*i}")
    stamp(A, 4)
    gb = acc[("g0", 0)].base
    pqb = gb
    for i in range(4):
        for dt in range(2):
            qa = acc[(f"q{dt}", i)].base
            src = tq + 8 * dt
            for j in range(4): A(f"v_accvgpr_read_b32 v{src+j}, a{qa+j}")
            phi_tile(src, src + 4, pqb + 4 * i + 2 * dt)
    A(f"""
    s_lshl_b32 s{sT}, s{sHD}, 2
    v_mov_b32 v{vT+4}, s{sT}
    s_mov_b32 s{sT+1}, 0
    """)
    A.label("G1_poll")
    A(f"""
    global_load_dword v{vT+5}, v{vT+4}, s[12:13] sc1
    s_add_u32 s{sT+1}, s{sT+1}, 1
    s_waitcnt vmcnt(0)
    v_readfirstlane_b32 s{sT+9}, v{vT+5}
    s_cmp_ge_u32 s{sT+9}, 8
    s_cbranch_scc1 G1_go
    s_sleep 2
    s_cmp_lt_u32 s{sT+1}, 0x40000
    s_cbranch_scc1 G1_poll
    """)
    A.label("G1_go")
    stamp(A, 5)
    lb = gb + 16
    A(f"s_mul_i32 s{sT}, s{sHD}, {8*6144}")
    for r in range(8):
        A(f"buffer_load_dwordx4 v[{lb+4*r}:{lb+4*r+3}], v{vT+2}, s[{sSK}:{sSK+3}], s{sT} offen sc1")
        A(f"s_add_u32 s{sT}, s{sT}, 6144")
    A(f"""
    s_lshl_b32 s{sT+2}, s{sW}, 10
    s_cmp_eq_u32 s{sW}, 3
    s_cselect_b32 s{sT+2}, 8, s{sT+2}
    s_add_u32 s{sT+2}, s{sT+2}, {G1_FIN}
    v_add_u32 v{vT+6}, s{sT+2}, v{vL16}
    v_add_u32 v{vT+7}, {G1_FIN}, v{vL16}
    s_cmp_lt_u32 s{sW}, 2
    s_cbranch_scc0 G1_kv2
    s_sub_u32 s{sT}, s{sT}, {8*6144-4096}
    """)
    for r in range(8):
        A(f"buffer_load_dwordx4 v[{lb+32+4*r}:{lb+32+4*r+3}], v{vT+2}, s[{sSK}:{sSK+3}], s{sT} offen sc1")
        A(f"s_add_u32 s{sT}, s{sT}, 6144")
    def sum8(b):
        sum4(b); sum4(b + 16)
        A(f"v_pk_add_f32 v[{b}:{b+1}], v[{b}:{b+1}], v[{b+16}:{b+17}]")
        A(f"v_pk_add_f32 v[{b+2}:{b+3}], v[{b+2}:{b+3}], v[{b+18}:{b+19}]")
        A(f"v_cvt_pk_bf16_f32 v{b}, v{b}, v{b+1}")
        A(f"v_cvt_pk_bf16_f32 v{b+1}, v{b+2}, v{b+3}")
    A("s_waitcnt vmcnt(0)")
    sum8(lb + 32)
    A(f"ds_write_b64 v{vT+6}, v[{lb+32}:{lb+33}] offset:{1024+8}")
    A.label("G1_kv2")
    A("s_waitcnt vmcnt(0)")
    sum8(lb)
    A(f"ds_write_b64 v{vT+6}, v[{lb}:{lb+1}]")
    A("s_waitcnt lgkmcnt(0)")
    A("s_barrier")
    fr = tb
    for et in range(3):
        A(f"ds_read_b128 v[{fr+4*et}:{fr+4*et+3}], v{vT+7} offset:{1024*et}")
    A(f"s_add_u32 s{sT}, s{sHD}, 112")
    A(f"s_lshl_b32 s{sT}, s{sT}, 17")
    A("s_waitcnt lgkmcnt(0)")
    ob = lb
    for i in range(4):
        for et in (2, 0, 1):
            d = ob + 12 * i + 4 * et
            A(f"v_mfma_f32_16x16x32_bf16 v[{d}:{d+3}], v[{fr+4*et}:{fr+4*et+3}], v[{pqb+4*i}:{pqb+4*i+3}], 0")
    A("s_nop 2")
    for i in range(4):
        d = ob + 12 * i
        A(f"v_add_f32 v{d+8}, s{sEPS}, v{d+8}")
    for i in range(4):
        d = ob + 12 * i
        A(f"v_rcp_f32 v{d+8}, v{d+8}")
    A("s_nop 3")
    for i in range(4):
        d = ob + 12 * i
        for q in range(4):
            A(f"v_pk_mul_f32 v[{d+2*q}:{d+2*q+1}], v[{d+2*q}:{d+2*q+1}], v[{d+8}:{d+9}] op_sel_hi:[1,0]")
        for q in range(4):
            A(f"v_cvt_pk_bf16_f32 v{d+q}, v{d+2*q}, v{d+2*q+1}")
        A(f"buffer_store_dwordx4 v[{d}:{d+3}], v{vX}, s[{sSH}:{sSH+3}], s{sT} offen offset:{1024*i}")
    stamp(A, 6)
    stamp_dump(A, 1, 14, 15, sW, 7)
    A.label("G1_end")
    A("s_endpgm")
    return A.text(), kd("g1_kernel", 512, 102, 256)

G2_LDS = 163840
def gen_g2():
    A = Asm(); head(A, "g2_kernel")
    vA, vA2, vB, vR, vL16 = 1, 2, [3, 4, 5, 6], [7, 8, 9, 10], 11
    vEW, vER, vXO = 12, 13, 14
    vT = 16
    BF = lambda s, j: Reg('v', 32 + 16 * s + 4 * j)
    vXD = 64
    vF = 80
    ACC = lambda i, j: Reg('a', 16 * i + 4 * j)
    AR = lambda s, i: Reg('a', 128 + 32 * s + 4 * i)
    sSA, sSB, sSX, sSO = 16, 20, 24, 28
    sW, sRT, sCT, sAo, sBo, sCnt, sMb = 32, 33, 34, 35, 36, 37, 38
    sT = 40
    A(f"""
    s_cmp_ge_u32 s2, 256
    s_cbranch_scc1 G2_end
    """)
    stamp_start(A)
    A(f"""
    s_load_dwordx2 s[4:5], s[0:1], 0
    s_load_dwordx2 s[6:7], s[0:1], 16
    s_load_dwordx4 s[8:11], s[0:1], 48
    s_load_dwordx2 s[12:13], s[0:1], 72
    v_lshrrev_b32 v{vT}, 6, v0
    v_and_b32 v0, 63, v0
    v_readfirstlane_b32 s{sW}, v{vT}
    s_and_b32 s{sT}, s2, 7
    s_lshr_b32 s{sT+1}, s2, 3
    s_lshr_b32 s{sRT}, s{sT}, 1
    s_lshl_b32 s{sRT}, s{sRT}, 2
    s_and_b32 s{sT+2}, s{sT+1}, 3
    s_add_u32 s{sRT}, s{sRT}, s{sT+2}
    s_and_b32 s{sCT}, s{sT}, 1
    s_lshl_b32 s{sCT}, s{sCT}, 3
    s_lshr_b32 s{sT+2}, s{sT+1}, 2
    s_add_u32 s{sCT}, s{sCT}, s{sT+2}
    v_lshlrev_b32 v{vL16}, 4, v0
    s_lshl_b32 s{sT}, s{sRT}, 13
    v_add_u32 v{vA}, s{sT}, v{vL16}
    v_add_u32 v{vA2}, 0x1000, v{vA}
    """)
    A(f"""
    v_lshrrev_b32 v{vT}, 3, v0
    v_bfe_u32 v{vT+1}, v0, 1, 2
    v_bfe_u32 v{vT+2}, v0, 4, 2
    v_xor_b32 v{vT+1}, v{vT+1}, v{vT+2}
    v_lshlrev_b32 v{vT}, 11, v{vT}
    v_lshl_add_u32 v{vT}, v{vT+1}, 5, v{vT}
    v_and_b32 v{vT+1}, 1, v0
    v_lshl_add_u32 v{vT}, v{vT+1}, 4, v{vT}
    s_lshl_b32 s{sT}, s{sCT}, 7
    v_add_u32 v{vB[0]}, s{sT}, v{vT}
    v_add_u32 v{vB[1]}, {16384-1024}, v{vB[0]}
    v_add_u32 v{vB[2]}, {2*(16384-1024)}, v{vB[0]}
    v_add_u32 v{vB[3]}, {3*(16384-1024)}, v{vB[0]}
    s_mul_i32 s{sT}, s{sW}, 36
    s_lshl_b32 s{sAo}, s{sT}, 17
    s_lshl_b32 s{sBo}, s{sT}, 16
    s_lshl_b32 s{sMb}, s{sW}, 15
    s_waitcnt lgkmcnt(0)
    """)
    srd(A, sSA, 12, 13, HF_SIZE, HF_OFF)
    srd(A, sSB, 8, 9, 3584 * 2048)
    def bdma(slot):
        r = [f"s_add_u32 m0, s{sMb}, 0x{4096*slot + 0:x}" if slot else f"s_mov_b32 m0, s{sMb}"]
        for b in range(4):
            r.append(f"buffer_load_dwordx4 v{vB[b]}, s[{sSB}:{sSB+3}], s{sBo} offen offset:{1024*b} lds")
        return r
    def aload(s, i):
        return f"buffer_load_dwordx4 {AR(s, i)}, v{vA if i < 4 else vA2}, s[{sSA}:{sSA+3}], s{sAo} offen offset:{1024*(i%4)}"
    for n in range(4):
        d = bdma(n)
        A(d[0]); A("s_nop 0")
        for l in d[1:]: A(l)
        for i in range(8): A(aload(n, i))
        A(f"s_add_u32 s{sAo}, s{sAo}, 0x20000")
        A(f"s_add_u32 s{sBo}, s{sBo}, 0x10000")
    A(f"""
    s_cmp_eq_u32 s{sW}, 3
    s_cselect_b32 s{sSB}, s6, s{sSB}
    s_cselect_b32 s{sSB+1}, s7, s{sSB+1}
    s_cselect_b32 s{sSB+2}, {1024*2048}, s{sSB+2}
    s_cselect_b32 s{sBo}, 0, s{sBo}
    """)
    NPF = code_prefetch(A, "g2", 1, sT + 8, sW, 0, vT + 8, vT + 9)
    srd(A, sSX, 4, 5, 0x400000)
    srd(A, sSO, 10, 11, 0x400000)
    A(f"""
    v_bfe_u32 v{vT}, v0, 2, 3
    v_lshrrev_b32 v{vT+1}, 5, v0
    v_lshlrev_b32 v{vT+1}, 10, v{vT+1}
    v_lshl_add_u32 v{vT+1}, v{vT}, 7, v{vT+1}
    v_and_b32 v{vT+2}, 3, v0
    v_lshl_add_u32 v{vT+1}, v{vT+2}, 3, v{vT+1}
    v_lshrrev_b32 v{vT}, 1, v{vT}
    v_lshl_add_u32 v{vT+1}, v{vT}, 5, v{vT+1}
    v_add_u32 v{vR[0]}, s{sMb}, v{vT+1}
    v_xor_b32 v{vR[1]}, 32, v{vR[0]}
    v_xor_b32 v{vR[2]}, 64, v{vR[0]}
    v_xor_b32 v{vR[3]}, 0x60, v{vR[0]}
    """)
    vEWj = [24 + 4, 24 + 5, 24 + 6, 24 + 7]
    A(f"""
    v_and_b32 v{vT}, 15, v0
    v_lshrrev_b32 v{vT+1}, 5, v0
    v_lshlrev_b32 v{vT+1}, 1, v{vT+1}
    v_xor_b32 v{vT}, v{vT}, v{vT+1}
    v_lshrrev_b32 v{vT+1}, 4, v0
    v_lshlrev_b32 v{vT+1}, 8, v{vT+1}
    v_lshl_add_u32 v{vEWj[0]}, v{vT}, 4, v{vT+1}
    v_xor_b32 v{vEWj[1]}, 64, v{vEWj[0]}
    v_xor_b32 v{vEWj[2]}, 0x80, v{vEWj[0]}
    v_xor_b32 v{vEWj[3]}, 0xc0, v{vEWj[0]}
    """)
    A(f"""
    v_lshrrev_b32 v{vT}, 3, v0
    v_and_b32 v{vT+1}, 7, v0
    v_lshlrev_b32 v{vT+2}, 1, v{vT+1}
    v_xor_b32 v{vT+2}, v{vT}, v{vT+2}
    v_lshlrev_b32 v{vT+2}, 4, v{vT+2}
    v_lshl_add_u32 v{vT+2}, v{vT+1}, 9, v{vT+2}
    s_lshl_b32 s{sT}, s{sW}, 13
    v_add_u32 v{vER}, s{sT}, v{vT+2}
    v_xor_b32 v{vEW}, 0x80, v{vER}
    v_lshlrev_b32 v{vT}, 11, v{vT}
    v_lshl_add_u32 v{vT}, v{vT+1}, 4, v{vT}
    s_lshl_b32 s{sT}, s{sRT}, 18
    s_lshl_b32 s{sT+1}, s{sW}, 16
    s_add_u32 s{sT}, s{sT}, s{sT+1}
    s_lshl_b32 s{sT+1}, s{sCT}, 7
    s_add_u32 s{sT}, s{sT}, s{sT+1}
    v_add_u32 v{vXO}, s{sT}, v{vT}
    s_mov_b32 s{sCnt}, 0
    """)
    vER2 = vEW
    for r in range(128):
        A(f"v_accvgpr_write_b32 a{r}, 0")
    def bread(slot, s, j, a):
        return f"ds_read_b64_tr_b16 {BF(s, j).sub(2*a, 2)}, v{vR[j]} offset:{4096*slot + 2048*a}"
    A(f"s_waitcnt vmcnt({8 + 36 + NPF})")
    stamp(A, 1)
    for j in range(4):
        for a in range(2): A(bread(0, 0, j, a))
    def dump_acc(base_off, addr_add):
        for i in range(8):
            for j in range(4):
                A(f"ds_write_b128 v{vT+j}, {ACC(i, j)} offset:{4096*i + 1024*j}")
    A.label("G2_loop")
    for n in range(4):
        A.comment(f"iter {n}")
        A("s_waitcnt vmcnt(32) lgkmcnt(0)")
        d = bdma(n)
        A(d[0])
        k = 0
        for i in range(8):
            for j in range(4):
                A(f"v_mfma_f32_16x16x32_bf16 {ACC(i, j)}, {BF(n % 2, j)}, {AR(n, i)}, {ACC(i, j)}")
                if i == 0: A(d[1 + j])
                elif i in (1, 2): A(bread((n + 1) % 4, (n + 1) % 2, 2 * (i - 1) + j // 2, j % 2))
                if j == 3: A(aload(n, i))
        A(f"s_add_u32 s{sAo}, s{sAo}, 0x20000")
        A(f"s_add_u32 s{sBo}, s{sBo}, 0x10000")
    A(f"""
    s_add_u32 s{sCnt}, s{sCnt}, 1
    s_cmp_eq_u32 s{sCnt}, 8
    s_cselect_b32 s{sSA+2}, 0, s{sSA+2}
    s_cselect_b32 s{sSB+2}, 0, s{sSB+2}
    s_lshl_b32 s{sT}, s{sCnt}, 2
    s_add_u32 s{sT}, s{sT}, s{sW}
    s_cmp_eq_u32 s{sT}, 7
    s_cbranch_scc0 G2_noswitch
    """)
    for j in range(4): A(f"v_add_u32 v{vT+j}, 0x20000, v{vEWj[j]}")
    A("s_nop 4")
    dump_acc(0, 0)
    A("s_waitcnt lgkmcnt(0)")
    for r in range(128):
        A(f"v_accvgpr_write_b32 a{r}, 0")
    A.label("G2_noswitch")
    A(f"s_cmp_lt_u32 s{sCnt}, 9")
    A("s_cbranch_scc1 G2_loop")
    stamp(A, 2)
    for rg in range(4):
        A(f"s_mov_b32 s{sT+rg}, {rg*8*2048}")
    for rg in range(4):
        A(f"buffer_load_dwordx4 v[{vXD+4*rg}:{vXD+4*rg+3}], v{vXO}, s[{sSX}:{sSX+3}], s{sT+rg} offen")
    for j in range(4): A(f"v_add_u32 v{vT+j}, s{sMb}, v{vEWj[j]}")
    A("s_waitcnt vmcnt(4) lgkmcnt(0)")
    dump_acc(0, 0)
    sNL = sT + 4
    A(f"s_mov_b32 s{sNL}, 0x{f2u(-LOG2E):x}")
    A(f"s_mov_b32 s{sNL+1}, 0x{f2u(-LOG2E):x}")
    A(f"v_add_u32 v{vT+4}, 0x10000, v{vER}")
    A(f"v_add_u32 v{vT+5}, 0x10000, v{vER2}")
    A(f"v_add_u32 v{vT+6}, 0x20000, v{vER}")
    A(f"v_add_u32 v{vT+7}, 0x20000, v{vER2}")
    A("s_waitcnt lgkmcnt(0)")
    A("s_barrier")
    stamp(A, 3)
    def fin_reads(rg, base):
        lo = rg & 1; toff = 4096 * (rg >> 1)
        a01 = vER2 if lo else vER; a23 = vT + 5 if lo else vT + 4; a4 = vT + 7 if lo else vT + 6
        srcs = [(a01, 0), (a01, 32768), (a23, 0), (a4, 0), (a23, 32768)]
        for si, (ad, off) in enumerate(srcs):
            for b in range(2):
                r = base + 8 * si + 4 * b
                A(f"ds_read_b128 v[{r}:{r+3}], v{ad} offset:{off + toff + 256*b}")
    bases = [vF, vF + 40]
    fin_reads(0, bases[0])
    for rg in range(4):
        b = bases[rg % 2]
        if rg < 3:
            fin_reads(rg + 1, bases[(rg + 1) % 2])
            A("s_waitcnt lgkmcnt(10)")
        else:
            A("s_waitcnt lgkmcnt(0)")
        for q in range(4):
            A(f"v_pk_add_f32 v[{b+2*q}:{b+2*q+1}], v[{b+2*q}:{b+2*q+1}], v[{b+8+2*q}:{b+8+2*q+1}]")
        for q in range(4):
            A(f"v_pk_add_f32 v[{b+16+2*q}:{b+16+2*q+1}], v[{b+16+2*q}:{b+16+2*q+1}], v[{b+24+2*q}:{b+24+2*q+1}]")
        for q in range(4):
            A(f"v_pk_add_f32 v[{b+2*q}:{b+2*q+1}], v[{b+2*q}:{b+2*q+1}], v[{b+16+2*q}:{b+16+2*q+1}]")
        for q in range(4):
            A(f"v_pk_mul_f32 v[{b+8+2*q}:{b+8+2*q+1}], v[{b+2*q}:{b+2*q+1}], s[{sNL}:{sNL+1}]")
        for q in range(8): A(f"v_exp_f32 v{b+8+q}, v{b+8+q}")
        for q in range(4):
            A(f"v_pk_mul_f32 v[{b+2*q}:{b+2*q+1}], v[{b+2*q}:{b+2*q+1}], v[{b+32+2*q}:{b+32+2*q+1}]")
        for q in range(4):
            A(f"v_pk_add_f32 v[{b+8+2*q}:{b+8+2*q+1}], v[{b+8+2*q}:{b+8+2*q+1}], 1.0 op_sel_hi:[1,0]")
        for q in range(8): A(f"v_rcp_f32 v{b+8+q}, v{b+8+q}")
        if rg == 0: A("s_waitcnt vmcnt(0)")
        for q in range(4):
            x = vXD + 4 * rg + q
            A(f"v_lshlrev_b32 v{b+16+2*q}, 16, v{x}")
            A(f"v_and_b32 v{b+17+2*q}, 0xffff0000, v{x}")
        for q in range(4):
            A(f"v_pk_fma_f32 v[{b+2*q}:{b+2*q+1}], v[{b+2*q}:{b+2*q+1}], v[{b+8+2*q}:{b+8+2*q+1}], v[{b+16+2*q}:{b+16+2*q+1}]")
        for q in range(4):
            A(f"v_cvt_pk_bf16_f32 v{vXD+4*rg+q}, v{b+2*q}, v{b+2*q+1}")
        A(f"buffer_store_dwordx4 v[{vXD+4*rg}:{vXD+4*rg+3}], v{vXO}, s[{sSO}:{sSO+3}], s{sT+rg} offen")
    stamp(A, 4)
    stamp_dump(A, 2, 12, 13, sW, 5)
    A.label("G2_end")
    A("s_endpgm")
    return A.text(), kd("g2_kernel", 416, 102, 160)

def build():
    hdr = open("recurrent_scan__linear_attn_block__swiglu_ffn__prompt.s.ref").read().split("; Override")[0]
    out = [hdr.rstrip("\n")]
    out.append(";   ln_kernel: layernorm -> xn fragments;  g1_kernel: qkv/gate/up GEMM + linear attention + swiglu;")
    out.append("; @launch kernel=ln_kernel grid=(256,1,1) block=(256,1,1) lds=1024")
    out.append(f"; @launch kernel=g1_kernel grid=(256,1,1) block=(256,1,1) lds={G1_LDS}")
    out.append(f"; @launch kernel=g2_kernel grid=(256,1,1) block=(256,1,1) lds={G2_LDS}")
    out.append('.amdgcn_target "amdgcn-amd-amdhsa--gfx950"')
    out.append(".text")
    for g in (gen_ln, gen_g1, gen_g2):
        body, desc = g()
        body, size = align_kernel(body)
        pr = check_hazards(body)
        for p in pr: print("HAZARD", g.__name__, p, file=sys.stderr)
        print(g.__name__, "code bytes", size, file=sys.stderr)
        out.append(body.rstrip("\n"))
        out.append(desc.rstrip("\n"))
    out.append(".p2align 8")
    out.append(".fill 8192, 4, 0xbf810000")
    return "\n".join(out) + "\n"

if __name__ == "__main__":
    for a in sys.argv[2:]:
        k, v = a.split("="); OPT[k] = int(v)
    open(sys.argv[1], "w").write(build())
```

```python
import sys, struct
from asmlib import *

XF_OFF = 0x0
HF_OFF = 0x400000
HF_SIZE = 144 * 131072
KVP_OFF = 0x1600000
KVP_SIZE = 32 * 8 * 6144
PQ_OFF = 0x1800000
WT_OFF = 0x1C00000
WT_SIZE = 144 * 65536
STAMP_OFF = 0x3000000

def f2u(x): return struct.unpack("<I", struct.pack("<f", x))[0]
LOG2E = 1.4426950408889634

OPT = dict(stamp=0, align=1, g2x=0, g1x=0, trip=0, ln_touch=256, touch=1, hst=1, g2lr=2, asc=1)

def kd(name, vgpr, sgpr, accum):
    return f""".section .rodata,"a"
.p2align 6
.amdhsa_kernel {name}
  .amdhsa_next_free_vgpr {vgpr}
  .amdhsa_next_free_sgpr {sgpr}
  .amdhsa_accum_offset {accum}
  .amdhsa_group_segment_fixed_size 0
  .amdhsa_kernarg_size 80
  .amdhsa_user_sgpr_count 2
  .amdhsa_user_sgpr_kernarg_segment_ptr 1
  .amdhsa_system_sgpr_workgroup_id_x 1
.end_amdhsa_kernel
.text
"""

def head(A, name):
    A.raw(f".globl {name}\n.p2align 8\n.type {name},@function\n{name}:")
    if OPT["align"]: A.raw("    ; @align on")

def srd(A, d, lo, hi, size, off=0):
    if off:
        A(f"s_add_u32 s{d}, s{lo}, 0x{off:x}")
        A(f"s_addc_u32 s{d+1}, s{hi}, 0")
    else:
        A(f"s_mov_b32 s{d}, s{lo}")
        A(f"s_mov_b32 s{d+1}, s{hi}")
    A(f"s_mov_b32 s{d+2}, 0x{size:x}")
    A(f"s_mov_b32 s{d+3}, 0x00020000")

def stamp(A, idx, mode=1):
    if idx and OPT["stamp"] != mode: return
    if not OPT["stamp"]: return
    A(f"s_memtime s[100:101]")
    A("s_waitcnt lgkmcnt(0)")
    A(f"s_mov_b32 s{90+idx}, s100")

def stamp_dump(A, kidx, ws_lo, ws_hi, swave, n):
    if not OPT["stamp"]: return
    A("s_memrealtime s[100:101]")
    A("s_waitcnt lgkmcnt(0)")
    srd(A, 16, ws_lo, ws_hi, 0x10000, STAMP_OFF + kidx * 0x10000)
    A(f"s_lshl_b32 s99, s2, 2")
    A(f"s_add_u32 s99, s99, s{swave}")
    A(f"s_lshl_b32 s99, s99, 6")
    A(f"v_mov_b32 v0, s99")
    for i in range(n):
        A(f"v_mov_b32 v1, s{90+i}")
        A(f"buffer_store_dword v1, v0, s[16:19], 0 offen offset:{4*i}")
    A(f"s_getreg_b32 s99, hwreg(HW_REG_XCC_ID)")
    A(f"v_mov_b32 v1, s99")
    A(f"buffer_store_dword v1, v0, s[16:19], 0 offen offset:{4*13}")
    A(f"v_mov_b32 v1, s100")
    A(f"buffer_store_dword v1, v0, s[16:19], 0 offen offset:{4*14}")
    A(f"v_mov_b32 v1, s98")
    A(f"buffer_store_dword v1, v0, s[16:19], 0 offen offset:{4*15}")

def stamp_start(A):
    if not OPT["stamp"]: return
    A("s_memrealtime s[100:101]")
    A("s_waitcnt lgkmcnt(0)")
    A("s_mov_b32 s98, s100")
    stamp(A, 0)

def gen_ln():
    A = Asm(); head(A, "ln_kernel")
    A("""
    s_cmp_ge_u32 s2, 256
    s_cbranch_scc1 LN_end
    s_load_dwordx2 s[4:5], s[0:1], 0
    s_load_dwordx2 s[6:7], s[0:1], 72
    s_load_dwordx2 s[24:25], s[0:1], 8
    s_load_dwordx4 s[28:31], s[0:1], 32
    v_and_b32 v1, 63, v0
    v_lshrrev_b32 v2, 6, v0
    v_and_b32 v3, 7, v0
    v_lshrrev_b32 v4, 3, v1
    s_lshl_b32 s3, s2, 14
    v_lshlrev_b32 v5, 11, v3
    v_lshl_add_u32 v5, v2, 9, v5
    v_lshl_add_u32 v5, v4, 4, v5
    v_add_u32 v5, s3, v5
    s_waitcnt lgkmcnt(0)
    """)
    srd(A, 8, 4, 5, 0x400000)
    srd(A, 12, 6, 7, 0x400000, XF_OFF)
    for n in range(4):
        A(f"buffer_load_dwordx4 v[{8+4*n}:{11+4*n}], v5, s[8:11], 0 offen offset:{128*n}")
    NT = 0
    if OPT["ln_touch"]:
        R = OPT["ln_touch"]
        A("s_lshl_b32 s18, s2, 13")
        A("v_lshlrev_b32 v86, 11, v2")
        A("v_lshl_add_u32 v86, v1, 6, v86")
        A("v_add_u32 v86, s18, v86")
        A("v_lshrrev_b32 v85, 5, v1")
        A("v_lshl_add_u32 v86, v85, 30, v86")
        srd(A, 32, 24, 25, R * 6144)
        srd(A, 36, 28, 29, R * 7168)
        srd(A, 40, 30, 31, R * 7168)
        for d in (32, 36, 40):
            A(f"buffer_load_dword v87, v86, s[{d}:{d+3}], 0 offen")
            NT += 1
        A("s_getpc_b64 s[44:45]")
        A.label("LN_pc")
        A("s_add_u32 s44, s44, g1_kernel-LN_pc")
        A("s_addc_u32 s45, s45, 0")
        A("v_lshlrev_b32 v85, 6, v0")
        A("global_load_dword v87, v85, s[44:45]")
        NT += 1
    A("""
    s_lshr_b32 s16, s2, 1
    s_lshl_b32 s16, s16, 10
    s_and_b32 s17, s2, 1
    s_lshl_b32 s17, s17, 7
    s_add_u32 s16, s16, s17
    v_lshrrev_b32 v6, 2, v4
    v_lshl_add_u32 v6, v2, 3, v6
    v_lshlrev_b32 v6, 17, v6
    v_and_b32 v7, 3, v4
    v_lshl_add_u32 v6, v7, 8, v6
    v_lshl_add_u32 v6, v3, 4, v6
    v_add_u32 v6, s16, v6
    """)
    A("""
    v_lshlrev_b32 v57, 6, v3
    v_lshrrev_b32 v56, 4, v0
    v_lshl_add_u32 v56, v56, 2, v57
    """)
    for n in range(4):
        A(f"s_waitcnt vmcnt({3-n+NT})")
        for q in range(4):
            s = 8 + 4 * n + q; d = 24 + 8 * n + 2 * q
            A(f"v_lshlrev_b32 v{d}, 16, v{s}")
            A(f"v_and_b32 v{d+1}, 0xffff0000, v{s}")
    A("v_pk_add_f32 v[58:59], v[24:25], v[26:27]")
    A("v_pk_add_f32 v[60:61], v[28:29], v[30:31]")
    for q in range(4, 16, 2):
        A(f"v_pk_add_f32 v[58:59], v[58:59], v[{24+2*q}:{25+2*q}]")
        A(f"v_pk_add_f32 v[60:61], v[60:61], v[{26+2*q}:{27+2*q}]")
    def finish_reduce(ldsoff):
        A(f"""
        v_pk_add_f32 v[58:59], v[58:59], v[60:61]
        v_add_f32 v58, v58, v59
        s_nop 1
        v_add_f32_dpp v58, v58, v58 row_ror:8 row_mask:0xf bank_mask:0xf
        ds_write_b32 v56, v58 offset:{ldsoff}
        s_waitcnt lgkmcnt(0)
        s_barrier
        ds_read_b128 v[64:67], v57 offset:{ldsoff}
        ds_read_b128 v[68:71], v57 offset:{ldsoff+16}
        ds_read_b128 v[72:75], v57 offset:{ldsoff+32}
        ds_read_b128 v[76:79], v57 offset:{ldsoff+48}
        s_waitcnt lgkmcnt(0)
        v_pk_add_f32 v[64:65], v[64:65], v[66:67]
        v_pk_add_f32 v[68:69], v[68:69], v[70:71]
        v_pk_add_f32 v[72:73], v[72:73], v[74:75]
        v_pk_add_f32 v[76:77], v[76:77], v[78:79]
        v_pk_add_f32 v[64:65], v[64:65], v[68:69]
        v_pk_add_f32 v[72:73], v[72:73], v[76:77]
        v_pk_add_f32 v[64:65], v[64:65], v[72:73]
        v_add_f32 v64, v64, v65
        v_mul_f32 v64, 0x{f2u(1.0/1024):x}, v64
        """)
    finish_reduce(0)
    A("""
    v_sub_f32 v62, 0, v64
    v_cvt_pk_bf16_f32 v80, v64, v64
    v_mov_b32 v63, v62
    v_lshlrev_b32 v80, 16, v80
    v_mov_b32 v58, 0
    v_mov_b32 v59, 0
    v_mov_b32 v60, 0
    v_mov_b32 v61, 0
    """)
    for q in range(0, 16, 2):
        A(f"v_pk_add_f32 v[82:83], v[{24+2*q}:{25+2*q}], v[62:63]")
        A(f"v_pk_add_f32 v[84:85], v[{26+2*q}:{27+2*q}], v[62:63]")
        A(f"v_pk_fma_f32 v[58:59], v[82:83], v[82:83], v[58:59]")
        A(f"v_pk_fma_f32 v[60:61], v[84:85], v[84:85], v[60:61]")
    finish_reduce(512)
    A(f"""
    v_cvt_pk_bf16_f32 v64, v64, v64
    v_lshlrev_b32 v64, 16, v64
    v_add_f32 v64, 0x{f2u(1e-5):x}, v64
    v_cvt_pk_bf16_f32 v64, v64, v64
    v_lshlrev_b32 v64, 16, v64
    v_sqrt_f32 v64, v64
    s_nop 0
    v_cvt_pk_bf16_f32 v64, v64, v64
    v_lshlrev_b32 v64, 16, v64
    v_rcp_f32 v64, v64
    v_sub_f32 v62, 0, v80
    v_mov_b32 v63, v62
    v_mov_b32 v65, v64
    s_mov_b32 s20, 0
    """)
    for n in range(4):
        for q in range(4):
            d = 24 + 8 * n + 2 * q; o = 8 + 4 * n + q
            A(f"v_pk_add_f32 v[{d}:{d+1}], v[{d}:{d+1}], v[62:63]")
            A(f"v_cvt_pk_bf16_f32 v{o}, v{d}, v{d+1}")
            A(f"v_lshlrev_b32 v{d}, 16, v{o}")
            A(f"v_and_b32 v{d+1}, 0xffff0000, v{o}")
            A(f"v_pk_mul_f32 v[{d}:{d+1}], v[{d}:{d+1}], v[64:65]")
            A(f"v_cvt_pk_bf16_f32 v{o}, v{d}, v{d+1}")
        A(f"buffer_store_dwordx4 v[{8+4*n}:{11+4*n}], v6, s[12:15], s20 offen")
        A(f"s_add_u32 s20, s20, 0x40000")
    A.label("LN_end")
    A("s_endpgm")
    return A.text(), kd("ln_kernel", 88, 48, 88)

G1_S = 5
G1_SLOT = 20480
G1_KVL = G1_S * G1_SLOT
G1_LDS = G1_KVL + 24576 + 2048

def code_prefetch(A, kname, nkb_per_wave, sT, sW, vlane, vtmp, vdst):
    A(f"s_getpc_b64 s[{sT}:{sT+1}]")
    A(f"s_and_b32 s{sT}, s{sT}, 0xffffff00")
    A(f"s_mul_i32 s{sT+2}, s{sW}, {4096*nkb_per_wave}")
    A(f"v_lshlrev_b32 v{vtmp}, 6, v{vlane}")
    A(f"v_add_u32 v{vtmp}, s{sT+2}, v{vtmp}")
    n = 0
    for j in range(nkb_per_wave):
        if j: A(f"v_add_u32 v{vtmp}, 0x1000, v{vtmp}")
        A(f"global_load_dword v{vdst}, v{vtmp}, s[{sT}:{sT+1}]")
        n += 1
    return n

def gen_g1():
    A = Asm(); head(A, "g1_kernel")
    HST = ["", " sc1", " nt", " sc0 sc1"][OPT["hst"]]
    vX, vD, vA0, vA1, vAG, vB0, vB1, vBG, vL16 = 1, [2, 3, 4, 5, 6], 7, 8, 9, 10, 11, 12, 13
    vT = 14
    names = ["k0", "k1", "v0", "v1", "q0", "q1"]
    for t in range(7): names += [f"g{t}", f"u{t}"]
    acc = {}
    nv = 24; na = 0
    for nm in ["k0", "k1", "v0", "v1"] + [f"g{t}" for t in range(7)]:
        for i in range(4):
            acc[(nm, i)] = Reg('v', nv); nv += 4
    for t in range(7):
        for i in range(4):
            if t * 4 + i < 14:
                acc[(f"u{t}", i)] = Reg('v', nv); nv += 4
            else:
                acc[(f"u{t}", i)] = Reg('a', na); na += 4
    for nm in ["q0", "q1"]:
        for i in range(4):
            acc[(nm, i)] = Reg('a', na); na += 4
    assert nv == 256 and na == 88
    XR = lambda s, i: Reg('a', 88 + 16 * s + 4 * i)
    WR = lambda p: Reg('a', 152 + 4 * p)
    PT = lambda t: Reg('a', 184 + 4 * t)
    sSX, sSD, sSH, sSK = 16, [20, 24, 28, 32, 36], 40, 44
    sW, sHD, sRB, sXo, sWoA, sWoB, sStA, sStB, sM, sR, sCnt = 48, 49, 50, 51, 52, 53, 54, 55, 56, 57, 58
    sSLOT, sREND, sMEND, sM0 = 59, 60, 61, 62
    sT = 64
    A(f"""
    s_cmp_ge_u32 s2, 256
    s_cbranch_scc1 G1_end
    """)
    stamp_start(A)
    A(f"""
    s_load_dwordx2 s[4:5], s[0:1], 8
    s_load_dwordx4 s[8:11], s[0:1], 32
    s_load_dwordx4 s[12:15], s[0:1], 64
    s_load_dwordx2 s[84:85], s[0:1], 16
    s_load_dwordx2 s[86:87], s[0:1], 48
    v_lshrrev_b32 v{vT}, 6, v0
    v_and_b32 v0, 63, v0
    v_readfirstlane_b32 s{sW}, v{vT}
    s_and_b32 s{sT}, s2, 7
    s_lshr_b32 s{sT+1}, s2, 3
    s_and_b32 s{sRB}, s{sT+1}, 7
    s_lshr_b32 s{sT+1}, s{sT+1}, 3
    s_lshl_b32 s{sHD}, s{sT}, 2
    s_add_u32 s{sHD}, s{sHD}, s{sT+1}
    v_lshlrev_b32 v{vL16}, 4, v0
    """)
    A(f"""
    s_lshl_b32 s{sT}, s{sRB}, 14
    s_lshl_b32 s{sT+1}, s{sW}, 12
    s_add_u32 s{sT}, s{sT}, s{sT+1}
    v_add_u32 v{vX}, s{sT}, v{vL16}
    """)
    A(f"""
    v_lshrrev_b32 v{vT}, 4, v0
    v_bfe_u32 v{vT+1}, v0, 2, 2
    v_lshl_add_u32 v{vT+2}, v{vT}, 3, v{vT+1}
    v_mul_u32_u24 v{vT+2}, 6144, v{vT+2}
    v_bfe_u32 v{vT+3}, v0, 1, 1
    v_and_b32 v{vT+4}, 1, v{vT}
    v_xor_b32 v{vT+3}, v{vT+3}, v{vT+4}
    v_lshl_add_u32 v{vT+2}, v{vT+3}, 5, v{vT+2}
    v_and_b32 v{vT+3}, 1, v0
    v_lshl_add_u32 v{vT+2}, v{vT+3}, 4, v{vT+2}
    s_mul_i32 s{sT+2}, s{sW}, 5
    s_and_b32 s{sT+3}, s{sHD}, 1
    s_lshl_b32 s{sT+3}, s{sT+3}, 1
    s_mul_i32 s{sT+4}, s{sHD}, 224
    s_waitcnt lgkmcnt(0)
    """)
    stamp(A, 1, 2)
    srd(A, sSX, 14, 15, 0x400000, XF_OFF)
    def dma(i):
        return [f"s_add_u32 m0, s{sM}, 0x{1024*(i+1):x}",
                f"buffer_load_dwordx4 v{vD[i]}, s[{sSD[i]}:{sSD[i]+3}], s{sWoA if i == 0 else sWoB} offen lds"]
    def xload(s, i):
        return f"buffer_load_dwordx4 {XR(s, i)}, v{vX}, s[{sSX}:{sSX+3}], s{sXo} offen offset:{1024*i}"
    A(f"""
    s_mov_b32 s{sXo}, 0
    s_mul_i32 s{sM0}, s{sW}, 5120
    s_sub_u32 s{sM0}, s{sM0}, 1024
    s_mov_b32 s{sM}, s{sM0}
    s_mov_b32 s{sWoA}, 0
    s_mov_b32 s{sWoB}, 0
    s_mov_b32 s{sSLOT}, {G1_SLOT}
    """)
    for i in range(4): A(xload(0, i))
    A(f"s_add_u32 s{sXo}, s{sXo}, 0x20000")
    for i in range(5):
        d = sSD[i]
        A(f"""
        s_add_u32 s{sT+5}, s{sT+2}, {i}
        s_cmp_lt_u32 s{sT+5}, 6
        s_cbranch_scc0 G1_gu{i}
        s_lshr_b32 s{sT+6}, s{sT+5}, 1
        s_lshl_b32 s{sT+6}, s{sT+6}, 11
        s_and_b32 s{sT+7}, s{sT+5}, 1
        s_mul_i32 s{sT+7}, s{sT+7}, 24576
        s_add_u32 s{sT+6}, s{sT+6}, s{sT+7}
        s_lshl_b32 s{sT+7}, s{sHD}, 6
        s_add_u32 s{sT+6}, s{sT+6}, s{sT+7}
        v_add_u32 v{vD[i]}, s{sT+6}, v{vT+2}
        s_mov_b32 s{d}, s4
        s_mov_b32 s{d+1}, s5
        s_mov_b32 s{d+2}, {1024*6144}
        s_mov_b32 s{sStA if i == 0 else sStB}, {32*6144}
        s_branch G1_dn{i}
        """)
        A.label(f"G1_gu{i}")
        A(f"""
        s_sub_u32 s{sT+6}, s{sT+5}, 6
        s_sub_u32 s{sT+7}, s{sT+5}, 13
        s_cmp_lt_u32 s{sT+5}, 13
        s_cselect_b32 s{sT+6}, s{sT+6}, s{sT+7}
        s_cselect_b32 s{d}, s8, s10
        s_cselect_b32 s{d+1}, s9, s11
        s_mov_b32 s{d+2}, {1024*7168}
        s_mov_b32 s{sStA if i == 0 else sStB}, {32*7168}
        s_lshl_b32 s{sT+6}, s{sT+6}, 6
        v_add_u32 v{vT+3}, s{sT+6}, v0
        v_mul_u32_u24 v{vT+4}, 4682, v{vT+3}
        v_lshrrev_b32 v{vT+4}, 16, v{vT+4}
        v_mul_u32_u24 v{vT+5}, 14, v{vT+4}
        v_sub_u32 v{vT+5}, v{vT+3}, v{vT+5}
        v_add_u32 v{vT+5}, s{sT+3}, v{vT+5}
        v_subrev_u32 v{vT+6}, 14, v{vT+5}
        v_min_u32 v{vT+5}, v{vT+5}, v{vT+6}
        v_bfe_u32 v{vT+6}, v{vT+4}, 2, 2
        v_lshrrev_b32 v{vT+7}, 4, v{vT+4}
        v_and_b32 v{vT+4}, 3, v{vT+4}
        v_lshl_add_u32 v{vT+4}, v{vT+6}, 3, v{vT+4}
        v_lshl_add_u32 v{vT+4}, v{vT+7}, 2, v{vT+4}
        v_mul_u32_u24 v{vT+4}, 7168, v{vT+4}
        v_lshl_add_u32 v{vT+4}, v{vT+5}, 4, v{vT+4}
        v_add_u32 v{vD[i]}, s{sT+4}, v{vT+4}
        """)
        A.label(f"G1_dn{i}")
        m, l = dma(i)
        A(m)
        A(f"s_mov_b32 s{d+3}, 0x00020000")
        A(l)
    stamp(A, 2, 2)
    later = []
    for t in range(1, 4):
        adv = [f"s_add_u32 s{sM}, s{sM}, s{sSLOT}", f"s_add_u32 s{sWoA}, s{sWoA}, s{sStA}", f"s_add_u32 s{sWoB}, s{sWoB}, s{sStB}"]
        if t < 3:
            for i in range(4):
                later.append([xload(t, i)] + ([f"s_add_u32 s{sXo}, s{sXo}, 0x20000"] if i == 3 else []))
        for i in range(5):
            m, l = dma(i)
            later.append((adv if i == 0 else []) + [m, "s_nop 0", l])
    B = Asm()
    B(f"""
    v_lshrrev_b32 v{vT+3}, 2, v0
    v_and_b32 v{vT+4}, 3, v0
    v_lshlrev_b32 v{vT+4}, 3, v{vT+4}
    v_lshl_add_u32 v{vB0}, v{vT+3}, 6, v{vT+4}
    v_and_b32 v{vT+5}, 1, v{vT}
    v_lshl_add_u32 v{vB0}, v{vT+5}, 5, v{vB0}
    v_xor_b32 v{vB1}, 32, v{vB0}
    v_mul_u32_u24 v{vBG}, 224, v{vT+3}
    v_add_u32 v{vBG}, v{vBG}, v{vT+4}
    v_mov_b32 v{vA0}, v{vB0}
    v_mov_b32 v{vA1}, v{vB1}
    v_mov_b32 v{vAG}, v{vBG}
    s_mov_b32 s{sR}, 0
    s_mov_b32 s{sCnt}, 0
    s_mov_b32 s{sREND}, {G1_S*G1_SLOT}
    s_add_u32 s{sMEND}, s{sM0}, s{sREND}
    """)
    vTq, vTg, vTd, vDum = vT + 6, vT + 7, vT + 8, vT + 9
    sST = [76, 80, 44]
    sSCs, sSCd = 40, 72
    sToq, sTog, sCl, sCs = 88, 89, 63, 3
    vCs, vCd = vTd, vT + 5
    CT = lambda k: Reg('a', 208 + 4 * k)
    TR0 = 256
    B(f"""
    s_lshr_b32 s{sT}, s2, 3
    s_lshl_b32 s{sT}, s{sT}, 2
    s_add_u32 s{sT}, s{sT}, s{sW}
    s_lshl_b32 s{sT}, s{sT}, 1
    s_add_u32 s{sT}, s{sT}, {TR0}
    s_and_b32 s{sT+1}, s2, 7
    s_mul_i32 s{sT+2}, s{sT}, 7168
    s_mul_i32 s{sT+3}, s{sT+1}, 896
    s_add_u32 s{sT+2}, s{sT+2}, s{sT+3}
    s_mul_i32 s{sT+3}, s{sT}, 6144
    s_lshl_b32 s{sT+4}, s{sT+1}, 8
    s_add_u32 s{sT+3}, s{sT+3}, s{sT+4}
    v_cmp_le_u32 vcc, 14, v0
    v_lshlrev_b32 v{vTg}, 6, v0
    v_mov_b32 v{vT+3}, {7168-14*64}
    v_cndmask_b32 v{vT+3}, 0, v{vT+3}, vcc
    v_add3_u32 v{vTg}, v{vTg}, v{vT+3}, s{sT+2}
    v_cmp_le_u32 vcc, 28, v0
    v_mov_b32 v{vT+3}, 0x70000000
    v_lshrrev_b32 v{vT+4}, 2, v0
    v_cndmask_b32 v{vTg}, v{vTg}, v{vT+3}, vcc
    v_and_b32 v{vTq}, 3, v0
    v_lshlrev_b32 v{vTq}, 6, v{vTq}
    v_lshl_add_u32 v{vTq}, v{vT+4}, 11, v{vTq}
    v_cmp_le_u32 vcc, 24, v0
    v_add_u32 v{vTq}, s{sT+3}, v{vTq}
    s_lshl_b32 s{sT}, s2, 2
    v_cndmask_b32 v{vTq}, v{vTq}, v{vT+3}, vcc
    s_add_u32 s{sT}, s{sT}, s{sW}
    s_lshl_b32 s{sT}, s{sT}, 10
    v_add_u32 v{vCd}, s{sT}, v{vL16}
    s_mov_b32 s{sToq}, 0
    s_mov_b32 s{sTog}, 0
    s_mov_b32 s{sCl}, 0x{(-4 << 20) & 0xffffffff:x}
    s_mov_b32 s{sCs}, 0x{(-6 << 20) & 0xffffffff:x}
    v_lshrrev_b32 v{vT+3}, 3, v0
    v_bfe_u32 v{vT+4}, v0, 1, 2
    v_bfe_u32 v{vCs}, v0, 4, 2
    v_xor_b32 v{vT+4}, v{vT+4}, v{vCs}
    v_lshlrev_b32 v{vT+3}, 11, v{vT+3}
    v_lshl_add_u32 v{vT+3}, v{vT+4}, 5, v{vT+3}
    v_and_b32 v{vT+4}, 1, v0
    v_lshl_add_u32 v{vT+3}, v{vT+4}, 4, v{vT+3}
    s_lshr_b32 s{sT}, s2, 4
    s_lshl_b32 s{sT}, s{sT}, 2
    s_add_u32 s{sT}, s{sT}, s{sW}
    s_lshl_b32 s{sT}, s{sT}, 14
    s_and_b32 s{sT+1}, s2, 15
    s_lshl_b32 s{sT+1}, s{sT+1}, 7
    s_add_u32 s{sT}, s{sT}, s{sT+1}
    v_add_u32 v{vCs}, s{sT}, v{vT+3}
    """)
    tsz = 1 if OPT["touch"] else 0
    srd(B, sST[0], 4, 5, 1024 * 6144 * tsz)
    srd(B, sST[1], 8, 9, 1024 * 7168 * tsz)
    srd(B, sST[2], 10, 11, 1024 * 7168 * tsz)
    srd(B, sSCs, 86, 87, 3584 * 2048)
    def touch(s):
        v = [vTq, vTg, vTg][s]; so = [sToq, sTog, sTog][s]
        return f"buffer_load_dword v{vDum}, v{v}, s[{sST[s]}:{sST[s]+3}], s{so} offen"
    def copy_op(s):
        if s % 2: return f"buffer_load_dwordx4 {CT(s // 2)}, v{vCs}, s[{sSCs}:{sSCs+3}], s{sCl} offen"
        return f"buffer_store_dwordx4 {CT(s // 2)}, v{vCd}, s[{sSCd}:{sSCd+3}], s{sCs} offen sc1"
    for r in range(24, 256, 2):
        B(f"v_pk_mov_b32 v[{r}:{r+1}], 0, 0")
    for r in range(88):
        B(f"v_accvgpr_write_b32 a{r}, 0")
    work = [l.strip() for l in B.lines]
    per = len(work) // len(later)
    wi = 0
    for li, grp in enumerate(later):
        for l in grp: A(l)
        n = per if li < len(later) - 1 else len(work) - wi
        for l in work[wi:wi + n]: A(l)
        wi += n
    NPF = code_prefetch(A, "g1", 2, sT, sW, 0, vT + 3, vDum)
    srd(A, sSCd, 14, 15, WT_SIZE, WT_OFF)
    A(f"s_sub_u32 s84, s84, {7 << 20}")
    A(f"s_subb_u32 s85, s85, 0")
    for k in range(2):
        for j in range(4): A(f"v_accvgpr_write_b32 a{CT(k).base+j}, 0")
    stamp(A, 3, 2)
    def wread(f, a, pos):
        nm = names[f]
        if nm[0] in "qkv":
            p = "qkv".index(nm[0]); j = int(nm[1])
            addr = vA1 if j else vA0; off = 2048 * p + 1024 * a
        else:
            tl = int(nm[1]); addr = vAG
            off = (6144 if nm[0] == 'g' else 13312) + 3584 * a + 32 * tl
        return f"ds_read_b64_tr_b16 {WR(pos).sub(2*a, 2)}, v{addr} offset:{off}"
    def mfma(f, i, s, pos):
        nm = names[f]; d = acc[(nm, i)]
        if nm[0] in "kv":
            return f"v_mfma_f32_16x16x32_bf16 {d}, {XR(s, i)}, {WR(pos)}, {d}"
        return f"v_mfma_f32_16x16x32_bf16 {d}, {WR(pos)}, {XR(s, i)}, {d}"
    LA = 6
    G1_VM0 = min(4 + 5 + 5 + NPF + 6, 5 + NPF + 11 + 6)
    A(f"s_mov_b32 s{sT+2}, {7 << 20}")
    A(f"s_mov_b32 s{sT+3}, {9 << 20}")
    stamp(A, 4, 2)
    A(f"s_waitcnt vmcnt({18 + 5 + NPF})")
    stamp(A, 5, 2)
    A("s_barrier")
    stamp(A, 6, 2)
    stamp(A, 1)
    for f in range(8 if OPT["g1x"] & 1 else LA):
        for a in range(2): A(wread(f, a, f % 8))
    if OPT["g1x"] & 2:
        for i in range(4): A(xload(3, i))
    if OPT["trip"]:
        A(f"""
        s_waitcnt vmcnt(0)
        s_memtime s[92:93]
        s_memrealtime s[94:95]
        s_waitcnt lgkmcnt(0)
        v_writelane_b32 v22, s92, 0
        v_writelane_b32 v23, s94, 0
        """)
    A.label("G1_loop")
    for s in range(4):
        for f in range(20):
            F = 20 * s + f
            pos = F % 8
            if f == 14:
                tch = lambda q: 1 if (q % 4) < 3 else 0
                nvm = (tch(s - 2) + 5) + (1 + 4 + tch(s - 1) + 5) + (1 + 4 + tch(s))
                A(f"s_waitcnt vmcnt({min(nvm, G1_VM0) if s < 2 else nvm}) lgkmcnt(8)"); A("s_barrier")
            elif f % 2 == 0:
                A("s_waitcnt lgkmcnt(8)")
                extra = {0: f"s_add_u32 s{sR}, s{sR}, s{sSLOT}",
                         2: f"s_add_u32 s{sWoA}, s{sWoA}, s{sStA}",
                         4: f"s_add_u32 s{sWoB}, s{sWoB}, s{sStB}",
                         6: f"s_add_u32 s{sM}, s{sM}, s{sSLOT}",
                         8: f"s_add_u32 s{sCnt}, s{sCnt}, 1"}.get(f)
                if extra: A(extra)
            nf = (f + LA) % 20
            A(mfma(f, 0, s, pos))
            if not OPT["g1x"] & 1: A(wread(nf, 0, (F + LA) % 8))
            A(mfma(f, 1, s, pos))
            if not OPT["g1x"] & 1: A(wread(nf, 1, (F + LA) % 8))
            if f >= 15:
                m, l = dma(f - 15)
                A(m); A(mfma(f, 2, s, pos))
                if not OPT["g1x"] & 2: A(l)
                A(mfma(f, 3, s, pos))
            elif f in (3, 5, 7, 9):
                A(mfma(f, 2, s, pos))
                if not OPT["g1x"] & 2: A(xload((s + 3) % 4, (f - 3) // 2))
                A(mfma(f, 3, s, pos))
            elif f == 1:
                A(mfma(f, 2, s, pos))
                A(f"s_cmp_eq_u32 s{sR}, s{sREND}"); A(f"s_cselect_b32 s{sR}, 0, s{sR}")
                A(mfma(f, 3, s, pos))
            elif f == 10:
                A(mfma(f, 2, s, pos))
                A(f"s_cmp_eq_u32 s{sM}, s{sMEND}"); A(f"s_cselect_b32 s{sM}, s{sM0}, s{sM}")
                A(mfma(f, 3, s, pos))
            elif f == 11:
                A(mfma(f, 2, s, pos)); A(f"s_add_u32 s{sXo}, s{sXo}, 0x20000"); A(mfma(f, 3, s, pos))
            elif f == 12 and s < 3:
                A(mfma(f, 2, s, pos)); A(touch(s)); A(mfma(f, 3, s, pos))
            elif f == 12 and s == 3:
                A(mfma(f, 2, s, pos)); A(f"s_add_u32 s{sToq}, s{sToq}, {256*6144}"); A(mfma(f, 3, s, pos)); A(f"s_add_u32 s{sTog}, s{sTog}, {256*7168}")
            elif f == 2:
                A(mfma(f, 2, s, pos)); A(copy_op(s)); A(mfma(f, 3, s, pos))
                A(f"s_add_u32 s{sCl if s % 2 else sCs}, s{sCl if s % 2 else sCs}, 0x100000")
            elif f == 4 and s % 2:
                A(mfma(f, 2, s, pos))
                A(f"s_cmp_eq_u32 s{sCl}, s{sT+2}"); A(f"s_cselect_b32 s{sSCs}, s84, s{sSCs}")
                A(mfma(f, 3, s, pos))
                A(f"s_cselect_b32 s{sSCs+1}, s85, s{sSCs+1}"); A(f"s_cselect_b32 s{sSCs+2}, s{sT+3}, s{sSCs+2}")
            elif f == 13:
                A(mfma(f, 2, s, pos))
                A(f"v_add_u32 v{vA0}, s{sR}, v{vB0}")
                A(f"v_add_u32 v{vA1}, s{sR}, v{vB1}")
                A(mfma(f, 3, s, pos))
                A(f"v_add_u32_e64 v{vAG}, s{sR}, v{vBG}")
            else:
                A(mfma(f, 2, s, pos)); A(mfma(f, 3, s, pos))
    if OPT["trip"]:
        A(f"""
        s_memtime s[92:93]
        s_memrealtime s[94:95]
        s_lshr_b32 s{sT}, s{sCnt}, 2
        s_waitcnt lgkmcnt(0)
        s_mov_b32 m0, s{sT}
        s_nop 0
        v_writelane_b32 v22, s92, m0
        v_writelane_b32 v23, s94, m0
        """)
    A(f"s_cmp_lt_u32 s{sCnt}, 32")
    A("s_cbranch_scc1 G1_loop")
    if OPT["trip"]:
        srd(A, 76, 14, 15, 0x100000, STAMP_OFF + 0x100000)
        A(f"""
        s_lshl_b32 s98, s2, 2
        s_add_u32 s98, s98, s{sW}
        s_lshl_b32 s98, s98, 9
        v_lshlrev_b32 v21, 2, v0
        v_add_u32 v21, s98, v21
        buffer_store_dword v22, v21, s[76:79], 0 offen
        buffer_store_dword v23, v21, s[76:79], 0 offen offset:256
        """)
    stamp(A, 2)
    srd(A, sSH, 14, 15, HF_SIZE, HF_OFF)
    srd(A, sSK, 14, 15, KVP_SIZE, KVP_OFF)
    sNL, sPL, sEPS = 66, 68, 70
    A(f"""
    s_mov_b32 s{sNL}, 0x{f2u(-LOG2E):x}
    s_mov_b32 s{sNL+1}, 0x{f2u(-LOG2E):x}
    s_mov_b32 s{sPL}, 0x{f2u(LOG2E):x}
    s_mov_b32 s{sPL+1}, 0x{f2u(LOG2E):x}
    s_mov_b32 s{sEPS}, 0x{f2u(1e-6):x}
    """)
    def phi_tile(src, tmp, dst):
        b = src
        A(f"v_pk_mul_f32 v[{tmp}:{tmp+1}], v[{b}:{b+1}], s[{sPL}:{sPL+1}]")
        A(f"v_pk_mul_f32 v[{tmp+2}:{tmp+3}], v[{b+2}:{b+3}], s[{sPL}:{sPL+1}]")
        for j in range(4): A(f"v_exp_f32_e64 v{tmp+j}, v{tmp+j} clamp")
        for j in range(4): A(f"v_max_f32 v{b+j}, s{sEPS}, v{b+j}")
        A(f"v_pk_add_f32 v[{b}:{b+1}], v[{b}:{b+1}], v[{tmp}:{tmp+1}]")
        A(f"v_pk_add_f32 v[{b+2}:{b+3}], v[{b+2}:{b+3}], v[{tmp+2}:{tmp+3}]")
        A(f"v_cvt_pk_bf16_f32 v{dst}, v{b}, v{b+1}")
        A(f"v_cvt_pk_bf16_f32 v{dst+1}, v{b+2}, v{b+3}")
    sSP = 76
    srd(A, sSP, 14, 15, 0x400000, PQ_OFF)
    sCB, sCL = 71, 72
    A(f"""
    s_mul_i32 s{sCB}, s{sHD}, 7
    s_add_u32 s{sCB}, s{sCB}, 1
    s_lshr_b32 s{sCB}, s{sCB}, 1
    s_and_b32 s{sT}, s{sHD}, 1
    s_lshl_b32 s{sCL}, s{sT}, 2
    s_sub_u32 s{sCL}, 3, s{sCL}
    s_add_u32 s{sCL}, s{sCL}, s{sCB}
    s_lshl_b32 s{sCB}, s{sCB}, 17
    s_lshl_b32 s{sCL}, s{sCL}, 17
    s_lshl_b32 s{sT}, s{sT}, 3
    s_add_u32 s{sCL}, s{sCL}, s{sT}
    """)
    def swiglu_tile(tl, i, tmp, dst):
        g = acc[(f"g{tl}", i)].base
        ur = acc[(f"u{tl}", i)]
        if ur.kind == 'a':
            u = tmp + 4
            for j in range(4): A(f"v_accvgpr_read_b32 v{u+j}, a{ur.base+j}")
        else:
            u = ur.base
        A(f"v_pk_mul_f32 v[{tmp}:{tmp+1}], v[{g}:{g+1}], s[{sNL}:{sNL+1}]")
        A(f"v_pk_mul_f32 v[{tmp+2}:{tmp+3}], v[{g+2}:{g+3}], s[{sNL}:{sNL+1}]")
        for j in range(4): A(f"v_exp_f32 v{tmp+j}, v{tmp+j}")
        A(f"v_pk_mul_f32 v[{g}:{g+1}], v[{g}:{g+1}], v[{u}:{u+1}]")
        A(f"v_pk_mul_f32 v[{g+2}:{g+3}], v[{g+2}:{g+3}], v[{u+2}:{u+3}]")
        A(f"v_pk_add_f32 v[{tmp}:{tmp+1}], v[{tmp}:{tmp+1}], 1.0 op_sel_hi:[1,0]")
        A(f"v_pk_add_f32 v[{tmp+2}:{tmp+3}], v[{tmp+2}:{tmp+3}], 1.0 op_sel_hi:[1,0]")
        for j in range(4): A(f"v_rcp_f32 v{tmp+j}, v{tmp+j}")
        A(f"v_pk_mul_f32 v[{g}:{g+1}], v[{g}:{g+1}], v[{tmp}:{tmp+1}]")
        A(f"v_pk_mul_f32 v[{g+2}:{g+3}], v[{g+2}:{g+3}], v[{tmp+2}:{tmp+3}]")
        A(f"v_cvt_pk_bf16_f32 v{dst}, v{g}, v{g+1}")
        A(f"v_cvt_pk_bf16_f32 v{dst+1}, v{g+2}, v{g+3}")
    def swiglu_pair(p, tmp):
        for i in range(4):
            o = acc[(f"g{2*p}", i)].base
            swiglu_tile(2 * p, i, tmp, o)
            swiglu_tile(2 * p + 1, i, tmp, o + 2)
            A(f"buffer_store_dwordx4 v[{o}:{o+3}], v{vX}, s[{sSH}:{sSH+3}], s{sCB} offen offset:{1024*i}{HST}")
        A(f"s_add_u32 s{sCB}, s{sCB}, 0x20000")
    swiglu_pair(0, vT)
    stamp(A, 3)
    tq = acc[("u0", 0)].base
    kb = acc[("k0", 0)].base; vb = acc[("v0", 0)].base
    vONE = tq + 8
    for j in range(4): A(f"v_mov_b32 v{vONE+j}, 0x3f803f80")
    for dt in range(2):
        for i in range(4):
            src = kb + 16 * dt + 4 * i
            dst = kb + 16 * dt + 8 * (i // 2) + 2 * (i % 2)
            phi_tile(src, tq, dst)
    for et in range(2):
        for i in range(4):
            src = vb + 16 * et + 4 * i
            dst = vb + 16 * et + 8 * (i // 2) + 2 * (i % 2)
            A(f"v_cvt_pk_bf16_f32 v{dst}, v{src}, v{src+1}")
            A(f"v_cvt_pk_bf16_f32 v{dst+1}, v{src+2}, v{src+3}")
    A("s_nop 1")
    for u in range(2):
        for dt in range(2):
            for et in range(3):
                a = kb + 16 * dt + 8 * u
                b = vb + 16 * et + 8 * u if et < 2 else vONE
                p = PT(dt * 3 + et)
                A(f"v_mfma_f32_16x16x32_bf16 {p}, v[{a}:{a+3}], v[{b}:{b+3}], {'0' if u == 0 else p}")
    A(f"""
    s_mul_i32 s{sT}, s{sW}, 6144
    s_add_u32 s{sT}, s{sT}, {G1_KVL}
    v_add_u32 v{vT}, s{sT}, v{vL16}
    s_lshl_b32 s{sT}, s{sW}, 10
    s_add_u32 s{sT+1}, s{sT}, {G1_KVL}
    v_add_u32 v{vT+1}, s{sT+1}, v{vL16}
    s_lshl_b32 s{sT+1}, s{sHD}, 3
    s_add_u32 s{sT+1}, s{sT+1}, s{sRB}
    s_mul_i32 s{sT+1}, s{sT+1}, 6144
    v_add_u32 v{vT+2}, s{sT}, v{vL16}
    s_add_u32 s73, s{sT+1}, 4096
    """)
    for t in range(6):
        A(f"ds_write_b128 v{vT}, {PT(t)} offset:{1024*t}")
    swiglu_pair(1, tq)
    A("s_waitcnt lgkmcnt(0)")
    A("s_barrier")
    tb = kb
    for sw in range(4):
        A(f"ds_read_b128 v[{tb+4*sw}:{tb+4*sw+3}], v{vT+1} offset:{6144*sw}")
    for sw in range(4):
        A(f"ds_read_b128 v[{tb+16+4*sw}:{tb+16+4*sw+3}], v{vT+1} offset:{6144*sw+4096}")
    stamp(A, 4)
    A(f"s_lshl_b32 s{sT}, s{sHD}, 17")
    for i in range(4):
        o = tb + 32 + 4 * i
        for dt in range(2):
            qa = acc[(f"q{dt}", i)].base
            src = tq + 8 * dt
            for j in range(4): A(f"v_accvgpr_read_b32 v{src+j}, a{qa+j}")
            phi_tile(src, src + 4, o + 2 * dt)
        A(f"buffer_store_dwordx4 v[{o}:{o+3}], v{vX}, s[{sSP}:{sSP+3}], s{sT} offen offset:{1024*i}{HST}")
    A("s_waitcnt lgkmcnt(0)")
    def sum4(b):
        A(f"v_pk_add_f32 v[{b}:{b+1}], v[{b}:{b+1}], v[{b+4}:{b+5}]")
        A(f"v_pk_add_f32 v[{b+2}:{b+3}], v[{b+2}:{b+3}], v[{b+6}:{b+7}]")
        A(f"v_pk_add_f32 v[{b+8}:{b+9}], v[{b+8}:{b+9}], v[{b+12}:{b+13}]")
        A(f"v_pk_add_f32 v[{b+10}:{b+11}], v[{b+10}:{b+11}], v[{b+14}:{b+15}]")
        A(f"v_pk_add_f32 v[{b}:{b+1}], v[{b}:{b+1}], v[{b+8}:{b+9}]")
        A(f"v_pk_add_f32 v[{b+2}:{b+3}], v[{b+2}:{b+3}], v[{b+10}:{b+11}]")
    sum4(tb)
    A(f"buffer_store_dwordx4 v[{tb}:{tb+3}], v{vT+2}, s[{sSK}:{sSK+3}], s{sT+1} offen{HST}")
    A(f"s_cmp_lt_u32 s{sW}, 2")
    A("s_cbranch_scc0 G1_kv1")
    sum4(tb + 16)
    A(f"buffer_store_dwordx4 v[{tb+16}:{tb+19}], v{vT+2}, s[{sSK}:{sSK+3}], s73 offen{HST}")
    A.label("G1_kv1")
    stamp(A, 5)
    swiglu_pair(2, tq)
    for i in range(4):
        o = acc[("g6", i)].base
        swiglu_tile(6, i, tq, o)
        A(f"buffer_store_dwordx2 v[{o}:{o+1}], v{vX}, s[{sSH}:{sSH+3}], s{sCL} offen offset:{1024*i}{HST}")
    stamp(A, 6)
    stamp_dump(A, 1, 14, 15, sW, 7)
    A.label("G1_end")
    A("s_endpgm")
    return A.text(), kd("g1_kernel", 512, 102, 256)

G2_R = 5
G2_SLOT = 16384
G2_FIN = G2_R * G2_SLOT
G2_LDS = G2_FIN + 4096
def gen_g2():
    A = Asm(); head(A, "g2_kernel")
    vA, vBd, vR, vRb, vXO, vL16, vPq, vKv, vZ, vFw, vPoll = [1, 2, 3, 4], 5, [6, 7, 8, 9], [10, 11, 12, 13], 14, 15, 16, 17, 18, 19, 20
    vT = 22
    ACC = lambda i, j: 32 + 16 * i + 4 * j
    SAV = lambda i, j: 64 + 16 * i + 4 * j
    BR = lambda p: Reg('v', 96 + 4 * p)
    vXD = 128
    vO = 144
    AR = lambda s, q, i: Reg('a', 32 * s + 8 * q + 4 * i)
    sSA, sSB, sSX, sSO, sSP, sSK = 16, 20, 24, 28, 44, 48
    sW, sRT, sCT, sAo, sBo, sCnt, sM, sM0, sMEND, sR, sSLOT, sREND = 32, 33, 34, 35, 36, 37, 38, 39, 40, 41, 42, 43
    sHD, sEPS, sRBK = 52, 53, 54
    sT = 56
    lr = OPT["g2lr"]; lc = 5 - lr
    A(f"""
    s_cmp_ge_u32 s2, 256
    s_cbranch_scc1 G2_end
    """)
    stamp_start(A)
    A(f"""
    s_load_dwordx2 s[4:5], s[0:1], 0
    s_load_dwordx2 s[10:11], s[0:1], 56
    s_load_dwordx4 s[12:15], s[0:1], 64
    v_lshrrev_b32 v{vT}, 6, v0
    v_and_b32 v0, 63, v0
    v_readfirstlane_b32 s{sW}, v{vT}
    v_lshlrev_b32 v{vL16}, 4, v0
    s_and_b32 s{sT}, s2, 7
    s_lshl_b32 s{sHD}, s{sT}, 2
    s_lshr_b32 s{sT+2}, s2, 6
    s_add_u32 s{sHD}, s{sHD}, s{sT+2}
    s_bfe_u32 s{sRBK}, s2, 0x30003
    """)
    A(f"""
    s_lshl_b32 s{sT+2}, s{sRBK}, 14
    s_lshl_b32 s{sT+3}, s{sW}, 12
    s_add_u32 s{sT+2}, s{sT+2}, s{sT+3}
    v_add_u32 v{vPq}, s{sT+2}, v{vL16}
    s_lshr_b32 s{sT+2}, s{sW}, 1
    s_add_u32 s{sT+2}, s{sT+2}, s{sW}
    s_lshl_b32 s{sT+2}, s{sT+2}, 10
    s_mul_i32 s{sT+3}, s{sHD}, 49152
    s_add_u32 s{sT+2}, s{sT+2}, s{sT+3}
    v_add_u32 v{vKv}, s{sT+2}, v{vL16}
    v_and_b32 v{vT}, 7, v0
    v_mul_u32_u24 v{vZ}, 6144, v{vT}
    v_bfe_u32 v{vT}, v0, 3, 2
    v_lshl_add_u32 v{vZ}, v{vT}, 8, v{vZ}
    v_lshrrev_b32 v{vT}, 5, v0
    v_mul_u32_u24 v{vT}, 3072, v{vT}
    v_add3_u32 v{vZ}, v{vZ}, v{vT}, s{sT+3}
    s_lshl_b32 s{sT+4}, s{sHD}, 17
    s_waitcnt lgkmcnt(0)
    """)
    stamp(A, 1, 2)
    srd(A, sSK, 14, 15, KVP_SIZE, KVP_OFF)
    srd(A, sSP, 14, 15, 0x400000, PQ_OFF)
    kvb = vO; zb = vO + 32; pqb = vO + 36; fr = vO + 52; ob = vO
    A(f"s_mov_b32 s{sT+5}, 0")
    for r in range(8):
        A(f"buffer_load_dwordx4 v[{kvb+4*r}:{kvb+4*r+3}], v{vKv}, s[{sSK}:{sSK+3}], s{sT+5} offen")
        A(f"s_add_u32 s{sT+5}, s{sT+5}, 6144")
    A(f"buffer_load_dwordx4 v[{zb}:{zb+3}], v{vZ}, s[{sSK}:{sSK+3}], 0 offen offset:2048")
    for i in range(4):
        A(f"buffer_load_dwordx4 v[{pqb+4*i}:{pqb+4*i+3}], v{vPq}, s[{sSP}:{sSP+3}], s{sT+4} offen offset:{1024*i}")
    A(f"""
    s_lshr_b32 s{sT+1}, s2, 3
    s_lshr_b32 s{sRT}, s{sT}, {4-lc}
    s_lshl_b32 s{sRT}, s{sRT}, {lr}
    s_and_b32 s{sT+2}, s{sT+1}, {(1<<lr)-1}
    s_add_u32 s{sRT}, s{sRT}, s{sT+2}
    s_and_b32 s{sCT}, s{sT}, {(1<<(4-lc))-1}
    s_lshl_b32 s{sCT}, s{sCT}, {lc}
    s_lshr_b32 s{sT+2}, s{sT+1}, {lr}
    s_add_u32 s{sCT}, s{sCT}, s{sT+2}
    s_lshl_b32 s{sT+2}, s{sW}, 4
    s_add_u32 s{sT+2}, s{sT+2}, s{sCT}
    s_lshl_b32 s{sT+2}, s{sT+2}, 12
    v_add_u32 v{vBd}, s{sT+2}, v{vL16}
    s_lshl_b32 s{sT+2}, s{sRT}, 13
    s_lshl_b32 s{sT+3}, s{sW}, 11
    s_add_u32 s{sT+2}, s{sT+2}, s{sT+3}
    v_add_u32 v{vA[0]}, s{sT+2}, v{vL16}
    v_add_u32 v{vA[1]}, 0x20000, v{vA[0]}
    v_add_u32 v{vA[2]}, 0x40000, v{vA[0]}
    v_add_u32 v{vA[3]}, 0x60000, v{vA[0]}
    s_mov_b32 s{sAo}, 0
    s_mov_b32 s{sBo}, 0
    s_lshl_b32 s{sM0}, s{sW}, 12
    s_mov_b32 s{sM}, s{sM0}
    s_mov_b32 s{sSLOT}, {G2_SLOT}
    """)
    srd(A, sSA, 14, 15, HF_SIZE, HF_OFF)
    srd(A, sSB, 14, 15, WT_SIZE, WT_OFF)
    if OPT["g2x"] & 1: A(f"s_mov_b32 s{sSB+2}, 0")
    if OPT["g2x"] & 2: A(f"s_mov_b32 s{sSA+2}, 0")
    ASC = " sc1" if OPT["asc"] else ""
    def bdma(b):
        return f"buffer_load_dwordx4 v{vBd}, s[{sSB}:{sSB+3}], s{sBo} offen offset:{1024*b} lds"
    def aload(s, q, i):
        return f"buffer_load_dwordx4 {AR(s, q, i)}, v{vA[q]}, s[{sSA}:{sSA+3}], s{sAo} offen offset:{1024*i}{ASC}"
    def stage_loads(n):
        L = []
        for b in range(4):
            L.append(([f"s_mov_b32 m0, s{sM}", "s_nop 0"] if b == 0 else []) + [bdma(b)])
        for q in range(4):
            for i in range(2):
                L.append([aload(n, q, i)])
        if n < 3:
            L[-1] += [f"s_add_u32 s{sAo}, s{sAo}, 0x80000", f"s_add_u32 s{sBo}, s{sBo}, 0x40000", f"s_add_u32 s{sM}, s{sM}, s{sSLOT}"]
        else:
            L = L[0:2] + L[4:10]
        return L
    def interleave(groups, work):
        per = -(-len(work) // len(groups)); wi = 0
        for grp in groups:
            for l in grp: A(l)
            for l in work[wi:wi + per]: A(l)
            wi += per
        for l in work[wi:]: A(l)
    B = Asm()
    B(f"""
    v_bfe_u32 v{vT}, v0, 2, 3
    v_lshrrev_b32 v{vT+1}, 5, v0
    v_lshlrev_b32 v{vT+1}, 10, v{vT+1}
    v_lshl_add_u32 v{vT+1}, v{vT}, 7, v{vT+1}
    v_and_b32 v{vT+2}, 3, v0
    v_lshl_add_u32 v{vT+1}, v{vT+2}, 3, v{vT+1}
    v_lshrrev_b32 v{vT}, 1, v{vT}
    v_lshl_add_u32 v{vRb[0]}, v{vT}, 5, v{vT+1}
    v_xor_b32 v{vRb[1]}, 32, v{vRb[0]}
    v_xor_b32 v{vRb[2]}, 64, v{vRb[0]}
    v_xor_b32 v{vRb[3]}, 0x60, v{vRb[0]}
    v_mov_b32 v{vR[0]}, v{vRb[0]}
    v_mov_b32 v{vR[1]}, v{vRb[1]}
    v_mov_b32 v{vR[2]}, v{vRb[2]}
    v_mov_b32 v{vR[3]}, v{vRb[3]}
    s_mov_b32 s{sR}, 0
    s_mov_b32 s{sCnt}, 0
    s_mov_b32 s{sREND}, {G2_R*G2_SLOT}
    s_add_u32 s{sMEND}, s{sM0}, s{sREND}
    s_mov_b32 s{sEPS}, 0x{f2u(1e-6):x}
    """)
    B(f"""
    v_and_b32 v{vT}, 15, v0
    v_lshlrev_b32 v{vT}, 11, v{vT}
    v_bfe_u32 v{vT+1}, v0, 4, 1
    v_lshl_add_u32 v{vT}, v{vT+1}, 5, v{vT}
    v_lshrrev_b32 v{vT+1}, 5, v0
    v_lshl_add_u32 v{vT}, v{vT+1}, 4, v{vT}
    s_lshl_b32 s{sT+2}, s{sRT}, 18
    s_lshl_b32 s{sT+3}, s{sW}, 16
    s_add_u32 s{sT+2}, s{sT+2}, s{sT+3}
    s_lshl_b32 s{sT+3}, s{sCT}, 7
    s_add_u32 s{sT+2}, s{sT+2}, s{sT+3}
    v_add_u32 v{vXO}, s{sT+2}, v{vT}
    """)
    B(f"""
    s_and_b32 s{sT+2}, s{sW}, 1
    s_lshl_b32 s{sT+2}, s{sT+2}, 10
    s_lshr_b32 s{sT+3}, s{sW}, 1
    s_lshl_b32 s{sT+3}, s{sT+3}, 3
    s_add_u32 s{sT+2}, s{sT+2}, s{sT+3}
    s_add_u32 s{sT+2}, s{sT+2}, {G2_FIN}
    v_add_u32 v{vFw}, s{sT+2}, v{vL16}
    v_bfe_u32 v{vT}, v0, 3, 2
    v_lshlrev_b32 v{vT}, 4, v{vT}
    v_lshrrev_b32 v{vT+1}, 5, v0
    v_lshl_add_u32 v{vT}, v{vT+1}, 3, v{vT}
    v_add_u32 v{vZ}, {G2_FIN+2048}, v{vT}
    v_and_b32 v{vT}, 48, v0
    v_add_u32 v{vKv}, {G2_FIN+2048}, v{vT}
    v_add_u32 v{vT+2}, {G2_FIN}, v{vL16}
    s_lshr_b32 s{sT+2}, s{sRT}, 1
    s_lshl_b32 s{sT+2}, s{sT+2}, 2
    v_mov_b32 v{vPoll}, s{sT+2}
    s_add_u32 s{sT+4}, s{sT+4}, {112 << 17}
    """)
    B(f"s_mov_b32 s{sSX}, s4"); B(f"s_mov_b32 s{sSX+1}, s5"); B(f"s_mov_b32 s{sSX+2}, 0x400000"); B(f"s_mov_b32 s{sSX+3}, 0x00020000")
    B(f"s_mov_b32 s{sSO}, s10"); B(f"s_mov_b32 s{sSO+1}, s11"); B(f"s_mov_b32 s{sSO+2}, 0x400000"); B(f"s_mov_b32 s{sSO+3}, 0x00020000")
    for r in range(32, 64, 2):
        B(f"v_pk_mov_b32 v[{r}:{r+1}], 0, 0")
    interleave(stage_loads(0) + stage_loads(1), [l.strip() for l in B.lines])
    stamp(A, 2, 2)
    A("s_waitcnt vmcnt(28)")
    B = Asm()
    for st in (16, 8, 4):
        for r in range(0, st, 2):
            B(f"v_pk_add_f32 v[{kvb+r}:{kvb+r+1}], v[{kvb+r}:{kvb+r+1}], v[{kvb+st+r}:{kvb+st+r+1}]")
    for dpp in ("quad_perm:[1,0,3,2]", "quad_perm:[2,3,0,1]", "row_half_mirror"):
        for j in range(4):
            B(f"v_add_f32_dpp v{zb+j}, v{zb+j}, v{zb+j} {dpp} row_mask:0xf bank_mask:0xf")
    B(f"v_cvt_pk_bf16_f32 v{kvb}, v{kvb}, v{kvb+1}")
    B(f"v_cvt_pk_bf16_f32 v{kvb+1}, v{kvb+2}, v{kvb+3}")
    B(f"v_cvt_pk_bf16_f32 v{zb}, v{zb}, v{zb+1}")
    B(f"v_cvt_pk_bf16_f32 v{zb+1}, v{zb+2}, v{zb+3}")
    B(f"ds_write_b64 v{vFw}, v[{kvb}:{kvb+1}]")
    B(f"ds_write_b64 v{vZ}, v[{zb}:{zb+1}]")
    s2l = stage_loads(2)
    interleave(s2l[:3], [l.strip() for l in B.lines])
    A("s_waitcnt lgkmcnt(0)")
    A("s_barrier")
    A(f"ds_read_b128 v[{fr}:{fr+3}], v{vT+2}")
    A(f"ds_read_b128 v[{fr+4}:{fr+7}], v{vT+2} offset:1024")
    A(f"ds_read_b128 v[{fr+8}:{fr+11}], v{vKv}")
    for g in s2l[3:5]:
        for l in g: A(l)
    A("s_waitcnt vmcnt(29) lgkmcnt(0)")
    B = Asm()
    ob = vO + 64
    for i in range(4):
        for et in (2, 0, 1):
            d = ob + 12 * i + 4 * et
            B(f"v_mfma_f32_16x16x32_bf16 v[{d}:{d+3}], v[{fr+4*et}:{fr+4*et+3}], v[{pqb+4*i}:{pqb+4*i+3}], 0")
    B("s_nop 2")
    for i in range(4):
        d = ob + 12 * i
        B(f"v_add_f32 v{d+8}, s{sEPS}, v{d+8}")
    for i in range(4):
        d = ob + 12 * i
        B(f"v_rcp_f32 v{d+8}, v{d+8}")
    B("s_nop 0")
    for i in range(4):
        d = ob + 12 * i
        for q in range(4):
            B(f"v_pk_mul_f32 v[{d+2*q}:{d+2*q+1}], v[{d+2*q}:{d+2*q+1}], v[{d+8}:{d+9}] op_sel_hi:[1,0]")
        for q in range(4):
            B(f"v_cvt_pk_bf16_f32 v{d+q}, v{d+2*q}, v{d+2*q+1}")
        B(f"buffer_store_dwordx4 v[{d}:{d+3}], v{vPq}, s[{sSA}:{sSA+3}], s{sT+4} offen offset:{1024*i} sc1")
    interleave(s2l[5:], [l.strip() for l in B.lines])
    for g in stage_loads(3):
        for l in g: A(l)
    NPF = code_prefetch(A, "g2", 1, sT + 6, sW, 0, vT, vT + 1)
    stamp(A, 3, 2)
    def bread(F, a, pos):
        q, j = (F % 16) // 4, F % 4
        return f"ds_read_b64_tr_b16 {BR(pos).sub(2*a, 2)}, v{vR[j]} offset:{4096*q + 2048*a}"
    LA = 6
    A(f"s_waitcnt vmcnt({32 + 4 + NPF})")
    A("s_barrier")
    stamp(A, 4, 2)
    stamp(A, 1)
    for F in range(LA):
        for a in range(2): A(bread(F, a, F % 8))
    def stage(s, loads, last=False, vm=26, finish=False):
        for F in range(16):
            q, j = F // 4, F % 4
            pos = F % 8
            rd = not (last and F + LA >= 16)
            if F == 10:
                if not last:
                    A(f"s_waitcnt vmcnt({vm}) lgkmcnt(8)"); A("s_barrier")
                else:
                    A("s_waitcnt lgkmcnt(8)")
            elif F % 2 == 0:
                n = 8 if not last or F < 10 else max(0, 2 * (16 - F - 2))
                A(f"s_waitcnt lgkmcnt({n})")
                extra = {0: f"s_add_u32 s{sR}, s{sR}, s{sSLOT}", 4: f"s_add_u32 s{sM}, s{sM}, s{sSLOT}"}.get(F)
                if extra: A(extra)
            m = lambda i: ("s_nop 0" if OPT["g2x"] & 4 else
                           f"v_mfma_f32_16x16x32_bf16 v[{ACC(i, j)}:{ACC(i, j)+3}], {BR(pos)}, {AR(s, q, i)}, v[{ACC(i, j)}:{ACC(i, j)+3}]")
            A(m(0))
            if rd: A(bread(F + LA, 0, (F + LA) % 8))
            A(m(1))
            if rd: A(bread(F + LA, 1, (F + LA) % 8))
            if F == 1:
                A(f"s_cmp_eq_u32 s{sR}, s{sREND}"); A(f"s_cselect_b32 s{sR}, 0, s{sR}")
            if F == 5:
                A(f"s_cmp_eq_u32 s{sM}, s{sMEND}"); A(f"s_cselect_b32 s{sM}, s{sM0}, s{sM}")
            if F == 8 and loads:
                A(f"s_add_u32 s{sBo}, s{sBo}, 0x40000")
            if F == 10 and loads:
                A(f"s_mov_b32 m0, s{sM}")
            if F == 9:
                for jj in range(4): A(f"v_add_u32 v{vR[jj]}, s{sR}, v{vRb[jj]}")
            if loads or finish:
                if F in (0, 1): A(aload((s + 3) % 4, 3, F))
                if F == 2: A(f"s_add_u32 s{sAo}, s{sAo}, 0x80000")
                if F in (3, 7): A(bdma(2 + F // 4))
            if loads:
                if F in (4, 5, 8, 9, 12, 13): A(aload(s, F // 4 - 1, F % 4))
                if F in (11, 15): A(bdma(F // 4 - 2))
    A.label("G2_loop")
    for s in range(4): stage(s, True)
    A(f"""
    s_add_u32 s{sCnt}, s{sCnt}, 1
    s_cmp_eq_u32 s{sCnt}, 1
    s_cbranch_scc1 G2_sig
    s_cmp_eq_u32 s{sCnt}, 4
    s_cbranch_scc1 G2_pollissue
    s_cmp_eq_u32 s{sCnt}, 5
    s_cbranch_scc1 G2_pollcheck
    s_cmp_eq_u32 s{sCnt}, 7
    s_cbranch_scc1 G2_switch
    s_cmp_lt_u32 s{sCnt}, 8
    s_cbranch_scc1 G2_loop
    s_branch G2_tail
    """)
    A.label("G2_sig")
    A(f"""
    s_cmp_eq_u32 s{sW}, 0
    s_cbranch_scc0 G2_loop
    s_lshl_b32 s{sT}, s{sRBK}, 2
    v_mov_b32 v{vT}, s{sT}
    v_mov_b32 v{vT+1}, 1
    s_mov_b64 exec, 1
    global_atomic_add v{vT}, v{vT+1}, s[12:13] sc1
    s_mov_b64 exec, -1
    s_branch G2_loop
    """)
    A.label("G2_pollissue")
    A(f"""
    s_cmp_eq_u32 s{sW}, 0
    s_cbranch_scc0 G2_loop
    global_load_dword v{vT+2}, v{vPoll}, s[12:13] sc1
    s_branch G2_loop
    """)
    A.label("G2_pollcheck")
    A(f"s_cmp_eq_u32 s{sW}, 0")
    A(f"s_cbranch_scc0 G2_loop")
    A(f"s_mov_b32 s{sT+1}, 0")
    A.label("G2_poll")
    A(f"""
    v_readfirstlane_b32 s{sT}, v{vT+2}
    s_cmp_ge_u32 s{sT}, 32
    s_cbranch_scc1 G2_loop
    s_add_u32 s{sT+1}, s{sT+1}, 1
    s_cmp_ge_u32 s{sT+1}, 0x40000
    s_cbranch_scc1 G2_loop
    s_sleep 2
    global_load_dword v{vT+2}, v{vPoll}, s[12:13] sc1
    s_waitcnt vmcnt(0)
    s_branch G2_poll
    """)
    A.label("G2_switch")
    for r in range(0, 32, 2):
        A(f"v_pk_mov_b32 v[{64+r}:{65+r}], v[{32+r}:{33+r}], v[{32+r}:{33+r}] op_sel:[0,1]")
    for r in range(0, 32, 2):
        A(f"v_pk_mov_b32 v[{32+r}:{33+r}], 0, 0")
    A("s_branch G2_loop")
    A.label("G2_tail")
    stage(0, False, vm=6 + 12 + 4, finish=True)
    A(f"s_mov_b32 s{sT}, 0")
    A(f"s_mov_b32 s{sT+1}, {16*2048}")
    for i in range(2):
        for pr in range(2):
            A(f"buffer_load_dwordx4 v[{vXD+8*i+4*pr}:{vXD+8*i+4*pr+3}], v{vXO}, s[{sSX}:{sSX+3}], s{sT+i} offen offset:{64*pr}")
    stage(1, False, vm=6 + 4 + 4)
    stage(2, False, vm=0 + 4)
    sNL = sT + 2
    A(f"s_mov_b32 s{sNL}, 0x{f2u(-LOG2E):x}")
    A(f"s_mov_b32 s{sNL+1}, 0x{f2u(-LOG2E):x}")
    stage(3, False, last=True)
    stamp(A, 2)
    tb = vO
    for r in range(0, 32, 2):
        A(f"v_pk_mul_f32 v[{tb+r}:{tb+r+1}], v[{64+r}:{65+r}], s[{sNL}:{sNL+1}]")
    for r in range(32): A(f"v_exp_f32 v{tb+r}, v{tb+r}")
    for r in range(0, 32, 2):
        A(f"v_pk_add_f32 v[{tb+r}:{tb+r+1}], v[{tb+r}:{tb+r+1}], 1.0 op_sel_hi:[1,0]")
    for r in range(32): A(f"v_rcp_f32 v{tb+r}, v{tb+r}")
    for r in range(0, 32, 2):
        A(f"v_pk_mul_f32 v[{64+r}:{65+r}], v[{64+r}:{65+r}], v[{tb+r}:{tb+r+1}]")
    stamp(A, 3)
    A("s_waitcnt vmcnt(0)")
    for i in range(2):
        for pr in range(2):
            t0 = ACC(i, 2 * pr); t1 = ACC(i, 2 * pr + 1)
            for t in (t0, t1):
                for r in (0, 2):
                    A(f"v_pk_mul_f32 v[{t+r}:{t+r+1}], v[{t+r}:{t+r+1}], v[{t+32+r}:{t+33+r}]")
            x = vXD + 8 * i + 4 * pr
            for q in range(4):
                A(f"v_lshlrev_b32 v{tb+2*q}, 16, v{x+q}")
                A(f"v_and_b32 v{tb+2*q+1}, 0xffff0000, v{x+q}")
            for r in range(4):
                A(f"v_permlane16_swap_b32 v{t0+r}, v{t1+r}")
            for q in range(4):
                A(f"v_pk_add_f32 v[{t0+2*q}:{t0+2*q+1}], v[{t0+2*q}:{t0+2*q+1}], v[{tb+2*q}:{tb+2*q+1}]")
            for q in range(4):
                A(f"v_cvt_pk_bf16_f32 v{x+q}, v{t0+2*q}, v{t0+2*q+1}")
            A(f"buffer_store_dwordx4 v[{x}:{x+3}], v{vXO}, s[{sSO}:{sSO+3}], s{sT+i} offen offset:{64*pr}")
    stamp(A, 4)
    stamp_dump(A, 2, 14, 15, sW, 5)
    A.label("G2_end")
    A("s_endpgm")
    return A.text(), kd("g2_kernel", 384, 102, 256)

def build():
    hdr = open("recurrent_scan__linear_attn_block__swiglu_ffn__prompt.s.ref").read().split("; Override")[0]
    out = [hdr.rstrip("\n")]
    out.append(";   ln_kernel: layernorm -> xn fragments;  g1_kernel: qkv/gate/up GEMM + linear attention + swiglu;")
    out.append("; @launch kernel=ln_kernel grid=(256,1,1) block=(256,1,1) lds=1024")
    out.append(f"; @launch kernel=g1_kernel grid=(256,1,1) block=(256,1,1) lds={G1_LDS}")
    out.append(f"; @launch kernel=g2_kernel grid=(256,1,1) block=(256,1,1) lds={G2_LDS}")
    out.append('.amdgcn_target "amdgcn-amd-amdhsa--gfx950"')
    out.append(".text")
    for g in (gen_ln, gen_g1, gen_g2):
        body, desc = g()
        body, size = align_kernel(body)
        pr = check_hazards(body)
        for p in pr: print("HAZARD", g.__name__, p, file=sys.stderr)
        print(g.__name__, "code bytes", size, file=sys.stderr)
        out.append(body.rstrip("\n"))
        out.append(desc.rstrip("\n"))
    out.append(".p2align 8")
    out.append(".fill 8192, 4, 0xbf810000")
    return "\n".join(out) + "\n"

if __name__ == "__main__":
    for a in sys.argv[2:]:
        k, v = a.split("="); OPT[k] = int(v)
    open(sys.argv[1], "w").write(build())
```

```python
import sys, struct
from asmlib import *

NAME = "recurrent_scan__linear_attn_block__swiglu_ffn__prompt"
XF_OFF = 0x0
HF_OFF = 0x400000
HF_SIZE = 144 * 131072
KVP_OFF = 0x1600000
KVP_SIZE = 32 * 8 * 6144
WT_OFF = 0x1C00000
WT_SIZE = 144 * 65536
FLG_OFF = 0x2800000
FLG_SIZE = 256 * 64 + 4096
EPOCH = 256 * 64 + 2048
STAMP_OFF = 0x3000000

def f2u(x): return struct.unpack("<I", struct.pack("<f", x))[0]
LOG2E = 1.4426950408889634
OPT = dict(stamp=0, align=1, snake=1)

G1_S, G1_SLOT = 5, 20480
KVL = G1_S * G1_SLOT
G2_R, G2_SLOT = 5, 16384
FIN = 131072
LDS_BYTES = FIN + 4096
F_LN, F_WT, F_A, F_A2, F_B, F_C = 1, 2, 4, 8, 16, 32

def srd(A, d, lo, hi, size, off=0):
    if off:
        A(f"s_add_u32 s{d}, s{lo}, 0x{off:x}")
        A(f"s_addc_u32 s{d+1}, s{hi}, 0")
    else:
        A(f"s_mov_b32 s{d}, s{lo}")
        A(f"s_mov_b32 s{d+1}, s{hi}")
    A(f"s_mov_b32 s{d+2}, 0x{size:x}")
    A(f"s_mov_b32 s{d+3}, 0x00020000")

SREG = [6, 7, 86, 87, 96, 97, 98]
def stamp(A, idx, mode):
    if OPT["stamp"] != mode: return
    A("s_memrealtime s[100:101]" if OPT.get("rt") else "s_memtime s[100:101]")
    A("s_waitcnt lgkmcnt(0)")
    A(f"s_mov_b32 s{SREG[idx]}, s100")

def interleave(A, groups, work):
    per = -(-len(work) // len(groups)); wi = 0
    for grp in groups:
        for l in grp: A(l)
        for l in work[wi:wi + per]: A(l)
        wi += per
    for l in work[wi:]: A(l)

def lines(B): return [l.strip() for l in B.lines]

def gen():
    A = Asm()
    K = NAME + "_kernel"
    A.raw(f".globl {K}\n.p2align 8\n.type {K},@function\n{K}:")
    if OPT["align"]: A.raw("    ; @align on")
    vX, vD, vA0, vA1, vAG, vB0, vB1, vBG, vL16 = 1, [2, 3, 4, 5, 6], 7, 8, 9, 10, 11, 12, 13
    vT = 14
    vPollR, vPv, vCd, vTq, vTg, vCs, vDum = 17, 18, 16, 20, 21, 22, 23
    names = ["k0", "k1", "v0", "v1", "q0", "q1"]
    for t in range(7): names += [f"g{t}", f"u{t}"]
    acc = {}
    nv = 24; na = 0
    for nm in ["k0", "k1", "v0", "v1"] + [f"g{t}" for t in range(7)]:
        for i in range(4):
            acc[(nm, i)] = Reg('v', nv); nv += 4
    for t in range(7):
        for i in range(4):
            if t * 4 + i < 14:
                acc[(f"u{t}", i)] = Reg('v', nv); nv += 4
            else:
                acc[(f"u{t}", i)] = Reg('a', na); na += 4
    for nm in ["q0", "q1"]:
        for i in range(4):
            acc[(nm, i)] = Reg('a', na); na += 4
    assert nv == 256 and na == 88
    XR = lambda s, i: Reg('a', 88 + 16 * s + 4 * i)
    WR = lambda p: Reg('a', 152 + 4 * p)
    PT = lambda t: Reg('a', 184 + 4 * t)
    CT = lambda k: Reg('a', 208 + 4 * k)
    sSX, sSD = 16, [20, 24, 28, 32, 36]
    sSCs, sSCd, sSF = 40, 72, 92
    sST = [76, 80, 44]
    sW, sHD, sRB, sXo, sWoA, sWoB, sStA, sStB, sM, sR, sCnt = 48, 49, 50, 51, 52, 53, 54, 55, 56, 57, 58
    sSLOT, sREND, sMEND, sM0, sCl, sCs = 59, 60, 61, 62, 63, 3
    sToq, sTog, sFo, sSpin, sTag = 88, 89, 90, 91, 12
    sT = 64
    uid = [0]
    def flag_set(val):
        uid[0] += 1; L = f"M_fs{uid[0]}"
        A(f"""
        s_cmp_eq_u32 s{sW}, 0
        s_cbranch_scc0 {L}
        v_mov_b32 v{vT}, s{sTag}
        v_mov_b32 v{vT+1}, {val}
        s_mov_b64 exec, 1
        buffer_store_dwordx2 v[{vT}:{vT+1}], off, s[{sSF}:{sSF+3}], s{sFo} sc1
        s_mov_b64 exec, -1
        """)
        A.label(L)
    def poll_issue(vaddr):
        return f"buffer_load_dwordx2 v[{vPv}:{vPv+1}], v{vaddr}, s[{sSF}:{sSF+3}], 0 offen sc1"
    def poll_check(bit, vaddr, vm=None, first=None):
        uid[0] += 1; L = f"M_pc{uid[0]}"
        if vm is not None: A(f"s_waitcnt vmcnt({vm})")
        A(f"s_mov_b32 s{sSpin}, 0")
        A.label(L)
        A(f"""
        v_xor_b32 v{vPv}, s{sTag}, v{vPv}
        v_bfe_u32 v{vPv+1}, v{vPv+1}, {bit.bit_length()-1}, 1
        v_xor_b32 v{vPv+1}, 1, v{vPv+1}
        v_or_b32 v{vPv}, v{vPv}, v{vPv+1}
        v_cmp_ne_u32 vcc, 0, v{vPv}
        s_add_u32 s{sSpin}, s{sSpin}, 1
        s_nop 3
        s_cbranch_vccz {L}_ok
        s_cmp_ge_u32 s{sSpin}, 0x40000
        s_cbranch_scc1 {L}_ok
        """)
        if first:
            A(f"s_cmp_eq_u32 s{sSpin}, 1"); A(f"s_cbranch_scc0 {L}_n")
            for l in first: A(l)
            A.label(L + "_n")
        A(f"""
        s_sleep {OPT.get("sleep", 1)}
        {poll_issue(vaddr)}
        s_waitcnt vmcnt(0)
        s_branch {L}
        """)
        A.label(L + "_ok")
    def rowblock_poll_addr(E, srb, t):
        E(f"""
        s_lshl_b32 s{sT+3}, s{srb}, 3
        v_and_b32 v{t}, 7, v0
        v_bfe_u32 v{t+1}, v0, 3, 2
        v_lshl_add_u32 v{t+1}, v{t+1}, 6, v{t}
        v_add_u32 v{t+1}, s{sT+3}, v{t+1}
        """)
    A(f"""
    s_cmp_ge_u32 s2, 256
    s_cbranch_scc1 M_end
    """)
    if OPT["stamp"]:
        A("s_memrealtime s[100:101]"); A("s_waitcnt lgkmcnt(0)"); A("s_mov_b32 s99, s100")
        A("s_memrealtime s[100:101]" if OPT.get("rt") else "s_memtime s[100:101]"); A("s_waitcnt lgkmcnt(0)"); A(f"s_mov_b32 s{SREG[0]}, s100")
    A(f"""
    s_load_dwordx4 s[68:71], s[0:1], 0
    s_load_dwordx4 s[8:11], s[0:1], 32
    s_load_dwordx4 s[12:15], s[0:1], 64
    s_load_dwordx2 s[84:85], s[0:1], 16
    s_load_dwordx2 s[{sSCs}:{sSCs+1}], s[0:1], 48
    s_getpc_b64 s[{sT+2}:{sT+3}]
    s_and_b32 s{sT+2}, s{sT+2}, 0xffffff00
    s_bfe_u32 s{sT}, s2, 0x30003
    s_lshl_b32 s{sT}, s{sT}, 12
    v_lshrrev_b32 v{vT}, 3, v0
    v_lshlrev_b32 v{vT}, 7, v{vT}
    v_add_u32 v{vT}, s{sT}, v{vT}
    global_load_dword v{vDum}, v{vT}, s[{sT+2}:{sT+3}]
    v_lshrrev_b32 v{vT}, 6, v0
    v_and_b32 v0, 63, v0
    v_readfirstlane_b32 s{sW}, v{vT}
    s_and_b32 s{sT}, s2, 7
    s_lshr_b32 s{sT+1}, s2, 3
    s_and_b32 s{sRB}, s{sT+1}, 7
    s_lshr_b32 s{sT+1}, s{sT+1}, 3
    s_lshl_b32 s{sHD}, s{sT}, 2
    s_add_u32 s{sHD}, s{sHD}, s{sT+1}
    v_lshlrev_b32 v{vL16}, 4, v0
    s_lshl_b32 s{sFo}, s{sRB}, 5
    s_add_u32 s{sFo}, s{sFo}, s{sHD}
    """)
    lX, lF, lS, lR, lA = 32, 48, 80, 88, 112
    A(f"""
    v_and_b32 v{lA}, 7, v0
    v_lshrrev_b32 v{lA+1}, 3, v0
    v_lshlrev_b32 v{lA+2}, 11, v{lA}
    v_lshl_add_u32 v{lA+2}, v{lA+1}, 4, v{lA+2}
    s_lshl_b32 s{sT}, s{sFo}, 14
    s_lshl_b32 s{sT+1}, s{sW}, 9
    s_add_u32 s{sT}, s{sT}, s{sT+1}
    v_add_u32 v{lA+2}, s{sT}, v{lA+2}
    s_waitcnt lgkmcnt(0)
    """)
    srd(A, sSX, 68, 69, 0x400000)
    for n in range(4):
        A(f"buffer_load_dwordx4 v[{lX+4*n}:{lX+4*n+3}], v{lA+2}, s[{sSX}:{sSX+3}], 0 offen offset:{128*n}")
    A(f"v_and_b32 v{lA+6}, 0xfffff800, v{lA+2}")
    A(f"buffer_load_ushort v{lA+7}, v{lA+6}, s[{sSX}:{sSX+3}], 0 offen")
    A("s_mov_b32 s4, s70"); A("s_mov_b32 s5, s71")
    srd(A, sSF, 14, 15, FLG_SIZE, FLG_OFF)
    A(f"s_mov_b32 s{sT}, {EPOCH}")
    A(f"buffer_load_dword v{vPv}, off, s[{sSF}:{sSF+3}], s{sT} sc1")
    A(f"""
    s_lshr_b32 s{sT}, s2, 3
    s_lshl_b32 s{sT}, s{sT}, 2
    s_add_u32 s{sT}, s{sT}, s{sW}
    s_lshl_b32 s{sT}, s{sT}, 1
    s_and_b32 s{sT+1}, s2, 7
    s_mul_i32 s{sT+2}, s{sT}, 7168
    s_mul_i32 s{sT+3}, s{sT+1}, 896
    s_add_u32 s{sT+2}, s{sT+2}, s{sT+3}
    s_mul_i32 s{sT+3}, s{sT}, 6144
    s_lshl_b32 s{sT+1}, s{sT+1}, 8
    s_add_u32 s{sT+3}, s{sT+3}, s{sT+1}
    v_cmp_le_u32 vcc, 7, v0
    v_lshlrev_b32 v{vTg}, 7, v0
    v_mov_b32 v{vT}, {7168-7*128}
    v_cndmask_b32 v{vT}, 0, v{vT}, vcc
    v_add3_u32 v{vTg}, v{vTg}, v{vT}, s{sT+2}
    v_cmp_le_u32 vcc, 14, v0
    v_mov_b32 v{vT}, 0x70000000
    v_lshrrev_b32 v{vT+1}, 1, v0
    v_cndmask_b32 v{vTg}, v{vTg}, v{vT}, vcc
    v_and_b32 v{vTq}, 1, v0
    v_lshlrev_b32 v{vTq}, 7, v{vTq}
    v_lshl_add_u32 v{vTq}, v{vT+1}, 11, v{vTq}
    v_cmp_le_u32 vcc, 12, v0
    v_add_u32 v{vTq}, s{sT+3}, v{vTq}
    s_mov_b32 s{sToq}, {128*6144}
    v_cndmask_b32 v{vTq}, v{vTq}, v{vT}, vcc
    s_mov_b32 s{sTog}, {128*7168}
    """)
    srd(A, sST[0], 4, 5, 1024 * 6144)
    srd(A, sST[1], 8, 9, 1024 * 7168)
    srd(A, sST[2], 10, 11, 1024 * 7168)
    def touch(s):
        v = [vTq, vTg, vTg][s]; so = [sToq, sTog, sTog][s]
        return f"buffer_load_dword v{vDum}, v{v}, s[{sST[s]}:{sST[s]+3}], s{so} offen"
    NY = 12
    stamp(A, 1, 2)
    A(f"""
    v_lshrrev_b32 v{lA+8}, 4, v0
    v_bfe_u32 v{lA+9}, v0, 2, 2
    v_lshl_add_u32 v{lA+10}, v{lA+8}, 3, v{lA+9}
    v_mul_u32_u24 v{lA+10}, 6144, v{lA+10}
    v_bfe_u32 v{lA+11}, v0, 1, 1
    v_and_b32 v{lA+12}, 1, v{lA+8}
    v_xor_b32 v{lA+11}, v{lA+11}, v{lA+12}
    v_lshl_add_u32 v{lA+10}, v{lA+11}, 5, v{lA+10}
    v_and_b32 v{lA+11}, 1, v0
    v_lshl_add_u32 v{lA+10}, v{lA+11}, 4, v{lA+10}
    s_mul_i32 s{sT+2}, s{sW}, 5
    s_and_b32 s{sT+3}, s{sHD}, 1
    s_lshl_b32 s{sT+3}, s{sT+3}, 1
    s_mul_i32 s{sT+4}, s{sHD}, 224
    """)
    t3, t4, t5, t6, t7 = lA + 11, lA + 12, lA + 13, lA + 14, lA + 15
    for i in range(5):
        d = sSD[i]
        A(f"""
        s_add_u32 s{sT+5}, s{sT+2}, {i}
        s_cmp_lt_u32 s{sT+5}, 6
        s_cbranch_scc0 M_gu{i}
        s_lshr_b32 s{sT+6}, s{sT+5}, 1
        s_lshl_b32 s{sT+6}, s{sT+6}, 11
        s_and_b32 s{sT+7}, s{sT+5}, 1
        s_mul_i32 s{sT+7}, s{sT+7}, 24576
        s_add_u32 s{sT+6}, s{sT+6}, s{sT+7}
        s_lshl_b32 s{sT+7}, s{sHD}, 6
        s_add_u32 s{sT+6}, s{sT+6}, s{sT+7}
        v_add_u32 v{vD[i]}, s{sT+6}, v{lA+10}
        s_mov_b32 s{d}, s4
        s_mov_b32 s{d+1}, s5
        s_mov_b32 s{d+2}, {1024*6144}
        s_mov_b32 s{sStA if i == 0 else sStB}, {32*6144}
        s_branch M_dn{i}
        """)
        A.label(f"M_gu{i}")
        A(f"""
        s_sub_u32 s{sT+6}, s{sT+5}, 6
        s_sub_u32 s{sT+7}, s{sT+5}, 13
        s_cmp_lt_u32 s{sT+5}, 13
        s_cselect_b32 s{sT+6}, s{sT+6}, s{sT+7}
        s_cselect_b32 s{d}, s8, s10
        s_cselect_b32 s{d+1}, s9, s11
        s_mov_b32 s{d+2}, {1024*7168}
        s_mov_b32 s{sStA if i == 0 else sStB}, {32*7168}
        s_lshl_b32 s{sT+6}, s{sT+6}, 6
        v_add_u32 v{t3}, s{sT+6}, v0
        v_mul_u32_u24 v{t4}, 4682, v{t3}
        v_lshrrev_b32 v{t4}, 16, v{t4}
        v_mul_u32_u24 v{t5}, 14, v{t4}
        v_sub_u32 v{t5}, v{t3}, v{t5}
        v_add_u32 v{t5}, s{sT+3}, v{t5}
        v_subrev_u32 v{t6}, 14, v{t5}
        v_min_u32 v{t5}, v{t5}, v{t6}
        v_bfe_u32 v{t6}, v{t4}, 2, 2
        v_lshrrev_b32 v{t7}, 4, v{t4}
        v_and_b32 v{t4}, 3, v{t4}
        v_lshl_add_u32 v{t4}, v{t6}, 3, v{t4}
        v_lshl_add_u32 v{t4}, v{t7}, 2, v{t4}
        v_mul_u32_u24 v{t4}, 7168, v{t4}
        v_lshl_add_u32 v{t4}, v{t5}, 4, v{t4}
        v_add_u32 v{vD[i]}, s{sT+4}, v{t4}
        """)
        A.label(f"M_dn{i}")
        A(f"s_mov_b32 s{d+3}, 0x00020000")
    A(f"""
    s_lshr_b32 s{sT}, s{sFo}, 1
    s_lshl_b32 s{sT}, s{sT}, 10
    s_and_b32 s{sT+1}, s{sFo}, 1
    s_lshl_b32 s{sT+1}, s{sT+1}, 7
    s_add_u32 s{sT}, s{sT}, s{sT+1}
    s_lshl_b32 s{sT+1}, s{sW}, 20
    s_add_u32 s{sT}, s{sT}, s{sT+1}
    v_lshrrev_b32 v{lA+3}, 2, v{lA+1}
    v_lshlrev_b32 v{lA+3}, 17, v{lA+3}
    v_and_b32 v{lA+4}, 3, v{lA+1}
    v_lshl_add_u32 v{lA+3}, v{lA+4}, 8, v{lA+3}
    v_lshl_add_u32 v{lA+3}, v{lA}, 4, v{lA+3}
    v_add_u32 v{lA+3}, s{sT}, v{lA+3}
    v_lshlrev_b32 v{lA+5}, 6, v{lA}
    v_add_u32 v{lA+5}, {KVL}, v{lA+5}
    s_lshl_b32 s{sT}, s{sW}, 4
    v_lshl_add_u32 v{lA+4}, v{lA+8}, 2, v{lA+5}
    v_add_u32 v{lA+4}, s{sT}, v{lA+4}
    """)
    srd(A, sSX, 14, 15, 0x400000, XF_OFF)
    A(f"s_lshl_b32 s{sFo}, s2, 6")
    def dma(i):
        return [f"s_add_u32 m0, s{sM}, 0x{1024*(i+1):x}",
                f"buffer_load_dwordx4 v{vD[i]}, s[{sSD[i]}:{sSD[i]+3}], s{sWoA if i == 0 else sWoB} offen lds"]
    def xload(s, i):
        return f"buffer_load_dwordx4 {XR(s, i)}, v{vX}, s[{sSX}:{sSX+3}], s{sXo} offen offset:{1024*i} sc1"
    wadv = [f"s_add_u32 s{sM}, s{sM}, s{sSLOT}", f"s_add_u32 s{sWoA}, s{sWoA}, s{sStA}", f"s_add_u32 s{sWoB}, s{sWoB}, s{sStB}"]
    def wgroups(adv):
        L = []
        for i in range(5):
            m, l = dma(i)
            L.append((wadv if (i == 0 and adv) else []) + [m, "s_nop 0", l])
        return L
    def xgroups(t):
        return [[xload(t, i)] + ([f"s_add_u32 s{sXo}, s{sXo}, 0x20000"] if i == 3 else []) for i in range(4)]
    A(f"""
    s_mov_b32 s{sXo}, 0
    s_mul_i32 s{sM0}, s{sW}, 5120
    s_sub_u32 s{sM0}, s{sM0}, 1024
    s_mov_b32 s{sM}, s{sM0}
    s_mov_b32 s{sWoA}, 0
    s_mov_b32 s{sWoB}, 0
    s_mov_b32 s{sSLOT}, {G1_SLOT}
    """)
    B = Asm()
    B(f"""
    s_lshl_b32 s{sT}, s{sRB}, 14
    s_lshl_b32 s{sT+1}, s{sW}, 12
    s_add_u32 s{sT}, s{sT}, s{sT+1}
    v_add_u32 v{vX}, s{sT}, v{vL16}
    s_lshl_b32 s{sT}, s{sRB}, 3
    v_and_b32 v{vPollR}, 7, v0
    v_bfe_u32 v{t3}, v0, 3, 2
    v_lshl_add_u32 v{vPollR}, v{t3}, 6, v{vPollR}
    v_add_u32 v{vPollR}, s{sT}, v{vPollR}
    v_lshlrev_b32 v{vPollR}, 6, v{vPollR}
    v_lshrrev_b32 v{t3}, 2, v0
    v_and_b32 v{t4}, 3, v0
    v_lshlrev_b32 v{t4}, 3, v{t4}
    v_lshl_add_u32 v{vB0}, v{t3}, 6, v{t4}
    v_and_b32 v{t5}, 1, v{lA+8}
    v_lshl_add_u32 v{vB0}, v{t5}, 5, v{vB0}
    v_xor_b32 v{vB1}, 32, v{vB0}
    v_mul_u32_u24 v{vBG}, 224, v{t3}
    v_add_u32 v{vBG}, v{vBG}, v{t4}
    v_mov_b32 v{vA0}, v{vB0}
    v_mov_b32 v{vA1}, v{vB1}
    v_mov_b32 v{vAG}, v{vBG}
    s_mov_b32 s{sR}, 0
    s_mov_b32 s{sCnt}, 0
    s_mov_b32 s{sREND}, {G1_S*G1_SLOT}
    s_add_u32 s{sMEND}, s{sM0}, s{sREND}
    """)
    B(f"""
    s_lshl_b32 s{sT}, s2, 2
    s_add_u32 s{sT}, s{sT}, s{sW}
    s_lshl_b32 s{sT}, s{sT}, 10
    v_add_u32 v{vCd}, s{sT}, v{vL16}
    v_lshrrev_b32 v{t3}, 3, v0
    v_bfe_u32 v{t4}, v0, 1, 2
    v_bfe_u32 v{t5}, v0, 4, 2
    v_xor_b32 v{t4}, v{t4}, v{t5}
    v_lshlrev_b32 v{t3}, 11, v{t3}
    v_lshl_add_u32 v{t3}, v{t4}, 5, v{t3}
    v_and_b32 v{t4}, 1, v0
    v_lshl_add_u32 v{t3}, v{t4}, 4, v{t3}
    s_lshl_b32 s{sT}, s{sW}, 14
    s_and_b32 s{sT+1}, s2, 15
    s_lshl_b32 s{sT+1}, s{sT+1}, 7
    s_add_u32 s{sT}, s{sT}, s{sT+1}
    v_add_u32 v{vCs}, s{sT}, v{t3}
    s_lshr_b32 s{sT+1}, s2, 4
    s_mul_i32 s{sT}, s{sT+1}, 7
    s_add_u32 s{sCl}, s{sT}, 1
    s_lshr_b32 s{sCl}, s{sCl}, 1
    s_sub_u32 s{sCl}, s{sCl}, 1
    s_lshl_b32 s{sCl}, s{sCl}, 16
    s_add_u32 s{sT}, s{sT}, 3
    s_lshl_b32 s{sT}, s{sT}, 16
    s_lshl_b32 s{sT+1}, s{sT+1}, 16
    s_add_u32 s{sT+2}, s{sT+1}, 0x100000
    s_mov_b32 s{sCs}, 0x{(-4 << 20) & 0xffffffff:x}
    s_mov_b32 s{sSCs+2}, 0
    s_mov_b32 s{sSCs+3}, 0x00020000
    """)
    sT6, sT7, sT8 = sT, sT + 1, sT + 2
    interleave(A, wgroups(False) + wgroups(True), lines(B))
    lW, lRd, lSt = lA + 4, lA + 5, lA + 3
    for n in range(4):
        A(f"s_waitcnt vmcnt({3-n+NY})")
        for q in range(4):
            s = lX + 4 * n + q; d = lF + 8 * n + 2 * q
            A(f"v_lshlrev_b32 v{d}, 16, v{s}")
            A(f"v_and_b32 v{d+1}, 0xffff0000, v{s}")
    stamp(A, 2, 2)
    A("s_waitcnt vmcnt(11)")
    lM, lMb, lT, lQ = lS + 4, lS + 6, 104, 108
    A(f"""
    v_lshlrev_b32 v{lA+7}, 16, v{lA+7}
    v_sub_f32 v{lM}, 0, v{lA+7}
    v_mov_b32 v{lM+1}, v{lM}
    """)
    for q in range(0, 16, 2):
        d0 = (lS, lS + 2) if q == 0 else (lT, lT + 2)
        A(f"v_pk_add_f32 v[{d0[0]}:{d0[0]+1}], v[{lF+2*q}:{lF+2*q+1}], v[{lM}:{lM+1}]")
        A(f"v_pk_add_f32 v[{d0[1]}:{d0[1]+1}], v[{lF+2*q+2}:{lF+2*q+3}], v[{lM}:{lM+1}]")
        if q == 0:
            A(f"v_pk_mul_f32 v[{lQ}:{lQ+1}], v[{lS}:{lS+1}], v[{lS}:{lS+1}]")
            A(f"v_pk_mul_f32 v[{lQ+2}:{lQ+3}], v[{lS+2}:{lS+3}], v[{lS+2}:{lS+3}]")
        else:
            A(f"v_pk_fma_f32 v[{lQ}:{lQ+1}], v[{lT}:{lT+1}], v[{lT}:{lT+1}], v[{lQ}:{lQ+1}]")
            A(f"v_pk_fma_f32 v[{lQ+2}:{lQ+3}], v[{lT+2}:{lT+3}], v[{lT+2}:{lT+3}], v[{lQ+2}:{lQ+3}]")
            A(f"v_pk_add_f32 v[{lS}:{lS+1}], v[{lS}:{lS+1}], v[{lT}:{lT+1}]")
            A(f"v_pk_add_f32 v[{lS+2}:{lS+3}], v[{lS+2}:{lS+3}], v[{lT+2}:{lT+3}]")
    r = lR; r2 = 128
    A(f"""
    v_pk_add_f32 v[{lS}:{lS+1}], v[{lS}:{lS+1}], v[{lS+2}:{lS+3}]
    v_pk_add_f32 v[{lQ}:{lQ+1}], v[{lQ}:{lQ+1}], v[{lQ+2}:{lQ+3}]
    v_add_f32 v{lS}, v{lS}, v{lS+1}
    v_add_f32 v{lQ}, v{lQ}, v{lQ+1}
    s_nop 0
    v_add_f32_dpp v{lS}, v{lS}, v{lS} row_ror:8 row_mask:0xf bank_mask:0xf
    v_add_f32_dpp v{lQ}, v{lQ}, v{lQ} row_ror:8 row_mask:0xf bank_mask:0xf
    ds_write_b32 v{lW}, v{lS}
    ds_write_b32 v{lW}, v{lQ} offset:512
    s_waitcnt lgkmcnt(0)
    s_barrier
    """)
    for k in range(4): A(f"ds_read_b128 v[{r+4*k}:{r+4*k+3}], v{lRd} offset:{16*k}")
    for k in range(4): A(f"ds_read_b128 v[{r2+4*k}:{r2+4*k+3}], v{lRd} offset:{512+16*k}")
    for wait, rr in ((4, r), (0, r2)):
        A(f"s_waitcnt lgkmcnt({wait})")
        A(f"""
        v_pk_add_f32 v[{rr}:{rr+1}], v[{rr}:{rr+1}], v[{rr+2}:{rr+3}]
        v_pk_add_f32 v[{rr+4}:{rr+5}], v[{rr+4}:{rr+5}], v[{rr+6}:{rr+7}]
        v_pk_add_f32 v[{rr+8}:{rr+9}], v[{rr+8}:{rr+9}], v[{rr+10}:{rr+11}]
        v_pk_add_f32 v[{rr+12}:{rr+13}], v[{rr+12}:{rr+13}], v[{rr+14}:{rr+15}]
        v_pk_add_f32 v[{rr}:{rr+1}], v[{rr}:{rr+1}], v[{rr+4}:{rr+5}]
        v_pk_add_f32 v[{rr+8}:{rr+9}], v[{rr+8}:{rr+9}], v[{rr+12}:{rr+13}]
        v_pk_add_f32 v[{rr}:{rr+1}], v[{rr}:{rr+1}], v[{rr+8}:{rr+9}]
        v_add_f32 v{rr}, v{rr}, v{rr+1}
        v_mul_f32 v{rr}, 0x{f2u(1.0/1024):x}, v{rr}
        """)
    A(f"""
    v_add_f32 v{lMb}, v{lA+7}, v{lR}
    v_fma_f32 v{lR}, -v{lR}, v{lR}, v{r2}
    v_cvt_pk_bf16_f32 v{lMb}, v{lMb}, v{lMb}
    v_max_f32 v{lR}, 0, v{lR}
    v_lshlrev_b32 v{lMb}, 16, v{lMb}
    """)
    A(f"""
    v_cvt_pk_bf16_f32 v{lR}, v{lR}, v{lR}
    v_lshlrev_b32 v{lR}, 16, v{lR}
    v_add_f32 v{lR}, 0x{f2u(1e-5):x}, v{lR}
    v_cvt_pk_bf16_f32 v{lR}, v{lR}, v{lR}
    v_lshlrev_b32 v{lR}, 16, v{lR}
    v_sqrt_f32 v{lR}, v{lR}
    s_nop 0
    v_cvt_pk_bf16_f32 v{lR}, v{lR}, v{lR}
    v_lshlrev_b32 v{lR}, 16, v{lR}
    v_rcp_f32 v{lR}, v{lR}
    v_sub_f32 v{lM}, 0, v{lMb}
    v_mov_b32 v{lM+1}, v{lM}
    v_mov_b32 v{lR+1}, v{lR}
    s_mov_b32 s{sT+3}, 0
    """)
    for n in range(4):
        for q in range(4):
            d = lF + 8 * n + 2 * q; o = lX + 4 * n + q
            A(f"v_pk_add_f32 v[{d}:{d+1}], v[{d}:{d+1}], v[{lM}:{lM+1}]")
        for q in range(4):
            d = lF + 8 * n + 2 * q; o = lX + 4 * n + q
            A(f"v_cvt_pk_bf16_f32 v{o}, v{d}, v{d+1}")
        for q in range(4):
            d = lF + 8 * n + 2 * q; o = lX + 4 * n + q
            A(f"v_lshlrev_b32 v{d}, 16, v{o}")
            A(f"v_and_b32 v{d+1}, 0xffff0000, v{o}")
        for q in range(4):
            d = lF + 8 * n + 2 * q
            A(f"v_pk_mul_f32 v[{d}:{d+1}], v[{d}:{d+1}], v[{lR}:{lR+1}]")
        for q in range(4):
            d = lF + 8 * n + 2 * q; o = lX + 4 * n + q
            A(f"v_cvt_pk_bf16_f32 v{o}, v{d}, v{d+1}")
        A(f"buffer_store_dwordx4 v[{lX+4*n}:{lX+4*n+3}], v{lSt}, s[{sSX}:{sSX+3}], s{sT+3} offen sc1")
        A(f"s_add_u32 s{sT+3}, s{sT+3}, 0x40000")
    stamp(A, 3, 2)
    srd(A, sSCd, 14, 15, WT_SIZE, WT_OFF)
    A("s_waitcnt vmcnt(0)")
    A(f"v_readfirstlane_b32 s{sTag}, v{vPv}")
    A("s_barrier")
    A(f"s_mul_i32 s{sTag}, s{sTag}, 0x9e3779b1")
    A(f"s_add_u32 s{sTag}, s{sTag}, 0x7f4a7c15")
    flag_set(F_LN)
    stamp(A, 4, 2)
    B = Asm()
    for r in range(24, 256, 2):
        B(f"v_pk_mov_b32 v[{r}:{r+1}], 0, 0")
    for r in list(range(88)) + list(range(208, 216)):
        B(f"v_accvgpr_write_b32 a{r}, 0")
    interleave(A, wgroups(True) + wgroups(True), lines(B))
    A(poll_issue(vPollR))
    poll_check(F_LN, vPollR, 0, first=[touch(s) for s in range(3)])
    A(f"s_mov_b32 s{sToq}, {384*6144}")
    A(f"s_mov_b32 s{sTog}, {384*7168}")
    stamp(A, 5, 2)
    for g in xgroups(0) + xgroups(1) + xgroups(2):
        for l in g: A(l)
    def copy_op(s):
        if s % 2: return f"buffer_load_dwordx4 {CT(s // 2)}, v{vCs}, s[{sSCs}:{sSCs+3}], s{sCl} offen"
        return f"buffer_store_dwordx4 {CT(s // 2)}, v{vCd}, s[{sSCd}:{sSCd+3}], s{sCs} offen sc1"
    def wread(f, a, pos):
        nm = names[f]
        if nm[0] in "qkv":
            p = "qkv".index(nm[0]); j = int(nm[1])
            addr = vA1 if j else vA0; off = 2048 * p + 1024 * a
        else:
            tl = int(nm[1]); addr = vAG
            off = (6144 if nm[0] == 'g' else 13312) + 3584 * a + 32 * tl
        return f"ds_read_b64_tr_b16 {WR(pos).sub(2*a, 2)}, v{addr} offset:{off}"
    def mfma(f, i, s, pos):
        if OPT.get("snake") and f % 2: i = 3 - i
        nm = names[f]; d = acc[(nm, i)]
        if nm[0] in "kv" or OPT.get("swapab"):
            return f"v_mfma_f32_16x16x32_bf16 {d}, {XR(s, i)}, {WR(pos)}, {d}"
        return f"v_mfma_f32_16x16x32_bf16 {d}, {WR(pos)}, {XR(s, i)}, {d}"
    LA = 6
    A("s_barrier")
    for f in range(LA):
        for a in range(2): A(wread(f, a, f % 8))
    A("s_waitcnt vmcnt(8)")
    stamp(A, 6, 2); stamp(A, 1, 1)
    A.label("M_loop1")
    for s in range(4):
        for f in range(20):
            F = 20 * s + f
            pos = F % 8
            if f == 14:
                tch = lambda q: 1 if (q % 4) < 3 else 0
                nvm = (tch(s - 2) + 5) + (1 + 4 + tch(s - 1) + 5) + (1 + 4 + tch(s))
                if s == 0:
                    A(f"s_cmp_eq_u32 s{sCnt}, 1"); A("s_cbranch_scc0 M_l1w"); A("s_waitcnt vmcnt(6)"); A.label("M_l1w")
                A(f"s_waitcnt vmcnt({nvm}) lgkmcnt(8)"); A("s_barrier")
            elif f % 2 == 0:
                A("s_waitcnt lgkmcnt(8)")
                extra = {0: f"s_add_u32 s{sR}, s{sR}, s{sSLOT}",
                         2: f"s_add_u32 s{sWoA}, s{sWoA}, s{sStA}",
                         4: f"s_add_u32 s{sWoB}, s{sWoB}, s{sStB}",
                         6: f"s_add_u32 s{sM}, s{sM}, s{sSLOT}",
                         8: f"s_add_u32 s{sCnt}, s{sCnt}, 1"}.get(f)
                if extra: A(extra)
            nf = (f + LA) % 20
            mid, post = [], []
            pre2 = []
            if f >= 15:
                m, l = dma(f - 15); pre2 = [m]; mid = [l]
            elif f in (3, 5, 7, 9): mid = [xload((s + 3) % 4, (f - 3) // 2)]
            elif f == 1: mid = [f"s_cmp_eq_u32 s{sR}, s{sREND}", f"s_cselect_b32 s{sR}, 0, s{sR}"]
            elif f == 10: mid = [f"s_cmp_eq_u32 s{sM}, s{sMEND}", f"s_cselect_b32 s{sM}, s{sM0}, s{sM}"]
            elif f == 11: mid = [f"s_add_u32 s{sXo}, s{sXo}, 0x20000"]
            elif f == 12 and s < 3: mid = [touch(s)]
            elif f == 12: mid = [f"s_add_u32 s{sToq}, s{sToq}, {256*6144}"]; post = [f"s_add_u32 s{sTog}, s{sTog}, {256*7168}"]
            elif f == 2:
                mid = [copy_op(s)]
                post = [{0: f"s_add_u32 s{sCs}, s{sCs}, 0x100000", 2: f"s_add_u32 s{sCs}, s{sCs}, 0x100000",
                         1: f"s_add_u32 s{sCl}, s{sCl}, {56 << 16}", 3: f"s_sub_u32 s{sCl}, s{sCl}, {55 << 16}"}[s]]
            elif f == 4 and s == 1:
                mid = [f"s_cmp_eq_u32 s{sCnt}, 17", f"s_cselect_b32 s{sCl}, s{sT7}, s{sCl}", f"s_cselect_b32 s{sSCs}, s84, s{sSCs}", f"s_cselect_b32 s{sSCs+1}, s85, s{sSCs+1}"]
                post = [f"s_cselect_b32 s{sSCs+2}, {1024*2048}, s{sSCs+2}"]
            elif f == 6 and s == 1:
                mid = [f"s_cmp_eq_u32 s{sCnt}, 21", f"s_cselect_b32 s{sSCs+2}, 0, s{sSCs+2}"]
            elif f == 4 and s == 3:
                mid = [f"s_cmp_eq_u32 s{sCnt}, 15", f"s_cselect_b32 s{sCl}, s{sT6}, s{sCl}"]
                post = [f"s_cmp_eq_u32 s{sCnt}, 19", f"s_cselect_b32 s{sCl}, s{sT8}, s{sCl}"]
            elif f == 6 and s == 3:
                mid = [f"s_cmp_eq_u32 s{sCnt}, 3", f"s_cselect_b32 s{sSCs+2}, {3584*2048}, s{sSCs+2}"]
            elif f == 13:
                mid = [f"v_add_u32 v{vA0}, s{sR}, v{vB0}", f"v_add_u32 v{vA1}, s{sR}, v{vB1}"]
                post = [f"v_add_u32_e64 v{vAG}, s{sR}, v{vBG}"]
            A(mfma(f, 0, s, pos))
            A(wread(nf, 0, (F + LA) % 8))
            A(mfma(f, 1, s, pos))
            A(wread(nf, 1, (F + LA) % 8))
            for l in pre2: A(l)
            A(mfma(f, 2, s, pos))
            for l in mid: A(l)
            A(mfma(f, 3, s, pos))
            for l in post: A(l)
    A(f"s_cmp_lg_u32 s{sCnt}, 28")
    A("s_cbranch_scc1 M_l1c")
    flag_set(F_LN | F_WT)
    A.label("M_l1c")
    A(f"s_cmp_lt_u32 s{sCnt}, 32")
    A("s_cbranch_scc1 M_loop1")
    stamp(A, 2, 1)
    sSH, sSK, sSXi, sSO = 20, 24, 28, 32
    vPollA = 16
    A(f"""
    s_load_dwordx2 s[68:69], s[0:1], 0
    s_load_dwordx2 s[70:71], s[0:1], 56
    s_and_b32 s{sT}, s2, 1
    s_lshl_b32 s{sT}, s{sT}, 3
    s_lshr_b32 s{sT+1}, s2, 5
    s_add_u32 s{sT}, s{sT}, s{sT+1}
    s_lshl_b32 s{sT}, s{sT}, 6
    v_and_b32 v{vPollA}, 15, v0
    v_lshlrev_b32 v{vPollA}, 10, v{vPollA}
    v_add_u32 v{vPollA}, s{sT}, v{vPollA}
    """)
    A(poll_issue(vPollA))
    srd(A, sSH, 14, 15, HF_SIZE, HF_OFF)
    srd(A, sSK, 14, 15, KVP_SIZE, KVP_OFF)
    sNL, sPL, sEPS, sCB, sCL = 36, 38, 40, 41, 42
    A(f"""
    s_mov_b32 s{sNL}, 0x{f2u(-LOG2E):x}
    s_mov_b32 s{sNL+1}, 0x{f2u(-LOG2E):x}
    s_mov_b32 s{sPL}, 0x{f2u(LOG2E):x}
    s_mov_b32 s{sPL+1}, 0x{f2u(LOG2E):x}
    s_mov_b32 s{sEPS}, 0x{f2u(1e-6):x}
    s_lshl_b32 s{sCB}, s{sHD}, 17
    s_lshr_b32 s{sCL}, s{sHD}, 1
    s_add_u32 s{sCL}, s{sCL}, 96
    s_lshl_b32 s{sCL}, s{sCL}, 17
    s_and_b32 s{sT}, s{sHD}, 1
    s_lshl_b32 s{sT}, s{sT}, 3
    s_add_u32 s{sCL}, s{sCL}, s{sT}
    """)
    def phi_tile(E, src, tmp, dst):
        b = src
        E(f"v_pk_mul_f32 v[{tmp}:{tmp+1}], v[{b}:{b+1}], s[{sPL}:{sPL+1}]")
        E(f"v_pk_mul_f32 v[{tmp+2}:{tmp+3}], v[{b+2}:{b+3}], s[{sPL}:{sPL+1}]")
        for j in range(4): E(f"v_exp_f32_e64 v{tmp+j}, v{tmp+j} clamp")
        for j in range(4): E(f"v_max_f32 v{b+j}, s{sEPS}, v{b+j}")
        E(f"v_pk_add_f32 v[{b}:{b+1}], v[{b}:{b+1}], v[{tmp}:{tmp+1}]")
        E(f"v_pk_add_f32 v[{b+2}:{b+3}], v[{b+2}:{b+3}], v[{tmp+2}:{tmp+3}]")
        E(f"v_cvt_pk_bf16_f32 v{dst}, v{b}, v{b+1}")
        E(f"v_cvt_pk_bf16_f32 v{dst+1}, v{b+2}, v{b+3}")
    def swiglu_tile(E, tl, i, tmp, dst):
        g = acc[(f"g{tl}", i)].base
        ur = acc[(f"u{tl}", i)]
        if ur.kind == 'a':
            u = tmp + 4
            for j in range(4): E(f"v_accvgpr_read_b32 v{u+j}, a{ur.base+j}")
        else:
            u = ur.base
        E(f"v_pk_mul_f32 v[{tmp}:{tmp+1}], v[{g}:{g+1}], s[{sNL}:{sNL+1}]")
        E(f"v_pk_mul_f32 v[{tmp+2}:{tmp+3}], v[{g+2}:{g+3}], s[{sNL}:{sNL+1}]")
        for j in range(4): E(f"v_exp_f32 v{tmp+j}, v{tmp+j}")
        E(f"v_pk_mul_f32 v[{g}:{g+1}], v[{g}:{g+1}], v[{u}:{u+1}]")
        E(f"v_pk_mul_f32 v[{g+2}:{g+3}], v[{g+2}:{g+3}], v[{u+2}:{u+3}]")
        E(f"v_pk_add_f32 v[{tmp}:{tmp+1}], v[{tmp}:{tmp+1}], 1.0 op_sel_hi:[1,0]")
        E(f"v_pk_add_f32 v[{tmp+2}:{tmp+3}], v[{tmp+2}:{tmp+3}], 1.0 op_sel_hi:[1,0]")
        for j in range(4): E(f"v_rcp_f32 v{tmp+j}, v{tmp+j}")
        E(f"v_pk_mul_f32 v[{g}:{g+1}], v[{g}:{g+1}], v[{tmp}:{tmp+1}]")
        E(f"v_pk_mul_f32 v[{g+2}:{g+3}], v[{g+2}:{g+3}], v[{tmp+2}:{tmp+3}]")
        E(f"v_cvt_pk_bf16_f32 v{dst}, v{g}, v{g+1}")
        E(f"v_cvt_pk_bf16_f32 v{dst+1}, v{g+2}, v{g+3}")
    def swiglu_pair(E, p, tmp):
        for i in range(4):
            o = acc[(f"g{2*p}", i)].base
            swiglu_tile(E, 2 * p, i, tmp, o)
            swiglu_tile(E, 2 * p + 1, i, tmp, o + 2)
            E(f"buffer_store_dwordx4 v[{o}:{o+3}], v{vX}, s[{sSH}:{sSH+3}], s{sCB} offen offset:{1024*i} sc1")
        E(f"s_add_u32 s{sCB}, s{sCB}, {32 << 17}")
    swiglu_pair(A, 0, 2)
    tq = acc[("u0", 0)].base
    kb = acc[("k0", 0)].base; vb = acc[("v0", 0)].base
    vONE = tq + 8
    for j in range(4): A(f"v_mov_b32 v{vONE+j}, 0x3f803f80")
    for dt in range(2):
        for i in range(4):
            phi_tile(A, kb + 16 * dt + 4 * i, tq, kb + 16 * dt + 8 * (i // 2) + 2 * (i % 2))
    for et in range(2):
        for i in range(4):
            src = vb + 16 * et + 4 * i
            dst = vb + 16 * et + 8 * (i // 2) + 2 * (i % 2)
            A(f"v_cvt_pk_bf16_f32 v{dst}, v{src}, v{src+1}")
            A(f"v_cvt_pk_bf16_f32 v{dst+1}, v{src+2}, v{src+3}")
    A("s_nop 1")
    for u in range(2):
        for dt in range(2):
            for et in range(3):
                a = kb + 16 * dt + 8 * u
                b = vb + 16 * et + 8 * u if et < 2 else vONE
                p = PT(dt * 3 + et)
                A(f"v_mfma_f32_16x16x32_bf16 {p}, v[{a}:{a+3}], v[{b}:{b+3}], {'0' if u == 0 else p}")
    vA, vBd, vR, vRb = [2, 3, 4, 5], 6, [7, 8, 9, 10], [24, 25, 26, 27]
    vXO, vKv, vZ, vFw, vZw, vZr, vFr = 28, 29, 30, 31, 23, 20, 21
    vk0, vk1, vk2 = 11, 12, 22
    sRT, sCT, sAo, sBo = 43, 44, 45, 46
    sSA, sSB = sSH, sSCd
    A(f"""
    s_mul_i32 s{sT}, s{sW}, 6144
    s_add_u32 s{sT}, s{sT}, {KVL}
    v_add_u32 v{vk0}, s{sT}, v{vL16}
    s_lshl_b32 s{sT}, s{sW}, 10
    s_add_u32 s{sT+1}, s{sT}, {KVL}
    v_add_u32 v{vk1}, s{sT+1}, v{vL16}
    s_lshl_b32 s{sT+1}, s{sHD}, 3
    s_add_u32 s{sT+1}, s{sT+1}, s{sRB}
    s_mul_i32 s{sT+1}, s{sT+1}, 6144
    v_add_u32 v{vk2}, s{sT}, v{vL16}
    s_add_u32 s{sT+2}, s{sT+1}, 4096
    """)
    for t in range(6):
        A(f"ds_write_b128 v{vk0}, {PT(t)} offset:{1024*t}")
    A(f"""
    s_and_b32 s{sT+3}, s2, 7
    s_lshr_b32 s{sRT}, s{sT+3}, 1
    s_lshl_b32 s{sRT}, s{sRT}, 2
    s_bfe_u32 s{sT}, s2, 0x20003
    s_add_u32 s{sRT}, s{sRT}, s{sT}
    s_and_b32 s{sCT}, s{sT+3}, 1
    s_lshl_b32 s{sCT}, s{sCT}, 3
    s_lshr_b32 s{sT}, s2, 5
    s_add_u32 s{sCT}, s{sCT}, s{sT}
    s_lshl_b32 s{sT}, s{sW}, 4
    s_add_u32 s{sT}, s{sT}, s{sCT}
    s_lshl_b32 s{sT}, s{sT}, 12
    v_add_u32 v{vBd}, s{sT}, v{vL16}
    s_lshl_b32 s{sT}, s{sRT}, 13
    s_lshl_b32 s{sT+3}, s{sW}, 11
    s_add_u32 s{sT}, s{sT}, s{sT+3}
    v_add_u32 v{vA[0]}, s{sT}, v{vL16}
    v_add_u32 v{vA[1]}, 0x20000, v{vA[0]}
    v_add_u32 v{vA[2]}, 0x40000, v{vA[0]}
    v_add_u32 v{vA[3]}, 0x60000, v{vA[0]}
    s_lshr_b32 s{sT}, s{sRT}, 1
    s_lshl_b32 s{sT}, s{sT}, 3
    v_and_b32 v{vT}, 7, v0
    v_bfe_u32 v{vT+1}, v0, 3, 2
    v_lshl_add_u32 v{vT+1}, v{vT+1}, 6, v{vT}
    v_add_u32 v{vT+1}, s{sT}, v{vT+1}
    s_and_b32 s{sT}, s2, 0xc7
    v_lshlrev_b32 v{vT}, 3, v{vT}
    v_add_u32 v{vT}, s{sT}, v{vT}
    v_cmp_gt_u32 vcc, 32, v0
    s_nop 1
    v_cndmask_b32 v{vPollR}, v{vT}, v{vT+1}, vcc
    v_lshlrev_b32 v{vPollR}, 6, v{vPollR}
    s_mov_b32 s{sAo}, 0
    s_mov_b32 s{sBo}, 0
    s_lshl_b32 s{sM0}, s{sW}, 12
    s_mov_b32 s{sM}, s{sM0}
    s_mov_b32 s{sSLOT}, {G2_SLOT}
    s_mov_b32 s{sR}, 0
    s_mov_b32 s{sCnt}, 0
    s_mov_b32 s{sREND}, {G2_R*G2_SLOT}
    s_add_u32 s{sMEND}, s{sM0}, s{sREND}
    """)
    poll_check(F_WT, vPollA, 0)
    A("s_waitcnt lgkmcnt(0)")
    A("s_barrier")
    flag_set(F_LN | F_WT | F_A)
    stamp(A, 3, 1)
    srd(A, sSXi, 68, 69, 0x400000)
    srd(A, sSO, 70, 71, 0x400000)
    AR = lambda s, q, i: Reg('a', 128 + 32 * s + 8 * q + 4 * i)
    def bdma(b):
        return f"buffer_load_dwordx4 v{vBd}, s[{sSB}:{sSB+3}], s{sBo} offen offset:{1024*b} sc1 lds"
    def aload(s, q, i):
        return f"buffer_load_dwordx4 {AR(s, q, i)}, v{vA[q]}, s[{sSA}:{sSA+3}], s{sAo} offen offset:{1024*i} sc1"
    def bgroups(n):
        L = [([f"s_mov_b32 m0, s{sM}", "s_nop 0"] if b == 0 else []) + [bdma(b)] for b in range(4 if n < 3 else 2)]
        if n < 3: L[-1] += [f"s_add_u32 s{sBo}, s{sBo}, 0x40000", f"s_add_u32 s{sM}, s{sM}, s{sSLOT}"]
        return L
    def agroups(n):
        L = [[aload(n, q, i)] for q in range(4 if n < 3 else 3) for i in range(2)]
        if n < 3: L[-1] += [f"s_add_u32 s{sAo}, s{sAo}, 0x80000"]
        return L
    tb = kb + 8
    for sw in range(4):
        A(f"ds_read_b128 v[{tb+4*sw}:{tb+4*sw+3}], v{vk1} offset:{6144*sw}")
    for sw in range(4):
        A(f"ds_read_b128 v[{tb+16+4*sw}:{tb+16+4*sw+3}], v{vk1} offset:{6144*sw+4096}")
    def sum4(b):
        A(f"v_pk_add_f32 v[{b}:{b+1}], v[{b}:{b+1}], v[{b+4}:{b+5}]")
        A(f"v_pk_add_f32 v[{b+2}:{b+3}], v[{b+2}:{b+3}], v[{b+6}:{b+7}]")
        A(f"v_pk_add_f32 v[{b+8}:{b+9}], v[{b+8}:{b+9}], v[{b+12}:{b+13}]")
        A(f"v_pk_add_f32 v[{b+10}:{b+11}], v[{b+10}:{b+11}], v[{b+14}:{b+15}]")
        A(f"v_pk_add_f32 v[{b}:{b+1}], v[{b}:{b+1}], v[{b+8}:{b+9}]")
        A(f"v_pk_add_f32 v[{b+2}:{b+3}], v[{b+2}:{b+3}], v[{b+10}:{b+11}]")
    B = Asm(); swiglu_pair(B, 1, tq); w1 = lines(B)
    for l in w1[:20]: A(l)
    A("s_waitcnt lgkmcnt(0)")
    sum4(tb)
    A(f"buffer_store_dwordx4 v[{tb}:{tb+3}], v{vk2}, s[{sSK}:{sSK+3}], s{sT+1} offen sc1")
    A(f"s_cmp_lt_u32 s{sW}, 2")
    A("s_cbranch_scc0 M_kv1")
    sum4(tb + 16)
    A(f"buffer_store_dwordx4 v[{tb+16}:{tb+19}], v{vk2}, s[{sSK}:{sSK+3}], s{sT+2} offen sc1")
    A.label("M_kv1")
    for l in w1[20:]: A(l)
    A(poll_issue(vPollR))
    pqb = 240
    B = Asm()
    for i in range(4):
        for dt in range(2):
            qa = acc[(f"q{dt}", i)].base
            src = tq + 8 * dt
            for j in range(4): B(f"v_accvgpr_read_b32 v{src+j}, a{qa+j}")
            phi_tile(B, src, src + 4, pqb + 4 * i + 2 * dt)
    t0 = tq + 16
    B(f"""
    v_bfe_u32 v{t0}, v0, 2, 3
    v_lshrrev_b32 v{t0+1}, 5, v0
    v_lshlrev_b32 v{t0+1}, 10, v{t0+1}
    v_lshl_add_u32 v{t0+1}, v{t0}, 7, v{t0+1}
    v_and_b32 v{t0+2}, 3, v0
    v_lshl_add_u32 v{t0+1}, v{t0+2}, 3, v{t0+1}
    v_lshrrev_b32 v{t0}, 1, v{t0}
    v_lshl_add_u32 v{vRb[0]}, v{t0}, 5, v{t0+1}
    v_xor_b32 v{vRb[1]}, 32, v{vRb[0]}
    v_xor_b32 v{vRb[2]}, 64, v{vRb[0]}
    v_xor_b32 v{vRb[3]}, 0x60, v{vRb[0]}
    v_mov_b32 v{vR[0]}, v{vRb[0]}
    v_mov_b32 v{vR[1]}, v{vRb[1]}
    v_mov_b32 v{vR[2]}, v{vRb[2]}
    v_mov_b32 v{vR[3]}, v{vRb[3]}
    v_and_b32 v{t0}, 15, v0
    v_lshlrev_b32 v{t0}, 11, v{t0}
    v_bfe_u32 v{t0+1}, v0, 4, 1
    v_lshl_add_u32 v{t0}, v{t0+1}, 5, v{t0}
    v_lshrrev_b32 v{t0+1}, 5, v0
    v_lshl_add_u32 v{t0}, v{t0+1}, 4, v{t0}
    s_lshl_b32 s{sT}, s{sRT}, 18
    s_lshl_b32 s{sT+3}, s{sW}, 16
    s_add_u32 s{sT}, s{sT}, s{sT+3}
    s_lshl_b32 s{sT+3}, s{sCT}, 7
    s_add_u32 s{sT}, s{sT}, s{sT+3}
    v_add_u32 v{vXO}, s{sT}, v{t0}
    s_lshr_b32 s{sT}, s{sW}, 1
    s_add_u32 s{sT}, s{sT}, s{sW}
    s_lshl_b32 s{sT}, s{sT}, 10
    s_mul_i32 s{sT+3}, s{sHD}, 49152
    s_add_u32 s{sT}, s{sT}, s{sT+3}
    v_add_u32 v{vKv}, s{sT}, v{vL16}
    v_and_b32 v{t0}, 7, v0
    v_mul_u32_u24 v{vZ}, 6144, v{t0}
    v_bfe_u32 v{t0}, v0, 3, 2
    v_lshl_add_u32 v{vZ}, v{t0}, 8, v{vZ}
    v_lshrrev_b32 v{t0}, 5, v0
    v_mul_u32_u24 v{t0}, 3072, v{t0}
    v_add3_u32 v{vZ}, v{vZ}, v{t0}, s{sT+3}
    s_and_b32 s{sT}, s{sW}, 1
    s_lshl_b32 s{sT}, s{sT}, 10
    s_lshr_b32 s{sT+3}, s{sW}, 1
    s_lshl_b32 s{sT+3}, s{sT+3}, 3
    s_add_u32 s{sT}, s{sT}, s{sT+3}
    s_add_u32 s{sT}, s{sT}, {FIN}
    v_add_u32 v{vFw}, s{sT}, v{vL16}
    v_bfe_u32 v{t0}, v0, 3, 2
    v_lshlrev_b32 v{t0}, 4, v{t0}
    v_lshrrev_b32 v{t0+1}, 5, v0
    v_lshl_add_u32 v{t0}, v{t0+1}, 3, v{t0}
    v_add_u32 v{vZw}, {FIN+2048}, v{t0}
    v_and_b32 v{t0}, 48, v0
    v_add_u32 v{vZr}, {FIN+2048}, v{t0}
    v_add_u32 v{vFr}, {FIN}, v{vL16}
    """)
    for r in range(32, 64, 2):
        B(f"v_pk_mov_b32 v[{r}:{r+1}], 0, 0")
    interleave(A, bgroups(0) + bgroups(1) + bgroups(2) + bgroups(3), lines(B))
    poll_check(F_A, vPollR, 14)
    A("s_barrier")
    flag_set(F_LN | F_WT | F_A | F_A2)
    stamp(A, 4, 1)
    B = Asm()
    swiglu_pair(B, 2, tq)
    for i in range(4):
        o = acc[("g6", i)].base
        swiglu_tile(B, 6, i, tq, o)
        B(f"buffer_store_dwordx2 v[{o}:{o+1}], v{vX}, s[{sSH}:{sSH+3}], s{sCL} offen offset:{1024*i} sc1")
    interleave(A, agroups(0) + agroups(1) + agroups(2) + agroups(3), lines(B))
    A(poll_issue(vPollR))
    ACC = lambda i, j: 32 + 16 * i + 4 * j
    BR = lambda p: Reg('v', 96 + 4 * p)
    vXD = 128
    kvb, zb, fr, ob = 144, 176, 180, 192
    def bread(F, a, pos):
        q, j = (F % 16) // 4, F % 4
        return f"ds_read_b64_tr_b16 {BR(pos).sub(2*a, 2)}, v{vR[j]} offset:{4096*q + 2048*a}"
    A("s_waitcnt vmcnt(23)")
    A("s_barrier")
    stamp(A, 5, 1); stamp(A, 1, 3)
    for F in range(LA):
        for a in range(2): A(bread(F, a, F % 8))
    def stage(s, loads, last=False, vm=26, finish=False):
        for F in range(16):
            q, j = F // 4, F % 4
            pos = F % 8
            rd = not (last and F + LA >= 16)
            if F == 10:
                if not last:
                    A(f"s_waitcnt vmcnt({vm}) lgkmcnt(8)"); A("s_barrier")
                else:
                    A("s_waitcnt lgkmcnt(8)")
            elif F % 2 == 0:
                n = 8 if not last or F < 10 else max(0, 2 * (16 - F - 2))
                A(f"s_waitcnt lgkmcnt({n})")
                extra = {0: f"s_add_u32 s{sR}, s{sR}, s{sSLOT}", 4: f"s_add_u32 s{sM}, s{sM}, s{sSLOT}"}.get(F)
                if extra: A(extra)
            m = lambda i: f"v_mfma_f32_16x16x32_bf16 v[{ACC(i, j)}:{ACC(i, j)+3}], {BR(pos)}, {AR(s, q, i)}, v[{ACC(i, j)}:{ACC(i, j)+3}]"
            A(m(0))
            if rd: A(bread(F + LA, 0, (F + LA) % 8))
            A(m(1))
            if rd: A(bread(F + LA, 1, (F + LA) % 8))
            if F == 1:
                A(f"s_cmp_eq_u32 s{sR}, s{sREND}"); A(f"s_cselect_b32 s{sR}, 0, s{sR}")
            if F == 5:
                A(f"s_cmp_eq_u32 s{sM}, s{sMEND}"); A(f"s_cselect_b32 s{sM}, s{sM0}, s{sM}")
            if F == 8 and loads: A(f"s_add_u32 s{sBo}, s{sBo}, 0x40000")
            if F == 10 and loads: A(f"s_mov_b32 m0, s{sM}")
            if F == 9:
                for jj in range(4): A(f"v_add_u32 v{vR[jj]}, s{sR}, v{vRb[jj]}")
            if loads or finish:
                if F in (0, 1): A(aload((s + 3) % 4, 3, F))
                if F == 2: A(f"s_add_u32 s{sAo}, s{sAo}, 0x80000")
                if F in (3, 7): A(bdma(2 + F // 4))
            if loads:
                if F in (4, 5, 8, 9, 12, 13): A(aload(s, F // 4 - 1, F % 4))
                if F in (11, 15): A(bdma(F // 4 - 2))
    A.label("M_loop2")
    for s in range(4): stage(s, True, vm=23 if s == 0 else 26)
    A(f"s_add_u32 s{sCnt}, s{sCnt}, 1")
    for k in (1, 2, 3, 5, 6, 7):
        A(f"s_cmp_eq_u32 s{sCnt}, {k}")
        A(f"s_cbranch_scc1 M_ev{k}")
    A(f"""
    s_cmp_lt_u32 s{sCnt}, 8
    s_cbranch_scc1 M_loop2
    s_branch M_tail
    """)
    A.label("M_ev1")
    stamp(A, 2, 3)
    flag_set(F_LN | F_WT | F_A | F_A2 | F_B)
    poll_check(F_A2, vPollR)
    A(f"s_mov_b32 s{sT}, 0")
    for r in range(8):
        A(f"buffer_load_dwordx4 v[{kvb+4*r}:{kvb+4*r+3}], v{vKv}, s[{sSK}:{sSK+3}], s{sT} offen sc1")
        A(f"s_add_u32 s{sT}, s{sT}, 6144")
    A(f"buffer_load_dwordx4 v[{zb}:{zb+3}], v{vZ}, s[{sSK}:{sSK+3}], 0 offen offset:2048 sc1")
    A("s_branch M_loop2")
    A.label("M_ev2")
    stamp(A, 3, 3)
    A(poll_issue(vPollR))
    for st in (16, 8, 4):
        for r in range(0, st, 2):
            A(f"v_pk_add_f32 v[{kvb+r}:{kvb+r+1}], v[{kvb+r}:{kvb+r+1}], v[{kvb+st+r}:{kvb+st+r+1}]")
    for dpp in ("quad_perm:[1,0,3,2]", "quad_perm:[2,3,0,1]", "row_half_mirror"):
        for j in range(4):
            A(f"v_add_f32_dpp v{zb+j}, v{zb+j}, v{zb+j} {dpp} row_mask:0xf bank_mask:0xf")
    A(f"""
    v_cvt_pk_bf16_f32 v{kvb}, v{kvb}, v{kvb+1}
    v_cvt_pk_bf16_f32 v{kvb+1}, v{kvb+2}, v{kvb+3}
    v_cvt_pk_bf16_f32 v{zb}, v{zb}, v{zb+1}
    v_cvt_pk_bf16_f32 v{zb+1}, v{zb+2}, v{zb+3}
    ds_write_b64 v{vFw}, v[{kvb}:{kvb+1}]
    ds_write_b64 v{vZw}, v[{zb}:{zb+1}]
    s_add_u32 s{sT}, s{sHD}, 112
    s_lshl_b32 s{sT}, s{sT}, 17
    s_waitcnt lgkmcnt(0)
    s_barrier
    ds_read_b128 v[{fr}:{fr+3}], v{vFr}
    ds_read_b128 v[{fr+4}:{fr+7}], v{vFr} offset:1024
    ds_read_b128 v[{fr+8}:{fr+11}], v{vZr}
    s_waitcnt lgkmcnt(0)
    """)
    for i in range(4):
        for et in (2, 0, 1):
            d = ob + 12 * i + 4 * et
            A(f"v_mfma_f32_16x16x32_bf16 v[{d}:{d+3}], v[{fr+4*et}:{fr+4*et+3}], v[{pqb+4*i}:{pqb+4*i+3}], 0")
    A("s_nop 2")
    for i in range(4): A(f"v_add_f32 v{ob+12*i+8}, s{sEPS}, v{ob+12*i+8}")
    for i in range(4): A(f"v_rcp_f32 v{ob+12*i+8}, v{ob+12*i+8}")
    A("s_nop 0")
    for i in range(4):
        d = ob + 12 * i
        for q in range(4):
            A(f"v_pk_mul_f32 v[{d+2*q}:{d+2*q+1}], v[{d+2*q}:{d+2*q+1}], v[{d+8}:{d+9}] op_sel_hi:[1,0]")
        for q in range(4):
            A(f"v_cvt_pk_bf16_f32 v{d+q}, v{d+2*q}, v{d+2*q+1}")
        A(f"buffer_store_dwordx4 v[{d}:{d+3}], v{vX}, s[{sSH}:{sSH+3}], s{sT} offen offset:{1024*i} sc1")
    A("s_branch M_loop2")
    A.label("M_ev3")
    stamp(A, 4, 3)
    flag_set(F_LN | F_WT | F_A | F_A2 | F_B | F_C)
    poll_check(F_B, vPollR)
    A("s_branch M_loop2")
    A.label("M_ev5")
    stamp(A, 5, 3)
    A(poll_issue(vPollR))
    A("s_branch M_loop2")
    A.label("M_ev6")
    poll_check(F_C, vPollR)
    A(f"""
    s_or_b32 s{sT}, s2, s{sW}
    s_cmp_eq_u32 s{sT}, 0
    s_cbranch_scc0 M_loop2
    v_mov_b32 v{vT}, s{sTag}
    s_mov_b32 s{sT}, {EPOCH}
    s_mov_b64 exec, 1
    buffer_store_dword v{vT}, off, s[{sSF}:{sSF+3}], s{sT} sc1
    s_mov_b64 exec, -1
    """)
    A("s_branch M_loop2")
    A.label("M_ev7")
    A(f"s_mov_b32 s{sT}, 0")
    A(f"s_mov_b32 s{sT+1}, {16*2048}")
    for i in range(2):
        for pr in range(2):
            A(f"buffer_load_dwordx4 v[{vXD+8*i+4*pr}:{vXD+8*i+4*pr+3}], v{vXO}, s[{sSXi}:{sSXi+3}], s{sT+i} offen offset:{64*pr}")
    tb = 144
    for r in range(0, 32, 2):
        A(f"v_pk_mul_f32 v[{tb+r}:{tb+r+1}], v[{32+r}:{33+r}], s[{sNL}:{sNL+1}]")
    for r in range(32): A(f"v_exp_f32 v{tb+r}, v{tb+r}")
    for r in range(0, 32, 2):
        A(f"v_pk_add_f32 v[{tb+r}:{tb+r+1}], v[{tb+r}:{tb+r+1}], 1.0 op_sel_hi:[1,0]")
    for r in range(32): A(f"v_rcp_f32 v{tb+r}, v{tb+r}")
    for r in range(0, 32, 2):
        A(f"v_pk_mul_f32 v[{64+r}:{65+r}], v[{32+r}:{33+r}], v[{tb+r}:{tb+r+1}]")
    for r in range(0, 32, 2):
        A(f"v_pk_mov_b32 v[{32+r}:{33+r}], 0, 0")
    A("s_branch M_loop2")
    A.label("M_tail")
    stamp(A, 6, 3)
    for i in range(2):
        for pr in range(2):
            x = vXD + 8 * i + 4 * pr
            for q in range(4):
                A(f"v_lshlrev_b32 v{tb+8*(2*i+pr)+2*q}, 16, v{x+q}")
                A(f"v_and_b32 v{tb+8*(2*i+pr)+2*q+1}, 0xffff0000, v{x+q}")
    stage(0, False, vm=6 + 12 + 4, finish=True)
    stage(1, False, vm=6 + 4)
    stage(2, False, vm=0)
    stage(3, False, last=True)
    A("s_nop 4")
    for i in range(2):
        for pr in range(2):
            t0 = ACC(i, 2 * pr); t1 = ACC(i, 2 * pr + 1)
            for t in (t0, t1):
                for r in (0, 2):
                    A(f"v_pk_mul_f32 v[{t+r}:{t+r+1}], v[{t+r}:{t+r+1}], v[{t+32+r}:{t+33+r}]")
    for i in range(2):
        for pr in range(2):
            t0 = ACC(i, 2 * pr); t1 = ACC(i, 2 * pr + 1)
            x = vXD + 8 * i + 4 * pr; xb = tb + 8 * (2 * i + pr)
            for r in range(4):
                A(f"v_permlane16_swap_b32 v{t0+r}, v{t1+r}")
            for q in range(4):
                A(f"v_pk_add_f32 v[{t0+2*q}:{t0+2*q+1}], v[{t0+2*q}:{t0+2*q+1}], v[{xb+2*q}:{xb+2*q+1}]")
            for q in range(4):
                A(f"v_cvt_pk_bf16_f32 v{x+q}, v{t0+2*q}, v{t0+2*q+1}")
            A(f"buffer_store_dwordx4 v[{x}:{x+3}], v{vXO}, s[{sSO}:{sSO+3}], s{sT+i} offen offset:{64*pr}")
    stamp(A, 6, 1)
    if OPT["stamp"]:
        A("s_memrealtime s[100:101]")
        A("s_waitcnt lgkmcnt(0)")
        srd(A, 16, 14, 15, 0x10000, STAMP_OFF + 0x10000)
        A(f"s_lshl_b32 s{sT}, s2, 2"); A(f"s_add_u32 s{sT}, s{sT}, s{sW}"); A(f"s_lshl_b32 s{sT}, s{sT}, 6")
        A(f"v_mov_b32 v0, s{sT}")
        for i, r in enumerate(SREG):
            A(f"v_mov_b32 v1, s{r}"); A(f"buffer_store_dword v1, v0, s[16:19], 0 offen offset:{4*i}")
        A(f"v_mov_b32 v1, s100"); A(f"buffer_store_dword v1, v0, s[16:19], 0 offen offset:56")
        A(f"v_mov_b32 v1, s99"); A(f"buffer_store_dword v1, v0, s[16:19], 0 offen offset:60")
    A.label("M_end")
    A("s_endpgm")
    return A.text()

def build():
    K = NAME + "_kernel"
    hdr = open(f"cdna_kernels/{NAME}.s.ref").read().split("; Override")[0]
    out = [hdr.rstrip("\n")]
    if OPT.get("list"):
        out.append(f"; @launch kernel={K} grid=(256,1,1) block=(256,1,1) lds={LDS_BYTES}")
    else:
        out.append(f"; @launch grid=(256,1,1) block=(256,1,1) lds={LDS_BYTES}")
    out.append('.amdgcn_target "amdgcn-amd-amdhsa--gfx950"')
    out.append(".text")
    body, size = align_kernel(gen())
    for p in check_hazards(body): print("HAZARD", p, file=sys.stderr)
    print("code bytes", size, file=sys.stderr)
    assert size < 32768
    out.append(body.rstrip("\n"))
    out.append(".p2align 8")
    out.append(f".fill {(33792 - size) // 4}, 4, 0xbf810000")
    out.append(f""".section .rodata,"a"
.p2align 6
.amdhsa_kernel {K}
  .amdhsa_next_free_vgpr 512
  .amdhsa_next_free_sgpr 102
  .amdhsa_accum_offset 256
  .amdhsa_group_segment_fixed_size 0
  .amdhsa_kernarg_size 80
  .amdhsa_user_sgpr_count 2
  .amdhsa_user_sgpr_kernarg_segment_ptr 1
  .amdhsa_system_sgpr_workgroup_id_x 1
.end_amdhsa_kernel""")
    return "\n".join(out) + "\n"

if __name__ == "__main__":
    for a in sys.argv[2:]:
        k, v = a.split("="); OPT[k] = int(v)
    open(sys.argv[1], "w").write(build())
```

```python
import sys, struct
from asmlib import *

NAME = "recurrent_scan__linear_attn_block__swiglu_ffn__prompt"
XF_OFF = 0x0
HF_OFF = 0x400000
HF_SIZE = 144 * 131072
KVP_OFF = 0x1600000
KVP_SIZE = 32 * 8 * 6144
WT_OFF = 0x1C00000
WT_SIZE = 144 * 65536
FLG_OFF = 0x2800000
FLG_SIZE = 256 * 64 + 4096
EPOCH = 256 * 64 + 2048
STAMP_OFF = 0x3000000

def f2u(x): return struct.unpack("<I", struct.pack("<f", x))[0]
LOG2E = 1.4426950408889634
OPT = dict(stamp=0, align=1, snake=1)

G1_S, G1_SLOT = 5, 20480
KVL = G1_S * G1_SLOT
G2_R, G2_SLOT = 5, 16384
FIN = 131072
LDS_BYTES = FIN + 4096
F_LN, F_WT, F_A, F_A2, F_B, F_C = 1, 2, 4, 8, 16, 32

def srd(A, d, lo, hi, size, off=0):
    if off:
        A(f"s_add_u32 s{d}, s{lo}, 0x{off:x}")
        A(f"s_addc_u32 s{d+1}, s{hi}, 0")
    else:
        A(f"s_mov_b32 s{d}, s{lo}")
        A(f"s_mov_b32 s{d+1}, s{hi}")
    A(f"s_mov_b32 s{d+2}, 0x{size:x}")
    A(f"s_mov_b32 s{d+3}, 0x00020000")

SREG = [6, 7, 86, 87, 96, 97, 98]
def stamp(A, idx, mode):
    if OPT["stamp"] != mode: return
    A("s_memrealtime s[100:101]" if OPT.get("rt") else "s_memtime s[100:101]")
    A("s_waitcnt lgkmcnt(0)")
    A(f"s_mov_b32 s{SREG[idx]}, s100")

def interleave(A, groups, work):
    per = -(-len(work) // len(groups)); wi = 0
    for grp in groups:
        for l in grp: A(l)
        for l in work[wi:wi + per]: A(l)
        wi += per
    for l in work[wi:]: A(l)

def lines(B): return [l.strip() for l in B.lines]

def gen():
    A = Asm()
    K = NAME + "_kernel"
    A.raw(f".globl {K}\n.p2align 8\n.type {K},@function\n{K}:")
    if OPT["align"]: A.raw("    ; @align on")
    vX, vD, vA0, vA1, vAG, vB0, vB1, vBG, vL16 = 1, [2, 3, 4, 5, 6], 7, 8, 9, 10, 11, 12, 13
    vT = 14
    vPollR, vPv, vCd, vTq, vTg, vCs, vDum = 17, 18, 16, 20, 21, 22, 23
    names = ["k0", "k1", "v0", "v1", "q0", "q1"]
    for t in range(7): names += [f"g{t}", f"u{t}"]
    acc = {}
    nv = 24; na = 0
    for nm in ["k0", "k1", "v0", "v1"] + [f"g{t}" for t in range(7)]:
        for i in range(4):
            acc[(nm, i)] = Reg('v', nv); nv += 4
    for t in range(7):
        for i in range(4):
            if t * 4 + i < 14:
                acc[(f"u{t}", i)] = Reg('v', nv); nv += 4
            else:
                acc[(f"u{t}", i)] = Reg('a', na); na += 4
    for nm in ["q0", "q1"]:
        for i in range(4):
            acc[(nm, i)] = Reg('a', na); na += 4
    assert nv == 256 and na == 88
    XR = lambda s, i: Reg('a', 88 + 16 * s + 4 * i)
    WR = lambda p: Reg('a', 152 + 4 * p)
    PT = lambda t: Reg('a', 184 + 4 * t)
    CT = lambda k: Reg('a', 208 + 4 * k)
    sSX, sSD = 16, [20, 24, 28, 32, 36]
    sSCs, sSCd, sSF = 40, 72, 92
    sST = [76, 80, 44]
    sW, sHD, sRB, sXo, sWoA, sWoB, sStA, sStB, sM, sR, sCnt = 48, 49, 50, 51, 52, 53, 54, 55, 56, 57, 58
    sSLOT, sREND, sMEND, sM0, sCl, sCs = 59, 60, 61, 62, 63, 3
    sWEnd, sFo, sSpin, sTag = 88, 90, 91, 12
    sT = 64
    uid = [0]
    def flag_set(val):
        uid[0] += 1; L = f"M_fs{uid[0]}"
        A(f"""
        s_cmp_eq_u32 s{sW}, 0
        s_cbranch_scc0 {L}
        v_mov_b32 v{vT}, s{sTag}
        v_mov_b32 v{vT+1}, {val}
        s_mov_b64 exec, 1
        buffer_store_dwordx2 v[{vT}:{vT+1}], off, s[{sSF}:{sSF+3}], s{sFo} sc1
        s_mov_b64 exec, -1
        """)
        A.label(L)
    def poll_issue(vaddr):
        return f"buffer_load_dwordx2 v[{vPv}:{vPv+1}], v{vaddr}, s[{sSF}:{sSF+3}], 0 offen sc1"
    def poll_check(bit, vaddr, vm=None, first=None):
        uid[0] += 1; L = f"M_pc{uid[0]}"
        if vm is not None: A(f"s_waitcnt vmcnt({vm})")
        A(f"s_mov_b32 s{sSpin}, 0")
        A.label(L)
        A(f"""
        v_xor_b32 v{vPv}, s{sTag}, v{vPv}
        v_bfe_u32 v{vPv+1}, v{vPv+1}, {bit.bit_length()-1}, 1
        v_xor_b32 v{vPv+1}, 1, v{vPv+1}
        v_or_b32 v{vPv}, v{vPv}, v{vPv+1}
        v_cmp_ne_u32 vcc, 0, v{vPv}
        s_add_u32 s{sSpin}, s{sSpin}, 1
        s_nop 3
        s_cbranch_vccz {L}_ok
        s_cmp_ge_u32 s{sSpin}, 0x40000
        s_cbranch_scc1 {L}_ok
        """)
        if first:
            A(f"s_cmp_eq_u32 s{sSpin}, 1"); A(f"s_cbranch_scc0 {L}_n")
            for l in first: A(l)
            A.label(L + "_n")
        A(f"""
        s_sleep {OPT.get("sleep", 1)}
        {poll_issue(vaddr)}
        s_waitcnt vmcnt(0)
        s_branch {L}
        """)
        A.label(L + "_ok")
    def rowblock_poll_addr(E, srb, t):
        E(f"""
        s_lshl_b32 s{sT+3}, s{srb}, 3
        v_and_b32 v{t}, 7, v0
        v_bfe_u32 v{t+1}, v0, 3, 2
        v_lshl_add_u32 v{t+1}, v{t+1}, 6, v{t}
        v_add_u32 v{t+1}, s{sT+3}, v{t+1}
        """)
    A(f"""
    s_cmp_ge_u32 s2, 256
    s_cbranch_scc1 M_end
    """)
    if OPT["stamp"]:
        A("s_memrealtime s[100:101]"); A("s_waitcnt lgkmcnt(0)"); A("s_mov_b32 s99, s100")
        A("s_memrealtime s[100:101]" if OPT.get("rt") else "s_memtime s[100:101]"); A("s_waitcnt lgkmcnt(0)"); A(f"s_mov_b32 s{SREG[0]}, s100")
    A(f"""
    s_load_dwordx4 s[68:71], s[0:1], 0
    s_load_dwordx4 s[8:11], s[0:1], 32
    s_load_dwordx4 s[12:15], s[0:1], 64
    s_load_dwordx2 s[84:85], s[0:1], 16
    s_load_dwordx2 s[{sSCs}:{sSCs+1}], s[0:1], 48
    s_getpc_b64 s[{sT+2}:{sT+3}]
    s_and_b32 s{sT+2}, s{sT+2}, 0xffffff00
    s_bfe_u32 s{sT}, s2, 0x30003
    s_lshl_b32 s{sT}, s{sT}, 12
    v_lshrrev_b32 v{vT}, 3, v0
    v_lshlrev_b32 v{vT}, 7, v{vT}
    v_add_u32 v{vT}, s{sT}, v{vT}
    global_load_dword v{vDum}, v{vT}, s[{sT+2}:{sT+3}]
    v_lshrrev_b32 v{vT}, 6, v0
    v_and_b32 v0, 63, v0
    v_readfirstlane_b32 s{sW}, v{vT}
    s_and_b32 s{sT}, s2, 7
    s_lshr_b32 s{sT+1}, s2, 3
    s_and_b32 s{sRB}, s{sT+1}, 7
    s_lshr_b32 s{sT+1}, s{sT+1}, 3
    s_lshl_b32 s{sHD}, s{sT}, 2
    s_add_u32 s{sHD}, s{sHD}, s{sT+1}
    v_lshlrev_b32 v{vL16}, 4, v0
    s_lshl_b32 s{sFo}, s{sRB}, 5
    s_add_u32 s{sFo}, s{sFo}, s{sHD}
    """)
    lX, lF, lS, lR, lA = 32, 48, 80, 88, 112
    A(f"""
    v_and_b32 v{lA}, 7, v0
    v_lshrrev_b32 v{lA+1}, 3, v0
    v_lshlrev_b32 v{lA+2}, 11, v{lA}
    v_lshl_add_u32 v{lA+2}, v{lA+1}, 4, v{lA+2}
    s_lshl_b32 s{sT}, s{sFo}, 14
    s_lshl_b32 s{sT+1}, s{sW}, 9
    s_add_u32 s{sT}, s{sT}, s{sT+1}
    v_add_u32 v{lA+2}, s{sT}, v{lA+2}
    s_waitcnt lgkmcnt(0)
    """)
    srd(A, sSX, 68, 69, 0x400000)
    for n in range(4):
        A(f"buffer_load_dwordx4 v[{lX+4*n}:{lX+4*n+3}], v{lA+2}, s[{sSX}:{sSX+3}], 0 offen offset:{128*n}")
    A(f"v_and_b32 v{lA+6}, 0xfffff800, v{lA+2}")
    A(f"buffer_load_ushort v{lA+7}, v{lA+6}, s[{sSX}:{sSX+3}], 0 offen")
    A("s_mov_b32 s4, s70"); A("s_mov_b32 s5, s71")
    srd(A, sSF, 14, 15, FLG_SIZE, FLG_OFF)
    A(f"s_mov_b32 s{sT}, {EPOCH}")
    A(f"buffer_load_dword v{vPv}, off, s[{sSF}:{sSF+3}], s{sT} sc1")
    NY = 7
    stamp(A, 1, 2)
    A(f"""
    v_lshrrev_b32 v{lA+8}, 4, v0
    v_bfe_u32 v{lA+9}, v0, 2, 2
    v_lshl_add_u32 v{lA+10}, v{lA+8}, 3, v{lA+9}
    v_mul_u32_u24 v{lA+10}, 6144, v{lA+10}
    v_bfe_u32 v{lA+11}, v0, 1, 1
    v_and_b32 v{lA+12}, 1, v{lA+8}
    v_xor_b32 v{lA+11}, v{lA+11}, v{lA+12}
    v_lshl_add_u32 v{lA+10}, v{lA+11}, 5, v{lA+10}
    v_and_b32 v{lA+11}, 1, v0
    v_lshl_add_u32 v{lA+10}, v{lA+11}, 4, v{lA+10}
    s_mul_i32 s{sT+2}, s{sW}, 5
    s_and_b32 s{sT+3}, s{sHD}, 1
    s_lshl_b32 s{sT+3}, s{sT+3}, 1
    s_mul_i32 s{sT+4}, s{sHD}, 224
    """)
    t3, t4, t5, t6, t7 = lA + 11, lA + 12, lA + 13, lA + 14, lA + 15
    for i in range(5):
        d = sSD[i]
        A(f"""
        s_add_u32 s{sT+5}, s{sT+2}, {i}
        s_cmp_lt_u32 s{sT+5}, 6
        s_cbranch_scc0 M_gu{i}
        s_lshr_b32 s{sT+6}, s{sT+5}, 1
        s_lshl_b32 s{sT+6}, s{sT+6}, 11
        s_and_b32 s{sT+7}, s{sT+5}, 1
        s_mul_i32 s{sT+7}, s{sT+7}, 24576
        s_add_u32 s{sT+6}, s{sT+6}, s{sT+7}
        s_lshl_b32 s{sT+7}, s{sHD}, 6
        s_add_u32 s{sT+6}, s{sT+6}, s{sT+7}
        v_add_u32 v{vD[i]}, s{sT+6}, v{lA+10}
        s_mov_b32 s{d}, s4
        s_mov_b32 s{d+1}, s5
        s_mov_b32 s{d+2}, {1024*6144}
        s_mov_b32 s{sStA if i == 0 else sStB}, {32*6144}
        s_branch M_dn{i}
        """)
        A.label(f"M_gu{i}")
        A(f"""
        s_sub_u32 s{sT+6}, s{sT+5}, 6
        s_sub_u32 s{sT+7}, s{sT+5}, 13
        s_cmp_lt_u32 s{sT+5}, 13
        s_cselect_b32 s{sT+6}, s{sT+6}, s{sT+7}
        s_cselect_b32 s{d}, s8, s10
        s_cselect_b32 s{d+1}, s9, s11
        s_mov_b32 s{d+2}, {1024*7168}
        s_mov_b32 s{sStA if i == 0 else sStB}, {32*7168}
        s_lshl_b32 s{sT+6}, s{sT+6}, 6
        v_add_u32 v{t3}, s{sT+6}, v0
        v_mul_u32_u24 v{t4}, 4682, v{t3}
        v_lshrrev_b32 v{t4}, 16, v{t4}
        v_mul_u32_u24 v{t5}, 14, v{t4}
        v_sub_u32 v{t5}, v{t3}, v{t5}
        v_add_u32 v{t5}, s{sT+3}, v{t5}
        v_subrev_u32 v{t6}, 14, v{t5}
        v_min_u32 v{t5}, v{t5}, v{t6}
        v_bfe_u32 v{t6}, v{t4}, 2, 2
        v_lshrrev_b32 v{t7}, 4, v{t4}
        v_and_b32 v{t4}, 3, v{t4}
        v_lshl_add_u32 v{t4}, v{t6}, 3, v{t4}
        v_lshl_add_u32 v{t4}, v{t7}, 2, v{t4}
        v_mul_u32_u24 v{t4}, 7168, v{t4}
        v_lshl_add_u32 v{t4}, v{t5}, 4, v{t4}
        v_add_u32 v{vD[i]}, s{sT+4}, v{t4}
        """)
        A.label(f"M_dn{i}")
        A(f"s_mov_b32 s{d+3}, 0x00020000")
    A(f"""
    s_lshr_b32 s{sT}, s{sFo}, 1
    s_lshl_b32 s{sT}, s{sT}, 10
    s_and_b32 s{sT+1}, s{sFo}, 1
    s_lshl_b32 s{sT+1}, s{sT+1}, 7
    s_add_u32 s{sT}, s{sT}, s{sT+1}
    s_lshl_b32 s{sT+1}, s{sW}, 20
    s_add_u32 s{sT}, s{sT}, s{sT+1}
    v_lshrrev_b32 v{lA+3}, 2, v{lA+1}
    v_lshlrev_b32 v{lA+3}, 17, v{lA+3}
    v_and_b32 v{lA+4}, 3, v{lA+1}
    v_lshl_add_u32 v{lA+3}, v{lA+4}, 8, v{lA+3}
    v_lshl_add_u32 v{lA+3}, v{lA}, 4, v{lA+3}
    v_add_u32 v{lA+3}, s{sT}, v{lA+3}
    v_lshlrev_b32 v{lA+5}, 6, v{lA}
    v_add_u32 v{lA+5}, {KVL}, v{lA+5}
    s_lshl_b32 s{sT}, s{sW}, 4
    v_lshl_add_u32 v{lA+4}, v{lA+8}, 2, v{lA+5}
    v_add_u32 v{lA+4}, s{sT}, v{lA+4}
    """)
    srd(A, sSX, 14, 15, 0x400000, XF_OFF)
    A(f"s_lshl_b32 s{sFo}, s2, 6")
    def dma(i):
        return [f"s_add_u32 m0, s{sM}, 0x{1024*(i+1):x}",
                f"buffer_load_dwordx4 v{vD[i]}, s[{sSD[i]}:{sSD[i]+3}], s{sWoA if i == 0 else sWoB} offen lds"]
    def xload(s, i):
        return f"buffer_load_dwordx4 {XR(s, i)}, v{vX}, s[{sSX}:{sSX+3}], s{sXo} offen offset:{1024*i} sc1"
    wadv = [f"s_add_u32 s{sM}, s{sM}, s{sSLOT}", f"s_add_u32 s{sWoA}, s{sWoA}, s{sStA}", f"s_add_u32 s{sWoB}, s{sWoB}, s{sStB}"]
    def wgroups(adv):
        L = []
        for i in range(5):
            m, l = dma(i)
            L.append((wadv if (i == 0 and adv) else []) + [m, "s_nop 0", l])
        return L
    def xgroups(t):
        return [[xload(t, i)] + ([f"s_add_u32 s{sXo}, s{sXo}, 0x20000"] if i == 3 else []) for i in range(4)]
    A(f"""
    s_lshl_b32 s{sXo}, s{sRB}, 19
    s_mul_i32 s{sM0}, s{sW}, 5120
    s_sub_u32 s{sM0}, s{sM0}, 1024
    s_mov_b32 s{sM}, s{sM0}
    s_lshl_b32 s{sT}, s{sRB}, 2
    s_mul_i32 s{sWoA}, s{sStA}, s{sT}
    s_mul_i32 s{sWoB}, s{sStB}, s{sT}
    s_lshl_b32 s{sWEnd}, s{sStB}, 5
    s_mov_b32 s{sSLOT}, {G1_SLOT}
    """)
    B = Asm()
    B(f"""
    s_lshl_b32 s{sT}, s{sRB}, 14
    s_lshl_b32 s{sT+1}, s{sW}, 12
    s_add_u32 s{sT}, s{sT}, s{sT+1}
    v_add_u32 v{vX}, s{sT}, v{vL16}
    s_lshl_b32 s{sT}, s{sRB}, 3
    v_and_b32 v{vPollR}, 7, v0
    v_bfe_u32 v{t3}, v0, 3, 2
    v_lshl_add_u32 v{vPollR}, v{t3}, 6, v{vPollR}
    v_add_u32 v{vPollR}, s{sT}, v{vPollR}
    v_lshlrev_b32 v{vPollR}, 6, v{vPollR}
    v_lshrrev_b32 v{t3}, 2, v0
    v_and_b32 v{t4}, 3, v0
    v_lshlrev_b32 v{t4}, 3, v{t4}
    v_lshl_add_u32 v{vB0}, v{t3}, 6, v{t4}
    v_and_b32 v{t5}, 1, v{lA+8}
    v_lshl_add_u32 v{vB0}, v{t5}, 5, v{vB0}
    v_xor_b32 v{vB1}, 32, v{vB0}
    v_mul_u32_u24 v{vBG}, 224, v{t3}
    v_add_u32 v{vBG}, v{vBG}, v{t4}
    v_mov_b32 v{vA0}, v{vB0}
    v_mov_b32 v{vA1}, v{vB1}
    v_mov_b32 v{vAG}, v{vBG}
    s_mov_b32 s{sR}, 0
    s_mov_b32 s{sCnt}, 0
    s_mov_b32 s{sREND}, {G1_S*G1_SLOT}
    s_add_u32 s{sMEND}, s{sM0}, s{sREND}
    """)
    B(f"""
    s_lshl_b32 s{sT}, s2, 2
    s_add_u32 s{sT}, s{sT}, s{sW}
    s_lshl_b32 s{sT}, s{sT}, 10
    v_add_u32 v{vCd}, s{sT}, v{vL16}
    v_lshrrev_b32 v{t3}, 3, v0
    v_bfe_u32 v{t4}, v0, 1, 2
    v_bfe_u32 v{t5}, v0, 4, 2
    v_xor_b32 v{t4}, v{t4}, v{t5}
    v_lshlrev_b32 v{t3}, 11, v{t3}
    v_lshl_add_u32 v{t3}, v{t4}, 5, v{t3}
    v_and_b32 v{t4}, 1, v0
    v_lshl_add_u32 v{t3}, v{t4}, 4, v{t3}
    s_lshl_b32 s{sT}, s{sW}, 14
    s_and_b32 s{sT+1}, s2, 15
    s_lshl_b32 s{sT+1}, s{sT+1}, 7
    s_add_u32 s{sT}, s{sT}, s{sT+1}
    v_add_u32 v{vCs}, s{sT}, v{t3}
    s_lshr_b32 s{sT+1}, s2, 4
    s_mul_i32 s{sT}, s{sT+1}, 7
    s_add_u32 s{sCl}, s{sT}, 1
    s_lshr_b32 s{sCl}, s{sCl}, 1
    s_sub_u32 s{sCl}, s{sCl}, 1
    s_lshl_b32 s{sCl}, s{sCl}, 16
    s_add_u32 s{sT}, s{sT}, 3
    s_lshl_b32 s{sT}, s{sT}, 16
    s_lshl_b32 s{sT+1}, s{sT+1}, 16
    s_add_u32 s{sT+2}, s{sT+1}, 0x100000
    s_mov_b32 s{sCs}, 0x{(-4 << 20) & 0xffffffff:x}
    s_mov_b32 s{sSCs+2}, 0
    s_mov_b32 s{sSCs+3}, 0x00020000
    """)
    sT6, sT7, sT8 = sT, sT + 1, sT + 2
    interleave(A, wgroups(False), lines(B))
    lW, lRd, lSt = lA + 4, lA + 5, lA + 3
    for n in range(4):
        A(f"s_waitcnt vmcnt({3-n+NY})")
        for q in range(4):
            s = lX + 4 * n + q; d = lF + 8 * n + 2 * q
            A(f"v_lshlrev_b32 v{d}, 16, v{s}")
            A(f"v_and_b32 v{d+1}, 0xffff0000, v{s}")
    stamp(A, 2, 2)
    A("s_waitcnt vmcnt(6)")
    lM, lMb, lT, lQ = lS + 4, lS + 6, 104, 108
    A(f"""
    v_lshlrev_b32 v{lA+7}, 16, v{lA+7}
    v_sub_f32 v{lM}, 0, v{lA+7}
    v_mov_b32 v{lM+1}, v{lM}
    """)
    for q in range(0, 16, 2):
        d0 = (lS, lS + 2) if q == 0 else (lT, lT + 2)
        A(f"v_pk_add_f32 v[{d0[0]}:{d0[0]+1}], v[{lF+2*q}:{lF+2*q+1}], v[{lM}:{lM+1}]")
        A(f"v_pk_add_f32 v[{d0[1]}:{d0[1]+1}], v[{lF+2*q+2}:{lF+2*q+3}], v[{lM}:{lM+1}]")
        if q == 0:
            A(f"v_pk_mul_f32 v[{lQ}:{lQ+1}], v[{lS}:{lS+1}], v[{lS}:{lS+1}]")
            A(f"v_pk_mul_f32 v[{lQ+2}:{lQ+3}], v[{lS+2}:{lS+3}], v[{lS+2}:{lS+3}]")
        else:
            A(f"v_pk_fma_f32 v[{lQ}:{lQ+1}], v[{lT}:{lT+1}], v[{lT}:{lT+1}], v[{lQ}:{lQ+1}]")
            A(f"v_pk_fma_f32 v[{lQ+2}:{lQ+3}], v[{lT+2}:{lT+3}], v[{lT+2}:{lT+3}], v[{lQ+2}:{lQ+3}]")
            A(f"v_pk_add_f32 v[{lS}:{lS+1}], v[{lS}:{lS+1}], v[{lT}:{lT+1}]")
            A(f"v_pk_add_f32 v[{lS+2}:{lS+3}], v[{lS+2}:{lS+3}], v[{lT+2}:{lT+3}]")
    r = lR; r2 = 128
    A(f"""
    v_pk_add_f32 v[{lS}:{lS+1}], v[{lS}:{lS+1}], v[{lS+2}:{lS+3}]
    v_pk_add_f32 v[{lQ}:{lQ+1}], v[{lQ}:{lQ+1}], v[{lQ+2}:{lQ+3}]
    v_add_f32 v{lS}, v{lS}, v{lS+1}
    v_add_f32 v{lQ}, v{lQ}, v{lQ+1}
    s_nop 0
    v_add_f32_dpp v{lS}, v{lS}, v{lS} row_ror:8 row_mask:0xf bank_mask:0xf
    v_add_f32_dpp v{lQ}, v{lQ}, v{lQ} row_ror:8 row_mask:0xf bank_mask:0xf
    ds_write_b32 v{lW}, v{lS}
    ds_write_b32 v{lW}, v{lQ} offset:512
    s_waitcnt lgkmcnt(0)
    s_barrier
    """)
    for k in range(4): A(f"ds_read_b128 v[{r+4*k}:{r+4*k+3}], v{lRd} offset:{16*k}")
    for k in range(4): A(f"ds_read_b128 v[{r2+4*k}:{r2+4*k+3}], v{lRd} offset:{512+16*k}")
    for wait, rr in ((4, r), (0, r2)):
        A(f"s_waitcnt lgkmcnt({wait})")
        A(f"""
        v_pk_add_f32 v[{rr}:{rr+1}], v[{rr}:{rr+1}], v[{rr+2}:{rr+3}]
        v_pk_add_f32 v[{rr+4}:{rr+5}], v[{rr+4}:{rr+5}], v[{rr+6}:{rr+7}]
        v_pk_add_f32 v[{rr+8}:{rr+9}], v[{rr+8}:{rr+9}], v[{rr+10}:{rr+11}]
        v_pk_add_f32 v[{rr+12}:{rr+13}], v[{rr+12}:{rr+13}], v[{rr+14}:{rr+15}]
        v_pk_add_f32 v[{rr}:{rr+1}], v[{rr}:{rr+1}], v[{rr+4}:{rr+5}]
        v_pk_add_f32 v[{rr+8}:{rr+9}], v[{rr+8}:{rr+9}], v[{rr+12}:{rr+13}]
        v_pk_add_f32 v[{rr}:{rr+1}], v[{rr}:{rr+1}], v[{rr+8}:{rr+9}]
        v_add_f32 v{rr}, v{rr}, v{rr+1}
        v_mul_f32 v{rr}, 0x{f2u(1.0/1024):x}, v{rr}
        """)
    A(f"""
    v_add_f32 v{lMb}, v{lA+7}, v{lR}
    v_fma_f32 v{lR}, -v{lR}, v{lR}, v{r2}
    v_cvt_pk_bf16_f32 v{lMb}, v{lMb}, v{lMb}
    v_max_f32 v{lR}, 0, v{lR}
    v_lshlrev_b32 v{lMb}, 16, v{lMb}
    """)
    A(f"""
    v_cvt_pk_bf16_f32 v{lR}, v{lR}, v{lR}
    v_lshlrev_b32 v{lR}, 16, v{lR}
    v_add_f32 v{lR}, 0x{f2u(1e-5):x}, v{lR}
    v_cvt_pk_bf16_f32 v{lR}, v{lR}, v{lR}
    v_lshlrev_b32 v{lR}, 16, v{lR}
    v_sqrt_f32 v{lR}, v{lR}
    s_nop 0
    v_cvt_pk_bf16_f32 v{lR}, v{lR}, v{lR}
    v_lshlrev_b32 v{lR}, 16, v{lR}
    v_rcp_f32 v{lR}, v{lR}
    v_sub_f32 v{lM}, 0, v{lMb}
    v_mov_b32 v{lM+1}, v{lM}
    v_mov_b32 v{lR+1}, v{lR}
    s_mov_b32 s{sT+3}, 0
    """)
    for n in range(4):
        for q in range(4):
            d = lF + 8 * n + 2 * q; o = lX + 4 * n + q
            A(f"v_pk_add_f32 v[{d}:{d+1}], v[{d}:{d+1}], v[{lM}:{lM+1}]")
        for q in range(4):
            d = lF + 8 * n + 2 * q; o = lX + 4 * n + q
            A(f"v_cvt_pk_bf16_f32 v{o}, v{d}, v{d+1}")
        for q in range(4):
            d = lF + 8 * n + 2 * q; o = lX + 4 * n + q
            A(f"v_lshlrev_b32 v{d}, 16, v{o}")
            A(f"v_and_b32 v{d+1}, 0xffff0000, v{o}")
        for q in range(4):
            d = lF + 8 * n + 2 * q
            A(f"v_pk_mul_f32 v[{d}:{d+1}], v[{d}:{d+1}], v[{lR}:{lR+1}]")
        for q in range(4):
            d = lF + 8 * n + 2 * q; o = lX + 4 * n + q
            A(f"v_cvt_pk_bf16_f32 v{o}, v{d}, v{d+1}")
        A(f"buffer_store_dwordx4 v[{lX+4*n}:{lX+4*n+3}], v{lSt}, s[{sSX}:{sSX+3}], s{sT+3} offen sc1")
        A(f"s_add_u32 s{sT+3}, s{sT+3}, 0x40000")
    stamp(A, 3, 2)
    srd(A, sSCd, 14, 15, WT_SIZE, WT_OFF)
    A("s_waitcnt vmcnt(0)")
    A(f"v_readfirstlane_b32 s{sTag}, v{vPv}")
    A("s_barrier")
    A(f"s_mul_i32 s{sTag}, s{sTag}, 0x9e3779b1")
    A(f"s_add_u32 s{sTag}, s{sTag}, 0x7f4a7c15")
    flag_set(F_LN)
    stamp(A, 4, 2)
    B = Asm()
    for r in range(24, 256, 2):
        B(f"v_pk_mov_b32 v[{r}:{r+1}], 0, 0")
    for r in list(range(88)) + list(range(208, 216)):
        B(f"v_accvgpr_write_b32 a{r}, 0")
    interleave(A, wgroups(True), lines(B))
    A(poll_issue(vPollR))
    poll_check(F_LN, vPollR, 0)
    stamp(A, 5, 2)
    for g in xgroups(0) + xgroups(1) + wgroups(True) + xgroups(2) + wgroups(True):
        for l in g: A(l)
    def copy_op(s):
        if s % 2: return f"buffer_load_dwordx4 {CT(s // 2)}, v{vCs}, s[{sSCs}:{sSCs+3}], s{sCl} offen"
        return f"buffer_store_dwordx4 {CT(s // 2)}, v{vCd}, s[{sSCd}:{sSCd+3}], s{sCs} offen sc1"
    def wread(f, a, pos):
        nm = names[f]
        if nm[0] in "qkv":
            p = "qkv".index(nm[0]); j = int(nm[1])
            addr = vA1 if j else vA0; off = 2048 * p + 1024 * a
        else:
            tl = int(nm[1]); addr = vAG
            off = (6144 if nm[0] == 'g' else 13312) + 3584 * a + 32 * tl
        return f"ds_read_b64_tr_b16 {WR(pos).sub(2*a, 2)}, v{addr} offset:{off}"
    def mfma(f, i, s, pos):
        if OPT.get("snake") and f % 2: i = 3 - i
        nm = names[f]; d = acc[(nm, i)]
        if nm[0] in "kv" or OPT.get("swapab"):
            return f"v_mfma_f32_16x16x32_bf16 {d}, {XR(s, i)}, {WR(pos)}, {d}"
        return f"v_mfma_f32_16x16x32_bf16 {d}, {WR(pos)}, {XR(s, i)}, {d}"
    LA = 6
    A(f"s_mov_b32 s{sT+3}, 0x70000000")
    A("s_barrier")
    for f in range(LA):
        for a in range(2): A(wread(f, a, f % 8))
    A("s_waitcnt vmcnt(18)")
    stamp(A, 6, 2); stamp(A, 1, 1)
    A.label("M_loop1")
    for s in range(4):
        for f in range(20):
            F = 20 * s + f
            pos = F % 8
            if f == 14:
                nvm = 19 if s == 0 else 20
                A(f"s_waitcnt vmcnt({nvm}) lgkmcnt(8)"); A("s_barrier")
            elif f % 2 == 0:
                A("s_waitcnt lgkmcnt(8)")
                extra = {0: f"s_add_u32 s{sR}, s{sR}, s{sSLOT}",
                         2: f"s_add_u32 s{sWoA}, s{sWoA}, s{sStA}",
                         4: f"s_add_u32 s{sWoB}, s{sWoB}, s{sStB}",
                         6: f"s_add_u32 s{sM}, s{sM}, s{sSLOT}",
                         8: f"s_add_u32 s{sCnt}, s{sCnt}, 1"}.get(f)
                if extra: A(extra)
            nf = (f + LA) % 20
            mid, post = [], []
            pre2 = []
            if f >= 15:
                m, l = dma(f - 15); pre2 = [m]; mid = [l]
            elif f in (3, 5, 7, 9): mid = [xload((s + 3) % 4, (f - 3) // 2)]
            elif f == 1: mid = [f"s_cmp_eq_u32 s{sR}, s{sREND}", f"s_cselect_b32 s{sR}, 0, s{sR}"]
            elif f == 10: mid = [f"s_cmp_eq_u32 s{sM}, s{sMEND}", f"s_cselect_b32 s{sM}, s{sM0}, s{sM}"]
            elif f == 11:
                mid = [f"s_add_u32 s{sXo}, s{sXo}, 0x20000"]
                if s == 0: post = [f"s_and_b32 s{sXo}, s{sXo}, 0x3fffff"]
            elif f == 6 and s == 0:
                mid = [f"s_cmp_eq_u32 s{sWoB}, s{sWEnd}", f"s_cselect_b32 s{sWoA}, 0, s{sWoA}"]
                post = [f"s_cselect_b32 s{sWoB}, 0, s{sWoB}"]
            elif f == 12 and s == 0:
                mid = [f"s_cmp_eq_u32 s{sCnt}, 29", f"s_cselect_b32 s{sWoA}, s{sT+3}, s{sWoA}"]
                post = [f"s_cselect_b32 s{sWoB}, s{sT+3}, s{sWoB}", f"s_cselect_b32 s{sXo}, s{sT+3}, s{sXo}"]
            elif f == 2:
                mid = [copy_op(s)]
                post = [{0: f"s_add_u32 s{sCs}, s{sCs}, 0x100000", 2: f"s_add_u32 s{sCs}, s{sCs}, 0x100000",
                         1: f"s_add_u32 s{sCl}, s{sCl}, {56 << 16}", 3: f"s_sub_u32 s{sCl}, s{sCl}, {55 << 16}"}[s]]
            elif f == 4 and s == 1:
                mid = [f"s_cmp_eq_u32 s{sCnt}, 17", f"s_cselect_b32 s{sCl}, s{sT7}, s{sCl}", f"s_cselect_b32 s{sSCs}, s84, s{sSCs}", f"s_cselect_b32 s{sSCs+1}, s85, s{sSCs+1}"]
                post = [f"s_cselect_b32 s{sSCs+2}, {1024*2048}, s{sSCs+2}"]
            elif f == 6 and s == 1:
                mid = [f"s_cmp_eq_u32 s{sCnt}, 21", f"s_cselect_b32 s{sSCs+2}, 0, s{sSCs+2}"]
            elif f == 4 and s == 3:
                mid = [f"s_cmp_eq_u32 s{sCnt}, 15", f"s_cselect_b32 s{sCl}, s{sT6}, s{sCl}"]
                post = [f"s_cmp_eq_u32 s{sCnt}, 19", f"s_cselect_b32 s{sCl}, s{sT8}, s{sCl}"]
            elif f == 6 and s == 3:
                mid = [f"s_cmp_eq_u32 s{sCnt}, 3", f"s_cselect_b32 s{sSCs+2}, {3584*2048}, s{sSCs+2}"]
            elif f == 13:
                mid = [f"v_add_u32 v{vA0}, s{sR}, v{vB0}", f"v_add_u32 v{vA1}, s{sR}, v{vB1}"]
                post = [f"v_add_u32_e64 v{vAG}, s{sR}, v{vBG}"]
            A(mfma(f, 0, s, pos))
            A(wread(nf, 0, (F + LA) % 8))
            A(mfma(f, 1, s, pos))
            A(wread(nf, 1, (F + LA) % 8))
            for l in pre2: A(l)
            A(mfma(f, 2, s, pos))
            for l in mid: A(l)
            A(mfma(f, 3, s, pos))
            for l in post: A(l)
    A(f"s_cmp_lg_u32 s{sCnt}, 28")
    A("s_cbranch_scc1 M_l1c")
    flag_set(F_LN | F_WT)
    A.label("M_l1c")
    A(f"s_cmp_lt_u32 s{sCnt}, 32")
    A("s_cbranch_scc1 M_loop1")
    stamp(A, 2, 1)
    sSH, sSK, sSXi, sSO = 20, 24, 28, 32
    vPollA = 16
    A(f"""
    s_load_dwordx2 s[68:69], s[0:1], 0
    s_load_dwordx2 s[70:71], s[0:1], 56
    s_and_b32 s{sT}, s2, 1
    s_lshl_b32 s{sT}, s{sT}, 3
    s_lshr_b32 s{sT+1}, s2, 5
    s_add_u32 s{sT}, s{sT}, s{sT+1}
    s_lshl_b32 s{sT}, s{sT}, 6
    v_and_b32 v{vPollA}, 15, v0
    v_lshlrev_b32 v{vPollA}, 10, v{vPollA}
    v_add_u32 v{vPollA}, s{sT}, v{vPollA}
    """)
    A(poll_issue(vPollA))
    srd(A, sSH, 14, 15, HF_SIZE, HF_OFF)
    srd(A, sSK, 14, 15, KVP_SIZE, KVP_OFF)
    sNL, sPL, sEPS, sCB, sCL = 36, 38, 40, 41, 42
    A(f"""
    s_mov_b32 s{sNL}, 0x{f2u(-LOG2E):x}
    s_mov_b32 s{sNL+1}, 0x{f2u(-LOG2E):x}
    s_mov_b32 s{sPL}, 0x{f2u(LOG2E):x}
    s_mov_b32 s{sPL+1}, 0x{f2u(LOG2E):x}
    s_mov_b32 s{sEPS}, 0x{f2u(1e-6):x}
    s_lshl_b32 s{sCB}, s{sHD}, 17
    s_lshr_b32 s{sCL}, s{sHD}, 1
    s_add_u32 s{sCL}, s{sCL}, 96
    s_lshl_b32 s{sCL}, s{sCL}, 17
    s_and_b32 s{sT}, s{sHD}, 1
    s_lshl_b32 s{sT}, s{sT}, 3
    s_add_u32 s{sCL}, s{sCL}, s{sT}
    """)
    def phi_tile(E, src, tmp, dst):
        b = src
        E(f"v_pk_mul_f32 v[{tmp}:{tmp+1}], v[{b}:{b+1}], s[{sPL}:{sPL+1}]")
        E(f"v_pk_mul_f32 v[{tmp+2}:{tmp+3}], v[{b+2}:{b+3}], s[{sPL}:{sPL+1}]")
        for j in range(4): E(f"v_exp_f32_e64 v{tmp+j}, v{tmp+j} clamp")
        for j in range(4): E(f"v_max_f32 v{b+j}, s{sEPS}, v{b+j}")
        E(f"v_pk_add_f32 v[{b}:{b+1}], v[{b}:{b+1}], v[{tmp}:{tmp+1}]")
        E(f"v_pk_add_f32 v[{b+2}:{b+3}], v[{b+2}:{b+3}], v[{tmp+2}:{tmp+3}]")
        E(f"v_cvt_pk_bf16_f32 v{dst}, v{b}, v{b+1}")
        E(f"v_cvt_pk_bf16_f32 v{dst+1}, v{b+2}, v{b+3}")
    def swiglu_tile(E, tl, i, tmp, dst):
        g = acc[(f"g{tl}", i)].base
        ur = acc[(f"u{tl}", i)]
        if ur.kind == 'a':
            u = tmp + 4
            for j in range(4): E(f"v_accvgpr_read_b32 v{u+j}, a{ur.base+j}")
        else:
            u = ur.base
        E(f"v_pk_mul_f32 v[{tmp}:{tmp+1}], v[{g}:{g+1}], s[{sNL}:{sNL+1}]")
        E(f"v_pk_mul_f32 v[{tmp+2}:{tmp+3}], v[{g+2}:{g+3}], s[{sNL}:{sNL+1}]")
        for j in range(4): E(f"v_exp_f32 v{tmp+j}, v{tmp+j}")
        E(f"v_pk_mul_f32 v[{g}:{g+1}], v[{g}:{g+1}], v[{u}:{u+1}]")
        E(f"v_pk_mul_f32 v[{g+2}:{g+3}], v[{g+2}:{g+3}], v[{u+2}:{u+3}]")
        E(f"v_pk_add_f32 v[{tmp}:{tmp+1}], v[{tmp}:{tmp+1}], 1.0 op_sel_hi:[1,0]")
        E(f"v_pk_add_f32 v[{tmp+2}:{tmp+3}], v[{tmp+2}:{tmp+3}], 1.0 op_sel_hi:[1,0]")
        for j in range(4): E(f"v_rcp_f32 v{tmp+j}, v{tmp+j}")
        E(f"v_pk_mul_f32 v[{g}:{g+1}], v[{g}:{g+1}], v[{tmp}:{tmp+1}]")
        E(f"v_pk_mul_f32 v[{g+2}:{g+3}], v[{g+2}:{g+3}], v[{tmp+2}:{tmp+3}]")
        E(f"v_cvt_pk_bf16_f32 v{dst}, v{g}, v{g+1}")
        E(f"v_cvt_pk_bf16_f32 v{dst+1}, v{g+2}, v{g+3}")
    def swiglu_pair(E, p, tmp):
        for i in range(4):
            o = acc[(f"g{2*p}", i)].base
            swiglu_tile(E, 2 * p, i, tmp, o)
            swiglu_tile(E, 2 * p + 1, i, tmp, o + 2)
            E(f"buffer_store_dwordx4 v[{o}:{o+3}], v{vX}, s[{sSH}:{sSH+3}], s{sCB} offen offset:{1024*i} sc1")
        E(f"s_add_u32 s{sCB}, s{sCB}, {32 << 17}")
    swiglu_pair(A, 0, 2)
    tq = acc[("u0", 0)].base
    kb = acc[("k0", 0)].base; vb = acc[("v0", 0)].base
    vONE = tq + 8
    for j in range(4): A(f"v_mov_b32 v{vONE+j}, 0x3f803f80")
    for dt in range(2):
        for i in range(4):
            phi_tile(A, kb + 16 * dt + 4 * i, tq, kb + 16 * dt + 8 * (i // 2) + 2 * (i % 2))
    for et in range(2):
        for i in range(4):
            src = vb + 16 * et + 4 * i
            dst = vb + 16 * et + 8 * (i // 2) + 2 * (i % 2)
            A(f"v_cvt_pk_bf16_f32 v{dst}, v{src}, v{src+1}")
            A(f"v_cvt_pk_bf16_f32 v{dst+1}, v{src+2}, v{src+3}")
    A("s_nop 1")
    for u in range(2):
        for dt in range(2):
            for et in range(3):
                a = kb + 16 * dt + 8 * u
                b = vb + 16 * et + 8 * u if et < 2 else vONE
                p = PT(dt * 3 + et)
                A(f"v_mfma_f32_16x16x32_bf16 {p}, v[{a}:{a+3}], v[{b}:{b+3}], {'0' if u == 0 else p}")
    vA, vBd, vR, vRb = [2, 3, 4, 5], 6, [7, 8, 9, 10], [24, 25, 26, 27]
    vXO, vKv, vZ, vFw, vZw, vZr, vFr = 28, 29, 30, 31, 23, 20, 21
    vk0, vk1, vk2 = 11, 12, 22
    sRT, sCT, sAo, sBo = 43, 44, 45, 46
    sSA, sSB = sSH, sSCd
    A(f"""
    s_mul_i32 s{sT}, s{sW}, 6144
    s_add_u32 s{sT}, s{sT}, {KVL}
    v_add_u32 v{vk0}, s{sT}, v{vL16}
    s_lshl_b32 s{sT}, s{sW}, 10
    s_add_u32 s{sT+1}, s{sT}, {KVL}
    v_add_u32 v{vk1}, s{sT+1}, v{vL16}
    s_lshl_b32 s{sT+1}, s{sHD}, 3
    s_add_u32 s{sT+1}, s{sT+1}, s{sRB}
    s_mul_i32 s{sT+1}, s{sT+1}, 6144
    v_add_u32 v{vk2}, s{sT}, v{vL16}
    s_add_u32 s{sT+2}, s{sT+1}, 4096
    """)
    for t in range(6):
        A(f"ds_write_b128 v{vk0}, {PT(t)} offset:{1024*t}")
    A(f"""
    s_and_b32 s{sT+3}, s2, 7
    s_lshr_b32 s{sRT}, s{sT+3}, 1
    s_lshl_b32 s{sRT}, s{sRT}, 2
    s_bfe_u32 s{sT}, s2, 0x20003
    s_add_u32 s{sRT}, s{sRT}, s{sT}
    s_and_b32 s{sCT}, s{sT+3}, 1
    s_lshl_b32 s{sCT}, s{sCT}, 3
    s_lshr_b32 s{sT}, s2, 5
    s_add_u32 s{sCT}, s{sCT}, s{sT}
    s_lshl_b32 s{sT}, s{sW}, 4
    s_add_u32 s{sT}, s{sT}, s{sCT}
    s_lshl_b32 s{sT}, s{sT}, 12
    v_add_u32 v{vBd}, s{sT}, v{vL16}
    s_lshl_b32 s{sT}, s{sRT}, 13
    s_lshl_b32 s{sT+3}, s{sW}, 11
    s_add_u32 s{sT}, s{sT}, s{sT+3}
    v_add_u32 v{vA[0]}, s{sT}, v{vL16}
    v_add_u32 v{vA[1]}, 0x20000, v{vA[0]}
    v_add_u32 v{vA[2]}, 0x40000, v{vA[0]}
    v_add_u32 v{vA[3]}, 0x60000, v{vA[0]}
    s_lshr_b32 s{sT}, s{sRT}, 1
    s_lshl_b32 s{sT}, s{sT}, 3
    v_and_b32 v{vT}, 7, v0
    v_bfe_u32 v{vT+1}, v0, 3, 2
    v_lshl_add_u32 v{vT+1}, v{vT+1}, 6, v{vT}
    v_add_u32 v{vT+1}, s{sT}, v{vT+1}
    s_and_b32 s{sT}, s2, 0xc7
    v_lshlrev_b32 v{vT}, 3, v{vT}
    v_add_u32 v{vT}, s{sT}, v{vT}
    v_cmp_gt_u32 vcc, 32, v0
    s_nop 1
    v_cndmask_b32 v{vPollR}, v{vT}, v{vT+1}, vcc
    v_lshlrev_b32 v{vPollR}, 6, v{vPollR}
    s_mov_b32 s{sAo}, 0
    s_mov_b32 s{sBo}, 0
    s_lshl_b32 s{sM0}, s{sW}, 12
    s_mov_b32 s{sM}, s{sM0}
    s_mov_b32 s{sSLOT}, {G2_SLOT}
    s_mov_b32 s{sR}, 0
    s_mov_b32 s{sCnt}, 0
    s_mov_b32 s{sREND}, {G2_R*G2_SLOT}
    s_add_u32 s{sMEND}, s{sM0}, s{sREND}
    """)
    poll_check(F_WT, vPollA, 0)
    A("s_waitcnt lgkmcnt(0)")
    A("s_barrier")
    flag_set(F_LN | F_WT | F_A)
    stamp(A, 3, 1)
    srd(A, sSXi, 68, 69, 0x400000)
    srd(A, sSO, 70, 71, 0x400000)
    AR = lambda s, q, i: Reg('a', 128 + 32 * s + 8 * q + 4 * i)
    def bdma(b):
        return f"buffer_load_dwordx4 v{vBd}, s[{sSB}:{sSB+3}], s{sBo} offen offset:{1024*b} sc1 lds"
    def aload(s, q, i):
        return f"buffer_load_dwordx4 {AR(s, q, i)}, v{vA[q]}, s[{sSA}:{sSA+3}], s{sAo} offen offset:{1024*i} sc1"
    def bgroups(n):
        L = [([f"s_mov_b32 m0, s{sM}", "s_nop 0"] if b == 0 else []) + [bdma(b)] for b in range(4 if n < 3 else 2)]
        if n < 3: L[-1] += [f"s_add_u32 s{sBo}, s{sBo}, 0x40000", f"s_add_u32 s{sM}, s{sM}, s{sSLOT}"]
        return L
    def agroups(n):
        L = [[aload(n, q, i)] for q in range(4 if n < 3 else 3) for i in range(2)]
        if n < 3: L[-1] += [f"s_add_u32 s{sAo}, s{sAo}, 0x80000"]
        return L
    tb = kb + 8
    for sw in range(4):
        A(f"ds_read_b128 v[{tb+4*sw}:{tb+4*sw+3}], v{vk1} offset:{6144*sw}")
    for sw in range(4):
        A(f"ds_read_b128 v[{tb+16+4*sw}:{tb+16+4*sw+3}], v{vk1} offset:{6144*sw+4096}")
    def sum4(b):
        A(f"v_pk_add_f32 v[{b}:{b+1}], v[{b}:{b+1}], v[{b+4}:{b+5}]")
        A(f"v_pk_add_f32 v[{b+2}:{b+3}], v[{b+2}:{b+3}], v[{b+6}:{b+7}]")
        A(f"v_pk_add_f32 v[{b+8}:{b+9}], v[{b+8}:{b+9}], v[{b+12}:{b+13}]")
        A(f"v_pk_add_f32 v[{b+10}:{b+11}], v[{b+10}:{b+11}], v[{b+14}:{b+15}]")
        A(f"v_pk_add_f32 v[{b}:{b+1}], v[{b}:{b+1}], v[{b+8}:{b+9}]")
        A(f"v_pk_add_f32 v[{b+2}:{b+3}], v[{b+2}:{b+3}], v[{b+10}:{b+11}]")
    B = Asm(); swiglu_pair(B, 1, tq); w1 = lines(B)
    for l in w1[:20]: A(l)
    A("s_waitcnt lgkmcnt(0)")
    sum4(tb)
    A(f"buffer_store_dwordx4 v[{tb}:{tb+3}], v{vk2}, s[{sSK}:{sSK+3}], s{sT+1} offen sc1")
    A(f"s_cmp_lt_u32 s{sW}, 2")
    A("s_cbranch_scc0 M_kv1")
    sum4(tb + 16)
    A(f"buffer_store_dwordx4 v[{tb+16}:{tb+19}], v{vk2}, s[{sSK}:{sSK+3}], s{sT+2} offen sc1")
    A.label("M_kv1")
    for l in w1[20:]: A(l)
    A(poll_issue(vPollR))
    pqb = 240
    B = Asm()
    for i in range(4):
        for dt in range(2):
            qa = acc[(f"q{dt}", i)].base
            src = tq + 8 * dt
            for j in range(4): B(f"v_accvgpr_read_b32 v{src+j}, a{qa+j}")
            phi_tile(B, src, src + 4, pqb + 4 * i + 2 * dt)
    t0 = tq + 16
    B(f"""
    v_bfe_u32 v{t0}, v0, 2, 3
    v_lshrrev_b32 v{t0+1}, 5, v0
    v_lshlrev_b32 v{t0+1}, 10, v{t0+1}
    v_lshl_add_u32 v{t0+1}, v{t0}, 7, v{t0+1}
    v_and_b32 v{t0+2}, 3, v0
    v_lshl_add_u32 v{t0+1}, v{t0+2}, 3, v{t0+1}
    v_lshrrev_b32 v{t0}, 1, v{t0}
    v_lshl_add_u32 v{vRb[0]}, v{t0}, 5, v{t0+1}
    v_xor_b32 v{vRb[1]}, 32, v{vRb[0]}
    v_xor_b32 v{vRb[2]}, 64, v{vRb[0]}
    v_xor_b32 v{vRb[3]}, 0x60, v{vRb[0]}
    v_mov_b32 v{vR[0]}, v{vRb[0]}
    v_mov_b32 v{vR[1]}, v{vRb[1]}
    v_mov_b32 v{vR[2]}, v{vRb[2]}
    v_mov_b32 v{vR[3]}, v{vRb[3]}
    v_and_b32 v{t0}, 15, v0
    v_lshlrev_b32 v{t0}, 11, v{t0}
    v_bfe_u32 v{t0+1}, v0, 4, 1
    v_lshl_add_u32 v{t0}, v{t0+1}, 5, v{t0}
    v_lshrrev_b32 v{t0+1}, 5, v0
    v_lshl_add_u32 v{t0}, v{t0+1}, 4, v{t0}
    s_lshl_b32 s{sT}, s{sRT}, 18
    s_lshl_b32 s{sT+3}, s{sW}, 16
    s_add_u32 s{sT}, s{sT}, s{sT+3}
    s_lshl_b32 s{sT+3}, s{sCT}, 7
    s_add_u32 s{sT}, s{sT}, s{sT+3}
    v_add_u32 v{vXO}, s{sT}, v{t0}
    s_lshr_b32 s{sT}, s{sW}, 1
    s_add_u32 s{sT}, s{sT}, s{sW}
    s_lshl_b32 s{sT}, s{sT}, 10
    s_mul_i32 s{sT+3}, s{sHD}, 49152
    s_add_u32 s{sT}, s{sT}, s{sT+3}
    v_add_u32 v{vKv}, s{sT}, v{vL16}
    v_and_b32 v{t0}, 7, v0
    v_mul_u32_u24 v{vZ}, 6144, v{t0}
    v_bfe_u32 v{t0}, v0, 3, 2
    v_lshl_add_u32 v{vZ}, v{t0}, 8, v{vZ}
    v_lshrrev_b32 v{t0}, 5, v0
    v_mul_u32_u24 v{t0}, 3072, v{t0}
    v_add3_u32 v{vZ}, v{vZ}, v{t0}, s{sT+3}
    s_and_b32 s{sT}, s{sW}, 1
    s_lshl_b32 s{sT}, s{sT}, 10
    s_lshr_b32 s{sT+3}, s{sW}, 1
    s_lshl_b32 s{sT+3}, s{sT+3}, 3
    s_add_u32 s{sT}, s{sT}, s{sT+3}
    s_add_u32 s{sT}, s{sT}, {FIN}
    v_add_u32 v{vFw}, s{sT}, v{vL16}
    v_bfe_u32 v{t0}, v0, 3, 2
    v_lshlrev_b32 v{t0}, 4, v{t0}
    v_lshrrev_b32 v{t0+1}, 5, v0
    v_lshl_add_u32 v{t0}, v{t0+1}, 3, v{t0}
    v_add_u32 v{vZw}, {FIN+2048}, v{t0}
    v_and_b32 v{t0}, 48, v0
    v_add_u32 v{vZr}, {FIN+2048}, v{t0}
    v_add_u32 v{vFr}, {FIN}, v{vL16}
    """)
    for r in range(32, 64, 2):
        B(f"v_pk_mov_b32 v[{r}:{r+1}], 0, 0")
    interleave(A, bgroups(0) + bgroups(1) + bgroups(2) + bgroups(3), lines(B))
    poll_check(F_A, vPollR, 14)
    A("s_barrier")
    flag_set(F_LN | F_WT | F_A | F_A2)
    stamp(A, 4, 1)
    B = Asm()
    swiglu_pair(B, 2, tq)
    for i in range(4):
        o = acc[("g6", i)].base
        swiglu_tile(B, 6, i, tq, o)
        B(f"buffer_store_dwordx2 v[{o}:{o+1}], v{vX}, s[{sSH}:{sSH+3}], s{sCL} offen offset:{1024*i} sc1")
    interleave(A, agroups(0) + agroups(1) + agroups(2) + agroups(3), lines(B))
    A(poll_issue(vPollR))
    ACC = lambda i, j: 32 + 16 * i + 4 * j
    BR = lambda p: Reg('v', 96 + 4 * p)
    vXD = 128
    kvb, zb, fr, ob = 144, 176, 180, 192
    def bread(F, a, pos):
        q, j = (F % 16) // 4, F % 4
        return f"ds_read_b64_tr_b16 {BR(pos).sub(2*a, 2)}, v{vR[j]} offset:{4096*q + 2048*a}"
    A("s_waitcnt vmcnt(23)")
    A("s_barrier")
    stamp(A, 5, 1); stamp(A, 1, 3)
    for F in range(LA):
        for a in range(2): A(bread(F, a, F % 8))
    def stage(s, loads, last=False, vm=26, finish=False):
        for F in range(16):
            q, j = F // 4, F % 4
            pos = F % 8
            rd = not (last and F + LA >= 16)
            if F == 10:
                if not last:
                    A(f"s_waitcnt vmcnt({vm}) lgkmcnt(8)"); A("s_barrier")
                else:
                    A("s_waitcnt lgkmcnt(8)")
            elif F % 2 == 0:
                n = 8 if not last or F < 10 else max(0, 2 * (16 - F - 2))
                A(f"s_waitcnt lgkmcnt({n})")
                extra = {0: f"s_add_u32 s{sR}, s{sR}, s{sSLOT}", 4: f"s_add_u32 s{sM}, s{sM}, s{sSLOT}"}.get(F)
                if extra: A(extra)
            m = lambda i: f"v_mfma_f32_16x16x32_bf16 v[{ACC(i, j)}:{ACC(i, j)+3}], {BR(pos)}, {AR(s, q, i)}, v[{ACC(i, j)}:{ACC(i, j)+3}]"
            A(m(0))
            if rd: A(bread(F + LA, 0, (F + LA) % 8))
            A(m(1))
            if rd: A(bread(F + LA, 1, (F + LA) % 8))
            if F == 1:
                A(f"s_cmp_eq_u32 s{sR}, s{sREND}"); A(f"s_cselect_b32 s{sR}, 0, s{sR}")
            if F == 5:
                A(f"s_cmp_eq_u32 s{sM}, s{sMEND}"); A(f"s_cselect_b32 s{sM}, s{sM0}, s{sM}")
            if F == 8 and loads: A(f"s_add_u32 s{sBo}, s{sBo}, 0x40000")
            if F == 10 and loads: A(f"s_mov_b32 m0, s{sM}")
            if F == 9:
                for jj in range(4): A(f"v_add_u32 v{vR[jj]}, s{sR}, v{vRb[jj]}")
            if loads or finish:
                if F in (0, 1): A(aload((s + 3) % 4, 3, F))
                if F == 2: A(f"s_add_u32 s{sAo}, s{sAo}, 0x80000")
                if F in (3, 7): A(bdma(2 + F // 4))
            if loads:
                if F in (4, 5, 8, 9, 12, 13): A(aload(s, F // 4 - 1, F % 4))
                if F in (11, 15): A(bdma(F // 4 - 2))
    A.label("M_loop2")
    for s in range(4): stage(s, True, vm=23 if s == 0 else 26)
    A(f"s_add_u32 s{sCnt}, s{sCnt}, 1")
    for k in (1, 2, 3, 5, 6, 7):
        A(f"s_cmp_eq_u32 s{sCnt}, {k}")
        A(f"s_cbranch_scc1 M_ev{k}")
    A(f"""
    s_cmp_lt_u32 s{sCnt}, 8
    s_cbranch_scc1 M_loop2
    s_branch M_tail
    """)
    A.label("M_ev1")
    stamp(A, 2, 3)
    flag_set(F_LN | F_WT | F_A | F_A2 | F_B)
    poll_check(F_A2, vPollR)
    A(f"s_mov_b32 s{sT}, 0")
    for r in range(8):
        A(f"buffer_load_dwordx4 v[{kvb+4*r}:{kvb+4*r+3}], v{vKv}, s[{sSK}:{sSK+3}], s{sT} offen sc1")
        A(f"s_add_u32 s{sT}, s{sT}, 6144")
    A(f"buffer_load_dwordx4 v[{zb}:{zb+3}], v{vZ}, s[{sSK}:{sSK+3}], 0 offen offset:2048 sc1")
    A("s_branch M_loop2")
    A.label("M_ev2")
    stamp(A, 3, 3)
    A(poll_issue(vPollR))
    for st in (16, 8, 4):
        for r in range(0, st, 2):
            A(f"v_pk_add_f32 v[{kvb+r}:{kvb+r+1}], v[{kvb+r}:{kvb+r+1}], v[{kvb+st+r}:{kvb+st+r+1}]")
    for dpp in ("quad_perm:[1,0,3,2]", "quad_perm:[2,3,0,1]", "row_half_mirror"):
        for j in range(4):
            A(f"v_add_f32_dpp v{zb+j}, v{zb+j}, v{zb+j} {dpp} row_mask:0xf bank_mask:0xf")
    A(f"""
    v_cvt_pk_bf16_f32 v{kvb}, v{kvb}, v{kvb+1}
    v_cvt_pk_bf16_f32 v{kvb+1}, v{kvb+2}, v{kvb+3}
    v_cvt_pk_bf16_f32 v{zb}, v{zb}, v{zb+1}
    v_cvt_pk_bf16_f32 v{zb+1}, v{zb+2}, v{zb+3}
    ds_write_b64 v{vFw}, v[{kvb}:{kvb+1}]
    ds_write_b64 v{vZw}, v[{zb}:{zb+1}]
    s_add_u32 s{sT}, s{sHD}, 112
    s_lshl_b32 s{sT}, s{sT}, 17
    s_waitcnt lgkmcnt(0)
    s_barrier
    ds_read_b128 v[{fr}:{fr+3}], v{vFr}
    ds_read_b128 v[{fr+4}:{fr+7}], v{vFr} offset:1024
    ds_read_b128 v[{fr+8}:{fr+11}], v{vZr}
    s_waitcnt lgkmcnt(0)
    """)
    for i in range(4):
        for et in (2, 0, 1):
            d = ob + 12 * i + 4 * et
            A(f"v_mfma_f32_16x16x32_bf16 v[{d}:{d+3}], v[{fr+4*et}:{fr+4*et+3}], v[{pqb+4*i}:{pqb+4*i+3}], 0")
    A("s_nop 2")
    for i in range(4): A(f"v_add_f32 v{ob+12*i+8}, s{sEPS}, v{ob+12*i+8}")
    for i in range(4): A(f"v_rcp_f32 v{ob+12*i+8}, v{ob+12*i+8}")
    A("s_nop 0")
    for i in range(4):
        d = ob + 12 * i
        for q in range(4):
            A(f"v_pk_mul_f32 v[{d+2*q}:{d+2*q+1}], v[{d+2*q}:{d+2*q+1}], v[{d+8}:{d+9}] op_sel_hi:[1,0]")
        for q in range(4):
            A(f"v_cvt_pk_bf16_f32 v{d+q}, v{d+2*q}, v{d+2*q+1}")
        A(f"buffer_store_dwordx4 v[{d}:{d+3}], v{vX}, s[{sSH}:{sSH+3}], s{sT} offen offset:{1024*i} sc1")
    A("s_branch M_loop2")
    A.label("M_ev3")
    stamp(A, 4, 3)
    flag_set(F_LN | F_WT | F_A | F_A2 | F_B | F_C)
    poll_check(F_B, vPollR)
    A("s_branch M_loop2")
    A.label("M_ev5")
    stamp(A, 5, 3)
    A(poll_issue(vPollR))
    A("s_branch M_loop2")
    A.label("M_ev6")
    poll_check(F_C, vPollR)
    A(f"""
    s_or_b32 s{sT}, s2, s{sW}
    s_cmp_eq_u32 s{sT}, 0
    s_cbranch_scc0 M_loop2
    v_mov_b32 v{vT}, s{sTag}
    s_mov_b32 s{sT}, {EPOCH}
    s_mov_b64 exec, 1
    buffer_store_dword v{vT}, off, s[{sSF}:{sSF+3}], s{sT} sc1
    s_mov_b64 exec, -1
    """)
    A("s_branch M_loop2")
    A.label("M_ev7")
    A(f"s_mov_b32 s{sT}, 0")
    A(f"s_mov_b32 s{sT+1}, {16*2048}")
    for i in range(2):
        for pr in range(2):
            A(f"buffer_load_dwordx4 v[{vXD+8*i+4*pr}:{vXD+8*i+4*pr+3}], v{vXO}, s[{sSXi}:{sSXi+3}], s{sT+i} offen offset:{64*pr}")
    tb = 144
    for r in range(0, 32, 2):
        A(f"v_pk_mul_f32 v[{tb+r}:{tb+r+1}], v[{32+r}:{33+r}], s[{sNL}:{sNL+1}]")
    for r in range(32): A(f"v_exp_f32 v{tb+r}, v{tb+r}")
    for r in range(0, 32, 2):
        A(f"v_pk_add_f32 v[{tb+r}:{tb+r+1}], v[{tb+r}:{tb+r+1}], 1.0 op_sel_hi:[1,0]")
    for r in range(32): A(f"v_rcp_f32 v{tb+r}, v{tb+r}")
    for r in range(0, 32, 2):
        A(f"v_pk_mul_f32 v[{64+r}:{65+r}], v[{32+r}:{33+r}], v[{tb+r}:{tb+r+1}]")
    for r in range(0, 32, 2):
        A(f"v_pk_mov_b32 v[{32+r}:{33+r}], 0, 0")
    A("s_branch M_loop2")
    A.label("M_tail")
    stamp(A, 6, 3)
    for i in range(2):
        for pr in range(2):
            x = vXD + 8 * i + 4 * pr
            for q in range(4):
                A(f"v_lshlrev_b32 v{tb+8*(2*i+pr)+2*q}, 16, v{x+q}")
                A(f"v_and_b32 v{tb+8*(2*i+pr)+2*q+1}, 0xffff0000, v{x+q}")
    stage(0, False, vm=6 + 12 + 4, finish=True)
    stage(1, False, vm=6 + 4)
    stage(2, False, vm=0)
    stage(3, False, last=True)
    A("s_nop 4")
    for i in range(2):
        for pr in range(2):
            t0 = ACC(i, 2 * pr); t1 = ACC(i, 2 * pr + 1)
            for t in (t0, t1):
                for r in (0, 2):
                    A(f"v_pk_mul_f32 v[{t+r}:{t+r+1}], v[{t+r}:{t+r+1}], v[{t+32+r}:{t+33+r}]")
    for i in range(2):
        for pr in range(2):
            t0 = ACC(i, 2 * pr); t1 = ACC(i, 2 * pr + 1)
            x = vXD + 8 * i + 4 * pr; xb = tb + 8 * (2 * i + pr)
            for r in range(4):
                A(f"v_permlane16_swap_b32 v{t0+r}, v{t1+r}")
            for q in range(4):
                A(f"v_pk_add_f32 v[{t0+2*q}:{t0+2*q+1}], v[{t0+2*q}:{t0+2*q+1}], v[{xb+2*q}:{xb+2*q+1}]")
            for q in range(4):
                A(f"v_cvt_pk_bf16_f32 v{x+q}, v{t0+2*q}, v{t0+2*q+1}")
            A(f"buffer_store_dwordx4 v[{x}:{x+3}], v{vXO}, s[{sSO}:{sSO+3}], s{sT+i} offen offset:{64*pr}")
    stamp(A, 6, 1)
    if OPT["stamp"]:
        A("s_memrealtime s[100:101]")
        A("s_waitcnt lgkmcnt(0)")
        srd(A, 16, 14, 15, 0x10000, STAMP_OFF + 0x10000)
        A(f"s_lshl_b32 s{sT}, s2, 2"); A(f"s_add_u32 s{sT}, s{sT}, s{sW}"); A(f"s_lshl_b32 s{sT}, s{sT}, 6")
        A(f"v_mov_b32 v0, s{sT}")
        for i, r in enumerate(SREG):
            A(f"v_mov_b32 v1, s{r}"); A(f"buffer_store_dword v1, v0, s[16:19], 0 offen offset:{4*i}")
        A(f"v_mov_b32 v1, s100"); A(f"buffer_store_dword v1, v0, s[16:19], 0 offen offset:56")
        A(f"v_mov_b32 v1, s99"); A(f"buffer_store_dword v1, v0, s[16:19], 0 offen offset:60")
    A.label("M_end")
    A("s_endpgm")
    return A.text()

def build():
    K = NAME + "_kernel"
    hdr = open(f"cdna_kernels/{NAME}.s.ref").read().split("; Override")[0]
    out = [hdr.rstrip("\n")]
    if OPT.get("list"):
        out.append(f"; @launch kernel={K} grid=(256,1,1) block=(256,1,1) lds={LDS_BYTES}")
    else:
        out.append(f"; @launch grid=(256,1,1) block=(256,1,1) lds={LDS_BYTES}")
    out.append('.amdgcn_target "amdgcn-amd-amdhsa--gfx950"')
    out.append(".text")
    body, size = align_kernel(gen())
    for p in check_hazards(body): print("HAZARD", p, file=sys.stderr)
    print("code bytes", size, file=sys.stderr)
    assert size < 32768
    out.append(body.rstrip("\n"))
    out.append(".p2align 8")
    out.append(f".fill {(33792 - size) // 4}, 4, 0xbf810000")
    out.append(f""".section .rodata,"a"
.p2align 6
.amdhsa_kernel {K}
  .amdhsa_next_free_vgpr 512
  .amdhsa_next_free_sgpr 102
  .amdhsa_accum_offset 256
  .amdhsa_group_segment_fixed_size 0
  .amdhsa_kernarg_size 80
  .amdhsa_user_sgpr_count 2
  .amdhsa_user_sgpr_kernarg_segment_ptr 1
  .amdhsa_system_sgpr_workgroup_id_x 1
.end_amdhsa_kernel""")
    return "\n".join(out) + "\n"

if __name__ == "__main__":
    for a in sys.argv[2:]:
        k, v = a.split("="); OPT[k] = int(v)
    WS_BASE = OPT.get('wsb', 0) << 20
    XF_OFF += WS_BASE; HF_OFF += WS_BASE; KVP_OFF += WS_BASE; WT_OFF += WS_BASE; FLG_OFF += WS_BASE
    open(sys.argv[1], "w").write(build())
```

```python
import sys, struct
from asmlib import *

NAME = "recurrent_scan__linear_attn_block__swiglu_ffn__prompt"
XF_OFF = 0x0
HF_OFF = 0x400000
HF_SIZE = 144 * 131072
KVP_OFF = 0x1600000
KVP_SIZE = 32 * 8 * 6144
WT_OFF = 0x1C00000
WT_SIZE = 144 * 65536
FLG_OFF = 0x2800000
LSTR = 128
FLG_SIZE = 33 * LSTR
EPOCH = 32 * LSTR
STAMP_OFF = 0x3000000

def f2u(x): return struct.unpack("<I", struct.pack("<f", x))[0]
LOG2E = 1.4426950408889634
OPT = dict(stamp=0, align=1, snake=1)

G1_S, G1_SLOT = 5, 20480
KVL = G1_S * G1_SLOT
G2_R, G2_SLOT = 5, 16384
FIN = 131072
LDS_BYTES = FIN + 4096
F_LN, F_WT, F_A, F_A2, F_B, F_C = 1, 2, 4, 8, 16, 32

def srd(A, d, lo, hi, size, off=0):
    if off:
        A(f"s_add_u32 s{d}, s{lo}, 0x{off:x}")
        A(f"s_addc_u32 s{d+1}, s{hi}, 0")
    else:
        A(f"s_mov_b32 s{d}, s{lo}")
        A(f"s_mov_b32 s{d+1}, s{hi}")
    A(f"s_mov_b32 s{d+2}, 0x{size:x}")
    A(f"s_mov_b32 s{d+3}, 0x00020000")

SREG = [6, 7, 86, 87, 96, 97, 98]
def stamp(A, idx, mode):
    if OPT["stamp"] != mode: return
    A("s_memrealtime s[100:101]" if OPT.get("rt") else "s_memtime s[100:101]")
    A("s_waitcnt lgkmcnt(0)")
    A(f"s_mov_b32 s{SREG[idx]}, s100")

def interleave(A, groups, work):
    per = -(-len(work) // len(groups)); wi = 0
    for grp in groups:
        for l in grp: A(l)
        for l in work[wi:wi + per]: A(l)
        wi += per
    for l in work[wi:]: A(l)

def lines(B): return [l.strip() for l in B.lines]

def gen():
    A = Asm()
    K = NAME + "_kernel"
    A.raw(f".globl {K}\n.p2align 8\n.type {K},@function\n{K}:")
    if OPT["align"]: A.raw("    ; @align on")
    vX, vD, vA0, vA1, vAG, vB0, vB1, vBG, vL16 = 1, [2, 3, 4, 5, 6], 7, 8, 9, 10, 11, 12, 13
    vT = 14
    vPollR, vPv, vCd, vPollW, vPollH, vCs, vDum = 17, 18, 16, 20, 21, 22, 23
    vTq, vTg = 20, 21
    names = ["g0", "u0", "g1", "u1", "k0", "k1", "v0", "v1", "q0", "q1"]
    for t in range(2, 7): names += [f"g{t}", f"u{t}"]
    acc = {}
    nv = 24; na = 0
    for nm in ["k0", "k1", "v0", "v1"] + [f"g{t}" for t in range(7)]:
        for i in range(4):
            acc[(nm, i)] = Reg('v', nv); nv += 4
    for t in range(7):
        for i in range(4):
            if t * 4 + i < 14:
                acc[(f"u{t}", i)] = Reg('v', nv); nv += 4
            else:
                acc[(f"u{t}", i)] = Reg('a', na); na += 4
    for nm in ["q0", "q1"]:
        for i in range(4):
            acc[(nm, i)] = Reg('a', na); na += 4
    assert nv == 256 and na == 88
    XR = lambda s, i: Reg('a', 88 + 16 * s + 4 * i)
    WR = lambda p: Reg('a', 152 + 4 * p)
    PT = lambda t: Reg('a', 88 + 4 * t)
    CT = lambda k: Reg('a', 208 + 4 * k)
    sSX, sSD = 16, [20, 24, 28, 32, 36]
    sSCs, sSCd, sSF = 40, 72, 92
    sST = [76, 80, 44]
    sW, sHD, sRB, sXo, sWoA, sWoB, sStA, sStB, sM, sR, sCnt = 48, 49, 50, 51, 52, 53, 54, 55, 56, 57, 58
    sSLOT, sREND, sMEND, sM0, sCl, sCs = 59, 60, 61, 62, 63, 3
    sToq, sTog, sFo, sSpin, sTag, sTm = 88, 89, 90, 91, 12, 13
    sT = 64
    uid = [0]
    def flag_set(val):
        uid[0] += 1; L = f"M_fs{uid[0]}"
        A(f"""
        s_cmp_eq_u32 s{sW}, 0
        s_cbranch_scc0 {L}
        v_mov_b32 v{vT}, s{sTag}
        v_mov_b32 v{vT+1}, {val}
        s_mov_b64 exec, 1
        buffer_store_dwordx2 v[{vT}:{vT+1}], off, s[{sSF}:{sSF+3}], s{sFo} sc1
        s_mov_b64 exec, -1
        """)
        A.label(L)
    def poll_issue(vaddr):
        return f"buffer_load_dwordx2 v[{vPv}:{vPv+1}], v{vaddr}, s[{sSF}:{sSF+3}], 0 offen sc1"
    MASK_R, MASK_U = 0x00000000ffffffff, 0xffffffff00000000
    def poll_eval(E, bit):
        E(f"""
        v_xor_b32 v{vT}, s{sTag}, v{vPv}
        v_bfe_u32 v{vT+1}, v{vPv+1}, {bit.bit_length()-1}, 1
        v_xor_b32 v{vT+1}, 1, v{vT+1}
        v_or_b32 v{vT}, v{vT}, v{vT+1}
        v_cmp_ne_u32 vcc, 0, v{vT}
        s_nop 3
        """)
    def repoll(L, va=None, slp=None):
        if slp is None: slp = OPT.get('sleep', 8)
        A(f"""
        s_add_u32 s{sSpin}, s{sSpin}, 1
        s_cmp_ge_u32 s{sSpin}, 0x40000
        s_cbranch_scc1 {L}_ok
        s_sleep {slp}
        {poll_issue(vPollR if va is None else va)}
        s_waitcnt vmcnt(0)
        s_branch {L}
        """)
    def poll_check(bit, mask, vm=None, va=None, slp=None):
        uid[0] += 1; L = f"M_pc{uid[0]}"
        if vm is not None: A(f"s_waitcnt vmcnt({vm})")
        A(f"s_mov_b32 s{sSpin}, 0")
        A.label(L)
        poll_eval(A, bit)
        lo, hi = mask & 0xffffffff, mask >> 32
        if hi == 0:
            A(f"s_cmp_eq_u32 vcc_lo, 0")
        elif lo == 0:
            A(f"s_and_b32 s{sTm}, vcc_hi, 0x{hi:x}"); A(f"s_cmp_eq_u32 s{sTm}, 0")
        else:
            A(f"s_and_b32 s{sTm}, vcc_hi, 0x{hi:x}"); A(f"s_or_b32 s{sTm}, s{sTm}, vcc_lo"); A(f"s_cmp_eq_u32 s{sTm}, 0")
        A(f"s_cbranch_scc1 {L}_ok")
        repoll(L, va, slp)
        A.label(L + "_ok")
    def cond_poll(cmp, va):
        uid[0] += 1; L = f"M_cp{uid[0]}"
        return cmp + [f"s_cbranch_scc0 {L}", poll_issue(va), L + ":"]
    def emit(ls):
        for l in ls:
            if l.endswith(":"): A.label(l[:-1])
            else: A(l)
    def lack_mask(E):
        poll_eval(E, F_A)
        E(f"""
        s_lshr_b32 s{sTm}, vcc_lo, 16
        s_or_b32 s{sLack}, s{sTm}, vcc_lo
        s_lshr_b32 s{sTm}, s{sLack}, 8
        s_or_b32 s{sLack}, s{sLack}, s{sTm}
        s_and_b32 s{sLack}, s{sLack}, 0xff
        """)
    def stage_gate(ssig):
        uid[0] += 1; L = f"M_sg{uid[0]}"
        A(f"s_bitcmp0_b32 s{sLack}, s{ssig}")
        A(f"s_cbranch_scc1 {L}_ok")
        A(f"s_mov_b32 s{sSpin}, 0")
        A(poll_issue(vPollR)); A("s_waitcnt vmcnt(0)")
        A.label(L)
        lack_mask(A)
        A(f"s_bitcmp0_b32 s{sLack}, s{ssig}")
        A(f"s_cbranch_scc1 {L}_ok")
        repoll(L)
        A.label(L + "_ok")
    A(f"""
    s_cmp_ge_u32 s2, 256
    s_cbranch_scc1 M_end
    """)
    if OPT["stamp"]:
        A("s_memrealtime s[100:101]"); A("s_waitcnt lgkmcnt(0)"); A("s_mov_b32 s99, s100")
        A("s_memrealtime s[100:101]" if OPT.get("rt") else "s_memtime s[100:101]"); A("s_waitcnt lgkmcnt(0)"); A(f"s_mov_b32 s{SREG[0]}, s100")
    A(f"""
    s_load_dwordx4 s[68:71], s[0:1], 0
    s_load_dwordx4 s[8:11], s[0:1], 32
    s_load_dwordx4 s[12:15], s[0:1], 64
    s_load_dwordx2 s[84:85], s[0:1], 16
    s_load_dwordx2 s[{sSCs}:{sSCs+1}], s[0:1], 48
    s_getpc_b64 s[{sT+2}:{sT+3}]
    s_and_b32 s{sT+2}, s{sT+2}, 0xffffff00
    s_bfe_u32 s{sT}, s2, 0x30003
    s_mul_i32 s{sT}, s{sT}, 5120
    v_mul_u32_u24 v{vT}, 5, v0
    v_lshrrev_b32 v{vT}, 5, v{vT}
    v_lshlrev_b32 v{vT}, 7, v{vT}
    v_add_u32 v{vT}, s{sT}, v{vT}
    global_load_dword v{vDum}, v{vT}, s[{sT+2}:{sT+3}]
    v_lshrrev_b32 v{vT}, 6, v0
    v_and_b32 v0, 63, v0
    v_readfirstlane_b32 s{sW}, v{vT}
    s_and_b32 s{sT}, s2, 7
    s_lshr_b32 s{sT+1}, s2, 3
    s_and_b32 s{sRB}, s{sT+1}, 7
    s_lshr_b32 s{sT+1}, s{sT+1}, 3
    s_lshl_b32 s{sHD}, s{sT}, 2
    s_add_u32 s{sHD}, s{sHD}, s{sT+1}
    v_lshlrev_b32 v{vL16}, 4, v0
    s_lshl_b32 s{sFo}, s{sRB}, 5
    s_add_u32 s{sFo}, s{sFo}, s{sHD}
    """)
    lX, lF, lS, lR, lA = 32, 48, 80, 88, 112
    A(f"""
    v_and_b32 v{lA}, 7, v0
    v_lshrrev_b32 v{lA+1}, 3, v0
    v_lshlrev_b32 v{lA+2}, 11, v{lA}
    v_lshl_add_u32 v{lA+2}, v{lA+1}, 4, v{lA+2}
    s_lshl_b32 s{sT}, s{sFo}, 14
    s_lshl_b32 s{sT+1}, s{sW}, 9
    s_add_u32 s{sT}, s{sT}, s{sT+1}
    v_add_u32 v{lA+2}, s{sT}, v{lA+2}
    s_waitcnt lgkmcnt(0)
    """)
    srd(A, sSX, 68, 69, 0x400000)
    for n in range(4):
        A(f"buffer_load_dwordx4 v[{lX+4*n}:{lX+4*n+3}], v{lA+2}, s[{sSX}:{sSX+3}], 0 offen offset:{128*n}")
    A(f"v_and_b32 v{lA+6}, 0xfffff800, v{lA+2}")
    A(f"buffer_load_ushort v{lA+7}, v{lA+6}, s[{sSX}:{sSX+3}], 0 offen")
    A("s_mov_b32 s4, s70"); A("s_mov_b32 s5, s71")
    srd(A, sSF, 14, 15, FLG_SIZE, FLG_OFF)
    A(f"s_mov_b32 s{sT}, {EPOCH}")
    A(f"buffer_load_dword v{vPv}, off, s[{sSF}:{sSF+3}], s{sT} sc1")
    A(f"""
    s_lshr_b32 s{sT}, s2, 3
    s_lshl_b32 s{sT}, s{sT}, 2
    s_add_u32 s{sT}, s{sT}, s{sW}
    s_lshl_b32 s{sT}, s{sT}, 1
    s_and_b32 s{sT+1}, s2, 7
    s_mul_i32 s{sT+2}, s{sT}, 7168
    s_mul_i32 s{sT+3}, s{sT+1}, 896
    s_add_u32 s{sT+2}, s{sT+2}, s{sT+3}
    s_mul_i32 s{sT+3}, s{sT}, 6144
    s_lshl_b32 s{sT+1}, s{sT+1}, 8
    s_add_u32 s{sT+3}, s{sT+3}, s{sT+1}
    v_cmp_le_u32 vcc, 7, v0
    v_lshlrev_b32 v{vTg}, 7, v0
    v_mov_b32 v{vT}, {7168-7*128}
    v_cndmask_b32 v{vT}, 0, v{vT}, vcc
    v_add3_u32 v{vTg}, v{vTg}, v{vT}, s{sT+2}
    v_cmp_le_u32 vcc, 14, v0
    v_mov_b32 v{vT}, 0x70000000
    v_lshrrev_b32 v{vT+1}, 1, v0
    v_cndmask_b32 v{vTg}, v{vTg}, v{vT}, vcc
    v_and_b32 v{vTq}, 1, v0
    v_lshlrev_b32 v{vTq}, 7, v{vTq}
    v_lshl_add_u32 v{vTq}, v{vT+1}, 11, v{vTq}
    v_cmp_le_u32 vcc, 12, v0
    v_add_u32 v{vTq}, s{sT+3}, v{vTq}
    s_mov_b32 s{sToq}, 0
    v_cndmask_b32 v{vTq}, v{vTq}, v{vT}, vcc
    s_mov_b32 s{sTog}, 0
    """)
    srd(A, sST[0], 4, 5, 1024 * 6144)
    srd(A, sST[1], 8, 9, 1024 * 7168)
    srd(A, sST[2], 10, 11, 1024 * 7168)
    def touch(s):
        v = [vTq, vTg, vTg][s]; so = [sToq, sTog, sTog][s]
        return f"buffer_load_dword v{vDum}, v{v}, s[{sST[s]}:{sST[s]+3}], s{so} offen"
    NY = 2
    stamp(A, 1, 2)
    A(f"""
    v_lshrrev_b32 v{lA+8}, 4, v0
    v_bfe_u32 v{lA+9}, v0, 2, 2
    v_lshl_add_u32 v{lA+10}, v{lA+8}, 3, v{lA+9}
    v_mul_u32_u24 v{lA+10}, 6144, v{lA+10}
    v_bfe_u32 v{lA+11}, v0, 1, 1
    v_and_b32 v{lA+12}, 1, v{lA+8}
    v_xor_b32 v{lA+11}, v{lA+11}, v{lA+12}
    v_lshl_add_u32 v{lA+10}, v{lA+11}, 5, v{lA+10}
    v_and_b32 v{lA+11}, 1, v0
    v_lshl_add_u32 v{lA+10}, v{lA+11}, 4, v{lA+10}
    s_mul_i32 s{sT+2}, s{sW}, 5
    s_and_b32 s{sT+3}, s{sHD}, 1
    s_lshl_b32 s{sT+3}, s{sT+3}, 1
    s_mul_i32 s{sT+4}, s{sHD}, 224
    """)
    t3, t4, t5, t6, t7 = lA + 11, lA + 12, lA + 13, lA + 14, lA + 15
    for i in range(5):
        d = sSD[i]
        A(f"""
        s_add_u32 s{sT+5}, s{sT+2}, {i}
        s_cmp_lt_u32 s{sT+5}, 6
        s_cbranch_scc0 M_gu{i}
        s_lshr_b32 s{sT+6}, s{sT+5}, 1
        s_lshl_b32 s{sT+6}, s{sT+6}, 11
        s_and_b32 s{sT+7}, s{sT+5}, 1
        s_mul_i32 s{sT+7}, s{sT+7}, 24576
        s_add_u32 s{sT+6}, s{sT+6}, s{sT+7}
        s_lshl_b32 s{sT+7}, s{sHD}, 6
        s_add_u32 s{sT+6}, s{sT+6}, s{sT+7}
        v_add_u32 v{vD[i]}, s{sT+6}, v{lA+10}
        s_mov_b32 s{d}, s4
        s_mov_b32 s{d+1}, s5
        s_mov_b32 s{d+2}, {1024*6144}
        s_mov_b32 s{sStA if i == 0 else sStB}, {32*6144}
        s_branch M_dn{i}
        """)
        A.label(f"M_gu{i}")
        A(f"""
        s_sub_u32 s{sT+6}, s{sT+5}, 6
        s_sub_u32 s{sT+7}, s{sT+5}, 13
        s_cmp_lt_u32 s{sT+5}, 13
        s_cselect_b32 s{sT+6}, s{sT+6}, s{sT+7}
        s_cselect_b32 s{d}, s8, s10
        s_cselect_b32 s{d+1}, s9, s11
        s_mov_b32 s{d+2}, {1024*7168}
        s_mov_b32 s{sStA if i == 0 else sStB}, {32*7168}
        s_lshl_b32 s{sT+6}, s{sT+6}, 6
        v_add_u32 v{t3}, s{sT+6}, v0
        v_mul_u32_u24 v{t4}, 4682, v{t3}
        v_lshrrev_b32 v{t4}, 16, v{t4}
        v_mul_u32_u24 v{t5}, 14, v{t4}
        v_sub_u32 v{t5}, v{t3}, v{t5}
        v_add_u32 v{t5}, s{sT+3}, v{t5}
        v_subrev_u32 v{t6}, 14, v{t5}
        v_min_u32 v{t5}, v{t5}, v{t6}
        v_bfe_u32 v{t6}, v{t4}, 2, 2
        v_lshrrev_b32 v{t7}, 4, v{t4}
        v_and_b32 v{t4}, 3, v{t4}
        v_lshl_add_u32 v{t4}, v{t6}, 3, v{t4}
        v_lshl_add_u32 v{t4}, v{t7}, 2, v{t4}
        v_mul_u32_u24 v{t4}, 7168, v{t4}
        v_lshl_add_u32 v{t4}, v{t5}, 4, v{t4}
        v_add_u32 v{vD[i]}, s{sT+4}, v{t4}
        """)
        A.label(f"M_dn{i}")
        A(f"s_mov_b32 s{d+3}, 0x00020000")
    A(f"""
    s_lshr_b32 s{sT}, s{sFo}, 1
    s_lshl_b32 s{sT}, s{sT}, 10
    s_and_b32 s{sT+1}, s{sFo}, 1
    s_lshl_b32 s{sT+1}, s{sT+1}, 7
    s_add_u32 s{sT}, s{sT}, s{sT+1}
    s_lshl_b32 s{sT+1}, s{sW}, 20
    s_add_u32 s{sT}, s{sT}, s{sT+1}
    v_lshrrev_b32 v{lA+3}, 2, v{lA+1}
    v_lshlrev_b32 v{lA+3}, 17, v{lA+3}
    v_and_b32 v{lA+4}, 3, v{lA+1}
    v_lshl_add_u32 v{lA+3}, v{lA+4}, 8, v{lA+3}
    v_lshl_add_u32 v{lA+3}, v{lA}, 4, v{lA+3}
    v_add_u32 v{lA+3}, s{sT}, v{lA+3}
    v_lshlrev_b32 v{lA+5}, 6, v{lA}
    v_add_u32 v{lA+5}, {KVL}, v{lA+5}
    s_lshl_b32 s{sT}, s{sW}, 4
    v_lshl_add_u32 v{lA+4}, v{lA+8}, 2, v{lA+5}
    v_add_u32 v{lA+4}, s{sT}, v{lA+4}
    """)
    srd(A, sSX, 14, 15, 0x400000, XF_OFF)
    A(f"s_lshr_b32 s{sFo}, s2, 3"); A(f"s_mul_i32 s{sFo}, s{sFo}, {LSTR}"); A(f"s_and_b32 s{sT}, s2, 7"); A(f"s_lshl_b32 s{sT}, s{sT}, 4"); A(f"s_add_u32 s{sFo}, s{sFo}, s{sT}")
    def dma(i):
        return [f"s_add_u32 m0, s{sM}, 0x{1024*(i+1):x}",
                f"buffer_load_dwordx4 v{vD[i]}, s[{sSD[i]}:{sSD[i]+3}], s{sWoA if i == 0 else sWoB} offen lds"]
    def xload(s, i):
        return f"buffer_load_dwordx4 {XR(s, i)}, v{vX}, s[{sSX}:{sSX+3}], s{sXo} offen offset:{1024*i} sc1"
    wadv = [f"s_add_u32 s{sM}, s{sM}, s{sSLOT}", f"s_add_u32 s{sWoA}, s{sWoA}, s{sStA}", f"s_add_u32 s{sWoB}, s{sWoB}, s{sStB}"]
    def wgroups(adv):
        L = []
        for i in range(5):
            m, l = dma(i)
            L.append((wadv if (i == 0 and adv) else []) + [m, "s_nop 0", l])
        return L
    def xgroups(t):
        return [[xload(t, i)] + ([f"s_add_u32 s{sXo}, s{sXo}, 0x20000"] if i == 3 else []) for i in range(4)]
    A(f"""
    s_mov_b32 s{sXo}, 0
    s_mul_i32 s{sM0}, s{sW}, 5120
    s_sub_u32 s{sM0}, s{sM0}, 1024
    s_mov_b32 s{sM}, s{sM0}
    s_mov_b32 s{sWoA}, 0
    s_mov_b32 s{sWoB}, 0
    s_mov_b32 s{sSLOT}, {G1_SLOT}
    """)
    B = Asm()
    B(f"""
    s_lshl_b32 s{sT}, s{sRB}, 14
    s_lshl_b32 s{sT+1}, s{sW}, 12
    s_add_u32 s{sT}, s{sT}, s{sT+1}
    v_add_u32 v{vX}, s{sT}, v{vL16}
    s_lshl_b32 s{sT}, s{sRB}, 3
    v_and_b32 v{vPollR}, 7, v0
    v_bfe_u32 v{t3}, v0, 3, 2
    v_lshl_add_u32 v{vPollR}, v{t3}, 6, v{vPollR}
    v_add_u32 v{vPollR}, s{sT}, v{vPollR}
    v_and_b32 v{vT}, 7, v{vPollR}
    v_lshrrev_b32 v{vPollR}, 3, v{vPollR}
    v_mul_u32_u24 v{vPollR}, {LSTR}, v{vPollR}
    v_lshl_add_u32 v{vPollR}, v{vT}, 4, v{vPollR}
    v_lshrrev_b32 v{t3}, 2, v0
    v_and_b32 v{t4}, 3, v0
    v_lshlrev_b32 v{t4}, 3, v{t4}
    v_lshl_add_u32 v{vB0}, v{t3}, 6, v{t4}
    v_and_b32 v{t5}, 1, v{lA+8}
    v_lshl_add_u32 v{vB0}, v{t5}, 5, v{vB0}
    v_xor_b32 v{vB1}, 32, v{vB0}
    v_mul_u32_u24 v{vBG}, 224, v{t3}
    v_add_u32 v{vBG}, v{vBG}, v{t4}
    v_mov_b32 v{vA0}, v{vB0}
    v_mov_b32 v{vA1}, v{vB1}
    v_mov_b32 v{vAG}, v{vBG}
    s_mov_b32 s{sR}, 0
    s_mov_b32 s{sCnt}, 0
    s_mov_b32 s{sREND}, {G1_S*G1_SLOT}
    s_add_u32 s{sMEND}, s{sM0}, s{sREND}
    """)
    B(f"""
    s_lshl_b32 s{sT}, s2, 2
    s_add_u32 s{sT}, s{sT}, s{sW}
    s_lshl_b32 s{sT}, s{sT}, 10
    v_add_u32 v{vCd}, s{sT}, v{vL16}
    v_lshrrev_b32 v{t3}, 3, v0
    v_bfe_u32 v{t4}, v0, 1, 2
    v_bfe_u32 v{t5}, v0, 4, 2
    v_xor_b32 v{t4}, v{t4}, v{t5}
    v_lshlrev_b32 v{t3}, 11, v{t3}
    v_lshl_add_u32 v{t3}, v{t4}, 5, v{t3}
    v_and_b32 v{t4}, 1, v0
    v_lshl_add_u32 v{t3}, v{t4}, 4, v{t3}
    s_lshl_b32 s{sT}, s{sW}, 14
    s_and_b32 s{sT+1}, s2, 15
    s_lshl_b32 s{sT+1}, s{sT+1}, 7
    s_add_u32 s{sT}, s{sT}, s{sT+1}
    v_add_u32 v{vCs}, s{sT}, v{t3}
    s_lshr_b32 s{sT+1}, s2, 4
    s_mul_i32 s{sT}, s{sT+1}, 7
    s_add_u32 s{sCl}, s{sT}, 1
    s_lshr_b32 s{sCl}, s{sCl}, 1
    s_lshl_b32 s{sCl}, s{sCl}, 16
    s_add_u32 s{sT}, s{sT}, 3
    s_lshl_b32 s{sT}, s{sT}, 16
    s_lshl_b32 s{sT+1}, s{sT+1}, 16
    s_add_u32 s{sT+2}, s{sT+1}, 0x100000
    s_mov_b32 s{sCs}, 0x{(-2 << 20) & 0xffffffff:x}
    s_mov_b32 s{sSCs+2}, {3584*2048}
    s_mov_b32 s{sSCs+3}, 0x00020000
    """)
    sT6, sT7, sT8 = sT, sT + 1, sT + 2
    for l in lines(B): A(l)
    lW, lRd, lSt = lA + 4, lA + 5, lA + 3
    for n in range(4):
        A(f"s_waitcnt vmcnt({3-n+NY})")
        for q in range(4):
            s = lX + 4 * n + q; d = lF + 8 * n + 2 * q
            A(f"v_lshlrev_b32 v{d}, 16, v{s}")
            A(f"v_and_b32 v{d+1}, 0xffff0000, v{s}")
    stamp(A, 2, 2)
    A("s_waitcnt vmcnt(1)")
    for k in range(3): A(touch(k))
    TROW = OPT.get("trow", 1)
    if TROW == 2:
        A(f"s_mov_b32 s{sToq}, {256*6144}")
        A(f"s_mov_b32 s{sTog}, {256*7168}")
    else:
        A(f"""
        s_lshr_b32 s{sTm}, s2, 3
        s_lshl_b32 s{sTm}, s{sTm}, 2
        s_add_u32 s{sTm}, s{sTm}, s{sW}
        s_sub_u32 s{sTm}, 256, s{sTm}
        s_mul_i32 s{sToq}, s{sTm}, 6144
        s_mul_i32 s{sTog}, s{sTm}, 7168
        v_mov_b32 v{vT}, 0x70000000
        v_cmp_le_u32 vcc, 7, v0
        s_nop 1
        v_cndmask_b32 v{vTg}, v{vTg}, v{vT}, vcc
        v_cmp_le_u32 vcc, 6, v0
        s_nop 1
        v_cndmask_b32 v{vTq}, v{vTq}, v{vT}, vcc
        """)
    lM, lMb, lT, lQ = lS + 4, lS + 6, 104, 108
    A(f"""
    v_lshlrev_b32 v{lA+7}, 16, v{lA+7}
    v_sub_f32 v{lM}, 0, v{lA+7}
    v_mov_b32 v{lM+1}, v{lM}
    """)
    for q in range(0, 16, 2):
        d0 = (lS, lS + 2) if q == 0 else (lT, lT + 2)
        A(f"v_pk_add_f32 v[{d0[0]}:{d0[0]+1}], v[{lF+2*q}:{lF+2*q+1}], v[{lM}:{lM+1}]")
        A(f"v_pk_add_f32 v[{d0[1]}:{d0[1]+1}], v[{lF+2*q+2}:{lF+2*q+3}], v[{lM}:{lM+1}]")
        if q == 0:
            A(f"v_pk_mul_f32 v[{lQ}:{lQ+1}], v[{lS}:{lS+1}], v[{lS}:{lS+1}]")
            A(f"v_pk_mul_f32 v[{lQ+2}:{lQ+3}], v[{lS+2}:{lS+3}], v[{lS+2}:{lS+3}]")
        else:
            A(f"v_pk_fma_f32 v[{lQ}:{lQ+1}], v[{lT}:{lT+1}], v[{lT}:{lT+1}], v[{lQ}:{lQ+1}]")
            A(f"v_pk_fma_f32 v[{lQ+2}:{lQ+3}], v[{lT+2}:{lT+3}], v[{lT+2}:{lT+3}], v[{lQ+2}:{lQ+3}]")
            A(f"v_pk_add_f32 v[{lS}:{lS+1}], v[{lS}:{lS+1}], v[{lT}:{lT+1}]")
            A(f"v_pk_add_f32 v[{lS+2}:{lS+3}], v[{lS+2}:{lS+3}], v[{lT+2}:{lT+3}]")
    r = lR; r2 = 128
    A(f"""
    v_pk_add_f32 v[{lS}:{lS+1}], v[{lS}:{lS+1}], v[{lS+2}:{lS+3}]
    v_pk_add_f32 v[{lQ}:{lQ+1}], v[{lQ}:{lQ+1}], v[{lQ+2}:{lQ+3}]
    v_add_f32 v{lS}, v{lS}, v{lS+1}
    v_add_f32 v{lQ}, v{lQ}, v{lQ+1}
    s_nop 0
    v_add_f32_dpp v{lS}, v{lS}, v{lS} row_ror:8 row_mask:0xf bank_mask:0xf
    v_add_f32_dpp v{lQ}, v{lQ}, v{lQ} row_ror:8 row_mask:0xf bank_mask:0xf
    ds_write_b32 v{lW}, v{lS}
    ds_write_b32 v{lW}, v{lQ} offset:512
    s_waitcnt lgkmcnt(0)
    s_barrier
    """)
    for k in range(4): A(f"ds_read_b128 v[{r+4*k}:{r+4*k+3}], v{lRd} offset:{16*k}")
    for k in range(4): A(f"ds_read_b128 v[{r2+4*k}:{r2+4*k+3}], v{lRd} offset:{512+16*k}")
    for wait, rr in ((4, r), (0, r2)):
        A(f"s_waitcnt lgkmcnt({wait})")
        A(f"""
        v_pk_add_f32 v[{rr}:{rr+1}], v[{rr}:{rr+1}], v[{rr+2}:{rr+3}]
        v_pk_add_f32 v[{rr+4}:{rr+5}], v[{rr+4}:{rr+5}], v[{rr+6}:{rr+7}]
        v_pk_add_f32 v[{rr+8}:{rr+9}], v[{rr+8}:{rr+9}], v[{rr+10}:{rr+11}]
        v_pk_add_f32 v[{rr+12}:{rr+13}], v[{rr+12}:{rr+13}], v[{rr+14}:{rr+15}]
        v_pk_add_f32 v[{rr}:{rr+1}], v[{rr}:{rr+1}], v[{rr+4}:{rr+5}]
        v_pk_add_f32 v[{rr+8}:{rr+9}], v[{rr+8}:{rr+9}], v[{rr+12}:{rr+13}]
        v_pk_add_f32 v[{rr}:{rr+1}], v[{rr}:{rr+1}], v[{rr+8}:{rr+9}]
        v_add_f32 v{rr}, v{rr}, v{rr+1}
        v_mul_f32 v{rr}, 0x{f2u(1.0/1024):x}, v{rr}
        """)
    A(f"""
    v_add_f32 v{lMb}, v{lA+7}, v{lR}
    v_fma_f32 v{lR}, -v{lR}, v{lR}, v{r2}
    v_cvt_pk_bf16_f32 v{lMb}, v{lMb}, v{lMb}
    v_max_f32 v{lR}, 0, v{lR}
    v_lshlrev_b32 v{lMb}, 16, v{lMb}
    """)
    A(f"""
    v_cvt_pk_bf16_f32 v{lR}, v{lR}, v{lR}
    v_lshlrev_b32 v{lR}, 16, v{lR}
    v_add_f32 v{lR}, 0x{f2u(1e-5):x}, v{lR}
    v_cvt_pk_bf16_f32 v{lR}, v{lR}, v{lR}
    v_lshlrev_b32 v{lR}, 16, v{lR}
    v_sqrt_f32 v{lR}, v{lR}
    s_nop 0
    v_cvt_pk_bf16_f32 v{lR}, v{lR}, v{lR}
    v_lshlrev_b32 v{lR}, 16, v{lR}
    v_rcp_f32 v{lR}, v{lR}
    v_sub_f32 v{lM}, 0, v{lMb}
    v_mov_b32 v{lM+1}, v{lM}
    v_mov_b32 v{lR+1}, v{lR}
    s_mov_b32 s{sT+3}, 0
    """)
    for n in range(4):
        for q in range(4):
            d = lF + 8 * n + 2 * q; o = lX + 4 * n + q
            A(f"v_pk_add_f32 v[{d}:{d+1}], v[{d}:{d+1}], v[{lM}:{lM+1}]")
        for q in range(4):
            d = lF + 8 * n + 2 * q; o = lX + 4 * n + q
            A(f"v_cvt_pk_bf16_f32 v{o}, v{d}, v{d+1}")
        for q in range(4):
            d = lF + 8 * n + 2 * q; o = lX + 4 * n + q
            A(f"v_lshlrev_b32 v{d}, 16, v{o}")
            A(f"v_and_b32 v{d+1}, 0xffff0000, v{o}")
        for q in range(4):
            d = lF + 8 * n + 2 * q
            A(f"v_pk_mul_f32 v[{d}:{d+1}], v[{d}:{d+1}], v[{lR}:{lR+1}]")
        for q in range(4):
            d = lF + 8 * n + 2 * q; o = lX + 4 * n + q
            A(f"v_cvt_pk_bf16_f32 v{o}, v{d}, v{d+1}")
        A(f"buffer_store_dwordx4 v[{lX+4*n}:{lX+4*n+3}], v{lSt}, s[{sSX}:{sSX+3}], s{sT+3} offen sc1")
        A(f"s_add_u32 s{sT+3}, s{sT+3}, 0x40000")
    stamp(A, 3, 2)
    srd(A, sSCd, 14, 15, WT_SIZE, WT_OFF)
    for g in wgroups(False): emit(g)
    A("s_waitcnt vmcnt(5)")
    A(f"v_readfirstlane_b32 s{sTag}, v{vPv}")
    A("s_barrier")
    A(f"s_mul_i32 s{sTag}, s{sTag}, 0x9e3779b1")
    A(f"s_add_u32 s{sTag}, s{sTag}, 0x7f4a7c15")
    flag_set(F_LN)
    stamp(A, 4, 2)
    B = Asm()
    for r in range(24, 256, 2):
        B(f"v_pk_mov_b32 v[{r}:{r+1}], 0, 0")
    for r in list(range(88)) + list(range(208, 216)):
        B(f"v_accvgpr_write_b32 a{r}, 0")
    interleave(A, wgroups(True) + wgroups(True), lines(B))
    A(poll_issue(vPollR))
    poll_check(F_LN, MASK_R, 0, None, OPT.get('lnsleep', 2))
    sRT, sCT = 68, 69
    A(f"""
    s_and_b32 s{sT+3}, s2, 7
    s_lshr_b32 s{sRT}, s{sT+3}, 1
    s_lshl_b32 s{sRT}, s{sRT}, 2
    s_bfe_u32 s{sT+6}, s2, 0x20003
    s_add_u32 s{sRT}, s{sRT}, s{sT+6}
    s_and_b32 s{sCT}, s{sT+3}, 1
    s_lshl_b32 s{sCT}, s{sCT}, 3
    s_lshr_b32 s{sT+6}, s2, 5
    s_add_u32 s{sCT}, s{sCT}, s{sT+6}
    """)
    stamp(A, 5, 2)
    for g in xgroups(0) + xgroups(1):
        for l in g: A(l)
    def copy_op(s):
        if s % 2: return f"buffer_load_dwordx4 {CT(s // 2)}, v{vCs}, s[{sSCs}:{sSCs+3}], s{sCl} offen"
        return f"buffer_store_dwordx4 {CT(s // 2)}, v{vCd}, s[{sSCd}:{sSCd+3}], s{sCs} offen sc1"
    def wread(f, a, pos):
        nm = names[f]
        if nm[0] in "qkv":
            p = "qkv".index(nm[0]); j = int(nm[1])
            addr = vA1 if j else vA0; off = 2048 * p + 1024 * a
        else:
            tl = int(nm[1]); addr = vAG
            off = (6144 if nm[0] == 'g' else 13312) + 3584 * a + 32 * tl
        return f"ds_read_b64_tr_b16 {WR(pos).sub(2*a, 2)}, v{addr} offset:{off}"
    def mfma(f, i, s, pos, par=None):
        if OPT.get("snake") and (f if par is None else par) % 2: i = 3 - i
        nm = names[f]; d = acc[(nm, i)]
        if nm[0] in "kv" or OPT.get("swapab"):
            return f"v_mfma_f32_16x16x32_bf16 {d}, {XR(s, i)}, {WR(pos)}, {d}"
        return f"v_mfma_f32_16x16x32_bf16 {d}, {WR(pos)}, {XR(s, i)}, {d}"
    LA = 6
    A(f"""
    s_lshr_b32 s{sT+3}, s{sRT}, 1
    s_lshl_b32 s{sT+3}, s{sT+3}, 3
    v_and_b32 v{vT}, 7, v0
    v_bfe_u32 v{vT+1}, v0, 3, 2
    v_lshl_add_u32 v{vT+1}, v{vT+1}, 6, v{vT}
    v_add_u32 v{vPollR}, s{sT+3}, v{vT+1}
    """)
    A("s_barrier")
    for f in range(LA):
        for a in range(2): A(wread(f, a, f % 8))
    A("s_waitcnt vmcnt(4)")
    stamp(A, 6, 2); stamp(A, 1, 1)
    madv = [f"s_add_u32 s{sM}, s{sM}, s{sSLOT}", f"s_add_u32 s{sWoA}, s{sWoA}, s{sStA}", f"s_add_u32 s{sWoB}, s{sWoB}, s{sStB}",
            f"s_cmp_eq_u32 s{sM}, s{sMEND}", f"s_cselect_b32 s{sM}, s{sM0}, s{sM}"]
    def Wop(k, i): return dict(tag=f"W{k}", pre=(madv if i == 0 else []) + [dma(i)[0]], ins=dma(i)[1], post=[])
    def Xop(k, i): return dict(tag=f"X{k}", pre=[], ins=xload(k % 4, i), post=[f"s_add_u32 s{sXo}, s{sXo}, 0x20000"] if i == 3 else [])
    def Sop(j): return dict(tag="S", pre=[], ins=copy_op(2 * j), post=[f"s_add_u32 s{sCs}, s{sCs}, 0x100000"])
    sched = {}
    def place(ops, slots):
        assert len(ops) <= len(slots), (len(ops), len(slots))
        for o, sl in zip(ops, slots): sched[sl] = o
    place([Wop(6, i) for i in range(5)], [(3, f) for f in range(15, 20)])
    place([Xop(2, i) for i in range(4)] + [Wop(3, i) for i in range(4)], [(0, f) for f in (1, 2, 4, 6, 8, 9, 11, 12)])
    place([Wop(3, 4)] + [Xop(3, i) for i in range(4)] + [Wop(4, i) for i in range(5)] + [Xop(4, i) for i in range(3)],
          [(0, 15), (0, 16), (0, 18), (0, 19), (1, 1), (1, 2), (1, 4), (1, 5), (1, 7), (1, 8), (1, 10), (1, 11), (1, 12)])
    place([Xop(4, 3)] + [Wop(5, i) for i in range(5)] + [Sop(0)] + [Xop(5, i) for i in range(4)] + [Sop(1)],
          [(1, 15), (1, 16), (1, 18), (1, 19), (2, 1), (2, 2), (2, 4), (2, 5), (2, 7), (2, 8), (2, 10), (2, 11)])
    cl0 = dict(tag="C", pre=[], ins=copy_op(1), post=[f"s_add_u32 s{sCl}, s{sCl}, {56 << 16}", f"s_cmp_eq_u32 s{sCnt}, 3",
               f"s_cselect_b32 s{sCl}, s{sT7}, s{sCl}", f"s_cselect_b32 s{sSCs}, s84, s{sSCs}", f"s_cselect_b32 s{sSCs+1}, s85, s{sSCs+1}",
               f"s_cselect_b32 s{sSCs+2}, {1024*2048}, s{sSCs+2}", f"s_cmp_eq_u32 s{sCnt}, 4", f"s_cselect_b32 s{sSCs+2}, 0, s{sSCs+2}"])
    cl1 = dict(tag="C", pre=[], ins=copy_op(3), post=[])
    place([cl0] + [dict(tag="T", pre=[], ins=touch(k), post=[]) for k in range(3)] + [cl1], [(2, f) for f in range(15, 20)])
    order = sorted(sched.keys())
    def vm_at(s):
        seq = [(-1, k) for k in order] + [(0, k) for k in order if k < (s, 14)]
        need = []
        for n, (tr, k) in enumerate(seq):
            t = sched[k]["tag"]
            if t[0] in "WX" and int(t[1:]) + 4 * tr == s + 1: need.append(n)
        return len(seq) - 1 - max(need)
    A.label("M_loop1")
    for s in range(4):
        for f in range(20):
            F = 20 * s + f
            pos = F % 8
            if f == 14:
                if s == 0:
                    A(f"s_cmp_eq_u32 s{sCnt}, 0"); A("s_cbranch_scc0 M_l1w"); A("s_waitcnt vmcnt(8)"); A.label("M_l1w")
                A(f"s_waitcnt vmcnt({vm_at(s)}) lgkmcnt(8)"); A("s_barrier")
                if s == 0:
                    A(f"s_cmp_eq_u32 s{sCnt}, 6"); A("s_cbranch_scc0 M_l1c")
                    flag_set(F_LN | F_WT); A.label("M_l1c")
            elif f % 2 == 0:
                A("s_waitcnt lgkmcnt(8)")
            nf = (f + LA) % 20
            pre2, mid, post = [], [], []
            if (s, f) in sched:
                o = sched[(s, f)]; pre2, mid, post = o["pre"], [o["ins"]], o["post"]
            elif f == 0: mid = [f"s_add_u32 s{sR}, s{sR}, s{sSLOT}"]; post = [f"s_cmp_eq_u32 s{sR}, s{sREND}", f"s_cselect_b32 s{sR}, 0, s{sR}"]
            elif f == 13:
                mid = [f"v_add_u32 v{vA0}, s{sR}, v{vB0}", f"v_add_u32 v{vA1}, s{sR}, v{vB1}"]
                post = [f"v_add_u32_e64 v{vAG}, s{sR}, v{vBG}"]
            elif s == 3 and f == 2:
                mid = [f"s_sub_u32 s{sCl}, s{sCl}, {55 << 16}"]; post = [f"s_cmp_eq_u32 s{sCnt}, 2", f"s_cselect_b32 s{sCl}, s{sT6}, s{sCl}"]
            elif s == 3 and f == 3:
                mid = [f"s_cmp_eq_u32 s{sCnt}, 3", f"s_cselect_b32 s{sCl}, s{sT8}, s{sCl}"]
            elif s == 3 and f == 4:
                mid = [f"s_add_u32 s{sToq}, s{sToq}, {128*TROW*6144}"]; post = [f"s_add_u32 s{sTog}, s{sTog}, {128*TROW*7168}"]
            elif s == 3 and f == 5: mid = [f"s_add_u32 s{sCnt}, s{sCnt}, 1"]
            A(mfma(f, 0, s, pos))
            A(wread(nf, 0, (F + LA) % 8))
            for l in pre2[:3 if len(pre2) > 3 else 0]: A(l)
            A(mfma(f, 1, s, pos))
            A(wread(nf, 1, (F + LA) % 8))
            for l in pre2[3 if len(pre2) > 3 else 0:]: A(l)
            A(mfma(f, 2, s, pos))
            emit(mid)
            A(mfma(f, 3, s, pos))
            for l in post: A(l)
    A(f"s_cmp_lt_u32 s{sCnt}, 7")
    A("s_cbranch_scc1 M_loop1")
    sSH, sSK, sSXi, sSO = 20, 24, 28, 32
    sNL, sPL, sEPS, sCB, sCL = 36, 38, 40, 41, 42
    sAo, sBo, sNext, sGo, sSig = 43, 44, 45, 46, 47
    sSA, sSB = sSH, sSCd
    vA, vBd, vR, vRb = [2, 3, 4, 5], 6, [7, 8, 9, 10], [24, 25, 26, 27]
    vXO, vKv, vZ, vFw, vZw, vZr, vFr = 28, 29, 30, 31, 23, 20, 16
    vk0, vk1, vk2 = 11, 12, 22
    AR = lambda s, q, i: Reg('a', 128 + 32 * s + 8 * q + 4 * i)
    def bdma(b):
        return f"buffer_load_dwordx4 v{vBd}, s[{sSB}:{sSB+3}], s{sBo} offen offset:{1024*b} sc1 lds"
    def aload(s, q, i):
        return f"buffer_load_dwordx4 {AR(s, q, i)}, v{vA[q]}, s[{sSA}:{sSA+3}], s{sAo} offen offset:{1024*i} sc1"
    def all_aloads():
        L = []
        for k in range(4):
            for j in range(8 if k < 3 else 6):
                L.append([aload(k, j // 2, j % 2)] + ([f"s_add_u32 s{sAo}, s{sAo}, 0x80000"] if (j == 7) else []))
        return L
    def cond(grp, val):
        uid[0] += 1; L = f"M_sk{uid[0]}"
        return [f"s_cmp_eq_u32 s{sGo}, {val}", f"s_cbranch_scc0 {L}"] + grp + [L + ":"]
    def bgroups():
        L = []
        for n in range(4):
            for b in range(4 if n < 3 else 2):
                L.append(([f"s_mov_b32 m0, s{sM}", "s_nop 0"] if b == 0 else []) + [bdma(b)])
            if n < 3: L[-1] += [f"s_add_u32 s{sBo}, s{sBo}, 0x40000", f"s_add_u32 s{sM}, s{sM}, s{sSLOT}"]
        return L
    def mix(G, work):
        n = len(G)
        for c, grp in enumerate(G):
            emit(grp)
            for l in work[len(work) * c // n: len(work) * (c + 1) // n]: A(l)
    def decide(val):
        poll_eval(A, F_A)
        A(f"""
        s_or_b32 s{sTm}, vcc_lo, s{sGo}
        s_cmp_eq_u32 s{sTm}, 0
        s_cselect_b32 s{sGo}, {val}, s{sGo}
        """)
    def phi_tile(E, src, tmp, dst):
        b = src
        E(f"v_pk_mul_f32 v[{tmp}:{tmp+1}], v[{b}:{b+1}], s[{sPL}:{sPL+1}]")
        E(f"v_pk_mul_f32 v[{tmp+2}:{tmp+3}], v[{b+2}:{b+3}], s[{sPL}:{sPL+1}]")
        for j in range(4): E(f"v_exp_f32_e64 v{tmp+j}, v{tmp+j} clamp")
        for j in range(4): E(f"v_max_f32 v{b+j}, s{sEPS}, v{b+j}")
        E(f"v_pk_add_f32 v[{b}:{b+1}], v[{b}:{b+1}], v[{tmp}:{tmp+1}]")
        E(f"v_pk_add_f32 v[{b+2}:{b+3}], v[{b+2}:{b+3}], v[{tmp+2}:{tmp+3}]")
        E(f"v_cvt_pk_bf16_f32 v{dst}, v{b}, v{b+1}")
        E(f"v_cvt_pk_bf16_f32 v{dst+1}, v{b+2}, v{b+3}")
    def swiglu_tile(E, tl, i, tmp, dst):
        g = acc[(f"g{tl}", i)].base
        ur = acc[(f"u{tl}", i)]
        if ur.kind == 'a':
            u = tmp + 4
            for j in range(4): E(f"v_accvgpr_read_b32 v{u+j}, a{ur.base+j}")
        else:
            u = ur.base
        E(f"v_pk_mul_f32 v[{tmp}:{tmp+1}], v[{g}:{g+1}], s[{sNL}:{sNL+1}]")
        E(f"v_pk_mul_f32 v[{tmp+2}:{tmp+3}], v[{g+2}:{g+3}], s[{sNL}:{sNL+1}]")
        for j in range(4): E(f"v_exp_f32 v{tmp+j}, v{tmp+j}")
        E(f"v_pk_mul_f32 v[{g}:{g+1}], v[{g}:{g+1}], v[{u}:{u+1}]")
        E(f"v_pk_mul_f32 v[{g+2}:{g+3}], v[{g+2}:{g+3}], v[{u+2}:{u+3}]")
        E(f"v_pk_add_f32 v[{tmp}:{tmp+1}], v[{tmp}:{tmp+1}], 1.0 op_sel_hi:[1,0]")
        E(f"v_pk_add_f32 v[{tmp+2}:{tmp+3}], v[{tmp+2}:{tmp+3}], 1.0 op_sel_hi:[1,0]")
        for j in range(4): E(f"v_rcp_f32 v{tmp+j}, v{tmp+j}")
        E(f"v_pk_mul_f32 v[{g}:{g+1}], v[{g}:{g+1}], v[{tmp}:{tmp+1}]")
        E(f"v_pk_mul_f32 v[{g+2}:{g+3}], v[{g+2}:{g+3}], v[{tmp+2}:{tmp+3}]")
        E(f"v_cvt_pk_bf16_f32 v{dst}, v{g}, v{g+1}")
        E(f"v_cvt_pk_bf16_f32 v{dst+1}, v{g+2}, v{g+3}")
    def swiglu_pair(E, p, tmp):
        for i in range(4):
            o = acc[(f"g{2*p}", i)].base
            swiglu_tile(E, 2 * p, i, tmp, o)
            swiglu_tile(E, 2 * p + 1, i, tmp, o + 2)
            E(f"buffer_store_dwordx4 v[{o}:{o+3}], v{vX}, s[{sSH}:{sSH+3}], s{sCB} offen offset:{1024*i} sc1")
        E(f"s_add_u32 s{sCB}, s{sCB}, {32 << 17}")
    S = Asm()
    srd(S, sSH, 14, 15, HF_SIZE, HF_OFF)
    sh_lines = lines(S)
    S = Asm()
    S(f"""
    s_mov_b32 s{sNL}, 0x{f2u(-LOG2E):x}
    s_mov_b32 s{sNL+1}, 0x{f2u(-LOG2E):x}
    s_mov_b32 s{sPL}, 0x{f2u(LOG2E):x}
    s_mov_b32 s{sPL+1}, 0x{f2u(LOG2E):x}
    s_mov_b32 s{sEPS}, 0x{f2u(1e-6):x}
    s_lshl_b32 s{sCB}, s{sHD}, 17
    s_lshr_b32 s{sCL}, s{sHD}, 1
    s_add_u32 s{sCL}, s{sCL}, 96
    s_lshl_b32 s{sCL}, s{sCL}, 17
    s_and_b32 s{sT}, s{sHD}, 1
    s_lshl_b32 s{sT}, s{sT}, 3
    s_add_u32 s{sCL}, s{sCL}, s{sT}
    s_lshl_b32 s{sT}, s{sW}, 4
    s_add_u32 s{sT}, s{sT}, s{sCT}
    s_lshl_b32 s{sT}, s{sT}, 12
    v_add_u32 v{vBd}, s{sT}, v{vL16}
    s_lshl_b32 s{sM0}, s{sW}, 12
    s_mov_b32 s{sM}, s{sM0}
    s_mov_b32 s{sSLOT}, {G2_SLOT}
    s_mov_b32 s{sR}, 0
    s_mov_b32 s{sCnt}, 0
    s_mov_b32 s{sREND}, {G2_R*G2_SLOT}
    s_add_u32 s{sMEND}, s{sM0}, s{sREND}
    s_mov_b32 s{sAo}, 0
    s_mov_b32 s{sBo}, 0
    """)
    pre_lines = lines(S)
    Ga, Gb = [0, 1, 2, 3], [4, 5, 6, 7]
    items = [(0, f) for f in range(6)] + [(1, f) for f in Ga] + [(0, 6), (0, 7)] + [(1, f) for f in Gb] + [(0, f) for f in range(8, 12)]
    items += [(2, f) for f in Ga] + [(0, f) for f in range(12, 14)] + [(3, f) for f in Ga] + [(2, f) for f in Gb] + [(3, f) for f in Gb]
    items += [(0, f) for f in range(14, 20)] + [(st, f) for st in range(1, 4) for f in range(8, 20)]
    assert len(items) == 80 and len(set(items)) == 80
    def wreadL(st, f, a, pos):
        l = wread(f, a, pos)
        base, off = l.rsplit(" offset:", 1)
        if st >= 2:
            for x, y in ((vA0, vB0), (vA1, vB1), (vAG, vBG)):
                if base.endswith(f", v{x}"): base = base[:-len(f"v{x}")] + f"v{y}"; break
        return f"{base} offset:{int(off) + G1_SLOT * (st % 2)}"
    B = Asm(); swiglu_pair(B, 0, 2); e0 = lines(B)
    E0_AT, E0_N = 31, 44
    S = Asm()
    S(f"""
    v_and_b32 v{vT}, 7, v0
    v_and_b32 v{vT+1}, 15, v0
    v_lshlrev_b32 v{vT+1}, 4, v{vT+1}
    v_add_u32 v{vT+1}, s{sCT}, v{vT+1}
    v_cmp_gt_u32 vcc, 32, v0
    s_and_b32 s{sT+3}, s2, 0xc7
    v_lshlrev_b32 v{vT}, 3, v{vT}
    v_cndmask_b32 v{vPollW}, v{vT+1}, v{vPollR}, vcc
    v_add_u32 v{vT}, s{sT+3}, v{vT}
    s_mov_b32 s{sT+3}, 0x70000000
    v_cndmask_b32 v{vPollH}, v{vT}, v{vPollR}, vcc
    v_and_b32 v{vT}, 7, v{vPollR}
    v_lshrrev_b32 v{vPollR}, 3, v{vPollR}
    v_mul_u32_u24 v{vPollR}, {LSTR}, v{vPollR}
    v_lshl_add_u32 v{vPollR}, v{vT}, 4, v{vPollR}
    v_and_b32 v{vT}, 7, v{vPollW}
    v_lshrrev_b32 v{vPollW}, 3, v{vPollW}
    v_mul_u32_u24 v{vPollW}, {LSTR}, v{vPollW}
    v_lshl_add_u32 v{vPollW}, v{vT}, 4, v{vPollW}
    v_and_b32 v{vT}, 7, v{vPollH}
    v_lshrrev_b32 v{vPollH}, 3, v{vPollH}
    v_mul_u32_u24 v{vPollH}, {LSTR}, v{vPollH}
    v_lshl_add_u32 v{vPollH}, v{vT}, 4, v{vPollH}
    """)
    poll_lines = lines(S)
    lops = [Xop(2, i) for i in range(4)] + [Wop(3, i) for i in range(5)] + [Xop(3, i) for i in range(4)]
    misc = pre_lines
    for n, (st, f) in enumerate(items):
        pos = n % 8
        lg = 8 if n + LA < 80 else max(0, 2 * (80 - n - 2))
        if n == 0: A(f"s_waitcnt vmcnt(10) lgkmcnt(8)"); A("s_barrier")
        elif n == 14: A(f"s_waitcnt vmcnt(9) lgkmcnt(8)"); A("s_barrier")
        elif n == 20: A(f"s_waitcnt vmcnt(4) lgkmcnt(8)"); A("s_barrier")
        elif n == 26: A(f"s_waitcnt vmcnt(1) lgkmcnt(8)")
        elif n % 2 == 0: A(f"s_waitcnt lgkmcnt({lg})")
        fill = []
        if n < 13:
            o = lops[n]; fill = o["pre"] + ["s_nop 0", o["ins"]] + o["post"]
        elif n == 13: fill = sh_lines
        elif 14 <= n < 22: fill = poll_lines[len(poll_lines) * (n - 14) // 8: len(poll_lines) * (n - 13) // 8]
        elif n == 22: fill = [poll_issue(vPollW)]
        elif 23 <= n < 31: fill = misc[len(misc) * (n - 23) // 8: len(misc) * (n - 22) // 8]
        elif E0_AT <= n < E0_AT + E0_N:
            c = n - E0_AT
            fill = e0[len(e0) * c // E0_N: len(e0) * (c + 1) // E0_N]
        mm = lambda i: mfma(f, i, st, pos, n)
        h = (len(fill) + 1) // 2 if n > 13 else len(fill)
        A(mm(0))
        if n + LA < 80: A(wreadL(*items[n + LA], 0, (n + LA) % 8))
        A(mm(1))
        if n + LA < 80: A(wreadL(*items[n + LA], 1, (n + LA) % 8))
        A(mm(2))
        for l in fill[:h]: A(l)
        A(mm(3))
        for l in fill[h:]: A(l)
    stamp(A, 2, 1); stamp(A, 1, 4)
    A(f"""
    s_load_dwordx2 s[78:79], s[0:1], 0
    s_load_dwordx2 s[80:81], s[0:1], 56
    s_lshl_b32 s{sT}, s{sRT}, 13
    s_lshl_b32 s{sT+3}, s{sW}, 11
    s_add_u32 s{sT}, s{sT}, s{sT+3}
    v_add_u32 v{vA[0]}, s{sT}, v{vL16}
    v_add_u32 v{vA[1]}, 0x20000, v{vA[0]}
    v_add_u32 v{vA[2]}, 0x40000, v{vA[0]}
    v_add_u32 v{vA[3]}, 0x60000, v{vA[0]}
    """)
    srd(A, sSK, 14, 15, KVP_SIZE, KVP_OFF)
    A("s_waitcnt vmcnt(0)")
    A("s_barrier")
    flag_set(F_LN | F_WT | F_A)
    poll_check(F_WT, MASK_U, None, vPollW)
    stamp(A, 2, 4)
    tq = acc[("u0", 0)].base
    kb = acc[("k0", 0)].base; vb = acc[("v0", 0)].base
    vONE = tq + 8
    B = Asm()
    for j in range(4): B(f"v_mov_b32 v{vONE+j}, 0x3f803f80")
    for dt in range(2):
        for i in range(4):
            phi_tile(B, kb + 16 * dt + 4 * i, tq, kb + 16 * dt + 8 * (i // 2) + 2 * (i % 2))
    for et in range(2):
        for i in range(4):
            src = vb + 16 * et + 4 * i
            dst = vb + 16 * et + 8 * (i // 2) + 2 * (i % 2)
            B(f"v_cvt_pk_bf16_f32 v{dst}, v{src}, v{src+1}")
            B(f"v_cvt_pk_bf16_f32 v{dst+1}, v{src+2}, v{src+3}")
    B("s_nop 1")
    for u in range(2):
        for dt in range(2):
            for et in range(3):
                a = kb + 16 * dt + 8 * u
                b = vb + 16 * et + 8 * u if et < 2 else vONE
                p = PT(dt * 3 + et)
                B(f"v_mfma_f32_16x16x32_bf16 {p}, v[{a}:{a+3}], v[{b}:{b+3}], {'0' if u == 0 else p}")
    B(f"""
    s_mul_i32 s{sT}, s{sW}, 6144
    s_add_u32 s{sT}, s{sT}, {KVL}
    v_add_u32 v{vk0}, s{sT}, v{vL16}
    s_lshl_b32 s{sT}, s{sW}, 10
    s_add_u32 s{sT+1}, s{sT}, {KVL}
    v_add_u32 v{vk1}, s{sT+1}, v{vL16}
    s_lshl_b32 s{sT+1}, s{sHD}, 3
    s_add_u32 s{sT+1}, s{sT+1}, s{sRB}
    s_mul_i32 s{sT+1}, s{sT+1}, 6144
    v_add_u32 v{vk2}, s{sT}, v{vL16}
    s_add_u32 s{sT+2}, s{sT+1}, 4096
    """)
    for t in range(6):
        B(f"ds_write_b128 v{vk0}, {PT(t)} offset:{1024*t}")
    A(f"s_mov_b32 s{sGo}, 0")
    G = bgroups(); G.insert(9, [poll_issue(vPollR)])
    mix(G, lines(B))
    stamp(A, 3, 4)
    A("s_waitcnt vmcnt(5) lgkmcnt(0)")
    A("s_barrier")
    srd(A, sSXi, 78, 79, 0x400000)
    srd(A, sSO, 80, 81, 0x400000)
    decide(1)
    stamp(A, 3, 1); stamp(A, 4, 4)
    tb = kb + 8
    for sw in range(4):
        A(f"ds_read_b128 v[{tb+4*sw}:{tb+4*sw+3}], v{vk1} offset:{6144*sw}")
    for sw in range(4):
        A(f"ds_read_b128 v[{tb+16+4*sw}:{tb+16+4*sw+3}], v{vk1} offset:{6144*sw+4096}")
    def sum4(E, b):
        E(f"v_pk_add_f32 v[{b}:{b+1}], v[{b}:{b+1}], v[{b+4}:{b+5}]")
        E(f"v_pk_add_f32 v[{b+2}:{b+3}], v[{b+2}:{b+3}], v[{b+6}:{b+7}]")
        E(f"v_pk_add_f32 v[{b+8}:{b+9}], v[{b+8}:{b+9}], v[{b+12}:{b+13}]")
        E(f"v_pk_add_f32 v[{b+10}:{b+11}], v[{b+10}:{b+11}], v[{b+14}:{b+15}]")
        E(f"v_pk_add_f32 v[{b}:{b+1}], v[{b}:{b+1}], v[{b+8}:{b+9}]")
        E(f"v_pk_add_f32 v[{b+2}:{b+3}], v[{b+2}:{b+3}], v[{b+10}:{b+11}]")
    A(f"s_cmp_lt_u32 s{sW}, 2")
    A(f"s_cselect_b32 s{sT+2}, s{sT+2}, 0x70000000")
    B = Asm(); swiglu_pair(B, 1, tq); w1 = lines(B)
    B = Asm()
    B("s_waitcnt lgkmcnt(0)")
    sum4(B, tb)
    B(f"buffer_store_dwordx4 v[{tb}:{tb+3}], v{vk2}, s[{sSK}:{sSK+3}], s{sT+1} offen sc1")
    sum4(B, tb + 16)
    B(f"buffer_store_dwordx4 v[{tb+16}:{tb+19}], v{vk2}, s[{sSK}:{sSK+3}], s{sT+2} offen sc1")
    AL = all_aloads()
    G = [cond(g, 1) for g in AL[:16]]
    G.insert(9, cond([poll_issue(vPollR)], 0))
    mix(G, w1[:18] + lines(B) + w1[18:])
    stamp(A, 5, 4)
    emit(cond(["s_waitcnt vmcnt(1)"], 0))
    decide(2)
    stamp(A, 6, 4)
    pqb = 240
    B = Asm()
    for i in range(4):
        for dt in range(2):
            qa = acc[(f"q{dt}", i)].base
            src = tq + 8 * dt
            for j in range(4): B(f"v_accvgpr_read_b32 v{src+j}, a{qa+j}")
            phi_tile(B, src, src + 4, pqb + 4 * i + 2 * dt)
    t0 = tq + 16
    B(f"""
    v_bfe_u32 v{t0}, v0, 2, 3
    v_lshrrev_b32 v{t0+1}, 5, v0
    v_lshlrev_b32 v{t0+1}, 10, v{t0+1}
    v_lshl_add_u32 v{t0+1}, v{t0}, 7, v{t0+1}
    v_and_b32 v{t0+2}, 3, v0
    v_lshl_add_u32 v{t0+1}, v{t0+2}, 3, v{t0+1}
    v_lshrrev_b32 v{t0}, 1, v{t0}
    v_lshl_add_u32 v{vRb[0]}, v{t0}, 5, v{t0+1}
    v_xor_b32 v{vRb[1]}, 32, v{vRb[0]}
    v_xor_b32 v{vRb[2]}, 64, v{vRb[0]}
    v_xor_b32 v{vRb[3]}, 0x60, v{vRb[0]}
    v_mov_b32 v{vR[0]}, v{vRb[0]}
    v_mov_b32 v{vR[1]}, v{vRb[1]}
    v_mov_b32 v{vR[2]}, v{vRb[2]}
    v_mov_b32 v{vR[3]}, v{vRb[3]}
    v_and_b32 v{t0}, 15, v0
    v_lshlrev_b32 v{t0}, 11, v{t0}
    v_bfe_u32 v{t0+1}, v0, 4, 1
    v_lshl_add_u32 v{t0}, v{t0+1}, 5, v{t0}
    v_lshrrev_b32 v{t0+1}, 5, v0
    v_lshl_add_u32 v{t0}, v{t0+1}, 4, v{t0}
    s_lshl_b32 s{sT}, s{sRT}, 18
    s_lshl_b32 s{sT+3}, s{sW}, 16
    s_add_u32 s{sT}, s{sT}, s{sT+3}
    s_lshl_b32 s{sT+3}, s{sCT}, 7
    s_add_u32 s{sT}, s{sT}, s{sT+3}
    v_add_u32 v{vXO}, s{sT}, v{t0}
    s_lshr_b32 s{sT}, s{sW}, 1
    s_add_u32 s{sT}, s{sT}, s{sW}
    s_lshl_b32 s{sT}, s{sT}, 10
    s_mul_i32 s{sT+3}, s{sHD}, 49152
    s_add_u32 s{sT}, s{sT}, s{sT+3}
    v_add_u32 v{vKv}, s{sT}, v{vL16}
    v_and_b32 v{t0}, 7, v0
    v_mul_u32_u24 v{vZ}, 6144, v{t0}
    v_bfe_u32 v{t0}, v0, 3, 2
    v_lshl_add_u32 v{vZ}, v{t0}, 8, v{vZ}
    v_lshrrev_b32 v{t0}, 5, v0
    v_mul_u32_u24 v{t0}, 3072, v{t0}
    v_add3_u32 v{vZ}, v{vZ}, v{t0}, s{sT+3}
    s_and_b32 s{sT}, s{sW}, 1
    s_lshl_b32 s{sT}, s{sT}, 10
    s_lshr_b32 s{sT+3}, s{sW}, 1
    s_lshl_b32 s{sT+3}, s{sT+3}, 3
    s_add_u32 s{sT}, s{sT}, s{sT+3}
    s_add_u32 s{sT}, s{sT}, {FIN}
    v_add_u32 v{vFw}, s{sT}, v{vL16}
    v_bfe_u32 v{t0}, v0, 3, 2
    v_lshlrev_b32 v{t0}, 4, v{t0}
    v_lshrrev_b32 v{t0+1}, 5, v0
    v_lshl_add_u32 v{t0}, v{t0+1}, 3, v{t0}
    v_add_u32 v{vZw}, {FIN+2048}, v{t0}
    v_and_b32 v{t0}, 48, v0
    v_add_u32 v{vZr}, {FIN+2048}, v{t0}
    v_add_u32 v{vFr}, {FIN}, v{vL16}
    """)
    for r in range(32, 64, 2):
        B(f"v_pk_mov_b32 v[{r}:{r+1}], 0, 0")
    G1_ = [cond(g, 1) for g in AL[16:]]
    G2_ = [cond(AL[2 * c] + AL[2 * c + 1], 2) for c in range(15)]
    G = []
    for c in range(15):
        G.append(G2_[c] + (G1_[c] if c < 14 else []))
    mix(G, lines(B))
    A("s_waitcnt vmcnt(30)")
    emit(cond(["s_waitcnt vmcnt(14)"], 1))
    emit(cond(["s_waitcnt vmcnt(0)"], 0))
    A("s_barrier")
    flag_set(F_LN | F_WT | F_A | F_A2)
    stamp(A, 4, 1)
    A(f"s_cmp_eq_u32 s{sGo}, 0")
    A("s_cbranch_scc0 M_cu")
    A(poll_issue(vPollR))
    poll_check(F_A, MASK_R, 0)
    for g in AL: emit(g)
    A.label("M_cu")
    B = Asm()
    swiglu_pair(B, 2, tq)
    for i in range(4):
        o = acc[("g6", i)].base
        swiglu_tile(B, 6, i, tq, o)
        B(f"buffer_store_dwordx2 v[{o}:{o+1}], v{vX}, s[{sSH}:{sSH+3}], s{sCL} offen offset:{1024*i} sc1")
    filler = lines(B)
    if OPT.get('x') == 1: filler = []
    if OPT.get('x') == 4: filler = [l for l in filler if not l.startswith('buffer_')]
    ACC = lambda i, j: 32 + 16 * i + 4 * j
    BR = lambda p: Reg('v', 64 + 4 * p)
    SAV = 96
    vXD = 128
    kvb, zb, fr, ob = 144, 176, 180, 192
    def bread(F, a, pos):
        q, j = (F % 16) // 4, F % 4
        return f"ds_read_b64_tr_b16 {BR(pos).sub(2*a, 2)}, v{vR[j]} offset:{4096*q + 2048*a}"
    for F in range(LA):
        for a in range(2): A(bread(F, a, F % 8))
    A("s_waitcnt vmcnt(22)")
    stamp(A, 5, 1); stamp(A, 1, 3)
    def stage(s, loads, last=False, vm=26, finish=False, first=None):
        for F in range(16):
            q, j = F // 4, F % 4
            pos = F % 8
            rd = not (last and F + LA >= 16)
            if F == 10:
                if not last:
                    A(f"s_waitcnt vmcnt({vm}) lgkmcnt(8)"); A("s_barrier")
                else:
                    A("s_waitcnt lgkmcnt(8)")
            elif F % 2 == 0:
                n = 8 if not last or F < 10 else max(0, 2 * (16 - F - 2))
                A(f"s_waitcnt lgkmcnt({n})")
                extra = {0: f"s_add_u32 s{sR}, s{sR}, s{sSLOT}", 4: f"s_add_u32 s{sM}, s{sM}, s{sSLOT}"}.get(F)
                if extra: A(extra)
            m = lambda i: f"v_mfma_f32_16x16x32_bf16 v[{ACC(i, j)}:{ACC(i, j)+3}], {BR(pos)}, {AR(s, q, i)}, v[{ACC(i, j)}:{ACC(i, j)+3}]"
            A(m(0))
            if rd: A(bread(F + LA, 0, (F + LA) % 8))
            A(m(1))
            if rd: A(bread(F + LA, 1, (F + LA) % 8))
            if F == 1:
                A(f"s_cmp_eq_u32 s{sR}, s{sREND}"); A(f"s_cselect_b32 s{sR}, 0, s{sR}")
            if F == 5:
                A(f"s_cmp_eq_u32 s{sM}, s{sMEND}"); A(f"s_cselect_b32 s{sM}, s{sM0}, s{sM}")
            if F == 8 and loads: A(f"s_lshr_b32 s{sBo}, s{sAo}, 1")
            if F == 10 and loads: A(f"s_mov_b32 m0, s{sM}")
            if F == 9:
                for jj in range(4): A(f"v_add_u32 v{vR[jj]}, s{sR}, v{vRb[jj]}")
            if loads or finish:
                if F in (0, 1): A(aload((s + 3) % 4, 3, F))
                if F == 2: A(f"s_add_u32 s{sAo}, s{sAo}, 0x80000")
                if F in (3, 7): A(bdma(2 + F // 4))
            if loads:
                if F in (4, 5, 8, 9, 12, 13): A(aload(s, F // 4 - 1, F % 4))
                if F in (11, 15): A(bdma(F // 4 - 2))
                if F == 6 and first is not None and s == 2: A(poll_issue(vPollH))
                if F == 6 and first is None and s == 2: emit(cond_poll([f"s_bitcmp1_b32 {(1 << 2) | (1 << 5)}, s{sCnt}"], vPollR))
            if first is not None:
                n = len(first); c = 16 * s + F
                for l in first[n * c // 64: n * (c + 1) // 64]: A(l)
    for s in range(4): stage(s, True, vm=22 if s == 0 else 26, first=filler)
    A("s_branch M_l2e")
    A.label("M_loop2")
    for s in range(4): stage(s, True)
    A.label("M_l2e")
    A(f"s_add_u32 s{sCnt}, s{sCnt}, 1")
    for k in (1, 2, 3, 6, 7) + ((5,) if OPT["stamp"] == 3 else ()):
        A(f"s_cmp_eq_u32 s{sCnt}, {k}")
        A(f"s_cbranch_scc1 M_ev{k}")
    A(f"""
    s_cmp_lt_u32 s{sCnt}, 8
    s_cbranch_scc1 M_loop2
    s_branch M_tail
    """)
    A.label("M_ev1")
    stamp(A, 2, 3)
    poll_check(F_A2, MASK_R | MASK_U, 19, vPollH)
    if OPT.get('x') == 2: A("s_branch M_loop2")
    A(f"s_mov_b32 s{sT}, 0")
    for r in range(8):
        A(f"buffer_load_dwordx4 v[{kvb+4*r}:{kvb+4*r+3}], v{vKv}, s[{sSK}:{sSK+3}], s{sT} offen sc1")
        A(f"s_add_u32 s{sT}, s{sT}, 6144")
    A(f"buffer_load_dwordx4 v[{zb}:{zb+3}], v{vZ}, s[{sSK}:{sSK+3}], 0 offen offset:2048 sc1")
    A("s_branch M_loop2")
    A.label("M_ev2")
    stamp(A, 3, 3)
    flag_set(F_LN | F_WT | F_A | F_A2 | F_B)
    if OPT.get('x') == 3: A("s_branch M_loop2")
    for st in (16, 8, 4):
        for r in range(0, st, 2):
            A(f"v_pk_add_f32 v[{kvb+r}:{kvb+r+1}], v[{kvb+r}:{kvb+r+1}], v[{kvb+st+r}:{kvb+st+r+1}]")
    for dpp in ("quad_perm:[1,0,3,2]", "quad_perm:[2,3,0,1]", "row_half_mirror"):
        for j in range(4):
            A(f"v_add_f32_dpp v{zb+j}, v{zb+j}, v{zb+j} {dpp} row_mask:0xf bank_mask:0xf")
    A(f"""
    v_cvt_pk_bf16_f32 v{kvb}, v{kvb}, v{kvb+1}
    v_cvt_pk_bf16_f32 v{kvb+1}, v{kvb+2}, v{kvb+3}
    v_cvt_pk_bf16_f32 v{zb}, v{zb}, v{zb+1}
    v_cvt_pk_bf16_f32 v{zb+1}, v{zb+2}, v{zb+3}
    ds_write_b64 v{vFw}, v[{kvb}:{kvb+1}]
    ds_write_b64 v{vZw}, v[{zb}:{zb+1}]
    s_add_u32 s{sT}, s{sHD}, 112
    s_lshl_b32 s{sT}, s{sT}, 17
    s_waitcnt lgkmcnt(0)
    s_barrier
    ds_read_b128 v[{fr}:{fr+3}], v{vFr}
    ds_read_b128 v[{fr+4}:{fr+7}], v{vFr} offset:1024
    ds_read_b128 v[{fr+8}:{fr+11}], v{vZr}
    s_waitcnt lgkmcnt(0)
    """)
    for i in range(4):
        for et in (2, 0, 1):
            d = ob + 12 * i + 4 * et
            A(f"v_mfma_f32_16x16x32_bf16 v[{d}:{d+3}], v[{fr+4*et}:{fr+4*et+3}], v[{pqb+4*i}:{pqb+4*i+3}], 0")
    A("s_nop 2")
    for i in range(4): A(f"v_add_f32 v{ob+12*i+8}, s{sEPS}, v{ob+12*i+8}")
    for i in range(4): A(f"v_rcp_f32 v{ob+12*i+8}, v{ob+12*i+8}")
    A("s_nop 0")
    for i in range(4):
        d = ob + 12 * i
        for q in range(4):
            A(f"v_pk_mul_f32 v[{d+2*q}:{d+2*q+1}], v[{d+2*q}:{d+2*q+1}], v[{d+8}:{d+9}] op_sel_hi:[1,0]")
        for q in range(4):
            A(f"v_cvt_pk_bf16_f32 v{d+q}, v{d+2*q}, v{d+2*q+1}")
        A(f"buffer_store_dwordx4 v[{d}:{d+3}], v{vX}, s[{sSH}:{sSH+3}], s{sT} offen offset:{1024*i} sc1")
    A("s_branch M_loop2")
    A.label("M_ev3")
    stamp(A, 4, 3)
    flag_set(F_LN | F_WT | F_A | F_A2 | F_B | F_C)
    poll_check(F_B, MASK_R, 19)
    A("s_branch M_loop2")
    A.label("M_ev5")
    stamp(A, 5, 3)
    A("s_branch M_loop2")
    A.label("M_ev6")
    poll_check(F_C, MASK_R, 19)
    A(f"""
    s_or_b32 s{sT}, s2, s{sW}
    s_cmp_eq_u32 s{sT}, 0
    s_cbranch_scc0 M_loop2
    v_mov_b32 v{vT}, s{sTag}
    s_mov_b32 s{sT}, {EPOCH}
    s_mov_b64 exec, 1
    buffer_store_dword v{vT}, off, s[{sSF}:{sSF+3}], s{sT} sc1
    s_mov_b64 exec, -1
    """)
    A("s_branch M_loop2")
    A.label("M_ev7")
    A(f"s_mov_b32 s{sT}, 0")
    A(f"s_mov_b32 s{sT+1}, {16*2048}")
    for i in range(2):
        for pr in range(2):
            A(f"buffer_load_dwordx4 v[{vXD+8*i+4*pr}:{vXD+8*i+4*pr+3}], v{vXO}, s[{sSXi}:{sSXi+3}], s{sT+i} offen offset:{64*pr}")
    tb = 144
    for r in range(0, 32, 2):
        A(f"v_pk_mul_f32 v[{tb+r}:{tb+r+1}], v[{32+r}:{33+r}], s[{sNL}:{sNL+1}]")
    for r in range(32): A(f"v_exp_f32 v{tb+r}, v{tb+r}")
    for r in range(0, 32, 2):
        A(f"v_pk_add_f32 v[{tb+r}:{tb+r+1}], v[{tb+r}:{tb+r+1}], 1.0 op_sel_hi:[1,0]")
    for r in range(32): A(f"v_rcp_f32 v{tb+r}, v{tb+r}")
    for r in range(0, 32, 2):
        A(f"v_pk_mul_f32 v[{SAV+r}:{SAV+r+1}], v[{32+r}:{33+r}], v[{tb+r}:{tb+r+1}]")
    for r in range(0, 32, 2):
        A(f"v_pk_mov_b32 v[{32+r}:{33+r}], 0, 0")
    A("s_branch M_loop2")
    A.label("M_tail")
    stamp(A, 6, 3)
    for i in range(2):
        for pr in range(2):
            x = vXD + 8 * i + 4 * pr
            for q in range(4):
                A(f"v_lshlrev_b32 v{tb+8*(2*i+pr)+2*q}, 16, v{x+q}")
                A(f"v_and_b32 v{tb+8*(2*i+pr)+2*q+1}, 0xffff0000, v{x+q}")
    stage(0, False, vm=6 + 12 + 4, finish=True)
    stage(1, False, vm=6 + 4)
    stage(2, False, vm=0)
    stage(3, False, last=True)
    A("s_nop 4")
    for i in range(2):
        for pr in range(2):
            t0 = ACC(i, 2 * pr); t1 = ACC(i, 2 * pr + 1)
            for t in (t0, t1):
                for r in (0, 2):
                    A(f"v_pk_mul_f32 v[{t+r}:{t+r+1}], v[{t+r}:{t+r+1}], v[{t+SAV-32+r}:{t+SAV-31+r}]")
    for i in range(2):
        for pr in range(2):
            t0 = ACC(i, 2 * pr); t1 = ACC(i, 2 * pr + 1)
            x = vXD + 8 * i + 4 * pr; xb = tb + 8 * (2 * i + pr)
            for r in range(4):
                A(f"v_permlane16_swap_b32 v{t0+r}, v{t1+r}")
            for q in range(4):
                A(f"v_pk_add_f32 v[{t0+2*q}:{t0+2*q+1}], v[{t0+2*q}:{t0+2*q+1}], v[{xb+2*q}:{xb+2*q+1}]")
            for q in range(4):
                A(f"v_cvt_pk_bf16_f32 v{x+q}, v{t0+2*q}, v{t0+2*q+1}")
            A(f"buffer_store_dwordx4 v[{x}:{x+3}], v{vXO}, s[{sSO}:{sSO+3}], s{sT+i} offen offset:{64*pr}")
    stamp(A, 6, 1)
    if OPT["stamp"]:
        A("s_memrealtime s[100:101]")
        A("s_waitcnt lgkmcnt(0)")
        srd(A, 16, 14, 15, 0x10000, STAMP_OFF + 0x10000)
        A(f"s_lshl_b32 s{sT}, s2, 2"); A(f"s_add_u32 s{sT}, s{sT}, s{sW}"); A(f"s_lshl_b32 s{sT}, s{sT}, 6")
        A(f"v_mov_b32 v0, s{sT}")
        for i, r in enumerate(SREG):
            A(f"v_mov_b32 v1, s{r}"); A(f"buffer_store_dword v1, v0, s[16:19], 0 offen offset:{4*i}")
        A(f"v_mov_b32 v1, s100"); A(f"buffer_store_dword v1, v0, s[16:19], 0 offen offset:56")
        A(f"v_mov_b32 v1, s99"); A(f"buffer_store_dword v1, v0, s[16:19], 0 offen offset:60")
    A.label("M_end")
    A("s_endpgm")
    return A.text()

def build():
    K = NAME + "_kernel"
    hdr = open(f"cdna_kernels/{NAME}.s.ref").read().split("; Override")[0]
    out = [hdr.rstrip("\n")]
    if OPT.get("list"):
        out.append(f"; @launch kernel={K} grid=(256,1,1) block=(256,1,1) lds={LDS_BYTES}")
    else:
        out.append(f"; @launch grid=(256,1,1) block=(256,1,1) lds={LDS_BYTES}")
    out.append('.amdgcn_target "amdgcn-amd-amdhsa--gfx950"')
    out.append(".text")
    body, size = align_kernel(gen())
    for p in check_hazards(body): print("HAZARD", p, file=sys.stderr)
    print("code bytes", size, file=sys.stderr)
    assert size < 40960
    out.append(body.rstrip("\n"))
    out.append(".p2align 8")
    out.append(f".fill {(41984 - size) // 4}, 4, 0xbf810000")
    out.append(f""".section .rodata,"a"
.p2align 6
.amdhsa_kernel {K}
  .amdhsa_next_free_vgpr 512
  .amdhsa_next_free_sgpr 102
  .amdhsa_accum_offset 256
  .amdhsa_group_segment_fixed_size 0
  .amdhsa_kernarg_size 80
  .amdhsa_user_sgpr_count 2
  .amdhsa_user_sgpr_kernarg_segment_ptr 1
  .amdhsa_system_sgpr_workgroup_id_x 1
.end_amdhsa_kernel""")
    return "\n".join(out) + "\n"

if __name__ == "__main__":
    for a in sys.argv[2:]:
        k, v = a.split("="); OPT[k] = int(v)
    WS_BASE = OPT.get('wsb', 0) << 20
    LSTR = OPT.get('lstr', LSTR); FLG_SIZE = 33 * LSTR; EPOCH = 32 * LSTR
    XF_OFF += WS_BASE; HF_OFF += WS_BASE; KVP_OFF += WS_BASE; WT_OFF += WS_BASE; FLG_OFF += WS_BASE
    open(sys.argv[1], "w").write(build())
```

```python
import sys, struct, re
from asmlib import *

NAME = "recurrent_scan__linear_attn_block__swiglu_ffn__prompt"
XF_OFF = 0x0
HF_OFF = 0x400000
HF_SIZE = 144 * 131072
KVP_OFF = 0x1600000
KVP_SIZE = 32 * 8 * 6144
WT_OFF = 0x1C00000
WT_SIZE = 144 * 65536
FLG_OFF = 0x2800000
LSTR = 128
FLG_SIZE = 33 * LSTR
EPOCH = 32 * LSTR
STAMP_OFF = 0x3000000

def f2u(x): return struct.unpack("<I", struct.pack("<f", x))[0]
LOG2E = 1.4426950408889634
OPT = dict(stamp=0, align=1, snake=1, unpk=1, e0n=48)

G1_S, G1_SLOT = 5, 20480
KVL = G1_S * G1_SLOT
G2_R, G2_SLOT = 6, 16384
FIN = 131072
LDS_BYTES = FIN + 4096
F_LN, F_WT, F_A, F_A2, F_K, F_B, F_L, F_C = 1, 2, 4, 8, 16, 32, 64, 128

def srd(A, d, lo, hi, size, off=0):
    if off:
        A(f"s_add_u32 s{d}, s{lo}, 0x{off:x}")
        A(f"s_addc_u32 s{d+1}, s{hi}, 0")
    else:
        A(f"s_mov_b32 s{d}, s{lo}")
        A(f"s_mov_b32 s{d+1}, s{hi}")
    A(f"s_mov_b32 s{d+2}, 0x{size:x}")
    A(f"s_mov_b32 s{d+3}, 0x00020000")

SREG = [6, 7, 86, 87, 96, 97, 98]
def stamp(A, idx, mode):
    if OPT["stamp"] != mode: return
    A("s_memrealtime s[100:101]" if OPT.get("rt") else "s_memtime s[100:101]")
    A("s_waitcnt lgkmcnt(0)")
    A(f"s_mov_b32 s{SREG[idx]}, s100")

def interleave(A, groups, work):
    per = -(-len(work) // len(groups)); wi = 0
    for grp in groups:
        for l in grp: A(l)
        for l in work[wi:wi + per]: A(l)
        wi += per
    for l in work[wi:]: A(l)

def lines(B): return [l.strip() for l in B.lines]

def gen():
    A = Asm()
    K = NAME + "_kernel"
    A.raw(f".globl {K}\n.p2align 8\n.type {K},@function\n{K}:")
    if OPT["align"]: A.raw("    ; @align on")
    vX, vD, vA0, vA1, vAG, vB0, vB1, vBG, vL16 = 1, [2, 3, 4, 5, 6], 7, 8, 9, 10, 11, 12, 13
    vT = 14
    vPollR, vPv, vCd, vPollW, vPollH, vCs, vDum = 17, 18, 16, 20, 21, 22, 23
    vTq, vTg = 20, 21
    names = ["g0", "u0", "g1", "u1", "k0", "k1", "v0", "v1", "q0", "q1"]
    for t in range(2, 7): names += [f"g{t}", f"u{t}"]
    acc = {}
    nv = 24; na = 0
    for nm in ["k0", "k1", "v0", "v1"] + [f"g{t}" for t in range(7)]:
        for i in range(4):
            acc[(nm, i)] = Reg('v', nv); nv += 4
    for t in range(7):
        for i in range(4):
            if t * 4 + i < 14:
                acc[(f"u{t}", i)] = Reg('v', nv); nv += 4
            else:
                acc[(f"u{t}", i)] = Reg('a', na); na += 4
    for nm in ["q0", "q1"]:
        for i in range(4):
            acc[(nm, i)] = Reg('a', na); na += 4
    assert nv == 256 and na == 88
    XR = lambda s, i: Reg('a', 88 + 16 * s + 4 * i)
    WR = lambda p: Reg('a', 152 + 4 * p)
    accm = acc
    if OPT.get("classic"):
        accm = {}; k = 0
        for nm in names:
            for i in range(4):
                accm[(nm, i)] = Reg('a', 4 * k) if k < 52 else Reg('v', 24 + 4 * (k - 52)); k += 1
        XR = lambda s, i: Reg('v', 136 + 16 * s + 4 * i)
        WR = lambda p: Reg('v', 200 + 4 * p)
    PT = lambda t: Reg('a', 88 + 4 * t)
    CT = lambda k: Reg('a', 208 + 4 * k)
    sSX, sSD = 16, [20, 24, 28, 32, 36]
    sSCs, sSCd, sSF = 40, 72, 92
    sST = [76, 80, 44]
    sW, sHD, sRB, sXo, sWoA, sWoB, sStA, sStB, sM, sR, sCnt = 48, 49, 50, 51, 52, 53, 54, 55, 56, 57, 58
    sSLOT, sREND, sMEND, sM0, sCl, sCs = 59, 60, 61, 62, 63, 3
    sToq, sTog, sFo, sSpin, sTag, sTm = 88, 89, 90, 91, 12, 13
    sT = 64
    uid = [0]
    def flag_set(val):
        uid[0] += 1; L = f"M_fs{uid[0]}"
        A(f"""
        s_cmp_eq_u32 s{sW}, 0
        s_cbranch_scc0 {L}
        v_mov_b32 v{vT}, s{sTag}
        v_mov_b32 v{vT+1}, {val}
        s_mov_b64 exec, 1
        buffer_store_dwordx2 v[{vT}:{vT+1}], off, s[{sSF}:{sSF+3}], s{sFo} sc1
        s_mov_b64 exec, -1
        """)
        A.label(L)
    def poll_issue(vaddr):
        return f"buffer_load_dwordx2 v[{vPv}:{vPv+1}], v{vaddr}, s[{sSF}:{sSF+3}], 0 offen sc1"
    MASK_R, MASK_U = 0x00000000ffffffff, 0xffffffff00000000
    def poll_eval(E, bit):
        E(f"""
        v_xor_b32 v{vT}, s{sTag}, v{vPv}
        v_bfe_u32 v{vT+1}, v{vPv+1}, {bit.bit_length()-1}, 1
        v_xor_b32 v{vT+1}, 1, v{vT+1}
        v_or_b32 v{vT}, v{vT}, v{vT+1}
        v_cmp_ne_u32 vcc, 0, v{vT}
        s_nop 3
        """)
    def repoll(L, va=None, slp=None):
        if slp is None: slp = OPT.get('sleep', 8)
        A(f"""
        s_add_u32 s{sSpin}, s{sSpin}, 1
        s_cmp_ge_u32 s{sSpin}, 0x40000
        s_cbranch_scc1 {L}_ok
        s_sleep {slp}
        {poll_issue(vPollR if va is None else va)}
        s_waitcnt vmcnt(0)
        s_branch {L}
        """)
    def poll_check(bit, mask, vm=None, va=None, slp=None):
        uid[0] += 1; L = f"M_pc{uid[0]}"
        if vm is not None: A(f"s_waitcnt vmcnt({vm})")
        A(f"s_mov_b32 s{sSpin}, 0")
        A.label(L)
        poll_eval(A, bit)
        lo, hi = mask & 0xffffffff, mask >> 32
        if hi == 0:
            A(f"s_cmp_eq_u32 vcc_lo, 0")
        elif lo == 0:
            A(f"s_and_b32 s{sTm}, vcc_hi, 0x{hi:x}"); A(f"s_cmp_eq_u32 s{sTm}, 0")
        else:
            A(f"s_and_b32 s{sTm}, vcc_hi, 0x{hi:x}"); A(f"s_or_b32 s{sTm}, s{sTm}, vcc_lo"); A(f"s_cmp_eq_u32 s{sTm}, 0")
        A(f"s_cbranch_scc1 {L}_ok")
        repoll(L, va, slp)
        A.label(L + "_ok")
    def cond_poll(cmp, va):
        uid[0] += 1; L = f"M_cp{uid[0]}"
        return cmp + [f"s_cbranch_scc0 {L}", poll_issue(va), L + ":"]
    def emit(ls):
        for l in ls:
            if l.endswith(":"): A.label(l[:-1])
            else: A(l)
    def lack_mask(E):
        poll_eval(E, F_A)
        E(f"""
        s_lshr_b32 s{sTm}, vcc_lo, 16
        s_or_b32 s{sLack}, s{sTm}, vcc_lo
        s_lshr_b32 s{sTm}, s{sLack}, 8
        s_or_b32 s{sLack}, s{sLack}, s{sTm}
        s_and_b32 s{sLack}, s{sLack}, 0xff
        """)
    def stage_gate(ssig):
        uid[0] += 1; L = f"M_sg{uid[0]}"
        A(f"s_bitcmp0_b32 s{sLack}, s{ssig}")
        A(f"s_cbranch_scc1 {L}_ok")
        A(f"s_mov_b32 s{sSpin}, 0")
        A(poll_issue(vPollR)); A("s_waitcnt vmcnt(0)")
        A.label(L)
        lack_mask(A)
        A(f"s_bitcmp0_b32 s{sLack}, s{ssig}")
        A(f"s_cbranch_scc1 {L}_ok")
        repoll(L)
        A.label(L + "_ok")
    A(f"""
    s_cmp_ge_u32 s2, 256
    s_cbranch_scc1 M_end
    """)
    if OPT["stamp"]:
        A("s_memrealtime s[100:101]"); A("s_waitcnt lgkmcnt(0)"); A("s_mov_b32 s99, s100")
        A("s_memrealtime s[100:101]" if OPT.get("rt") else "s_memtime s[100:101]"); A("s_waitcnt lgkmcnt(0)"); A(f"s_mov_b32 s{SREG[0]}, s100")
    A(f"""
    s_load_dwordx4 s[68:71], s[0:1], 0
    s_load_dwordx4 s[8:11], s[0:1], 32
    s_load_dwordx4 s[12:15], s[0:1], 64
    s_load_dwordx2 s[84:85], s[0:1], 16
    s_load_dwordx2 s[{sSCs}:{sSCs+1}], s[0:1], 48
    s_getpc_b64 s[{sT+2}:{sT+3}]
    s_and_b32 s{sT+2}, s{sT+2}, 0xffffff00
    s_bfe_u32 s{sT}, s2, 0x30003
    s_lshl_b32 s{sT}, s{sT}, 12
    v_lshrrev_b32 v{vT}, 3, v0
    v_lshlrev_b32 v{vT}, 7, v{vT}
    v_add_u32 v{vT}, s{sT}, v{vT}
    global_load_dword v{vDum}, v{vT}, s[{sT+2}:{sT+3}]
    v_lshrrev_b32 v{vT}, 6, v0
    v_and_b32 v0, 63, v0
    v_readfirstlane_b32 s{sW}, v{vT}
    s_and_b32 s{sT}, s2, 7
    s_lshr_b32 s{sT+1}, s2, 3
    s_and_b32 s{sRB}, s{sT+1}, 7
    s_lshr_b32 s{sT+1}, s{sT+1}, 3
    s_lshl_b32 s{sHD}, s{sT}, 2
    s_add_u32 s{sHD}, s{sHD}, s{sT+1}
    v_lshlrev_b32 v{vL16}, 4, v0
    s_lshl_b32 s{sFo}, s{sRB}, 5
    s_add_u32 s{sFo}, s{sFo}, s{sHD}
    """)
    lX, lF, lS, lR, lA = 32, 48, 80, 88, 112
    A(f"""
    v_and_b32 v{lA}, 7, v0
    v_lshrrev_b32 v{lA+1}, 3, v0
    v_lshlrev_b32 v{lA+2}, 11, v{lA}
    v_lshl_add_u32 v{lA+2}, v{lA+1}, 4, v{lA+2}
    s_lshl_b32 s{sT}, s{sFo}, 14
    s_lshl_b32 s{sT+1}, s{sW}, 9
    s_add_u32 s{sT}, s{sT}, s{sT+1}
    v_add_u32 v{lA+2}, s{sT}, v{lA+2}
    s_waitcnt lgkmcnt(0)
    """)
    srd(A, sSX, 68, 69, 0x400000)
    for n in range(4):
        A(f"buffer_load_dwordx4 v[{lX+4*n}:{lX+4*n+3}], v{lA+2}, s[{sSX}:{sSX+3}], 0 offen offset:{128*n}")
    A(f"v_and_b32 v{lA+6}, 0xfffff800, v{lA+2}")
    A(f"buffer_load_ushort v{lA+7}, v{lA+6}, s[{sSX}:{sSX+3}], 0 offen")
    A("s_mov_b32 s4, s70"); A("s_mov_b32 s5, s71")
    srd(A, sSF, 14, 15, FLG_SIZE, FLG_OFF)
    A(f"s_mov_b32 s{sT}, {EPOCH}")
    A(f"buffer_load_dword v{vPv}, off, s[{sSF}:{sSF+3}], s{sT} sc1")
    A(f"""
    s_lshr_b32 s{sT}, s2, 3
    s_lshl_b32 s{sT}, s{sT}, 2
    s_add_u32 s{sT}, s{sT}, s{sW}
    s_lshl_b32 s{sT}, s{sT}, 1
    s_and_b32 s{sT+1}, s2, 7
    s_mul_i32 s{sT+2}, s{sT}, 7168
    s_mul_i32 s{sT+3}, s{sT+1}, 896
    s_add_u32 s{sT+2}, s{sT+2}, s{sT+3}
    s_mul_i32 s{sT+3}, s{sT}, 6144
    s_lshl_b32 s{sT+1}, s{sT+1}, 8
    s_add_u32 s{sT+3}, s{sT+3}, s{sT+1}
    v_cmp_le_u32 vcc, 7, v0
    v_lshlrev_b32 v{vTg}, 7, v0
    v_mov_b32 v{vT}, {7168-7*128}
    v_cndmask_b32 v{vT}, 0, v{vT}, vcc
    v_add3_u32 v{vTg}, v{vTg}, v{vT}, s{sT+2}
    v_cmp_le_u32 vcc, 14, v0
    v_mov_b32 v{vT}, 0x70000000
    v_lshrrev_b32 v{vT+1}, 1, v0
    v_cndmask_b32 v{vTg}, v{vTg}, v{vT}, vcc
    v_and_b32 v{vTq}, 1, v0
    v_lshlrev_b32 v{vTq}, 7, v{vTq}
    v_lshl_add_u32 v{vTq}, v{vT+1}, 11, v{vTq}
    v_cmp_le_u32 vcc, 12, v0
    v_add_u32 v{vTq}, s{sT+3}, v{vTq}
    s_mov_b32 s{sToq}, 0
    v_cndmask_b32 v{vTq}, v{vTq}, v{vT}, vcc
    s_mov_b32 s{sTog}, 0
    """)
    srd(A, sST[0], 4, 5, 1024 * 6144)
    srd(A, sST[1], 8, 9, 1024 * 7168)
    srd(A, sST[2], 10, 11, 1024 * 7168)
    def touch(s):
        v = [vTq, vTg, vTg][s]; so = [sToq, sTog, sTog][s]
        return f"buffer_load_dword v{vDum}, v{v}, s[{sST[s]}:{sST[s]+3}], s{so} offen"
    NY = 2
    stamp(A, 1, 2)
    A(f"""
    v_lshrrev_b32 v{lA+8}, 4, v0
    v_bfe_u32 v{lA+9}, v0, 2, 2
    v_lshl_add_u32 v{lA+10}, v{lA+8}, 3, v{lA+9}
    v_mul_u32_u24 v{lA+10}, 6144, v{lA+10}
    v_bfe_u32 v{lA+11}, v0, 1, 1
    v_and_b32 v{lA+12}, 1, v{lA+8}
    v_xor_b32 v{lA+11}, v{lA+11}, v{lA+12}
    v_lshl_add_u32 v{lA+10}, v{lA+11}, 5, v{lA+10}
    v_and_b32 v{lA+11}, 1, v0
    v_lshl_add_u32 v{lA+10}, v{lA+11}, 4, v{lA+10}
    s_mul_i32 s{sT+2}, s{sW}, 5
    s_and_b32 s{sT+3}, s{sHD}, 1
    s_lshl_b32 s{sT+3}, s{sT+3}, 1
    s_mul_i32 s{sT+4}, s{sHD}, 224
    """)
    t3, t4, t5, t6, t7 = lA + 11, lA + 12, lA + 13, lA + 14, lA + 15
    for i in range(5):
        d = sSD[i]
        A(f"""
        s_add_u32 s{sT+5}, s{sT+2}, {i}
        s_cmp_lt_u32 s{sT+5}, 6
        s_cbranch_scc0 M_gu{i}
        s_lshr_b32 s{sT+6}, s{sT+5}, 1
        s_lshl_b32 s{sT+6}, s{sT+6}, 11
        s_and_b32 s{sT+7}, s{sT+5}, 1
        s_mul_i32 s{sT+7}, s{sT+7}, 24576
        s_add_u32 s{sT+6}, s{sT+6}, s{sT+7}
        s_lshl_b32 s{sT+7}, s{sHD}, 6
        s_add_u32 s{sT+6}, s{sT+6}, s{sT+7}
        v_add_u32 v{vD[i]}, s{sT+6}, v{lA+10}
        s_mov_b32 s{d}, s4
        s_mov_b32 s{d+1}, s5
        s_mov_b32 s{d+2}, {1024*6144}
        s_mov_b32 s{sStA if i == 0 else sStB}, {32*6144}
        s_branch M_dn{i}
        """)
        A.label(f"M_gu{i}")
        A(f"""
        s_sub_u32 s{sT+6}, s{sT+5}, 6
        s_sub_u32 s{sT+7}, s{sT+5}, 13
        s_cmp_lt_u32 s{sT+5}, 13
        s_cselect_b32 s{sT+6}, s{sT+6}, s{sT+7}
        s_cselect_b32 s{d}, s8, s10
        s_cselect_b32 s{d+1}, s9, s11
        s_mov_b32 s{d+2}, {1024*7168}
        s_mov_b32 s{sStA if i == 0 else sStB}, {32*7168}
        s_lshl_b32 s{sT+6}, s{sT+6}, 6
        v_add_u32 v{t3}, s{sT+6}, v0
        v_mul_u32_u24 v{t4}, 4682, v{t3}
        v_lshrrev_b32 v{t4}, 16, v{t4}
        v_mul_u32_u24 v{t5}, 14, v{t4}
        v_sub_u32 v{t5}, v{t3}, v{t5}
        v_add_u32 v{t5}, s{sT+3}, v{t5}
        v_subrev_u32 v{t6}, 14, v{t5}
        v_min_u32 v{t5}, v{t5}, v{t6}
        v_bfe_u32 v{t6}, v{t4}, 2, 2
        v_lshrrev_b32 v{t7}, 4, v{t4}
        v_and_b32 v{t4}, 3, v{t4}
        v_lshl_add_u32 v{t4}, v{t6}, 3, v{t4}
        v_lshl_add_u32 v{t4}, v{t7}, 2, v{t4}
        v_mul_u32_u24 v{t4}, 7168, v{t4}
        v_lshl_add_u32 v{t4}, v{t5}, 4, v{t4}
        v_add_u32 v{vD[i]}, s{sT+4}, v{t4}
        """)
        A.label(f"M_dn{i}")
        A(f"s_mov_b32 s{d+3}, 0x00020000")
    A(f"""
    s_lshr_b32 s{sT}, s{sFo}, 1
    s_lshl_b32 s{sT}, s{sT}, 10
    s_and_b32 s{sT+1}, s{sFo}, 1
    s_lshl_b32 s{sT+1}, s{sT+1}, 7
    s_add_u32 s{sT}, s{sT}, s{sT+1}
    s_lshl_b32 s{sT+1}, s{sW}, 20
    s_add_u32 s{sT}, s{sT}, s{sT+1}
    v_lshrrev_b32 v{lA+3}, 2, v{lA+1}
    v_lshlrev_b32 v{lA+3}, 17, v{lA+3}
    v_and_b32 v{lA+4}, 3, v{lA+1}
    v_lshl_add_u32 v{lA+3}, v{lA+4}, 8, v{lA+3}
    v_lshl_add_u32 v{lA+3}, v{lA}, 4, v{lA+3}
    v_add_u32 v{lA+3}, s{sT}, v{lA+3}
    v_lshlrev_b32 v{lA+5}, 6, v{lA}
    v_add_u32 v{lA+5}, {KVL}, v{lA+5}
    s_lshl_b32 s{sT}, s{sW}, 4
    v_lshl_add_u32 v{lA+4}, v{lA+8}, 2, v{lA+5}
    v_add_u32 v{lA+4}, s{sT}, v{lA+4}
    """)
    srd(A, sSX, 14, 15, 0x400000, XF_OFF)
    A(f"s_lshr_b32 s{sFo}, s2, 3"); A(f"s_mul_i32 s{sFo}, s{sFo}, {LSTR}"); A(f"s_and_b32 s{sT}, s2, 7"); A(f"s_lshl_b32 s{sT}, s{sT}, 4"); A(f"s_add_u32 s{sFo}, s{sFo}, s{sT}")
    def dma(i):
        return [f"s_add_u32 m0, s{sM}, 0x{1024*(i+1):x}",
                f"buffer_load_dwordx4 v{vD[i]}, s[{sSD[i]}:{sSD[i]+3}], s{sWoA if i == 0 else sWoB} offen lds"]
    def xload(s, i):
        return f"buffer_load_dwordx4 {XR(s, i)}, v{vX}, s[{sSX}:{sSX+3}], s{sXo} offen offset:{1024*i} sc1"
    wadv = [f"s_add_u32 s{sM}, s{sM}, s{sSLOT}", f"s_add_u32 s{sWoA}, s{sWoA}, s{sStA}", f"s_add_u32 s{sWoB}, s{sWoB}, s{sStB}"]
    def wgroups(adv):
        L = []
        for i in range(5):
            m, l = dma(i)
            L.append((wadv if (i == 0 and adv) else []) + [m, "s_nop 0", l])
        return L
    def xgroups(t):
        return [[xload(t, i)] + ([f"s_add_u32 s{sXo}, s{sXo}, 0x20000"] if i == 3 else []) for i in range(4)]
    A(f"""
    s_mov_b32 s{sXo}, 0
    s_mul_i32 s{sM0}, s{sW}, 5120
    s_sub_u32 s{sM0}, s{sM0}, 1024
    s_mov_b32 s{sM}, s{sM0}
    s_mov_b32 s{sWoA}, 0
    s_mov_b32 s{sWoB}, 0
    s_mov_b32 s{sSLOT}, {G1_SLOT}
    """)
    B = Asm()
    B(f"""
    s_lshl_b32 s{sT}, s{sRB}, 14
    s_lshl_b32 s{sT+1}, s{sW}, 12
    s_add_u32 s{sT}, s{sT}, s{sT+1}
    v_add_u32 v{vX}, s{sT}, v{vL16}
    s_lshl_b32 s{sT}, s{sRB}, 3
    v_and_b32 v{vPollR}, 7, v0
    v_bfe_u32 v{t3}, v0, 3, 2
    v_lshl_add_u32 v{vPollR}, v{t3}, 6, v{vPollR}
    v_add_u32 v{vPollR}, s{sT}, v{vPollR}
    v_and_b32 v{vT}, 7, v{vPollR}
    v_lshrrev_b32 v{vPollR}, 3, v{vPollR}
    v_mul_u32_u24 v{vPollR}, {LSTR}, v{vPollR}
    v_lshl_add_u32 v{vPollR}, v{vT}, 4, v{vPollR}
    v_lshrrev_b32 v{t3}, 2, v0
    v_and_b32 v{t4}, 3, v0
    v_lshlrev_b32 v{t4}, 3, v{t4}
    v_lshl_add_u32 v{vB0}, v{t3}, 6, v{t4}
    v_and_b32 v{t5}, 1, v{lA+8}
    v_lshl_add_u32 v{vB0}, v{t5}, 5, v{vB0}
    v_xor_b32 v{vB1}, 32, v{vB0}
    v_mul_u32_u24 v{vBG}, 224, v{t3}
    v_add_u32 v{vBG}, v{vBG}, v{t4}
    v_mov_b32 v{vA0}, v{vB0}
    v_mov_b32 v{vA1}, v{vB1}
    v_mov_b32 v{vAG}, v{vBG}
    s_mov_b32 s{sR}, 0
    s_mov_b32 s{sCnt}, 0
    s_mov_b32 s{sREND}, {G1_S*G1_SLOT}
    s_add_u32 s{sMEND}, s{sM0}, s{sREND}
    """)
    B(f"""
    s_lshl_b32 s{sT}, s2, 2
    s_add_u32 s{sT}, s{sT}, s{sW}
    s_lshl_b32 s{sT}, s{sT}, 10
    v_add_u32 v{vCd}, s{sT}, v{vL16}
    v_lshrrev_b32 v{t3}, 3, v0
    v_bfe_u32 v{t4}, v0, 1, 2
    v_bfe_u32 v{t5}, v0, 4, 2
    v_xor_b32 v{t4}, v{t4}, v{t5}
    v_lshlrev_b32 v{t3}, 11, v{t3}
    v_lshl_add_u32 v{t3}, v{t4}, 5, v{t3}
    v_and_b32 v{t4}, 1, v0
    v_lshl_add_u32 v{t3}, v{t4}, 4, v{t3}
    s_lshl_b32 s{sT}, s{sW}, 14
    s_and_b32 s{sT+1}, s2, 15
    s_lshl_b32 s{sT+1}, s{sT+1}, 7
    s_add_u32 s{sT}, s{sT}, s{sT+1}
    v_add_u32 v{vCs}, s{sT}, v{t3}
    s_lshr_b32 s{sT+1}, s2, 4
    s_mul_i32 s{sT}, s{sT+1}, 7
    s_add_u32 s{sCl}, s{sT}, 1
    s_lshr_b32 s{sCl}, s{sCl}, 1
    s_lshl_b32 s{sCl}, s{sCl}, 16
    s_add_u32 s{sT}, s{sT}, 3
    s_lshl_b32 s{sT}, s{sT}, 16
    s_lshl_b32 s{sT+1}, s{sT+1}, 16
    s_add_u32 s{sT+2}, s{sT+1}, 0x100000
    s_mov_b32 s{sCs}, 0x{(-2 << 20) & 0xffffffff:x}
    s_mov_b32 s{sSCs+2}, {3584*2048}
    s_mov_b32 s{sSCs+3}, 0x00020000
    """)
    sT6, sT7, sT8 = sT, sT + 1, sT + 2
    for l in lines(B): A(l)
    lW, lRd, lSt = lA + 4, lA + 5, lA + 3
    for n in range(4):
        A(f"s_waitcnt vmcnt({3-n+NY})")
        for q in range(4):
            s = lX + 4 * n + q; d = lF + 8 * n + 2 * q
            A(f"v_lshlrev_b32 v{d}, 16, v{s}")
            A(f"v_and_b32 v{d+1}, 0xffff0000, v{s}")
    stamp(A, 2, 2)
    A("s_waitcnt vmcnt(1)")
    for k in range(3): A(touch(k))
    TROW = OPT.get("trow", 1)
    if TROW == 2:
        A(f"s_mov_b32 s{sToq}, {256*6144}")
        A(f"s_mov_b32 s{sTog}, {256*7168}")
    else:
        A(f"""
        s_lshr_b32 s{sTm}, s2, 3
        s_lshl_b32 s{sTm}, s{sTm}, 2
        s_add_u32 s{sTm}, s{sTm}, s{sW}
        s_sub_u32 s{sTm}, 256, s{sTm}
        s_mul_i32 s{sToq}, s{sTm}, 6144
        s_mul_i32 s{sTog}, s{sTm}, 7168
        v_mov_b32 v{vT}, 0x70000000
        v_cmp_le_u32 vcc, 7, v0
        s_nop 1
        v_cndmask_b32 v{vTg}, v{vTg}, v{vT}, vcc
        v_cmp_le_u32 vcc, 6, v0
        s_nop 1
        v_cndmask_b32 v{vTq}, v{vTq}, v{vT}, vcc
        """)
    lM, lMb, lT, lQ = lS + 4, lS + 6, 104, 108
    A(f"""
    v_lshlrev_b32 v{lA+7}, 16, v{lA+7}
    v_sub_f32 v{lM}, 0, v{lA+7}
    v_mov_b32 v{lM+1}, v{lM}
    """)
    for q in range(0, 16, 2):
        d0 = (lS, lS + 2) if q == 0 else (lT, lT + 2)
        A(f"v_pk_add_f32 v[{d0[0]}:{d0[0]+1}], v[{lF+2*q}:{lF+2*q+1}], v[{lM}:{lM+1}]")
        A(f"v_pk_add_f32 v[{d0[1]}:{d0[1]+1}], v[{lF+2*q+2}:{lF+2*q+3}], v[{lM}:{lM+1}]")
        if q == 0:
            A(f"v_pk_mul_f32 v[{lQ}:{lQ+1}], v[{lS}:{lS+1}], v[{lS}:{lS+1}]")
            A(f"v_pk_mul_f32 v[{lQ+2}:{lQ+3}], v[{lS+2}:{lS+3}], v[{lS+2}:{lS+3}]")
        else:
            A(f"v_pk_fma_f32 v[{lQ}:{lQ+1}], v[{lT}:{lT+1}], v[{lT}:{lT+1}], v[{lQ}:{lQ+1}]")
            A(f"v_pk_fma_f32 v[{lQ+2}:{lQ+3}], v[{lT+2}:{lT+3}], v[{lT+2}:{lT+3}], v[{lQ+2}:{lQ+3}]")
            A(f"v_pk_add_f32 v[{lS}:{lS+1}], v[{lS}:{lS+1}], v[{lT}:{lT+1}]")
            A(f"v_pk_add_f32 v[{lS+2}:{lS+3}], v[{lS+2}:{lS+3}], v[{lT+2}:{lT+3}]")
    r = lR; r2 = 128
    A(f"""
    v_pk_add_f32 v[{lS}:{lS+1}], v[{lS}:{lS+1}], v[{lS+2}:{lS+3}]
    v_pk_add_f32 v[{lQ}:{lQ+1}], v[{lQ}:{lQ+1}], v[{lQ+2}:{lQ+3}]
    v_add_f32 v{lS}, v{lS}, v{lS+1}
    v_add_f32 v{lQ}, v{lQ}, v{lQ+1}
    s_nop 0
    v_add_f32_dpp v{lS}, v{lS}, v{lS} row_ror:8 row_mask:0xf bank_mask:0xf
    v_add_f32_dpp v{lQ}, v{lQ}, v{lQ} row_ror:8 row_mask:0xf bank_mask:0xf
    ds_write_b32 v{lW}, v{lS}
    ds_write_b32 v{lW}, v{lQ} offset:512
    s_waitcnt lgkmcnt(0)
    s_barrier
    """)
    for k in range(4): A(f"ds_read_b128 v[{r+4*k}:{r+4*k+3}], v{lRd} offset:{16*k}")
    for k in range(4): A(f"ds_read_b128 v[{r2+4*k}:{r2+4*k+3}], v{lRd} offset:{512+16*k}")
    for wait, rr in ((4, r), (0, r2)):
        A(f"s_waitcnt lgkmcnt({wait})")
        A(f"""
        v_pk_add_f32 v[{rr}:{rr+1}], v[{rr}:{rr+1}], v[{rr+2}:{rr+3}]
        v_pk_add_f32 v[{rr+4}:{rr+5}], v[{rr+4}:{rr+5}], v[{rr+6}:{rr+7}]
        v_pk_add_f32 v[{rr+8}:{rr+9}], v[{rr+8}:{rr+9}], v[{rr+10}:{rr+11}]
        v_pk_add_f32 v[{rr+12}:{rr+13}], v[{rr+12}:{rr+13}], v[{rr+14}:{rr+15}]
        v_pk_add_f32 v[{rr}:{rr+1}], v[{rr}:{rr+1}], v[{rr+4}:{rr+5}]
        v_pk_add_f32 v[{rr+8}:{rr+9}], v[{rr+8}:{rr+9}], v[{rr+12}:{rr+13}]
        v_pk_add_f32 v[{rr}:{rr+1}], v[{rr}:{rr+1}], v[{rr+8}:{rr+9}]
        v_add_f32 v{rr}, v{rr}, v{rr+1}
        v_mul_f32 v{rr}, 0x{f2u(1.0/1024):x}, v{rr}
        """)
    A(f"""
    v_add_f32 v{lMb}, v{lA+7}, v{lR}
    v_fma_f32 v{lR}, -v{lR}, v{lR}, v{r2}
    v_cvt_pk_bf16_f32 v{lMb}, v{lMb}, v{lMb}
    v_max_f32 v{lR}, 0, v{lR}
    v_lshlrev_b32 v{lMb}, 16, v{lMb}
    """)
    A(f"""
    v_cvt_pk_bf16_f32 v{lR}, v{lR}, v{lR}
    v_lshlrev_b32 v{lR}, 16, v{lR}
    v_add_f32 v{lR}, 0x{f2u(1e-5):x}, v{lR}
    v_cvt_pk_bf16_f32 v{lR}, v{lR}, v{lR}
    v_lshlrev_b32 v{lR}, 16, v{lR}
    v_sqrt_f32 v{lR}, v{lR}
    s_nop 0
    v_cvt_pk_bf16_f32 v{lR}, v{lR}, v{lR}
    v_lshlrev_b32 v{lR}, 16, v{lR}
    v_rcp_f32 v{lR}, v{lR}
    v_sub_f32 v{lM}, 0, v{lMb}
    v_mov_b32 v{lM+1}, v{lM}
    v_mov_b32 v{lR+1}, v{lR}
    s_mov_b32 s{sT+3}, 0
    """)
    for n in range(4):
        for q in range(4):
            d = lF + 8 * n + 2 * q; o = lX + 4 * n + q
            A(f"v_pk_add_f32 v[{d}:{d+1}], v[{d}:{d+1}], v[{lM}:{lM+1}]")
        for q in range(4):
            d = lF + 8 * n + 2 * q; o = lX + 4 * n + q
            A(f"v_cvt_pk_bf16_f32 v{o}, v{d}, v{d+1}")
        for q in range(4):
            d = lF + 8 * n + 2 * q; o = lX + 4 * n + q
            A(f"v_lshlrev_b32 v{d}, 16, v{o}")
            A(f"v_and_b32 v{d+1}, 0xffff0000, v{o}")
        for q in range(4):
            d = lF + 8 * n + 2 * q
            A(f"v_pk_mul_f32 v[{d}:{d+1}], v[{d}:{d+1}], v[{lR}:{lR+1}]")
        for q in range(4):
            d = lF + 8 * n + 2 * q; o = lX + 4 * n + q
            A(f"v_cvt_pk_bf16_f32 v{o}, v{d}, v{d+1}")
        A(f"buffer_store_dwordx4 v[{lX+4*n}:{lX+4*n+3}], v{lSt}, s[{sSX}:{sSX+3}], s{sT+3} offen sc1")
        A(f"s_add_u32 s{sT+3}, s{sT+3}, 0x40000")
    stamp(A, 3, 2)
    srd(A, sSCd, 14, 15, WT_SIZE, WT_OFF)
    for g in wgroups(False): emit(g)
    A("s_waitcnt vmcnt(5)")
    A(f"v_readfirstlane_b32 s{sTag}, v{vPv}")
    A("s_barrier")
    A(f"s_mul_i32 s{sTag}, s{sTag}, 0x9e3779b1")
    A(f"s_add_u32 s{sTag}, s{sTag}, 0x7f4a7c15")
    flag_set(F_LN)
    stamp(A, 4, 2)
    B = Asm()
    for r in range(24, 256, 2):
        B(f"v_pk_mov_b32 v[{r}:{r+1}], 0, 0")
    for r in list(range(208 if OPT.get('classic') else 88)) + list(range(208, 216)):
        B(f"v_accvgpr_write_b32 a{r}, 0")
    interleave(A, wgroups(True) + wgroups(True), lines(B))
    A(f"s_cmp_eq_u32 s{sW}, 0"); A("s_cbranch_scc0 M_lng")
    A(poll_issue(vPollR))
    poll_check(F_LN, MASK_R, 0, None, OPT.get('lnsleep', 1))
    A.label("M_lng")
    A("s_waitcnt vmcnt(0)")
    A("s_barrier")
    sRT, sCT = 68, 69
    A(f"""
    s_and_b32 s{sT+3}, s2, 7
    s_lshr_b32 s{sRT}, s{sT+3}, 1
    s_lshl_b32 s{sRT}, s{sRT}, 2
    s_bfe_u32 s{sT+6}, s2, 0x20003
    s_add_u32 s{sRT}, s{sRT}, s{sT+6}
    s_and_b32 s{sCT}, s{sT+3}, 1
    s_lshl_b32 s{sCT}, s{sCT}, 3
    s_lshr_b32 s{sT+6}, s2, 5
    s_add_u32 s{sCT}, s{sCT}, s{sT+6}
    """)
    stamp(A, 5, 2)
    for g in xgroups(0) + xgroups(1):
        for l in g: A(l)
    def copy_op(s):
        if s % 2: return f"buffer_load_dwordx4 {CT(s // 2)}, v{vT+1 if s == 1 else vCs}, s[{sSCs}:{sSCs+3}], s{sCl} offen"
        return f"buffer_store_dwordx4 {CT(s // 2)}, v{vCd}, s[{sSCd}:{sSCd+3}], s{sCs} offen sc1"
    def wread(f, a, pos):
        nm = names[f]
        if nm[0] in "qkv":
            p = "qkv".index(nm[0]); j = int(nm[1])
            addr = vA1 if j else vA0; off = 2048 * p + 1024 * a
        else:
            tl = int(nm[1]); addr = vAG
            off = (6144 if nm[0] == 'g' else 13312) + 3584 * a + 32 * tl
        return f"ds_read_b64_tr_b16 {WR(pos).sub(2*a, 2)}, v{addr} offset:{off}"
    def mfma(f, i, s, pos, par=None):
        if OPT.get("snake") and (f if par is None else par) % 2: i = 3 - i
        nm = names[f]; d = accm[(nm, i)]
        if nm[0] in "kv" or OPT.get("swapab"):
            return f"v_mfma_f32_16x16x32_bf16 {d}, {XR(s, i)}, {WR(pos)}, {d}"
        return f"v_mfma_f32_16x16x32_bf16 {d}, {WR(pos)}, {XR(s, i)}, {d}"
    LA = 6
    A(f"""
    s_lshr_b32 s{sT+3}, s{sRT}, 1
    s_lshl_b32 s{sT+3}, s{sT+3}, 3
    v_and_b32 v{vT}, 7, v0
    v_bfe_u32 v{vT+1}, v0, 3, 2
    v_lshl_add_u32 v{vT+1}, v{vT+1}, 6, v{vT}
    v_add_u32 v{vPollR}, s{sT+3}, v{vT+1}
    """)
    A(f"""
    s_and_b32 s{sT+3}, s{sW}, 1
    s_lshl_b32 s{sT+3}, s{sT+3}, 2
    s_lshr_b32 s{sT+6}, s{sW}, 1
    s_add_u32 s{sT+3}, s{sT+3}, s{sT+6}
    s_lshl_b32 s{sT+3}, s{sT+3}, 13
    v_and_b32 v{vT}, 0x7ff, v{vCs}
    v_bfe_u32 v{vT+1}, v0, 3, 2
    v_lshl_add_u32 v{vT}, v{vT+1}, 11, v{vT}
    v_lshrrev_b32 v{vT+1}, 5, v0
    v_lshl_add_u32 v{vT}, v{vT+1}, 14, v{vT}
    v_add_u32 v{vT}, s{sT+3}, v{vT}
    s_getpc_b64 s[4:5]
    s_and_b32 s4, s4, 0xffffff80
    s_bfe_u32 s{sT+3}, s2, 0x30003
    s_lshl_b32 s{sT+3}, s{sT+3}, 2
    s_add_u32 s{sT+3}, s{sT+3}, s{sW}
    s_mul_i32 s{sT+3}, s{sT+3}, 1408
    s_add_u32 s{sT+3}, s{sT+3}, 5120
    v_min_u32 v{vPv}, 10, v0
    v_lshlrev_b32 v{vPv}, 7, v{vPv}
    v_add_u32 v{vPv}, s{sT+3}, v{vPv}
    """)
    for f in range(LA):
        for a in range(2): A(wread(f, a, f % 8))
    A("s_waitcnt vmcnt(4)")
    stamp(A, 6, 2); stamp(A, 1, 1)
    madv = [f"s_add_u32 s{sM}, s{sM}, s{sSLOT}", f"s_add_u32 s{sWoA}, s{sWoA}, s{sStA}", f"s_add_u32 s{sWoB}, s{sWoB}, s{sStB}",
            f"s_cmp_eq_u32 s{sM}, s{sMEND}", f"s_cselect_b32 s{sM}, s{sM0}, s{sM}"]
    def Wop(k, i): return dict(tag=f"W{k}", pre=(madv if i == 0 else []) + [dma(i)[0]], ins=dma(i)[1], post=[])
    def Xop(k, i): return dict(tag=f"X{k}", pre=[], ins=xload(k % 4, i), post=[f"s_add_u32 s{sXo}, s{sXo}, 0x20000"] if i == 3 else [])
    def Sop(j): return dict(tag="S", pre=[], ins=copy_op(2 * j), post=[f"s_add_u32 s{sCs}, s{sCs}, 0x100000"])
    sched = {}
    def place(ops, slots):
        assert len(ops) <= len(slots), (len(ops), len(slots))
        for o, sl in zip(ops, slots): sched[sl] = o
    place([Wop(6, i) for i in range(5)], [(3, f) for f in range(15, 20)])
    place([Xop(2, i) for i in range(4)] + [Wop(3, i) for i in range(4)], [(0, f) for f in (1, 2, 4, 6, 8, 9, 11, 12)])
    place([Wop(3, 4)] + [Xop(3, i) for i in range(4)] + [Wop(4, i) for i in range(5)] + [Xop(4, i) for i in range(3)],
          [(0, 15), (0, 16), (0, 18), (0, 19), (1, 1), (1, 2), (1, 4), (1, 5), (1, 7), (1, 8), (1, 10), (1, 11), (1, 12)])
    place([Xop(4, 3)] + [Wop(5, i) for i in range(5)] + [Sop(0)] + [Xop(5, i) for i in range(4)] + [Sop(1)],
          [(1, 15), (1, 16), (1, 18), (1, 19), (2, 1), (2, 2), (2, 4), (2, 5), (2, 7), (2, 8), (2, 10), (2, 11)])
    cl0 = dict(tag="C", pre=[], ins=copy_op(1), post=[f"s_add_u32 s{sCl}, s{sCl}, {56 << 16}", f"s_cmp_eq_u32 s{sCnt}, 3",
               f"s_cselect_b32 s{sCl}, s{sT7}, s{sCl}", f"s_cselect_b32 s{sSCs}, s84, s{sSCs}", f"s_cselect_b32 s{sSCs+1}, s85, s{sSCs+1}",
               f"s_cselect_b32 s{sSCs+2}, {1024*2048}, s{sSCs+2}", f"s_cmp_eq_u32 s{sCnt}, 4", f"s_cselect_b32 s{sSCs+2}, 0, s{sSCs+2}"])
    cl1 = dict(tag="C", pre=[], ins=copy_op(3), post=[])
    place([cl0] + [dict(tag="T", pre=[], ins=touch(k), post=[]) for k in range(3)] + [cl1], [(2, f) for f in range(15, 20)])
    place([dict(tag="T", pre=[], ins=f"global_load_dword v{vDum}, v{vPv}, s[4:5]", post=[])], [(3, 1)])
    order = sorted(sched.keys())
    def vm_at(s):
        seq = [(-1, k) for k in order] + [(0, k) for k in order if k < (s, 14)]
        need = []
        for n, (tr, k) in enumerate(seq):
            t = sched[k]["tag"]
            if t[0] in "WX" and int(t[1:]) + 4 * tr == s + 1: need.append(n)
        return len(seq) - 1 - max(need)
    A.label("M_loop1")
    for s in range(4):
        for f in range(20):
            F = 20 * s + f
            pos = F % 8
            if f == 14:
                if s == 0:
                    A(f"s_cmp_eq_u32 s{sCnt}, 0"); A("s_cbranch_scc0 M_l1w"); A("s_waitcnt vmcnt(8)"); A.label("M_l1w")
                A(f"s_waitcnt vmcnt({vm_at(s)}) lgkmcnt(8)"); A("s_barrier")
                if s == 0:
                    A(f"s_cmp_eq_u32 s{sCnt}, 6"); A("s_cbranch_scc0 M_l1c")
                    flag_set(F_LN | F_WT); A.label("M_l1c")
            elif f % 2 == 0:
                A("s_waitcnt lgkmcnt(8)")
            nf = (f + LA) % 20
            pre2, mid, post = [], [], []
            if (s, f) in sched:
                o = sched[(s, f)]; pre2, mid, post = o["pre"], [o["ins"]], o["post"]
            elif f == 0: mid = [f"s_add_u32 s{sR}, s{sR}, s{sSLOT}"]; post = [f"s_cmp_eq_u32 s{sR}, s{sREND}", f"s_cselect_b32 s{sR}, 0, s{sR}"]
            elif f == 13:
                mid = [f"v_add_u32 v{vA0}, s{sR}, v{vB0}", f"v_add_u32 v{vA1}, s{sR}, v{vB1}"]
                post = [f"v_add_u32_e64 v{vAG}, s{sR}, v{vBG}"]
            elif s == 2 and f == 12:
                mid = [f"s_cmp_eq_u32 s{sCnt}, 3", f"s_cselect_b64 s[{sT+6}:{sT+7}], -1, 0"]
                post = [f"v_cndmask_b32 v{vT+1}, v{vCs}, v{vT}, s[{sT+6}:{sT+7}]"]
            elif s == 3 and f == 2:
                mid = [f"s_sub_u32 s{sCl}, s{sCl}, {55 << 16}"]; post = [f"s_cmp_eq_u32 s{sCnt}, 2", f"s_cselect_b32 s{sCl}, s{sT6}, s{sCl}"]
            elif s == 3 and f == 3:
                mid = [f"s_cmp_eq_u32 s{sCnt}, 3", f"s_cselect_b32 s{sCl}, s{sT8}, s{sCl}"]
            elif s == 3 and f == 4:
                mid = [f"s_add_u32 s{sToq}, s{sToq}, {128*TROW*6144}"]; post = [f"s_add_u32 s{sTog}, s{sTog}, {128*TROW*7168}"]
            elif s == 3 and f == 5: mid = [f"s_add_u32 s{sCnt}, s{sCnt}, 1"]
            A(mfma(f, 0, s, pos))
            A(wread(nf, 0, (F + LA) % 8))
            for l in pre2[:3 if len(pre2) > 3 else 0]: A(l)
            A(mfma(f, 1, s, pos))
            A(wread(nf, 1, (F + LA) % 8))
            for l in pre2[3 if len(pre2) > 3 else 0:]: A(l)
            A(mfma(f, 2, s, pos))
            emit(mid)
            A(mfma(f, 3, s, pos))
            for l in post: A(l)
    A(f"s_cmp_lt_u32 s{sCnt}, 7")
    A("s_cbranch_scc1 M_loop1")
    sSH, sSK, sSXi, sSO = 20, 24, 28, 32
    sNL, sPL, sEPS, sCB, sCL = 36, 38, 40, 41, 42
    sAo, sBo = 43, 44
    sSA, sSB = sSH, sSCd
    vA, vBd = [2, 3, 4, 5], 6
    vR = [[216, 217, 218, 219], [220, 221, 222, 223]]
    vXO, vKv, vZ, vFw, vZw, vZr, vFr, vLn = 224, 225, 226, 227, 228, 229, 230, 231
    vk0, vk1, vk2 = 11, 12, 22
    AR = lambda s, q, i: Reg('a', 128 + 32 * (s % 4) + 8 * q + 4 * i)
    def phi_tile(E, src, tmp, dst):
        b = src
        E(f"v_pk_mul_f32 v[{tmp}:{tmp+1}], v[{b}:{b+1}], s[{sPL}:{sPL+1}]")
        E(f"v_pk_mul_f32 v[{tmp+2}:{tmp+3}], v[{b+2}:{b+3}], s[{sPL}:{sPL+1}]")
        for j in range(4): E(f"v_exp_f32_e64 v{tmp+j}, v{tmp+j} clamp")
        for j in range(4): E(f"v_max_f32 v{b+j}, s{sEPS}, v{b+j}")
        E(f"v_pk_add_f32 v[{b}:{b+1}], v[{b}:{b+1}], v[{tmp}:{tmp+1}]")
        E(f"v_pk_add_f32 v[{b+2}:{b+3}], v[{b+2}:{b+3}], v[{tmp+2}:{tmp+3}]")
        E(f"v_cvt_pk_bf16_f32 v{dst}, v{b}, v{b+1}")
        E(f"v_cvt_pk_bf16_f32 v{dst+1}, v{b+2}, v{b+3}")
    def swiglu_tile(E, tl, i, tmp, dst):
        g = acc[(f"g{tl}", i)].base
        ur = acc[(f"u{tl}", i)]
        if ur.kind == 'a':
            u = tmp + 4
            for j in range(4): E(f"v_accvgpr_read_b32 v{u+j}, a{ur.base+j}")
        else:
            u = ur.base
        E(f"v_pk_mul_f32 v[{tmp}:{tmp+1}], v[{g}:{g+1}], s[{sNL}:{sNL+1}]")
        E(f"v_pk_mul_f32 v[{tmp+2}:{tmp+3}], v[{g+2}:{g+3}], s[{sNL}:{sNL+1}]")
        for j in range(4): E(f"v_exp_f32 v{tmp+j}, v{tmp+j}")
        E(f"v_pk_mul_f32 v[{g}:{g+1}], v[{g}:{g+1}], v[{u}:{u+1}]")
        E(f"v_pk_mul_f32 v[{g+2}:{g+3}], v[{g+2}:{g+3}], v[{u+2}:{u+3}]")
        E(f"v_pk_add_f32 v[{tmp}:{tmp+1}], v[{tmp}:{tmp+1}], 1.0 op_sel_hi:[1,0]")
        E(f"v_pk_add_f32 v[{tmp+2}:{tmp+3}], v[{tmp+2}:{tmp+3}], 1.0 op_sel_hi:[1,0]")
        for j in range(4): E(f"v_rcp_f32 v{tmp+j}, v{tmp+j}")
        E(f"v_pk_mul_f32 v[{g}:{g+1}], v[{g}:{g+1}], v[{tmp}:{tmp+1}]")
        E(f"v_pk_mul_f32 v[{g+2}:{g+3}], v[{g+2}:{g+3}], v[{tmp+2}:{tmp+3}]")
        E(f"v_cvt_pk_bf16_f32 v{dst}, v{g}, v{g+1}")
        E(f"v_cvt_pk_bf16_f32 v{dst+1}, v{g+2}, v{g+3}")
    def swiglu_pair(E, p, tmp):
        for i in range(4):
            o = acc[(f"g{2*p}", i)].base
            swiglu_tile(E, 2 * p, i, tmp, o)
            swiglu_tile(E, 2 * p + 1, i, tmp, o + 2)
            E(f"buffer_store_dwordx4 v[{o}:{o+3}], v{vX}, s[{sSH}:{sSH+3}], s{sCB} offen offset:{1024*i} sc1")
        E(f"s_add_u32 s{sCB}, s{sCB}, {32 << 17}")
    S = Asm()
    srd(S, sSH, 14, 15, HF_SIZE, HF_OFF)
    sh_lines = lines(S)
    S = Asm()
    S(f"""
    s_mov_b32 s{sNL}, 0x{f2u(-LOG2E):x}
    s_mov_b32 s{sNL+1}, 0x{f2u(-LOG2E):x}
    s_mov_b32 s{sPL}, 0x{f2u(LOG2E):x}
    s_mov_b32 s{sPL+1}, 0x{f2u(LOG2E):x}
    s_mov_b32 s{sEPS}, 0x{f2u(1e-6):x}
    s_lshl_b32 s{sCB}, s{sHD}, 17
    s_lshr_b32 s{sCL}, s{sHD}, 1
    s_add_u32 s{sCL}, s{sCL}, 96
    s_lshl_b32 s{sCL}, s{sCL}, 17
    s_and_b32 s{sT}, s{sHD}, 1
    s_lshl_b32 s{sT}, s{sT}, 9
    s_add_u32 s{sCL}, s{sCL}, s{sT}
    s_lshl_b32 s{sT}, s{sW}, 4
    s_add_u32 s{sT}, s{sT}, s{sCT}
    s_lshl_b32 s{sT}, s{sT}, 12
    v_add_u32 v{vBd}, s{sT}, v{vL16}
    s_lshl_b32 s{sM0}, s{sW}, 12
    """)
    pre_lines = lines(S)
    Ga, Gb = [0, 1, 2, 3], [4, 5, 6, 7]
    items = [(0, f) for f in range(6)] + [(1, f) for f in Ga] + [(0, 6), (0, 7)] + [(1, f) for f in Gb] + [(0, f) for f in range(8, 12)]
    items += [(2, f) for f in Ga] + [(0, f) for f in range(12, 14)] + [(3, f) for f in Ga] + [(2, f) for f in Gb] + [(3, f) for f in Gb]
    items += [(0, f) for f in range(14, 20)] + [(st, f) for st in range(1, 4) for f in range(8, 20)]
    assert len(items) == 80 and len(set(items)) == 80
    def wreadL(st, f, a, pos):
        l = wread(f, a, pos)
        base, off = l.rsplit(" offset:", 1)
        if st >= 2:
            for x, y in ((vA0, vB0), (vA1, vB1), (vAG, vBG)):
                if base.endswith(f", v{x}"): base = base[:-len(f"v{x}")] + f"v{y}"; break
        return f"{base} offset:{int(off) + G1_SLOT * (st % 2)}"
    B = Asm(); swiglu_pair(B, 0, 2); e0 = lines(B)
    if OPT.get('noe0'): e0 = []
    def unpack(ls):
        out = []
        for l in ls:
            m = re.match(r"v_pk_(mul|add)_f32 v\[(\d+):\d+\], v\[(\d+):\d+\], (\S+)", l)
            if not m: out.append(l); continue
            op, d, a, b = m.group(1), int(m.group(2)), int(m.group(3)), m.group(4)
            for k in range(2):
                if b.startswith("v["): bb = "v%d" % (int(b[2:].split(":")[0]) + k)
                elif b.startswith("s["): bb = "s%d" % int(b[2:].split(":")[0])
                else: bb = b
                out.append(f"v_{op}_f32 v{d+k}, {bb}, v{a+k}")
        return out
    if OPT.get('unpk', 0) & 1: e0 = unpack(e0)
    E0_AT, E0_N = 31, OPT.get('e0n', 44)
    S = Asm()
    S(f"""
    v_and_b32 v{vT}, 7, v0
    v_and_b32 v{vT+1}, 15, v0
    v_lshlrev_b32 v{vT+1}, 4, v{vT+1}
    v_add_u32 v{vT+1}, s{sCT}, v{vT+1}
    v_cmp_gt_u32 vcc, 32, v0
    s_and_b32 s{sT+3}, s2, 0xc7
    v_lshlrev_b32 v{vT}, 3, v{vT}
    v_cndmask_b32 v{vPollW}, v{vT+1}, v{vPollR}, vcc
    v_add_u32 v{vT}, s{sT+3}, v{vT}
    s_mov_b32 s{sT+3}, 0x70000000
    v_cndmask_b32 v{vPollH}, v{vT}, v{vPollR}, vcc
    v_and_b32 v{vT}, 7, v{vPollR}
    v_lshrrev_b32 v{vPollR}, 3, v{vPollR}
    v_mul_u32_u24 v{vPollR}, {LSTR}, v{vPollR}
    v_lshl_add_u32 v{vPollR}, v{vT}, 4, v{vPollR}
    v_and_b32 v{vT}, 7, v{vPollW}
    v_lshrrev_b32 v{vPollW}, 3, v{vPollW}
    v_mul_u32_u24 v{vPollW}, {LSTR}, v{vPollW}
    v_lshl_add_u32 v{vPollW}, v{vT}, 4, v{vPollW}
    v_and_b32 v{vT}, 7, v{vPollH}
    v_lshrrev_b32 v{vPollH}, 3, v{vPollH}
    v_mul_u32_u24 v{vPollH}, {LSTR}, v{vPollH}
    v_lshl_add_u32 v{vPollH}, v{vT}, 4, v{vPollH}
    """)
    poll_lines = lines(S)
    lops = [Xop(2, i) for i in range(4)] + [Wop(3, i) for i in range(5)] + [Xop(3, i) for i in range(4)]
    misc = pre_lines
    for n, (st, f) in enumerate(items):
        pos = n % 8
        lg = 8 if n + LA < 80 else max(0, 2 * (80 - n - 2))
        if n == 0: A(f"s_waitcnt vmcnt(10) lgkmcnt(8)"); A("s_barrier")
        elif n == 14: A(f"s_waitcnt vmcnt(9) lgkmcnt(8)"); A("s_barrier")
        elif n == 20: A(f"s_waitcnt vmcnt(4) lgkmcnt(8)"); A("s_barrier")
        elif n == 26: A(f"s_waitcnt vmcnt(0) lgkmcnt(8)")
        elif n % 2 == 0: A(f"s_waitcnt lgkmcnt({lg})")
        fill = []
        if n < 13:
            o = lops[n]; fill = o["pre"] + ["s_nop 0", o["ins"]] + o["post"]
        elif n == 13: fill = sh_lines
        elif 14 <= n < 22: fill = poll_lines[len(poll_lines) * (n - 14) // 8: len(poll_lines) * (n - 13) // 8]
        elif n == 27: fill = [f"s_cmp_eq_u32 s{sW}, 0\ns_cbranch_scc0 M_npw\n{poll_issue(vPollW)}", "M_npw:"]
        elif 22 <= n < 27: fill = misc[len(misc) * (n - 22) // 5: len(misc) * (n - 21) // 5]
        elif E0_AT <= n < E0_AT + E0_N:
            c = n - E0_AT
            fill = e0[len(e0) * c // E0_N: len(e0) * (c + 1) // E0_N]
        mm = lambda i: mfma(f, i, st, pos, n)
        h = (len(fill) + 1) // 2 if (n > 13 and n != 27) else len(fill)
        A(mm(0))
        if n + LA < 80: A(wreadL(*items[n + LA], 0, (n + LA) % 8))
        A(mm(1))
        if n + LA < 80: A(wreadL(*items[n + LA], 1, (n + LA) % 8))
        A(mm(2))
        emit(fill[:h])
        A(mm(3))
        emit(fill[h:])
    stamp(A, 2, 1); stamp(A, 1, 4)
    A(f"""
    s_load_dwordx2 s[78:79], s[0:1], 0
    s_load_dwordx2 s[80:81], s[0:1], 56
    s_lshl_b32 s{sT}, s{sRT}, 13
    s_lshl_b32 s{sT+3}, s{sW}, 11
    s_add_u32 s{sT}, s{sT}, s{sT+3}
    v_add_u32 v{vA[0]}, s{sT}, v{vL16}
    v_add_u32 v{vA[1]}, 0x20000, v{vA[0]}
    v_add_u32 v{vA[2]}, 0x40000, v{vA[0]}
    v_add_u32 v{vA[3]}, 0x60000, v{vA[0]}
    """)
    srd(A, sSK, 14, 15, KVP_SIZE, KVP_OFF)
    A("s_waitcnt vmcnt(0)")
    A(f"s_cmp_eq_u32 s{sW}, 0"); A("s_cbranch_scc0 M_wtc")
    poll_check(F_WT, MASK_U, None, vPollW)
    A.label("M_wtc")
    A("s_barrier")
    flag_set(F_LN | F_WT | F_A)
    stamp(A, 2, 4)
    tq = acc[("u0", 0)].base
    LA2 = OPT.get("la2", 3); LB = G2_R - 1
    vm, lg = [], []
    done = {"vm": -1, "lg": -1}
    pmark = {}
    def put(x):
        line, tag = x if isinstance(x, tuple) else (x, None)
        if line.startswith("@"):
            k, t = line[1:].split()
            waitfor(**{k: [t]}); return
        if line.startswith("#poll"):
            _, c, va = line.split()
            A(f"s_cmp_eq_u32 s{sW}, 0"); A(f"s_cbranch_scc0 M_np{c}"); A(poll_issue(int(va))); A.label(f"M_np{c}")
            pmark[int(c)] = len(vm); return
        if line.endswith(":"): A.label(line[:-1]); return
        A(line)
        if line.startswith("buffer_"): vm.append(tag)
        elif line.startswith("ds_"): lg.append(tag)
    def waitfor(vm=(), lg=(), _vm=vm, _lg=lg):
        parts = []
        for name, lst, tags, cap in (("vm", _vm, vm, 63), ("lg", _lg, lg, 15)):
            idx = [i for i, t in enumerate(lst) if t in tags]
            assert len(idx) >= 1 or not tags, tags
            if idx and max(idx) > done[name]:
                n = min(len(lst) - 1 - max(idx), cap)
                done[name] = len(lst) - 1 - n
                parts.append(f"{'vmcnt' if name == 'vm' else 'lgkmcnt'}({n})")
        if parts: A("s_waitcnt " + " ".join(parts))
    def bop(m, b):
        pre = [f"s_mov_b32 s{sBo}, 0x{m * 0x40000:x}", f"s_add_u32 m0, s{sM0}, 0x{(m % G2_R) * G2_SLOT:x}", "s_nop 0"] if b == 0 else []
        return pre + [(f"buffer_load_dwordx4 v{vBd}, s[{sSB}:{sSB+3}], s{sBo} offen offset:{1024*b} sc1 lds", f"B{m}")]
    def aop(m, j):
        q, i = j // 2, j % 2
        pre = [f"s_mov_b32 s{sAo}, 0x{m * 0x80000:x}"] if j == 0 else []
        return pre + [(f"buffer_load_dwordx4 {AR(m, q, i)}, v{vA[q]}, s[{sSA}:{sSA+3}], s{sAo} offen offset:{1024*i} sc1", f"A{m}q{q}")]
    def tagged(ls, tag): return [(l, tag) if l.startswith(("buffer_", "ds_")) else l for l in ls]
    def mix(G, work):
        n = len(G)
        for c, grp in enumerate(G):
            for x in grp: put(x)
            for x in work[len(work) * c // n: len(work) * (c + 1) // n]: put(x)
    B = Asm(); swiglu_pair(B, 1, tq)
    G = [bop(m, b) for m in range(LB) for b in range(4 if m < LB - 1 else 2)]
    G.insert(len(G) - 5, [f"#poll 0 {vPollR}"])
    mix(G, tagged(lines(B), "h1"))
    stamp(A, 3, 4)
    A("s_waitcnt lgkmcnt(0)")
    srd(A, sSXi, 78, 79, 0x400000)
    srd(A, sSO, 80, 81, 0x400000)
    A(f"s_cmp_eq_u32 s{sW}, 0"); A("s_cbranch_scc0 M_gate")
    poll_check(F_A, MASK_R, len(vm) - pmark[0], None, 2)
    A.label("M_gate")
    waitfor(vm=["B0"])
    A("s_barrier")
    stamp(A, 3, 1); stamp(A, 4, 4)
    ACCF, ACCS, BRB = 88, 24, 120
    BR = lambda p: Reg('v', BRB + 4 * p)
    t0 = tq + 12
    B = Asm()
    B(f"""
    v_bfe_u32 v{t0}, v0, 2, 3
    v_lshrrev_b32 v{t0+1}, 5, v0
    v_lshlrev_b32 v{t0+1}, 10, v{t0+1}
    v_lshl_add_u32 v{t0+1}, v{t0}, 7, v{t0+1}
    v_and_b32 v{t0+2}, 3, v0
    v_lshl_add_u32 v{t0+1}, v{t0+2}, 3, v{t0+1}
    v_lshrrev_b32 v{t0}, 1, v{t0}
    v_lshl_add_u32 v{vR[0][0]}, v{t0}, 5, v{t0+1}
    v_xor_b32 v{vR[0][1]}, 32, v{vR[0][0]}
    v_xor_b32 v{vR[0][2]}, 64, v{vR[0][0]}
    v_xor_b32 v{vR[0][3]}, 0x60, v{vR[0][0]}
    """)
    for r in range(ACCF, ACCF + 32, 2): B(f"v_pk_mov_b32 v[{r}:{r+1}], 0, 0")
    kb = acc[("k0", 0)].base; vb = acc[("v0", 0)].base
    for dt in range(2):
        for i in range(4):
            phi_tile(B, kb + 16 * dt + 4 * i, tq, kb + 16 * dt + 8 * (i // 2) + 2 * (i % 2))
    mix([aop(m, j) for m in range(LA2) for j in range(8)], lines(B))
    fill = {}
    def spread(ls, c0, c1):
        n = c1 - c0
        for c in range(n):
            fill.setdefault(c0 + c, []).extend(ls[len(ls) * c // n: len(ls) * (c + 1) // n])
    vONE = tq + 8
    B = Asm()
    for j in range(4): B(f"v_add_u32 v{vR[1][j]}, 0x10000, v{vR[0][j]}")
    for j in range(4): B(f"v_mov_b32 v{vONE+j}, 0x3f803f80")
    for et in range(2):
        for i in range(4):
            src = vb + 16 * et + 4 * i
            dst = vb + 16 * et + 8 * (i // 2) + 2 * (i % 2)
            B(f"v_cvt_pk_bf16_f32 v{dst}, v{src}, v{src+1}")
            B(f"v_cvt_pk_bf16_f32 v{dst+1}, v{src+2}, v{src+3}")
    B(f"""
    s_mul_i32 s{sT}, s{sW}, 6144
    s_add_u32 s{sT}, s{sT}, {KVL}
    v_add_u32 v{vk0}, s{sT}, v{vL16}
    s_lshl_b32 s{sT}, s{sW}, 10
    """)
    for u in range(2):
        for dt in range(2):
            for et in range(3):
                a = kb + 16 * dt + 8 * u
                b = vb + 16 * et + 8 * u if et < 2 else vONE
                p = PT(dt * 3 + et)
                B(f"v_mfma_f32_16x16x32_bf16 {p}, v[{a}:{a+3}], v[{b}:{b+3}], {'0' if u == 0 else p}")
    B(f"""
    s_add_u32 s{sT+1}, s{sT}, {KVL}
    v_add_u32 v{vk1}, s{sT+1}, v{vL16}
    s_lshl_b32 s{sT+1}, s{sHD}, 3
    s_add_u32 s{sT+1}, s{sT+1}, s{sRB}
    s_mul_i32 s{sT+1}, s{sT+1}, 6144
    v_add_u32 v{vk2}, s{sT}, v{vL16}
    s_add_u32 s{sT+2}, s{sT+1}, 4096
    """)
    ls = lines(B) + [f"s_cmp_lt_u32 s{sW}, 2\ns_cselect_b32 s{sT+2}, s{sT+2}, 0x70000000"]
    ls += [(f"ds_write_b128 v{vk0}, {PT(t)} offset:{1024*t}", "kvw") for t in range(6)]
    spread(ls, 0, 16 + 6)
    barrier_lg = {1: ["kvw"]}
    tb = kb
    def sum4(E, b):
        E(f"v_pk_add_f32 v[{b}:{b+1}], v[{b}:{b+1}], v[{b+4}:{b+5}]")
        E(f"v_pk_add_f32 v[{b+2}:{b+3}], v[{b+2}:{b+3}], v[{b+6}:{b+7}]")
        E(f"v_pk_add_f32 v[{b+8}:{b+9}], v[{b+8}:{b+9}], v[{b+12}:{b+13}]")
        E(f"v_pk_add_f32 v[{b+10}:{b+11}], v[{b+10}:{b+11}], v[{b+14}:{b+15}]")
        E(f"v_pk_add_f32 v[{b}:{b+1}], v[{b}:{b+1}], v[{b+8}:{b+9}]")
        E(f"v_pk_add_f32 v[{b+2}:{b+3}], v[{b+2}:{b+3}], v[{b+10}:{b+11}]")
    ls = [(f"ds_read_b128 v[{tb+4*sw}:{tb+4*sw+3}], v{vk1} offset:{6144*sw}", "kvr") for sw in range(4)]
    ls += [(f"ds_read_b128 v[{tb+16+4*sw}:{tb+16+4*sw+3}], v{vk1} offset:{6144*sw+4096}", "kvr") for sw in range(4)]
    spread(ls, 16 + 10, 32 + 2)
    B = Asm()
    sum4(B, tb)
    B(f"buffer_store_dwordx4 v[{tb}:{tb+3}], v{vk2}, s[{sSK}:{sSK+3}], s{sT+1} offen sc1")
    sum4(B, tb + 16)
    B(f"buffer_store_dwordx4 v[{tb+16}:{tb+19}], v{vk2}, s[{sSK}:{sSK+3}], s{sT+2} offen sc1")
    spread(["@lg kvr"] + tagged(lines(B), "kvs"), 32 + 6, 32 + 12)
    B = Asm(); swiglu_pair(B, 2, tq)
    spread(tagged(lines(B), "h2"), 16 * 2 + 12, 16 * 6 + 8)
    B = Asm()
    B(f"""
    v_and_b32 v{vXO}, 15, v0
    v_lshlrev_b32 v{t0+2}, 4, v{vXO}
    v_lshlrev_b32 v{vXO}, 11, v{vXO}
    v_bfe_u32 v{t0+1}, v0, 4, 1
    v_lshl_add_u32 v{vXO}, v{t0+1}, 5, v{vXO}
    v_lshl_add_u32 v{t0+2}, v{t0+1}, 10, v{t0+2}
    v_lshrrev_b32 v{t0+1}, 5, v0
    v_lshl_add_u32 v{vXO}, v{t0+1}, 4, v{vXO}
    v_lshl_add_u32 v{t0+2}, v{t0+1}, 8, v{t0+2}
    v_sub_u32 v{vLn}, v{vX}, v{vL16}
    v_add_u32 v{vLn}, v{vLn}, v{t0+2}
    s_lshl_b32 s{sT}, s{sRT}, 18
    s_lshl_b32 s{sT+3}, s{sW}, 16
    s_add_u32 s{sT}, s{sT}, s{sT+3}
    s_lshl_b32 s{sT+3}, s{sCT}, 7
    s_add_u32 s{sT}, s{sT}, s{sT+3}
    v_add_u32 v{vXO}, s{sT}, v{vXO}
    s_lshr_b32 s{sT}, s{sW}, 1
    s_add_u32 s{sT}, s{sT}, s{sW}
    s_lshl_b32 s{sT}, s{sT}, 10
    s_mul_i32 s{sT+3}, s{sHD}, 49152
    s_add_u32 s{sT}, s{sT}, s{sT+3}
    v_add_u32 v{vKv}, s{sT}, v{vL16}
    v_and_b32 v{t0}, 7, v0
    v_mul_u32_u24 v{vZ}, 6144, v{t0}
    v_bfe_u32 v{t0}, v0, 3, 2
    v_lshl_add_u32 v{vZ}, v{t0}, 8, v{vZ}
    v_lshrrev_b32 v{t0}, 5, v0
    v_mul_u32_u24 v{t0}, 3072, v{t0}
    v_add3_u32 v{vZ}, v{vZ}, v{t0}, s{sT+3}
    s_and_b32 s{sT}, s{sW}, 1
    s_lshl_b32 s{sT}, s{sT}, 10
    s_lshr_b32 s{sT+3}, s{sW}, 1
    s_lshl_b32 s{sT+3}, s{sT+3}, 3
    s_add_u32 s{sT}, s{sT}, s{sT+3}
    s_add_u32 s{sT}, s{sT}, {FIN}
    v_add_u32 v{vFw}, s{sT}, v{vL16}
    v_bfe_u32 v{t0}, v0, 3, 2
    v_lshlrev_b32 v{t0}, 4, v{t0}
    v_lshrrev_b32 v{t0+1}, 5, v0
    v_lshl_add_u32 v{t0}, v{t0+1}, 3, v{t0}
    v_add_u32 v{vZw}, {FIN+2048}, v{t0}
    v_and_b32 v{t0}, 48, v0
    v_add_u32 v{vZr}, {FIN+2048}, v{t0}
    v_add_u32 v{vFr}, {FIN}, v{vL16}
    """)
    spread(lines(B)[:11], 16 * 1 + 6, 16 * 1 + 12)
    spread(lines(B)[11:], 16 * 9, 16 * 10)
    B = Asm()
    for i in (0, 2):
        o = acc[("g6", i)].base
        swiglu_tile(B, 6, i, tq, o)
        swiglu_tile(B, 6, i + 1, tq, o + 2)
        B("s_nop 1")
        B(f"v_permlane16_swap_b32 v{o}, v{o+2}")
        B(f"v_permlane16_swap_b32 v{o+1}, v{o+3}")
        B(f"buffer_store_dwordx4 v[{o}:{o+3}], v{vLn}, s[{sSH}:{sSH+3}], s{sCL} offen offset:{1024*i} sc1")
    spread(tagged(lines(B), "h3"), 16 * 6 + 8, 16 * 8 + 8)
    pqb = 240
    B = Asm()
    for i in range(4):
        for dt in range(2):
            qa = acc[(f"q{dt}", i)].base
            for j in range(4): B(f"v_accvgpr_read_b32 v{tq+j}, a{qa+j}")
            phi_tile(B, tq, tq + 4, pqb + 4 * i + 2 * dt)
    spread(lines(B), 16 * 10, 16 * 15)
    kvb, zb, fr, ob = 24, 56, 60, 152
    extra = {}
    for r in range(8):
        extra[16 * 13 + 2 + 4 * r] = [f"s_mov_b32 s{sT+1}, {6144*r}", (f"buffer_load_dwordx4 v[{kvb+4*r}:{kvb+4*r+3}], v{vKv}, s[{sSK}:{sSK+3}], s{sT+1} offen sc1", "kvg")]
    extra[16 * 15 + 2] = [(f"buffer_load_dwordx4 v[{zb}:{zb+3}], v{vZ}, s[{sSK}:{sSK+3}], 0 offen offset:2048 sc1", "kvg")]
    B = Asm()
    for st in (16, 8, 4):
        for r in range(0, st, 2):
            B(f"v_pk_add_f32 v[{kvb+r}:{kvb+r+1}], v[{kvb+r}:{kvb+r+1}], v[{kvb+st+r}:{kvb+st+r+1}]")
    for dpp in ("quad_perm:[1,0,3,2]", "quad_perm:[2,3,0,1]", "row_half_mirror"):
        for j in range(4):
            B(f"v_add_f32_dpp v{zb+j}, v{zb+j}, v{zb+j} {dpp} row_mask:0xf bank_mask:0xf")
    B(f"""
    v_cvt_pk_bf16_f32 v{kvb}, v{kvb}, v{kvb+1}
    v_cvt_pk_bf16_f32 v{kvb+1}, v{kvb+2}, v{kvb+3}
    v_cvt_pk_bf16_f32 v{zb}, v{zb}, v{zb+1}
    v_cvt_pk_bf16_f32 v{zb+1}, v{zb+2}, v{zb+3}
    ds_write_b64 v{vFw}, v[{kvb}:{kvb+1}]
    ds_write_b64 v{vZw}, v[{zb}:{zb+1}]
    """)
    spread(["@vm kvg"] + tagged(lines(B), "fw"), 16 * 17, 16 * 17 + 7)
    barrier_lg[17] = ["fw"]
    spread([(f"ds_read_b128 v[{fr}:{fr+3}], v{vFr}", "frr"), (f"ds_read_b128 v[{fr+4}:{fr+7}], v{vFr} offset:1024", "frr"),
            (f"ds_read_b128 v[{fr+8}:{fr+11}], v{vZr}", "frr")], 16 * 17 + 10, 16 * 17 + 13)
    B = Asm()
    B(f"s_add_u32 s{sT}, s{sHD}, 112")
    B(f"s_lshl_b32 s{sT}, s{sT}, 17")
    for i in range(4):
        for et in (2, 0, 1):
            d = ob + 12 * i + 4 * et
            B(f"v_mfma_f32_16x16x32_bf16 v[{d}:{d+3}], v[{fr+4*et}:{fr+4*et+3}], v[{pqb+4*i}:{pqb+4*i+3}], 0")
    for i in range(4): B(f"v_add_f32 v{ob+12*i+8}, s{sEPS}, v{ob+12*i+8}")
    for i in range(4): B(f"v_rcp_f32 v{ob+12*i+8}, v{ob+12*i+8}")
    for i in range(4):
        d = ob + 12 * i
        for q in range(4):
            B(f"v_pk_mul_f32 v[{d+2*q}:{d+2*q+1}], v[{d+2*q}:{d+2*q+1}], v[{d+8}:{d+9}] op_sel_hi:[1,0]")
        for q in range(4):
            B(f"v_cvt_pk_bf16_f32 v{d+q}, v{d+2*q}, v{d+2*q+1}")
        B(f"buffer_store_dwordx4 v[{d}:{d+3}], v{vX}, s[{sSH}:{sSH+3}], s{sT} offen offset:{1024*i} sc1")
    spread(["@lg frr"] + tagged(lines(B), "os"), 16 * 18 + 2, 16 * 20)
    spread([f"v_pk_mov_b32 v[{r}:{r+1}], 0, 0" for r in range(ACCS, ACCS + 32, 2)], 16 * 22, 16 * 23)
    vXD, tb = 56, 152
    for k in range(4):
        i, pr = k // 2, k % 2
        extra[16 * 27 + 2 + 4 * k] = [f"s_mov_b32 s{sT+i}, {i*16*2048}", (f"buffer_load_dwordx4 v[{vXD+8*i+4*pr}:{vXD+8*i+4*pr+3}], v{vXO}, s[{sSXi}:{sSXi+3}], s{sT+i} offen offset:{64*pr}", "x")]
    B = Asm()
    for r in range(0, 32, 2): B(f"v_pk_mul_f32 v[{tb+r}:{tb+r+1}], v[{ACCF+r}:{ACCF+r+1}], s[{sNL}:{sNL+1}]")
    for r in range(32): B(f"v_exp_f32 v{tb+r}, v{tb+r}")
    for r in range(0, 32, 2): B(f"v_pk_add_f32 v[{tb+r}:{tb+r+1}], v[{tb+r}:{tb+r+1}], 1.0 op_sel_hi:[1,0]")
    for r in range(32): B(f"v_rcp_f32 v{tb+r}, v{tb+r}")
    for r in range(0, 32, 2): B(f"v_pk_mul_f32 v[{ACCF+r}:{ACCF+r+1}], v[{ACCF+r}:{ACCF+r+1}], v[{tb+r}:{tb+r+1}]")
    ls = lines(B) + ["@vm x"]
    for k in range(4):
        for q in range(4):
            ls.append(f"v_lshlrev_b32 v{tb+8*k+2*q}, 16, v{vXD+4*k+q}")
            ls.append(f"v_and_b32 v{tb+8*k+2*q+1}, 0xffff0000, v{vXD+4*k+q}")
    spread(ls, 16 * 28 + 2, 16 * 33)
    base = F_LN | F_WT | F_A
    flags = {0: (base | F_A2, ["h1"]), 10: (base | F_A2 | F_B, ["kvs", "h2", "h3"]), 21: (base | F_A2 | F_B | F_C, ["os"])}
    checks = {16 * (8 - LA2) - 7: (F_A2, MASK_R, vPollR), 16 * (16 - LA2) - 7: (F_B, MASK_R | MASK_U, vPollH),
              16 * (28 - LA2) - 7: (F_C, MASK_R, vPollR)}
    Y = OPT.get("y", 0)
    if Y & 1: checks = {k: v for k, v in checks.items() if v[0] == F_C}
    if Y & 2: flags = {k: v for k, v in flags.items() if k == 19}
    if Y & 4:
        for k in list(extra):
            if any(isinstance(x, tuple) and x[1] == "kvg" for x in extra[k]) and k != 16 * 12 + 2: del extra[k]
    if Y & 8:
        for k in list(extra):
            if any(isinstance(x, tuple) and x[1] == "x" for x in extra[k]) and k != 16 * 27 + 2: del extra[k]
    if Y & 16:
        for k in fill: fill[k] = [x for x in fill[k] if isinstance(x, tuple) or not x.startswith(("v_pk", "v_exp", "v_rcp", "v_acc", "v_cvt", "v_max"))]
    for c, (bit, mask, va) in checks.items():
        pc = c - OPT.get("pdist", 19)
        extra.setdefault(pc, []).append(f"#poll {c} {va}")
    def bread(n, F, a):
        q, j = F // 4, F % 4
        sl = n % G2_R
        return (f"ds_read_b64_tr_b16 {BR(F % 8).sub(2*a, 2)}, v{vR[sl // 4][j]} offset:{(sl % 4) * G2_SLOT + 4096*q + 2048*a}", f"b{n}_{F}")
    for F in range(LA):
        for a in range(2): put(bread(0, F, a))
    stamp(A, 5, 1); stamp(A, 1, 3); stamp(A, 5, 4)
    for n in range(36):
        accb = ACCF if n < 28 else ACCS
        for F in range(16):
            q, j = F // 4, F % 4
            c = 16 * n + F
            wv, wl = [], []
            if F % 2 == 0: wl = [f"b{n}_{F}", f"b{n}_{F+1}"]
            if j == 0: wv = [f"A{n}q{q}"]
            if F == 10 and n < 35:
                wv += [f"B{n+1}"] + (flags[n][1] if n in flags else [])
                wl += barrier_lg.get(n, [])
            waitfor(vm=wv, lg=wl)
            if F == 10 and n < 35:
                A("s_barrier")
                if n in flags: flag_set(flags[n][0])
            order = (0, 1) if (F % 2 == 0 or not OPT.get("snake")) else (1, 0)
            m = lambda i: f"v_mfma_f32_16x16x32_bf16 v[{accb+16*i+4*j}:{accb+16*i+4*j+3}], {BR(F % 8)}, {AR(n, q, i)}, v[{accb+16*i+4*j}:{accb+16*i+4*j+3}]"
            nn, nF = (n, F + LA) if F + LA < 16 else (n + 1, F + LA - 16)
            A(m(order[0]))
            if nn < 36: put(bread(nn, nF, 0))
            A(m(order[1]))
            if nn < 36: put(bread(nn, nF, 1))
            if j < 2 and n + LA2 < 36:
                for x in aop(n + LA2, 2 * q + j): put(x)
            if F in (3, 7) and n + LB - 1 < 36:
                for x in bop(n + LB - 1, 2 + F // 4): put(x)
            if F in (11, 15) and n + LB < 36:
                for x in bop(n + LB, F // 4 - 2): put(x)
            for x in extra.get(c, []): put(x)
            for x in fill.get(c, []): put(x)
            if c in checks:
                bit, mask, va = checks[c]
                A(f"s_cmp_eq_u32 s{sW}, 0"); A(f"s_cbranch_scc0 M_nc{c}")
                poll_check(bit, mask, len(vm) - pmark[c], va)
                if bit != F_C: A.label(f"M_nc{c}")
                if bit == F_C:
                    A(f"""
                    s_or_b32 s{sTm}, s2, s{sW}
                    s_cmp_eq_u32 s{sTm}, 0
                    s_cbranch_scc0 M_nobump
                    v_mov_b32 v{vT}, s{sTag}
                    s_mov_b32 s{sTm}, {EPOCH}
                    s_mov_b64 exec, 1
                    buffer_store_dword v{vT}, off, s[{sSF}:{sSF+3}], s{sTm} sc1
                    s_mov_b64 exec, -1
                    """)
                    A.label("M_nobump"); A.label(f"M_nc{c}")
        if n in (3, 7, 11, 19, 31): stamp(A, {3: 2, 7: 3, 11: 4, 19: 5, 31: 6}[n], 3)
    A("s_nop 4")
    for i in range(2):
        for pr in range(2):
            for r in range(0, 8, 2):
                t = 16 * i + 8 * pr + r
                A(f"v_pk_mul_f32 v[{ACCS+t}:{ACCS+t+1}], v[{ACCS+t}:{ACCS+t+1}], v[{ACCF+t}:{ACCF+t+1}]")
    for i in range(2):
        for pr in range(2):
            t0 = ACCS + 16 * i + 8 * pr; t1 = t0 + 4
            x = vXD + 8 * i + 4 * pr; xb = tb + 8 * (2 * i + pr)
            for r in range(4):
                A(f"v_permlane16_swap_b32 v{t0+r}, v{t1+r}")
            for q in range(4):
                A(f"v_pk_add_f32 v[{t0+2*q}:{t0+2*q+1}], v[{t0+2*q}:{t0+2*q+1}], v[{xb+2*q}:{xb+2*q+1}]")
            for q in range(4):
                A(f"v_cvt_pk_bf16_f32 v{x+q}, v{t0+2*q}, v{t0+2*q+1}")
            A(f"buffer_store_dwordx4 v[{x}:{x+3}], v{vXO}, s[{sSO}:{sSO+3}], s{sT+i} offen offset:{64*pr}")
    stamp(A, 6, 1)
    if OPT["stamp"]:
        A("s_memrealtime s[100:101]")
        A("s_waitcnt lgkmcnt(0)")
        srd(A, 16, 14, 15, 0x10000, STAMP_OFF + 0x10000)
        A(f"s_lshl_b32 s{sT}, s2, 2"); A(f"s_add_u32 s{sT}, s{sT}, s{sW}"); A(f"s_lshl_b32 s{sT}, s{sT}, 6")
        A(f"v_mov_b32 v0, s{sT}")
        for i, r in enumerate(SREG):
            A(f"v_mov_b32 v1, s{r}"); A(f"buffer_store_dword v1, v0, s[16:19], 0 offen offset:{4*i}")
        A(f"v_mov_b32 v1, s100"); A(f"buffer_store_dword v1, v0, s[16:19], 0 offen offset:56")
        A(f"v_mov_b32 v1, s99"); A(f"buffer_store_dword v1, v0, s[16:19], 0 offen offset:60")
    A.label("M_end")
    A("s_endpgm")
    return A.text()

def build():
    K = NAME + "_kernel"
    hdr = open(f"cdna_kernels/{NAME}.s.ref").read().split("; Override")[0]
    out = [hdr.rstrip("\n")]
    if OPT.get("list"):
        out.append(f"; @launch kernel={K} grid=(256,1,1) block=(256,1,1) lds={LDS_BYTES}")
    else:
        out.append(f"; @launch grid=(256,1,1) block=(256,1,1) lds={LDS_BYTES}")
    out.append('.amdgcn_target "amdgcn-amd-amdhsa--gfx950"')
    out.append(".text")
    body, size = align_kernel(gen())
    for p in check_hazards(body): print("HAZARD", p, file=sys.stderr)
    print("code bytes", size, file=sys.stderr)
    assert size < 65536
    out.append(body.rstrip("\n"))
    out.append(".p2align 8")
    out.append(f".fill {(66560 - size) // 4}, 4, 0xbf810000")
    out.append(f""".section .rodata,"a"
.p2align 6
.amdhsa_kernel {K}
  .amdhsa_next_free_vgpr 512
  .amdhsa_next_free_sgpr 102
  .amdhsa_accum_offset 256
  .amdhsa_group_segment_fixed_size 0
  .amdhsa_kernarg_size 80
  .amdhsa_user_sgpr_count 2
  .amdhsa_user_sgpr_kernarg_segment_ptr 1
  .amdhsa_system_sgpr_workgroup_id_x 1
.end_amdhsa_kernel""")
    return "\n".join(out) + "\n"

if __name__ == "__main__":
    for a in sys.argv[2:]:
        k, v = a.split("="); OPT[k] = int(v)
    WS_BASE = OPT.get('wsb', 0) << 20
    LSTR = OPT.get('lstr', LSTR); FLG_SIZE = 33 * LSTR; EPOCH = 32 * LSTR
    XF_OFF += WS_BASE; HF_OFF += WS_BASE; KVP_OFF += WS_BASE; WT_OFF += WS_BASE; FLG_OFF += WS_BASE
    open(sys.argv[1], "w").write(build())
```

```python
import sys, struct, re
from asmlib import *

NAME = "recurrent_scan__linear_attn_block__swiglu_ffn__prompt"
XF_OFF = 0x0
HF_OFF = 0x400000
HF_SIZE = 144 * 131072
KVP_OFF = 0x1600000
KVP_SIZE = 32 * 8 * 6144
WT_OFF = 0x1C00000
WT_SIZE = 144 * 65536
FLG_OFF = 0x2800000
LSTR = 128
FLG_SIZE = 33 * LSTR
EPOCH = 32 * LSTR
STAMP_OFF = 0x3000000
EX_OFF = 0x3400000
EX_SIZE = 256 * 32768

def f2u(x): return struct.unpack("<I", struct.pack("<f", x))[0]
LOG2E = 1.4426950408889634
OPT = dict(stamp=0, align=1, snake=1, unpk=1, e0n=48)

G1_S, G1_SLOT = 5, 20480
KVL = G1_S * G1_SLOT
G2_R, G2_SLOT = 6, 16384
FIN = 131072
LDS_BYTES = FIN + 4096
F_LN, F_WT, F_A, F_A2, F_E, F_B, F_C = 1, 2, 4, 8, 16, 32, 64

def srd(A, d, lo, hi, size, off=0):
    if off:
        A(f"s_add_u32 s{d}, s{lo}, 0x{off:x}")
        A(f"s_addc_u32 s{d+1}, s{hi}, 0")
    else:
        A(f"s_mov_b32 s{d}, s{lo}")
        A(f"s_mov_b32 s{d+1}, s{hi}")
    A(f"s_mov_b32 s{d+2}, 0x{size:x}")
    A(f"s_mov_b32 s{d+3}, 0x00020000")

SREG = [6, 7, 86, 87, 96, 97, 98]
def stamp(A, idx, mode):
    if OPT["stamp"] != mode: return
    A("s_memrealtime s[100:101]" if OPT.get("rt") else "s_memtime s[100:101]")
    A("s_waitcnt lgkmcnt(0)")
    A(f"s_mov_b32 s{SREG[idx]}, s100")

def interleave(A, groups, work):
    per = -(-len(work) // len(groups)); wi = 0
    for grp in groups:
        for l in grp: A(l)
        for l in work[wi:wi + per]: A(l)
        wi += per
    for l in work[wi:]: A(l)

def lines(B): return [l.strip() for l in B.lines]

def gen():
    A = Asm()
    K = NAME + "_kernel"
    A.raw(f".globl {K}\n.p2align 8\n.type {K},@function\n{K}:")
    if OPT["align"]: A.raw("    ; @align on")
    vX, vD, vA0, vA1, vAG, vB0, vB1, vBG, vL16 = 1, [2, 3, 4, 5, 6], 7, 8, 9, 10, 11, 12, 13
    vT = 14
    vPollR, vPv, vCd, vPollW, vPollH, vCs, vDum = 17, 18, 16, 20, 21, 22, 23
    vTq, vTg = 20, 21
    names = ["g0", "u0", "g1", "u1", "k0", "k1", "v0", "v1", "q0", "q1"]
    for t in range(2, 7): names += [f"g{t}", f"u{t}"]
    acc = {}
    nv = 24; na = 0
    for nm in ["k0", "k1", "v0", "v1"] + [f"g{t}" for t in range(7)]:
        for i in range(4):
            acc[(nm, i)] = Reg('v', nv); nv += 4
    for t in range(7):
        for i in range(4):
            if t * 4 + i < 14:
                acc[(f"u{t}", i)] = Reg('v', nv); nv += 4
            else:
                acc[(f"u{t}", i)] = Reg('a', na); na += 4
    for nm in ["q0", "q1"]:
        for i in range(4):
            acc[(nm, i)] = Reg('a', na); na += 4
    assert nv == 256 and na == 88
    XR = lambda s, i: Reg('a', 88 + 16 * s + 4 * i)
    WR = lambda p: Reg('a', 152 + 4 * p)
    accm = acc
    if OPT.get("classic"):
        accm = {}; k = 0
        for nm in names:
            for i in range(4):
                accm[(nm, i)] = Reg('a', 4 * k) if k < 52 else Reg('v', 24 + 4 * (k - 52)); k += 1
        XR = lambda s, i: Reg('v', 136 + 16 * s + 4 * i)
        WR = lambda p: Reg('v', 200 + 4 * p)
    PT = lambda t: Reg('a', 88 + 4 * t)
    CT = lambda k: Reg('a', 208 + 4 * k)
    sSX, sSD = 16, [20, 24, 28, 32, 36]
    sSCs, sSCd, sSF = 40, 72, 92
    sST = [76, 80, 44]
    sW, sHD, sRB, sXo, sWoA, sWoB, sStA, sStB, sM, sR, sCnt = 48, 49, 50, 51, 52, 53, 54, 55, 56, 57, 58
    sSLOT, sREND, sMEND, sM0, sCl, sCs = 59, 60, 61, 62, 63, 3
    sToq, sTog, sFo, sSpin, sTag, sTm = 88, 89, 90, 91, 12, 13
    sT = 64
    uid = [0]
    def flag_set(val):
        uid[0] += 1; L = f"M_fs{uid[0]}"
        A(f"""
        s_cmp_eq_u32 s{sW}, 0
        s_cbranch_scc0 {L}
        v_mov_b32 v{vT}, s{sTag}
        v_mov_b32 v{vT+1}, {val}
        s_mov_b64 exec, 1
        buffer_store_dwordx2 v[{vT}:{vT+1}], off, s[{sSF}:{sSF+3}], s{sFo} sc1
        s_mov_b64 exec, -1
        """)
        A.label(L)
    def poll_issue(vaddr):
        return f"buffer_load_dwordx2 v[{vPv}:{vPv+1}], v{vaddr}, s[{sSF}:{sSF+3}], 0 offen sc1"
    MASK_R, MASK_U = 0x00000000ffffffff, 0xffffffff00000000
    def poll_eval(E, bit):
        E(f"""
        v_xor_b32 v{vT}, s{sTag}, v{vPv}
        v_bfe_u32 v{vT+1}, v{vPv+1}, {bit.bit_length()-1}, 1
        v_xor_b32 v{vT+1}, 1, v{vT+1}
        v_or_b32 v{vT}, v{vT}, v{vT+1}
        v_cmp_ne_u32 vcc, 0, v{vT}
        s_nop 3
        """)
    def repoll(L, va=None, slp=None):
        if slp is None: slp = OPT.get('sleep', 8)
        A(f"""
        s_add_u32 s{sSpin}, s{sSpin}, 1
        s_cmp_ge_u32 s{sSpin}, 0x40000
        s_cbranch_scc1 {L}_ok
        s_sleep {slp}
        {poll_issue(vPollR if va is None else va)}
        s_waitcnt vmcnt(0)
        s_branch {L}
        """)
    def poll_check(bit, mask, vm=None, va=None, slp=None):
        uid[0] += 1; L = f"M_pc{uid[0]}"
        if vm is not None: A(f"s_waitcnt vmcnt({vm})")
        A(f"s_mov_b32 s{sSpin}, 0")
        A.label(L)
        poll_eval(A, bit)
        lo, hi = mask & 0xffffffff, mask >> 32
        if hi == 0:
            A(f"s_cmp_eq_u32 vcc_lo, 0")
        elif lo == 0:
            A(f"s_and_b32 s{sTm}, vcc_hi, 0x{hi:x}"); A(f"s_cmp_eq_u32 s{sTm}, 0")
        else:
            A(f"s_and_b32 s{sTm}, vcc_hi, 0x{hi:x}"); A(f"s_or_b32 s{sTm}, s{sTm}, vcc_lo"); A(f"s_cmp_eq_u32 s{sTm}, 0")
        A(f"s_cbranch_scc1 {L}_ok")
        repoll(L, va, slp)
        A.label(L + "_ok")
    def cond_poll(cmp, va):
        uid[0] += 1; L = f"M_cp{uid[0]}"
        return cmp + [f"s_cbranch_scc0 {L}", poll_issue(va), L + ":"]
    def emit(ls):
        for l in ls:
            if l.endswith(":"): A.label(l[:-1])
            else: A(l)
    def lack_mask(E):
        poll_eval(E, F_A)
        E(f"""
        s_lshr_b32 s{sTm}, vcc_lo, 16
        s_or_b32 s{sLack}, s{sTm}, vcc_lo
        s_lshr_b32 s{sTm}, s{sLack}, 8
        s_or_b32 s{sLack}, s{sLack}, s{sTm}
        s_and_b32 s{sLack}, s{sLack}, 0xff
        """)
    def stage_gate(ssig):
        uid[0] += 1; L = f"M_sg{uid[0]}"
        A(f"s_bitcmp0_b32 s{sLack}, s{ssig}")
        A(f"s_cbranch_scc1 {L}_ok")
        A(f"s_mov_b32 s{sSpin}, 0")
        A(poll_issue(vPollR)); A("s_waitcnt vmcnt(0)")
        A.label(L)
        lack_mask(A)
        A(f"s_bitcmp0_b32 s{sLack}, s{ssig}")
        A(f"s_cbranch_scc1 {L}_ok")
        repoll(L)
        A.label(L + "_ok")
    A(f"""
    s_cmp_ge_u32 s2, 256
    s_cbranch_scc1 M_end
    """)
    if OPT.get("scramble"):
        A("s_and_b32 s3, s2, 7"); A("s_lshl_b32 s3, s3, 3"); A("s_bfe_u32 s4, s2, 0x30003"); A("s_and_b32 s2, s2, 0xc0")
        A("s_or_b32 s2, s2, s3"); A("s_or_b32 s2, s2, s4")
    if OPT["stamp"]:
        A("s_memrealtime s[100:101]"); A("s_waitcnt lgkmcnt(0)"); A("s_mov_b32 s99, s100")
        A("s_memrealtime s[100:101]" if OPT.get("rt") else "s_memtime s[100:101]"); A("s_waitcnt lgkmcnt(0)"); A(f"s_mov_b32 s{SREG[0]}, s100")
    A(f"""
    s_load_dwordx4 s[68:71], s[0:1], 0
    s_load_dwordx4 s[8:11], s[0:1], 32
    s_load_dwordx4 s[12:15], s[0:1], 64
    s_load_dwordx2 s[84:85], s[0:1], 16
    s_load_dwordx2 s[{sSCs}:{sSCs+1}], s[0:1], 48
    s_getpc_b64 s[{sT+2}:{sT+3}]
    s_and_b32 s{sT+2}, s{sT+2}, 0xffffff00
    s_bfe_u32 s{sT}, s2, 0x30003
    s_lshl_b32 s{sT}, s{sT}, 12
    v_lshrrev_b32 v{vT}, 3, v0
    v_lshlrev_b32 v{vT}, 7, v{vT}
    v_add_u32 v{vT}, s{sT}, v{vT}
    global_load_dword v{vDum}, v{vT}, s[{sT+2}:{sT+3}]
    v_lshrrev_b32 v{vT}, 6, v0
    v_and_b32 v0, 63, v0
    v_readfirstlane_b32 s{sW}, v{vT}
    s_and_b32 s{sT}, s2, 7
    s_lshr_b32 s{sT+1}, s2, 3
    s_and_b32 s{sRB}, s{sT+1}, 7
    s_lshr_b32 s{sT+1}, s{sT+1}, 3
    s_lshl_b32 s{sHD}, s{sT}, 2
    s_add_u32 s{sHD}, s{sHD}, s{sT+1}
    v_lshlrev_b32 v{vL16}, 4, v0
    s_lshl_b32 s{sFo}, s{sRB}, 5
    s_add_u32 s{sFo}, s{sFo}, s{sHD}
    """)
    lX, lF, lS, lR, lA = 32, 48, 80, 88, 112
    A(f"""
    v_and_b32 v{lA}, 7, v0
    v_lshrrev_b32 v{lA+1}, 3, v0
    v_lshlrev_b32 v{lA+2}, 11, v{lA}
    v_lshl_add_u32 v{lA+2}, v{lA+1}, 4, v{lA+2}
    s_lshl_b32 s{sT}, s{sFo}, 14
    s_lshl_b32 s{sT+1}, s{sW}, 9
    s_add_u32 s{sT}, s{sT}, s{sT+1}
    v_add_u32 v{lA+2}, s{sT}, v{lA+2}
    s_waitcnt lgkmcnt(0)
    """)
    srd(A, sSX, 68, 69, 0x400000)
    for n in range(4):
        A(f"buffer_load_dwordx4 v[{lX+4*n}:{lX+4*n+3}], v{lA+2}, s[{sSX}:{sSX+3}], 0 offen offset:{128*n}")
    A(f"v_and_b32 v{lA+6}, 0xfffff800, v{lA+2}")
    A(f"buffer_load_ushort v{lA+7}, v{lA+6}, s[{sSX}:{sSX+3}], 0 offen")
    A("s_mov_b32 s4, s70"); A("s_mov_b32 s5, s71")
    srd(A, sSF, 14, 15, FLG_SIZE, FLG_OFF)
    A(f"s_mov_b32 s{sT}, {EPOCH}")
    A(f"buffer_load_dword v{vPv}, off, s[{sSF}:{sSF+3}], s{sT} sc1")
    A(f"""
    s_lshr_b32 s{sT}, s2, 3
    s_lshl_b32 s{sT}, s{sT}, 2
    s_add_u32 s{sT}, s{sT}, s{sW}
    s_lshl_b32 s{sT}, s{sT}, 1
    s_and_b32 s{sT+1}, s2, 7
    s_mul_i32 s{sT+2}, s{sT}, 7168
    s_mul_i32 s{sT+3}, s{sT+1}, 896
    s_add_u32 s{sT+2}, s{sT+2}, s{sT+3}
    s_mul_i32 s{sT+3}, s{sT}, 6144
    s_lshl_b32 s{sT+1}, s{sT+1}, 8
    s_add_u32 s{sT+3}, s{sT+3}, s{sT+1}
    v_cmp_le_u32 vcc, 7, v0
    v_lshlrev_b32 v{vTg}, 7, v0
    v_mov_b32 v{vT}, {7168-7*128}
    v_cndmask_b32 v{vT}, 0, v{vT}, vcc
    v_add3_u32 v{vTg}, v{vTg}, v{vT}, s{sT+2}
    v_cmp_le_u32 vcc, 14, v0
    v_mov_b32 v{vT}, 0x70000000
    v_lshrrev_b32 v{vT+1}, 1, v0
    v_cndmask_b32 v{vTg}, v{vTg}, v{vT}, vcc
    v_and_b32 v{vTq}, 1, v0
    v_lshlrev_b32 v{vTq}, 7, v{vTq}
    v_lshl_add_u32 v{vTq}, v{vT+1}, 11, v{vTq}
    v_cmp_le_u32 vcc, 12, v0
    v_add_u32 v{vTq}, s{sT+3}, v{vTq}
    s_mov_b32 s{sToq}, 0
    v_cndmask_b32 v{vTq}, v{vTq}, v{vT}, vcc
    s_mov_b32 s{sTog}, 0
    """)
    srd(A, sST[0], 4, 5, 1024 * 6144)
    srd(A, sST[1], 8, 9, 1024 * 7168)
    srd(A, sST[2], 10, 11, 1024 * 7168)
    def touch(s):
        v = [vTq, vTg, vTg][s]; so = [sToq, sTog, sTog][s]
        return f"buffer_load_dword v{vDum}, v{v}, s[{sST[s]}:{sST[s]+3}], s{so} offen"
    TROW = 1
    TS = OPT.get("ts", 1)
    onerow = f"""
        s_lshr_b32 s{sTm}, s2, 3
        s_lshl_b32 s{sTm}, s{sTm}, 2
        s_add_u32 s{sTm}, s{sTm}, s{sW}
        s_sub_u32 s{sTm}, ROW0, s{sTm}
        s_mul_i32 s{sToq}, s{sTm}, 6144
        s_mul_i32 s{sTog}, s{sTm}, 7168
        v_mov_b32 v{vT}, 0x70000000
        v_cmp_le_u32 vcc, 7, v0
        s_nop 1
        v_cndmask_b32 v{vTg}, v{vTg}, v{vT}, vcc
        v_cmp_le_u32 vcc, 6, v0
        s_nop 1
        v_cndmask_b32 v{vTq}, v{vTq}, v{vT}, vcc
        """
    tadv = [f"s_add_u32 s{sToq}, s{sToq}, {128*6144}", f"s_add_u32 s{sTog}, s{sTog}, {128*7168}"]
    A(onerow.replace("ROW0", "0"))
    A(f"v_add_u32 v{vTq}, s{sToq}, v{vTq}"); A(f"v_add_u32 v{vTg}, s{sTog}, v{vTg}")
    A(f"s_mov_b32 s{sToq}, 0"); A(f"s_mov_b32 s{sTog}, 0")
    if TS == 3:
        for k in range(3): A(touch(k))
        for l in tadv: A(l)
    NY = 2 + (3 if TS == 3 else 0)
    stamp(A, 1, 2)
    A(f"""
    v_lshrrev_b32 v{lA+8}, 4, v0
    v_bfe_u32 v{lA+9}, v0, 2, 2
    v_lshl_add_u32 v{lA+10}, v{lA+8}, 3, v{lA+9}
    v_mul_u32_u24 v{lA+10}, 6144, v{lA+10}
    v_bfe_u32 v{lA+11}, v0, 1, 1
    v_and_b32 v{lA+12}, 1, v{lA+8}
    v_xor_b32 v{lA+11}, v{lA+11}, v{lA+12}
    v_lshl_add_u32 v{lA+10}, v{lA+11}, 5, v{lA+10}
    v_and_b32 v{lA+11}, 1, v0
    v_lshl_add_u32 v{lA+10}, v{lA+11}, 4, v{lA+10}
    s_mul_i32 s{sT+2}, s{sW}, 5
    s_and_b32 s{sT+3}, s{sHD}, 1
    s_lshl_b32 s{sT+3}, s{sT+3}, 1
    s_mul_i32 s{sT+4}, s{sHD}, 224
    """)
    t3, t4, t5, t6, t7 = lA + 11, lA + 12, lA + 13, lA + 14, lA + 15
    for i in range(5):
        d = sSD[i]
        A(f"""
        s_add_u32 s{sT+5}, s{sT+2}, {i}
        s_cmp_lt_u32 s{sT+5}, 6
        s_cbranch_scc0 M_gu{i}
        s_lshr_b32 s{sT+6}, s{sT+5}, 1
        s_lshl_b32 s{sT+6}, s{sT+6}, 11
        s_and_b32 s{sT+7}, s{sT+5}, 1
        s_mul_i32 s{sT+7}, s{sT+7}, 24576
        s_add_u32 s{sT+6}, s{sT+6}, s{sT+7}
        s_lshl_b32 s{sT+7}, s{sHD}, 6
        s_add_u32 s{sT+6}, s{sT+6}, s{sT+7}
        v_add_u32 v{vD[i]}, s{sT+6}, v{lA+10}
        s_mov_b32 s{d}, s4
        s_mov_b32 s{d+1}, s5
        s_mov_b32 s{d+2}, {1024*6144}
        s_mov_b32 s{sStA if i == 0 else sStB}, {32*6144}
        s_branch M_dn{i}
        """)
        A.label(f"M_gu{i}")
        A(f"""
        s_sub_u32 s{sT+6}, s{sT+5}, 6
        s_sub_u32 s{sT+7}, s{sT+5}, 13
        s_cmp_lt_u32 s{sT+5}, 13
        s_cselect_b32 s{sT+6}, s{sT+6}, s{sT+7}
        s_cselect_b32 s{d}, s8, s10
        s_cselect_b32 s{d+1}, s9, s11
        s_mov_b32 s{d+2}, {1024*7168}
        s_mov_b32 s{sStA if i == 0 else sStB}, {32*7168}
        s_lshl_b32 s{sT+6}, s{sT+6}, 6
        v_add_u32 v{t3}, s{sT+6}, v0
        v_mul_u32_u24 v{t4}, 4682, v{t3}
        v_lshrrev_b32 v{t4}, 16, v{t4}
        v_mul_u32_u24 v{t5}, 14, v{t4}
        v_sub_u32 v{t5}, v{t3}, v{t5}
        v_add_u32 v{t5}, s{sT+3}, v{t5}
        v_subrev_u32 v{t6}, 14, v{t5}
        v_min_u32 v{t5}, v{t5}, v{t6}
        v_bfe_u32 v{t6}, v{t4}, 2, 2
        v_lshrrev_b32 v{t7}, 4, v{t4}
        v_and_b32 v{t4}, 3, v{t4}
        v_lshl_add_u32 v{t4}, v{t6}, 3, v{t4}
        v_lshl_add_u32 v{t4}, v{t7}, 2, v{t4}
        v_mul_u32_u24 v{t4}, 7168, v{t4}
        v_lshl_add_u32 v{t4}, v{t5}, 4, v{t4}
        v_add_u32 v{vD[i]}, s{sT+4}, v{t4}
        """)
        A.label(f"M_dn{i}")
        A(f"s_mov_b32 s{d+3}, 0x00020000")
    A(f"""
    s_lshr_b32 s{sT}, s{sFo}, 1
    s_lshl_b32 s{sT}, s{sT}, 10
    s_and_b32 s{sT+1}, s{sFo}, 1
    s_lshl_b32 s{sT+1}, s{sT+1}, 7
    s_add_u32 s{sT}, s{sT}, s{sT+1}
    s_lshl_b32 s{sT+1}, s{sW}, 20
    s_add_u32 s{sT}, s{sT}, s{sT+1}
    v_lshrrev_b32 v{lA+3}, 2, v{lA+1}
    v_lshlrev_b32 v{lA+3}, 17, v{lA+3}
    v_and_b32 v{lA+4}, 3, v{lA+1}
    v_lshl_add_u32 v{lA+3}, v{lA+4}, 8, v{lA+3}
    v_lshl_add_u32 v{lA+3}, v{lA}, 4, v{lA+3}
    v_add_u32 v{lA+3}, s{sT}, v{lA+3}
    v_lshlrev_b32 v{lA+5}, 6, v{lA}
    v_add_u32 v{lA+5}, {KVL}, v{lA+5}
    s_lshl_b32 s{sT}, s{sW}, 4
    v_lshl_add_u32 v{lA+4}, v{lA+8}, 2, v{lA+5}
    v_add_u32 v{lA+4}, s{sT}, v{lA+4}
    """)
    srd(A, sSX, 14, 15, 0x400000, XF_OFF)
    A(f"s_lshr_b32 s{sFo}, s2, 3"); A(f"s_mul_i32 s{sFo}, s{sFo}, {LSTR}"); A(f"s_and_b32 s{sT}, s2, 7"); A(f"s_lshl_b32 s{sT}, s{sT}, 4"); A(f"s_add_u32 s{sFo}, s{sFo}, s{sT}")
    def dma(i):
        return [f"s_add_u32 m0, s{sM}, 0x{1024*(i+1):x}",
                f"buffer_load_dwordx4 v{vD[i]}, s[{sSD[i]}:{sSD[i]+3}], s{sWoA if i == 0 else sWoB} offen lds"]
    def xload(s, i):
        return f"buffer_load_dwordx4 {XR(s, i)}, v{vX}, s[{sSX}:{sSX+3}], s{sXo} offen offset:{1024*i} sc1"
    wadv = [f"s_add_u32 s{sM}, s{sM}, s{sSLOT}", f"s_add_u32 s{sWoA}, s{sWoA}, s{sStA}", f"s_add_u32 s{sWoB}, s{sWoB}, s{sStB}"]
    def wgroups(adv):
        L = []
        for i in range(5):
            m, l = dma(i)
            L.append((wadv if (i == 0 and adv) else []) + [m, "s_nop 0", l])
        return L
    def xgroups(t):
        return [[xload(t, i)] + ([f"s_add_u32 s{sXo}, s{sXo}, 0x20000"] if i == 3 else []) for i in range(4)]
    A(f"""
    s_mov_b32 s{sXo}, 0
    s_mul_i32 s{sM0}, s{sW}, 5120
    s_sub_u32 s{sM0}, s{sM0}, 1024
    s_mov_b32 s{sM}, s{sM0}
    s_mov_b32 s{sWoA}, 0
    s_mov_b32 s{sWoB}, 0
    s_mov_b32 s{sSLOT}, {G1_SLOT}
    """)
    B = Asm()
    B(f"""
    s_lshl_b32 s{sT}, s{sRB}, 14
    s_lshl_b32 s{sT+1}, s{sW}, 12
    s_add_u32 s{sT}, s{sT}, s{sT+1}
    v_add_u32 v{vX}, s{sT}, v{vL16}
    s_lshl_b32 s{sT}, s{sRB}, 3
    v_and_b32 v{vPollR}, 7, v0
    v_bfe_u32 v{t3}, v0, 3, 2
    v_lshl_add_u32 v{vPollR}, v{t3}, 6, v{vPollR}
    v_add_u32 v{vPollR}, s{sT}, v{vPollR}
    v_and_b32 v{vT}, 7, v{vPollR}
    v_lshrrev_b32 v{vPollR}, 3, v{vPollR}
    v_mul_u32_u24 v{vPollR}, {LSTR}, v{vPollR}
    v_lshl_add_u32 v{vPollR}, v{vT}, 4, v{vPollR}
    v_lshrrev_b32 v{t3}, 2, v0
    v_and_b32 v{t4}, 3, v0
    v_lshlrev_b32 v{t4}, 3, v{t4}
    v_lshl_add_u32 v{vB0}, v{t3}, 6, v{t4}
    v_and_b32 v{t5}, 1, v{lA+8}
    v_lshl_add_u32 v{vB0}, v{t5}, 5, v{vB0}
    v_xor_b32 v{vB1}, 32, v{vB0}
    v_mul_u32_u24 v{vBG}, 224, v{t3}
    v_add_u32 v{vBG}, v{vBG}, v{t4}
    v_mov_b32 v{vA0}, v{vB0}
    v_mov_b32 v{vA1}, v{vB1}
    v_mov_b32 v{vAG}, v{vBG}
    s_mov_b32 s{sR}, 0
    s_mov_b32 s{sCnt}, 0
    s_mov_b32 s{sREND}, {G1_S*G1_SLOT}
    s_add_u32 s{sMEND}, s{sM0}, s{sREND}
    """)
    B(f"""
    s_lshl_b32 s{sT}, s2, 2
    s_add_u32 s{sT}, s{sT}, s{sW}
    s_lshl_b32 s{sT}, s{sT}, 10
    v_add_u32 v{vCd}, s{sT}, v{vL16}
    v_lshrrev_b32 v{t3}, 3, v0
    v_bfe_u32 v{t4}, v0, 1, 2
    v_bfe_u32 v{t5}, v0, 4, 2
    v_xor_b32 v{t4}, v{t4}, v{t5}
    v_lshlrev_b32 v{t3}, 11, v{t3}
    v_lshl_add_u32 v{t3}, v{t4}, 5, v{t3}
    v_and_b32 v{t4}, 1, v0
    v_lshl_add_u32 v{t3}, v{t4}, 4, v{t3}
    s_lshl_b32 s{sT}, s{sW}, 14
    s_and_b32 s{sT+1}, s2, 15
    s_lshl_b32 s{sT+1}, s{sT+1}, 7
    s_add_u32 s{sT}, s{sT}, s{sT+1}
    v_add_u32 v{vCs}, s{sT}, v{t3}
    s_lshr_b32 s{sT+1}, s2, 4
    s_mul_i32 s{sT}, s{sT+1}, 7
    s_add_u32 s{sCl}, s{sT}, 1
    s_lshr_b32 s{sCl}, s{sCl}, 1
    s_lshl_b32 s{sCl}, s{sCl}, 16
    s_add_u32 s{sT}, s{sT}, 3
    s_lshl_b32 s{sT}, s{sT}, 16
    s_lshl_b32 s{sT+1}, s{sT+1}, 16
    s_add_u32 s{sT+2}, s{sT+1}, 0x100000
    s_mov_b32 s{sCs}, 0x{(-2 << 20) & 0xffffffff:x}
    s_mov_b32 s{sSCs+2}, {3584*2048}
    s_mov_b32 s{sSCs+3}, 0x00020000
    """)
    sT6, sT7, sT8 = sT, sT + 1, sT + 2
    for l in lines(B): A(l)
    lW, lRd, lSt = lA + 4, lA + 5, lA + 3
    for n in range(4):
        A(f"s_waitcnt vmcnt({3-n+NY})")
        for q in range(4):
            s = lX + 4 * n + q; d = lF + 8 * n + 2 * q
            A(f"v_lshlrev_b32 v{d}, 16, v{s}")
            A(f"v_and_b32 v{d+1}, 0xffff0000, v{s}")
    stamp(A, 2, 2)
    A(f"s_waitcnt vmcnt({NY - 1})")
    if TS in (1, 3, 4):
        for k in range(3): A(touch(k))
        for l in tadv: A(l)
    lM, lMb, lT, lQ = lS + 4, lS + 6, 104, 108
    A(f"""
    v_lshlrev_b32 v{lA+7}, 16, v{lA+7}
    v_sub_f32 v{lM}, 0, v{lA+7}
    v_mov_b32 v{lM+1}, v{lM}
    """)
    for q in range(0, 16, 2):
        d0 = (lS, lS + 2) if q == 0 else (lT, lT + 2)
        A(f"v_pk_add_f32 v[{d0[0]}:{d0[0]+1}], v[{lF+2*q}:{lF+2*q+1}], v[{lM}:{lM+1}]")
        A(f"v_pk_add_f32 v[{d0[1]}:{d0[1]+1}], v[{lF+2*q+2}:{lF+2*q+3}], v[{lM}:{lM+1}]")
        if q == 0:
            A(f"v_pk_mul_f32 v[{lQ}:{lQ+1}], v[{lS}:{lS+1}], v[{lS}:{lS+1}]")
            A(f"v_pk_mul_f32 v[{lQ+2}:{lQ+3}], v[{lS+2}:{lS+3}], v[{lS+2}:{lS+3}]")
        else:
            A(f"v_pk_fma_f32 v[{lQ}:{lQ+1}], v[{lT}:{lT+1}], v[{lT}:{lT+1}], v[{lQ}:{lQ+1}]")
            A(f"v_pk_fma_f32 v[{lQ+2}:{lQ+3}], v[{lT+2}:{lT+3}], v[{lT+2}:{lT+3}], v[{lQ+2}:{lQ+3}]")
            A(f"v_pk_add_f32 v[{lS}:{lS+1}], v[{lS}:{lS+1}], v[{lT}:{lT+1}]")
            A(f"v_pk_add_f32 v[{lS+2}:{lS+3}], v[{lS+2}:{lS+3}], v[{lT+2}:{lT+3}]")
    r = lR; r2 = 128
    A(f"""
    v_pk_add_f32 v[{lS}:{lS+1}], v[{lS}:{lS+1}], v[{lS+2}:{lS+3}]
    v_pk_add_f32 v[{lQ}:{lQ+1}], v[{lQ}:{lQ+1}], v[{lQ+2}:{lQ+3}]
    v_add_f32 v{lS}, v{lS}, v{lS+1}
    v_add_f32 v{lQ}, v{lQ}, v{lQ+1}
    s_nop 0
    v_add_f32_dpp v{lS}, v{lS}, v{lS} row_ror:8 row_mask:0xf bank_mask:0xf
    v_add_f32_dpp v{lQ}, v{lQ}, v{lQ} row_ror:8 row_mask:0xf bank_mask:0xf
    ds_write_b32 v{lW}, v{lS}
    ds_write_b32 v{lW}, v{lQ} offset:512
    s_waitcnt lgkmcnt(0)
    s_barrier
    """)
    for k in range(4): A(f"ds_read_b128 v[{r+4*k}:{r+4*k+3}], v{lRd} offset:{16*k}")
    for k in range(4): A(f"ds_read_b128 v[{r2+4*k}:{r2+4*k+3}], v{lRd} offset:{512+16*k}")
    for wait, rr in ((4, r), (0, r2)):
        A(f"s_waitcnt lgkmcnt({wait})")
        A(f"""
        v_pk_add_f32 v[{rr}:{rr+1}], v[{rr}:{rr+1}], v[{rr+2}:{rr+3}]
        v_pk_add_f32 v[{rr+4}:{rr+5}], v[{rr+4}:{rr+5}], v[{rr+6}:{rr+7}]
        v_pk_add_f32 v[{rr+8}:{rr+9}], v[{rr+8}:{rr+9}], v[{rr+10}:{rr+11}]
        v_pk_add_f32 v[{rr+12}:{rr+13}], v[{rr+12}:{rr+13}], v[{rr+14}:{rr+15}]
        v_pk_add_f32 v[{rr}:{rr+1}], v[{rr}:{rr+1}], v[{rr+4}:{rr+5}]
        v_pk_add_f32 v[{rr+8}:{rr+9}], v[{rr+8}:{rr+9}], v[{rr+12}:{rr+13}]
        v_pk_add_f32 v[{rr}:{rr+1}], v[{rr}:{rr+1}], v[{rr+8}:{rr+9}]
        v_add_f32 v{rr}, v{rr}, v{rr+1}
        v_mul_f32 v{rr}, 0x{f2u(1.0/1024):x}, v{rr}
        """)
    A(f"""
    v_add_f32 v{lMb}, v{lA+7}, v{lR}
    v_fma_f32 v{lR}, -v{lR}, v{lR}, v{r2}
    v_cvt_pk_bf16_f32 v{lMb}, v{lMb}, v{lMb}
    v_max_f32 v{lR}, 0, v{lR}
    v_lshlrev_b32 v{lMb}, 16, v{lMb}
    """)
    A(f"""
    v_cvt_pk_bf16_f32 v{lR}, v{lR}, v{lR}
    v_lshlrev_b32 v{lR}, 16, v{lR}
    v_add_f32 v{lR}, 0x{f2u(1e-5):x}, v{lR}
    v_cvt_pk_bf16_f32 v{lR}, v{lR}, v{lR}
    v_lshlrev_b32 v{lR}, 16, v{lR}
    v_sqrt_f32 v{lR}, v{lR}
    s_nop 0
    v_cvt_pk_bf16_f32 v{lR}, v{lR}, v{lR}
    v_lshlrev_b32 v{lR}, 16, v{lR}
    v_rcp_f32 v{lR}, v{lR}
    v_sub_f32 v{lM}, 0, v{lMb}
    v_mov_b32 v{lM+1}, v{lM}
    v_mov_b32 v{lR+1}, v{lR}
    s_mov_b32 s{sT+3}, 0
    """)
    for n in range(4):
        for q in range(4):
            d = lF + 8 * n + 2 * q; o = lX + 4 * n + q
            A(f"v_pk_add_f32 v[{d}:{d+1}], v[{d}:{d+1}], v[{lM}:{lM+1}]")
        for q in range(4):
            d = lF + 8 * n + 2 * q; o = lX + 4 * n + q
            A(f"v_cvt_pk_bf16_f32 v{o}, v{d}, v{d+1}")
        for q in range(4):
            d = lF + 8 * n + 2 * q; o = lX + 4 * n + q
            A(f"v_lshlrev_b32 v{d}, 16, v{o}")
            A(f"v_and_b32 v{d+1}, 0xffff0000, v{o}")
        for q in range(4):
            d = lF + 8 * n + 2 * q
            A(f"v_pk_mul_f32 v[{d}:{d+1}], v[{d}:{d+1}], v[{lR}:{lR+1}]")
        for q in range(4):
            d = lF + 8 * n + 2 * q; o = lX + 4 * n + q
            A(f"v_cvt_pk_bf16_f32 v{o}, v{d}, v{d+1}")
        A(f"buffer_store_dwordx4 v[{lX+4*n}:{lX+4*n+3}], v{lSt}, s[{sSX}:{sSX+3}], s{sT+3} offen sc1")
        A(f"s_add_u32 s{sT+3}, s{sT+3}, 0x40000")
    stamp(A, 3, 2)
    srd(A, sSCd, 14, 15, WT_SIZE, WT_OFF)
    B = Asm()
    for r in list(range(88)) + list(range(208, 216)):
        B(f"v_accvgpr_write_b32 a{r}, 0")
    for r in range(24, 256, 2):
        B(f"v_pk_mov_b32 v[{r}:{r+1}], 0, 0")
    interleave(A, wgroups(False), lines(B))
    A("s_waitcnt vmcnt(5)")
    A(f"v_readfirstlane_b32 s{sTag}, v{vPv}")
    A("s_barrier")
    A(f"s_mul_i32 s{sTag}, s{sTag}, 0x9e3779b1")
    A(f"s_add_u32 s{sTag}, s{sTag}, 0x7f4a7c15")
    flag_set(F_LN)
    stamp(A, 4, 2)
    if TS == 1:
        for k in range(3): A(touch(k))
        for l in tadv: A(l)
    for g in wgroups(True) + wgroups(True): emit(g)
    A(f"s_cmp_eq_u32 s{sW}, 0"); A("s_cbranch_scc0 M_lng")
    if OPT.get("pre", 0): A(f"s_sleep {OPT['pre']}")
    A(poll_issue(vPollR))
    poll_check(F_LN, MASK_R, 0, None, OPT.get('lnsleep', 1))
    A.label("M_lng")
    A("s_waitcnt vmcnt(0)")
    A("s_barrier")
    sRT, sCT = 68, 69
    A(f"""
    s_and_b32 s{sT+3}, s2, 7
    s_lshr_b32 s{sRT}, s{sT+3}, 1
    s_lshl_b32 s{sRT}, s{sRT}, 2
    s_bfe_u32 s{sT+6}, s2, 0x20003
    s_add_u32 s{sRT}, s{sRT}, s{sT+6}
    s_and_b32 s{sCT}, s{sT+3}, 1
    s_lshl_b32 s{sCT}, s{sCT}, 3
    s_lshr_b32 s{sT+6}, s2, 5
    s_add_u32 s{sCT}, s{sCT}, s{sT+6}
    """)
    stamp(A, 5, 2)
    for g in xgroups(0) + xgroups(1):
        for l in g: A(l)
    if TS == 4:
        for k in range(3): A(touch(k))
        for l in tadv: A(l)
    def copy_op(s):
        if s % 2: return f"buffer_load_dwordx4 {CT(s // 2)}, v{vT+1 if s == 1 else vCs}, s[{sSCs}:{sSCs+3}], s{sCl} offen"
        return f"buffer_store_dwordx4 {CT(s // 2)}, v{vCd}, s[{sSCd}:{sSCd+3}], s{sCs} offen sc1"
    def wread(f, a, pos):
        nm = names[f]
        if nm[0] in "qkv":
            p = "qkv".index(nm[0]); j = int(nm[1])
            addr = vA1 if j else vA0; off = 2048 * p + 1024 * a
        else:
            tl = int(nm[1]); addr = vAG
            off = (6144 if nm[0] == 'g' else 13312) + 3584 * a + 32 * tl
        return f"ds_read_b64_tr_b16 {WR(pos).sub(2*a, 2)}, v{addr} offset:{off}"
    def mfma(f, i, s, pos, par=None):
        if OPT.get("snake") and (f if par is None else par) % 2: i = 3 - i
        nm = names[f]; d = accm[(nm, i)]
        if nm[0] in "kv" or OPT.get("swapab"):
            return f"v_mfma_f32_16x16x32_bf16 {d}, {XR(s, i)}, {WR(pos)}, {d}"
        return f"v_mfma_f32_16x16x32_bf16 {d}, {WR(pos)}, {XR(s, i)}, {d}"
    LA = 6
    A(f"""
    s_lshr_b32 s{sT+3}, s{sRT}, 1
    s_lshl_b32 s{sT+3}, s{sT+3}, 3
    v_and_b32 v{vT}, 7, v0
    v_bfe_u32 v{vT+1}, v0, 3, 2
    v_lshl_add_u32 v{vT+1}, v{vT+1}, 6, v{vT}
    v_add_u32 v{vPollR}, s{sT+3}, v{vT+1}
    """)
    A(f"""
    s_and_b32 s{sT+3}, s{sW}, 1
    s_lshl_b32 s{sT+3}, s{sT+3}, 2
    s_lshr_b32 s{sT+6}, s{sW}, 1
    s_add_u32 s{sT+3}, s{sT+3}, s{sT+6}
    s_lshl_b32 s{sT+3}, s{sT+3}, 13
    v_and_b32 v{vT}, 0x7ff, v{vCs}
    v_bfe_u32 v{vT+1}, v0, 3, 2
    v_lshl_add_u32 v{vT}, v{vT+1}, 11, v{vT}
    v_lshrrev_b32 v{vT+1}, 5, v0
    v_lshl_add_u32 v{vT}, v{vT+1}, 14, v{vT}
    v_add_u32 v{vT}, s{sT+3}, v{vT}
    s_getpc_b64 s[4:5]
    s_and_b32 s4, s4, 0xffffff80
    s_bfe_u32 s{sT+3}, s2, 0x30003
    s_lshl_b32 s{sT+3}, s{sT+3}, 2
    s_add_u32 s{sT+3}, s{sT+3}, s{sW}
    s_mul_i32 s{sT+3}, s{sT+3}, 1408
    s_add_u32 s{sT+3}, s{sT+3}, 5120
    v_min_u32 v{vPv}, 10, v0
    v_lshlrev_b32 v{vPv}, 7, v{vPv}
    v_add_u32 v{vPv}, s{sT+3}, v{vPv}
    """)
    for f in range(LA):
        for a in range(2): A(wread(f, a, f % 8))
    A(f"s_waitcnt vmcnt({7 if TS == 4 else 4})")
    stamp(A, 6, 2); stamp(A, 1, 1)
    madv = [f"s_add_u32 s{sM}, s{sM}, s{sSLOT}", f"s_add_u32 s{sWoA}, s{sWoA}, s{sStA}", f"s_add_u32 s{sWoB}, s{sWoB}, s{sStB}",
            f"s_cmp_eq_u32 s{sM}, s{sMEND}", f"s_cselect_b32 s{sM}, s{sM0}, s{sM}"]
    def Wop(k, i): return dict(tag=f"W{k}", pre=(madv if i == 0 else []) + [dma(i)[0]], ins=dma(i)[1], post=[])
    def Xop(k, i): return dict(tag=f"X{k}", pre=[], ins=xload(k % 4, i), post=[f"s_add_u32 s{sXo}, s{sXo}, 0x20000"] if i == 3 else [])
    def Sop(j): return dict(tag="S", pre=[], ins=copy_op(2 * j), post=[f"s_add_u32 s{sCs}, s{sCs}, 0x100000"])
    sched = {}
    def place(ops, slots):
        assert len(ops) <= len(slots), (len(ops), len(slots))
        for o, sl in zip(ops, slots): sched[sl] = o
    place([Wop(6, i) for i in range(5)], [(3, f) for f in range(15, 20)])
    place([Xop(2, i) for i in range(4)] + [Wop(3, i) for i in range(4)], [(0, f) for f in (1, 2, 4, 6, 8, 9, 11, 12)])
    place([Wop(3, 4)] + [Xop(3, i) for i in range(4)] + [Wop(4, i) for i in range(5)] + [Xop(4, i) for i in range(3)],
          [(0, 15), (0, 16), (0, 18), (0, 19), (1, 1), (1, 2), (1, 4), (1, 5), (1, 7), (1, 8), (1, 10), (1, 11), (1, 12)])
    place([Xop(4, 3)] + [Wop(5, i) for i in range(5)] + [Sop(0)] + [Xop(5, i) for i in range(4)] + [Sop(1)],
          [(1, 15), (1, 16), (1, 18), (1, 19), (2, 1), (2, 2), (2, 4), (2, 5), (2, 7), (2, 8), (2, 10), (2, 11)])
    cl0 = dict(tag="C", pre=[], ins=copy_op(1), post=[f"s_add_u32 s{sCl}, s{sCl}, {56 << 16}", f"s_cmp_eq_u32 s{sCnt}, 3",
               f"s_cselect_b32 s{sCl}, s{sT7}, s{sCl}", f"s_cselect_b32 s{sSCs}, s84, s{sSCs}", f"s_cselect_b32 s{sSCs+1}, s85, s{sSCs+1}",
               f"s_cselect_b32 s{sSCs+2}, {1024*2048}, s{sSCs+2}", f"s_cmp_eq_u32 s{sCnt}, 4", f"s_cselect_b32 s{sSCs+2}, 0, s{sSCs+2}"])
    cl1 = dict(tag="C", pre=[], ins=copy_op(3), post=[])
    place([cl0] + [dict(tag="T", pre=[], ins=touch(k), post=[]) for k in range(3)] + [cl1], [(2, f) for f in range(15, 20)])
    place([dict(tag="T", pre=[], ins=f"global_load_dword v{vDum}, v{vPv}, s[4:5]", post=[])], [(3, 1)])
    order = sorted(sched.keys())
    def vm_at(s):
        seq = [(-1, k) for k in order] + [(0, k) for k in order if k < (s, 14)]
        need = []
        for n, (tr, k) in enumerate(seq):
            t = sched[k]["tag"]
            if t[0] in "WX" and int(t[1:]) + 4 * tr == s + 1: need.append(n)
        return len(seq) - 1 - max(need)
    A.label("M_loop1")
    for s in range(4):
        for f in range(20):
            F = 20 * s + f
            pos = F % 8
            if f == 14:
                if s == 0:
                    A(f"s_cmp_eq_u32 s{sCnt}, 0"); A("s_cbranch_scc0 M_l1w"); A(f"s_waitcnt vmcnt({11 if TS == 4 else 8})"); A.label("M_l1w")
                A(f"s_waitcnt vmcnt({vm_at(s)}) lgkmcnt(8)"); A("s_barrier")
                if s == 0:
                    A(f"s_cmp_eq_u32 s{sCnt}, 6"); A("s_cbranch_scc0 M_l1c")
                    flag_set(F_LN | F_WT); A.label("M_l1c")
            elif f % 2 == 0:
                A("s_waitcnt lgkmcnt(8)")
            nf = (f + LA) % 20
            pre2, mid, post = [], [], []
            if (s, f) in sched:
                o = sched[(s, f)]; pre2, mid, post = o["pre"], [o["ins"]], o["post"]
            elif f == 0: mid = [f"s_add_u32 s{sR}, s{sR}, s{sSLOT}"]; post = [f"s_cmp_eq_u32 s{sR}, s{sREND}", f"s_cselect_b32 s{sR}, 0, s{sR}"]
            elif f == 13:
                mid = [f"v_add_u32 v{vA0}, s{sR}, v{vB0}", f"v_add_u32 v{vA1}, s{sR}, v{vB1}"]
                post = [f"v_add_u32_e64 v{vAG}, s{sR}, v{vBG}"]
            elif s == 2 and f == 12:
                mid = [f"s_cmp_eq_u32 s{sCnt}, 3", f"s_cselect_b64 s[{sT+6}:{sT+7}], -1, 0"]
                post = [f"v_cndmask_b32 v{vT+1}, v{vCs}, v{vT}, s[{sT+6}:{sT+7}]"]
            elif s == 3 and f == 2:
                mid = [f"s_sub_u32 s{sCl}, s{sCl}, {55 << 16}"]; post = [f"s_cmp_eq_u32 s{sCnt}, 2", f"s_cselect_b32 s{sCl}, s{sT6}, s{sCl}"]
            elif s == 3 and f == 3:
                mid = [f"s_cmp_eq_u32 s{sCnt}, 3", f"s_cselect_b32 s{sCl}, s{sT8}, s{sCl}"]
            elif s == 3 and f == 4:
                mid = [f"s_add_u32 s{sToq}, s{sToq}, {128*TROW*6144}"]; post = [f"s_add_u32 s{sTog}, s{sTog}, {128*TROW*7168}"]
            elif s == 3 and f == 5: mid = [f"s_add_u32 s{sCnt}, s{sCnt}, 1"]
            A(mfma(f, 0, s, pos))
            A(wread(nf, 0, (F + LA) % 8))
            for l in pre2[:3 if len(pre2) > 3 else 0]: A(l)
            A(mfma(f, 1, s, pos))
            A(wread(nf, 1, (F + LA) % 8))
            for l in pre2[3 if len(pre2) > 3 else 0:]: A(l)
            A(mfma(f, 2, s, pos))
            emit(mid)
            A(mfma(f, 3, s, pos))
            for l in post: A(l)
    A(f"s_cmp_lt_u32 s{sCnt}, 7")
    A("s_cbranch_scc1 M_loop1")
    sSH, sSK, sSXi, sSO = 20, 24, 28, 32
    sNL, sPL, sEPS, sCB, sCL = 36, 38, 40, 41, 42
    sAo, sBo = 43, 44
    sSA, sSB = sSH, sSCd
    vA, vBd = [2, 3, 4, 5], 6
    vR = [[216, 217, 218, 219], [220, 221, 222, 223]]
    vXO, vKv, vZ, vFw, vZw, vZr, vFr, vLn = 224, 225, 226, 227, 228, 229, 230, 231
    vk0, vk1, vk2 = 11, 12, 22
    NSL = 14
    AR = lambda ch, i: Reg('a', 144 + 8 * (ch % NSL) + 4 * i)
    vAs, vBds, vPollE = [7, 8], 9, 10
    NS = OPT.get('ns', 22)
    def phi_tile(E, src, tmp, dst):
        b = src
        E(f"v_pk_mul_f32 v[{tmp}:{tmp+1}], v[{b}:{b+1}], s[{sPL}:{sPL+1}]")
        E(f"v_pk_mul_f32 v[{tmp+2}:{tmp+3}], v[{b+2}:{b+3}], s[{sPL}:{sPL+1}]")
        for j in range(4): E(f"v_exp_f32_e64 v{tmp+j}, v{tmp+j} clamp")
        for j in range(4): E(f"v_max_f32 v{b+j}, s{sEPS}, v{b+j}")
        E(f"v_pk_add_f32 v[{b}:{b+1}], v[{b}:{b+1}], v[{tmp}:{tmp+1}]")
        E(f"v_pk_add_f32 v[{b+2}:{b+3}], v[{b+2}:{b+3}], v[{tmp+2}:{tmp+3}]")
        E(f"v_cvt_pk_bf16_f32 v{dst}, v{b}, v{b+1}")
        E(f"v_cvt_pk_bf16_f32 v{dst+1}, v{b+2}, v{b+3}")
    def swiglu_tile(E, tl, i, tmp, dst):
        g = acc[(f"g{tl}", i)].base
        ur = acc[(f"u{tl}", i)]
        if ur.kind == 'a':
            u = tmp + 4
            for j in range(4): E(f"v_accvgpr_read_b32 v{u+j}, a{ur.base+j}")
        else:
            u = ur.base
        E(f"v_pk_mul_f32 v[{tmp}:{tmp+1}], v[{g}:{g+1}], s[{sNL}:{sNL+1}]")
        E(f"v_pk_mul_f32 v[{tmp+2}:{tmp+3}], v[{g+2}:{g+3}], s[{sNL}:{sNL+1}]")
        for j in range(4): E(f"v_exp_f32 v{tmp+j}, v{tmp+j}")
        E(f"v_pk_mul_f32 v[{g}:{g+1}], v[{g}:{g+1}], v[{u}:{u+1}]")
        E(f"v_pk_mul_f32 v[{g+2}:{g+3}], v[{g+2}:{g+3}], v[{u+2}:{u+3}]")
        E(f"v_pk_add_f32 v[{tmp}:{tmp+1}], v[{tmp}:{tmp+1}], 1.0 op_sel_hi:[1,0]")
        E(f"v_pk_add_f32 v[{tmp+2}:{tmp+3}], v[{tmp+2}:{tmp+3}], 1.0 op_sel_hi:[1,0]")
        for j in range(4): E(f"v_rcp_f32 v{tmp+j}, v{tmp+j}")
        E(f"v_pk_mul_f32 v[{g}:{g+1}], v[{g}:{g+1}], v[{tmp}:{tmp+1}]")
        E(f"v_pk_mul_f32 v[{g+2}:{g+3}], v[{g+2}:{g+3}], v[{tmp+2}:{tmp+3}]")
        E(f"v_cvt_pk_bf16_f32 v{dst}, v{g}, v{g+1}")
        E(f"v_cvt_pk_bf16_f32 v{dst+1}, v{g+2}, v{g+3}")
    def swiglu_pair(E, p, tmp):
        for i in range(4):
            o = acc[(f"g{2*p}", i)].base
            swiglu_tile(E, 2 * p, i, tmp, o)
            swiglu_tile(E, 2 * p + 1, i, tmp, o + 2)
            E(f"buffer_store_dwordx4 v[{o}:{o+3}], v{vX}, s[{sSH}:{sSH+3}], s{sCB} offen offset:{1024*i} sc1")
        E(f"s_add_u32 s{sCB}, s{sCB}, {32 << 17}")
    S = Asm()
    srd(S, sSH, 14, 15, HF_SIZE, HF_OFF)
    sh_lines = lines(S)
    S = Asm()
    S(f"""
    s_mov_b32 s{sNL}, 0x{f2u(-LOG2E):x}
    s_mov_b32 s{sNL+1}, 0x{f2u(-LOG2E):x}
    s_mov_b32 s{sPL}, 0x{f2u(LOG2E):x}
    s_mov_b32 s{sPL+1}, 0x{f2u(LOG2E):x}
    s_mov_b32 s{sEPS}, 0x{f2u(1e-6):x}
    s_lshl_b32 s{sCB}, s{sHD}, 17
    s_lshr_b32 s{sCL}, s{sHD}, 1
    s_add_u32 s{sCL}, s{sCL}, 96
    s_lshl_b32 s{sCL}, s{sCL}, 17
    s_and_b32 s{sT}, s{sHD}, 1
    s_lshl_b32 s{sT}, s{sT}, 9
    s_add_u32 s{sCL}, s{sCL}, s{sT}
    s_lshl_b32 s{sT}, s{sW}, 4
    s_add_u32 s{sT}, s{sT}, s{sCT}
    s_lshl_b32 s{sT}, s{sT}, 12
    v_add_u32 v{vBd}, s{sT}, v{vL16}
    s_lshl_b32 s{sM0}, s{sW}, 12
    """)
    pre_lines = lines(S)
    Ga, Gb = [0, 1, 2, 3], [4, 5, 6, 7]
    items = [(0, f) for f in range(6)] + [(1, f) for f in Ga] + [(0, 6), (0, 7)] + [(1, f) for f in Gb] + [(0, f) for f in range(8, 12)]
    items += [(2, f) for f in Ga] + [(0, f) for f in range(12, 14)] + [(3, f) for f in Ga] + [(2, f) for f in Gb] + [(3, f) for f in Gb]
    items += [(0, f) for f in range(14, 20)] + [(st, f) for st in range(1, 4) for f in range(8, 20)]
    assert len(items) == 80 and len(set(items)) == 80
    def wreadL(st, f, a, pos):
        l = wread(f, a, pos)
        base, off = l.rsplit(" offset:", 1)
        if st >= 2:
            for x, y in ((vA0, vB0), (vA1, vB1), (vAG, vBG)):
                if base.endswith(f", v{x}"): base = base[:-len(f"v{x}")] + f"v{y}"; break
        return f"{base} offset:{int(off) + G1_SLOT * (st % 2)}"
    B = Asm(); swiglu_pair(B, 0, 2); e0 = lines(B)
    if OPT.get('noe0'): e0 = []
    def unpack(ls):
        out = []
        for l in ls:
            m = re.match(r"v_pk_(mul|add)_f32 v\[(\d+):\d+\], v\[(\d+):\d+\], (\S+)", l)
            if not m: out.append(l); continue
            op, d, a, b = m.group(1), int(m.group(2)), int(m.group(3)), m.group(4)
            for k in range(2):
                if b.startswith("v["): bb = "v%d" % (int(b[2:].split(":")[0]) + k)
                elif b.startswith("s["): bb = "s%d" % int(b[2:].split(":")[0])
                else: bb = b
                out.append(f"v_{op}_f32 v{d+k}, {bb}, v{a+k}")
        return out
    if OPT.get('unpk', 0) & 1: e0 = unpack(e0)
    E0_AT, E0_N = 31, OPT.get('e0n', 44)
    S = Asm()
    S(f"""
    v_and_b32 v{vT}, 7, v0
    v_and_b32 v{vT+1}, 15, v0
    v_lshlrev_b32 v{vT+1}, 4, v{vT+1}
    v_add_u32 v{vT+1}, s{sCT}, v{vT+1}
    v_bfe_u32 v{vPollW}, v0, 4, 1
    v_xor_b32 v{vT+1}, v{vT+1}, v{vPollW}
    v_cmp_gt_u32 vcc, 32, v0
    s_and_b32 s{sT+3}, s2, 0xc7
    v_lshlrev_b32 v{vT}, 3, v{vT}
    v_cndmask_b32 v{vPollW}, v{vT+1}, v{vPollR}, vcc
    v_add_u32 v{vT}, s{sT+3}, v{vT}
    s_mov_b32 s{sT+3}, 0x70000000
    v_cndmask_b32 v{vPollH}, v{vT}, v{vPollR}, vcc
    v_and_b32 v{vT}, 7, v{vPollR}
    v_lshrrev_b32 v{vPollR}, 3, v{vPollR}
    v_mul_u32_u24 v{vPollR}, {LSTR}, v{vPollR}
    v_lshl_add_u32 v{vPollR}, v{vT}, 4, v{vPollR}
    v_and_b32 v{vT}, 7, v{vPollW}
    v_lshrrev_b32 v{vPollW}, 3, v{vPollW}
    v_mul_u32_u24 v{vPollW}, {LSTR}, v{vPollW}
    v_lshl_add_u32 v{vPollW}, v{vT}, 4, v{vPollW}
    v_and_b32 v{vT}, 7, v{vPollH}
    v_lshrrev_b32 v{vPollH}, 3, v{vPollH}
    v_mul_u32_u24 v{vPollH}, {LSTR}, v{vPollH}
    v_lshl_add_u32 v{vPollH}, v{vT}, 4, v{vPollH}
    """)
    poll_lines = lines(S)
    lops = [Xop(2, i) for i in range(4)] + [Wop(3, i) for i in range(5)] + [Xop(3, i) for i in range(4)]
    misc = pre_lines
    for n, (st, f) in enumerate(items):
        pos = n % 8
        lg = 8 if n + LA < 80 else max(0, 2 * (80 - n - 2))
        if n == 0: A(f"s_waitcnt vmcnt(10) lgkmcnt(8)"); A("s_barrier")
        elif n == 14: A(f"s_waitcnt vmcnt(9) lgkmcnt(8)"); A("s_barrier")
        elif n == 20: A(f"s_waitcnt vmcnt(4) lgkmcnt(8)"); A("s_barrier")
        elif n == 26: A(f"s_waitcnt vmcnt(0) lgkmcnt(8)")
        elif n % 2 == 0: A(f"s_waitcnt lgkmcnt({lg})")
        fill = []
        if n < 13:
            o = lops[n]; fill = o["pre"] + ["s_nop 0", o["ins"]] + o["post"]
        elif n == 13: fill = sh_lines
        elif 14 <= n < 22: fill = poll_lines[len(poll_lines) * (n - 14) // 8: len(poll_lines) * (n - 13) // 8]
        elif n == 27: fill = [f"s_cmp_eq_u32 s{sW}, 0\ns_cbranch_scc0 M_npw\n{poll_issue(vPollW)}", "M_npw:"]
        elif 22 <= n < 27: fill = misc[len(misc) * (n - 22) // 5: len(misc) * (n - 21) // 5]
        elif E0_AT <= n < E0_AT + E0_N:
            c = n - E0_AT
            fill = e0[len(e0) * c // E0_N: len(e0) * (c + 1) // E0_N]
        mm = lambda i: mfma(f, i, st, pos, n)
        h = (len(fill) + 1) // 2 if (n > 13 and n != 27) else len(fill)
        A(mm(0))
        if n + LA < 80: A(wreadL(*items[n + LA], 0, (n + LA) % 8))
        A(mm(1))
        if n + LA < 80: A(wreadL(*items[n + LA], 1, (n + LA) % 8))
        A(mm(2))
        emit(fill[:h])
        A(mm(3))
        emit(fill[h:])
    stamp(A, 2, 1); stamp(A, 1, 4)
    A(f"""
    s_load_dwordx2 s[78:79], s[0:1], 0
    s_load_dwordx2 s[80:81], s[0:1], 56
    s_lshl_b32 s{sT}, s{sRT}, 13
    s_lshl_b32 s{sT+3}, s{sW}, 11
    s_add_u32 s{sT}, s{sT}, s{sT+3}
    v_add_u32 v{vA[0]}, s{sT}, v{vL16}
    v_add_u32 v{vA[1]}, 0x20000, v{vA[0]}
    v_add_u32 v{vA[2]}, 0x40000, v{vA[0]}
    v_add_u32 v{vA[3]}, 0x60000, v{vA[0]}
    s_and_b32 s{sT}, s{sCT}, 1
    s_lshl_b32 s{sT+3}, s{sT}, 18
    v_add_u32 v{vAs[0]}, s{sT+3}, v{vA[0]}
    v_add_u32 v{vAs[1]}, s{sT+3}, v{vA[1]}
    s_lshl_b32 s{sT}, s{sT}, 1
    s_lshr_b32 s{sT+3}, s{sW}, 1
    s_add_u32 s{sT}, s{sT}, s{sT+3}
    s_lshl_b32 s{sT}, s{sT}, 4
    s_and_b32 s{sT+3}, s{sW}, 1
    s_xor_b32 s{sT+3}, s{sT+3}, s{sCT}
    s_add_u32 s{sT}, s{sT}, s{sT+3}
    s_lshl_b32 s{sT}, s{sT}, 12
    v_add_u32 v{vBds}, s{sT}, v{vL16}
    """)
    srd(A, sSK, 14, 15, KVP_SIZE, KVP_OFF)
    A("s_waitcnt vmcnt(0)")
    A(f"s_cmp_eq_u32 s{sW}, 0"); A("s_cbranch_scc0 M_wtc")
    poll_check(F_WT, MASK_U, None, vPollW)
    A.label("M_wtc")
    A("s_barrier")
    flag_set(F_LN | F_WT | F_A)
    stamp(A, 2, 4)
    tq = acc[("u0", 0)].base
    LA2 = OPT.get("la2", 3); LB = G2_R - 1
    vm, lg = [], []
    done = {"vm": -1, "lg": -1}
    pmark = {}
    def put(x):
        line, tag = x if isinstance(x, tuple) else (x, None)
        if line.startswith("@"):
            k, t = line[1:].split()
            waitfor(**{k: [t]}); return
        if line.startswith("#poll"):
            _, c, va = line.split()
            A(f"s_cmp_eq_u32 s{sW}, 0"); A(f"s_cbranch_scc0 M_np{c}"); A(poll_issue(int(va))); A.label(f"M_np{c}")
            pmark[int(c)] = len(vm); return
        if line.endswith(":"): A.label(line[:-1]); return
        A(line)
        if line.startswith("buffer_"): vm.append(tag)
        elif line.startswith("ds_"): lg.append(tag)
    def waitfor(vm=(), lg=(), _vm=vm, _lg=lg):
        parts = []
        for name, lst, tags, cap in (("vm", _vm, vm, 63), ("lg", _lg, lg, 15)):
            idx = [i for i, t in enumerate(lst) if t in tags]
            assert len(idx) >= 1 or not tags, tags
            if idx and max(idx) > done[name]:
                n = min(len(lst) - 1 - max(idx), cap)
                done[name] = len(lst) - 1 - n
                parts.append(f"{'vmcnt' if name == 'vm' else 'lgkmcnt'}({n})")
        if parts: A("s_waitcnt " + " ".join(parts))
    def bop(m, b):
        pre = [f"s_mov_b32 s{sBo}, 0x{m * 0x40000:x}", f"s_add_u32 m0, s{sM0}, 0x{(m % G2_R) * G2_SLOT:x}", "s_nop 0"] if b == 0 else []
        return pre + [(f"buffer_load_dwordx4 v{vBds if m < NS else vBd}, s[{sSB}:{sSB+3}], s{sBo} offen offset:{1024*b} sc1 lds", f"B{m}")]
    nq = lambda m: 2 if m < NS else 4
    ch0 = [sum(nq(k) for k in range(m)) for m in range(37)]
    aq = [(m, q, i) for m in range(36) for q in range(nq(m)) for i in range(2)]
    def aop(m, q, i):
        pre = [f"s_mov_b32 s{sAo}, 0x{m * 0x80000:x}"] if (q == 0 and i == 0) else []
        va = vAs[q] if m < NS else vA[q]
        return pre + [(f"buffer_load_dwordx4 {AR(ch0[m] + q, i)}, v{va}, s[{sSA}:{sSA+3}], s{sAo} offen offset:{1024*i} sc1", f"A{m}q{q}")]
    LAC = OPT.get("lac", 8)
    LACS = OPT.get("lacs", 6)
    NPRE = OPT.get("npre", 6)
    asched = {}; first_at = {}
    k = 2 * NPRE
    for c in range(16 * 36):
        n, F = c // 16, c % 16
        cur = ch0[n] + F * nq(n) // 16
        if F % 4 < 2 and k < len(aq):
            m, q, i = aq[k]
            if ch0[m] + q - cur <= (LACS if m < NS else LAC):
                asched[c] = aq[k]; first_at.setdefault(m, c); k += 1
    assert k == len(aq)
    def check_pos(c):
        n = c // 16 if c % 16 >= 10 else c // 16 - 1
        return 16 * n + 9
    def tagged(ls, tag): return [(l, tag) if l.startswith(("buffer_", "ds_")) else l for l in ls]
    def mix(G, work):
        n = len(G)
        for c, grp in enumerate(G):
            for x in grp: put(x)
            for x in work[len(work) * c // n: len(work) * (c + 1) // n]: put(x)
    B = Asm(); swiglu_pair(B, 1, tq)
    G = [bop(m, b) for m in range(LB) for b in range(4 if m < LB - 1 else 2)]
    G.insert(len(G) - 5, [f"#poll 0 {vPollR}"])
    mix(G, tagged(lines(B), "h1"))
    stamp(A, 3, 4)
    A("s_waitcnt lgkmcnt(0)")
    srd(A, sSXi, 78, 79, 0x400000)
    srd(A, sSO, 80, 81, 0x400000)
    A(f"s_cmp_eq_u32 s{sW}, 0"); A("s_cbranch_scc0 M_gate")
    poll_check(F_A, MASK_R, len(vm) - pmark[0], None, 2)
    A.label("M_gate")
    waitfor(vm=["B0"])
    A("s_barrier")
    stamp(A, 3, 1); stamp(A, 4, 4)
    ACCF, ACCP, ACCS = 88, 120, 24
    BR = lambda p: Reg('a', 112 + 4 * p)
    t0 = tq + 12
    B = Asm()
    B(f"""
    v_bfe_u32 v{t0}, v0, 2, 3
    v_lshrrev_b32 v{t0+1}, 5, v0
    v_lshlrev_b32 v{t0+1}, 10, v{t0+1}
    v_lshl_add_u32 v{t0+1}, v{t0}, 7, v{t0+1}
    v_and_b32 v{t0+2}, 3, v0
    v_lshl_add_u32 v{t0+1}, v{t0+2}, 3, v{t0+1}
    v_lshrrev_b32 v{t0}, 1, v{t0}
    v_lshl_add_u32 v{vR[0][0]}, v{t0}, 5, v{t0+1}
    v_xor_b32 v{vR[0][1]}, 32, v{vR[0][0]}
    v_xor_b32 v{vR[0][2]}, 64, v{vR[0][0]}
    v_xor_b32 v{vR[0][3]}, 0x60, v{vR[0][0]}
    """)
    for r in range(ACCF, ACCF + 64, 2): B(f"v_pk_mov_b32 v[{r}:{r+1}], 0, 0")
    kb = acc[("k0", 0)].base; vb = acc[("v0", 0)].base
    for dt in range(2):
        for i in range(4):
            phi_tile(B, kb + 16 * dt + 4 * i, tq, kb + 16 * dt + 8 * (i // 2) + 2 * (i % 2))
    mix([aop(*aq[k]) for k in range(2 * NPRE)], lines(B))
    fill = {}
    def spread(ls, c0, c1):
        n = c1 - c0
        for c in range(n):
            fill.setdefault(c0 + c, []).extend(ls[len(ls) * c // n: len(ls) * (c + 1) // n])
    vONE = tq + 8
    B = Asm()
    for j in range(4): B(f"v_add_u32 v{vR[1][j]}, 0x10000, v{vR[0][j]}")
    for j in range(4): B(f"v_mov_b32 v{vONE+j}, 0x3f803f80")
    for et in range(2):
        for i in range(4):
            src = vb + 16 * et + 4 * i
            dst = vb + 16 * et + 8 * (i // 2) + 2 * (i % 2)
            B(f"v_cvt_pk_bf16_f32 v{dst}, v{src}, v{src+1}")
            B(f"v_cvt_pk_bf16_f32 v{dst+1}, v{src+2}, v{src+3}")
    B(f"""
    s_mul_i32 s{sT}, s{sW}, 6144
    s_add_u32 s{sT}, s{sT}, {KVL}
    v_add_u32 v{vk0}, s{sT}, v{vL16}
    s_lshl_b32 s{sT}, s{sW}, 10
    """)
    for u in range(2):
        for dt in range(2):
            for et in range(3):
                a = kb + 16 * dt + 8 * u
                b = vb + 16 * et + 8 * u if et < 2 else vONE
                p = PT(dt * 3 + et)
                B(f"v_mfma_f32_16x16x32_bf16 {p}, v[{a}:{a+3}], v[{b}:{b+3}], {'0' if u == 0 else p}")
    B(f"""
    s_add_u32 s{sT+1}, s{sT}, {KVL}
    v_add_u32 v{vk1}, s{sT+1}, v{vL16}
    s_lshl_b32 s{sT+1}, s{sHD}, 3
    s_add_u32 s{sT+1}, s{sT+1}, s{sRB}
    s_mul_i32 s{sT+1}, s{sT+1}, 6144
    v_add_u32 v{vk2}, s{sT}, v{vL16}
    s_add_u32 s{sT+2}, s{sT+1}, 4096
    """)
    ls = lines(B) + [f"s_cmp_lt_u32 s{sW}, 2\ns_cselect_b32 s{sT+2}, s{sT+2}, 0x70000000"]
    ls += [(f"ds_write_b128 v{vk0}, {PT(t)} offset:{1024*t}", "kvw") for t in range(6)]
    spread(ls, 0, 16 + 6)
    barrier_lg = {1: ["kvw"]}
    tb = kb
    def sum4(E, b):
        E(f"v_pk_add_f32 v[{b}:{b+1}], v[{b}:{b+1}], v[{b+4}:{b+5}]")
        E(f"v_pk_add_f32 v[{b+2}:{b+3}], v[{b+2}:{b+3}], v[{b+6}:{b+7}]")
        E(f"v_pk_add_f32 v[{b+8}:{b+9}], v[{b+8}:{b+9}], v[{b+12}:{b+13}]")
        E(f"v_pk_add_f32 v[{b+10}:{b+11}], v[{b+10}:{b+11}], v[{b+14}:{b+15}]")
        E(f"v_pk_add_f32 v[{b}:{b+1}], v[{b}:{b+1}], v[{b+8}:{b+9}]")
        E(f"v_pk_add_f32 v[{b+2}:{b+3}], v[{b+2}:{b+3}], v[{b+10}:{b+11}]")
    ls = [(f"ds_read_b128 v[{tb+4*sw}:{tb+4*sw+3}], v{vk1} offset:{6144*sw}", "kvr") for sw in range(4)]
    ls += [(f"ds_read_b128 v[{tb+16+4*sw}:{tb+16+4*sw+3}], v{vk1} offset:{6144*sw+4096}", "kvr") for sw in range(4)]
    spread(ls, 16 + 10, 32 + 2)
    B = Asm()
    sum4(B, tb)
    B(f"buffer_store_dwordx4 v[{tb}:{tb+3}], v{vk2}, s[{sSK}:{sSK+3}], s{sT+1} offen sc1")
    sum4(B, tb + 16)
    B(f"buffer_store_dwordx4 v[{tb+16}:{tb+19}], v{vk2}, s[{sSK}:{sSK+3}], s{sT+2} offen sc1")
    spread(["@lg kvr"] + tagged(lines(B), "kvs"), 32 + 6, 32 + 12)
    B = Asm(); swiglu_pair(B, 2, tq)
    spread(tagged(lines(B), "h2"), 16 * 2 + 12, 16 * 5 + 8)
    B = Asm()
    B(f"""
    v_and_b32 v{vXO}, 15, v0
    v_lshlrev_b32 v{t0+2}, 4, v{vXO}
    v_lshlrev_b32 v{vXO}, 11, v{vXO}
    v_bfe_u32 v{t0+1}, v0, 4, 1
    v_lshl_add_u32 v{vXO}, v{t0+1}, 5, v{vXO}
    v_lshl_add_u32 v{t0+2}, v{t0+1}, 10, v{t0+2}
    v_lshrrev_b32 v{t0+1}, 5, v0
    v_lshl_add_u32 v{vXO}, v{t0+1}, 4, v{vXO}
    v_lshl_add_u32 v{t0+2}, v{t0+1}, 8, v{t0+2}
    v_sub_u32 v{vLn}, v{vX}, v{vL16}
    v_add_u32 v{vLn}, v{vLn}, v{t0+2}
    s_lshl_b32 s{sT}, s{sRT}, 18
    s_lshl_b32 s{sT+3}, s{sW}, 16
    s_add_u32 s{sT}, s{sT}, s{sT+3}
    s_lshl_b32 s{sT+3}, s{sCT}, 7
    s_add_u32 s{sT}, s{sT}, s{sT+3}
    v_add_u32 v{vXO}, s{sT}, v{vXO}
    s_lshr_b32 s{sT}, s{sW}, 1
    s_add_u32 s{sT}, s{sT}, s{sW}
    s_lshl_b32 s{sT}, s{sT}, 10
    s_mul_i32 s{sT+3}, s{sHD}, 49152
    s_add_u32 s{sT}, s{sT}, s{sT+3}
    v_add_u32 v{vKv}, s{sT}, v{vL16}
    v_and_b32 v{t0}, 7, v0
    v_mul_u32_u24 v{vZ}, 6144, v{t0}
    v_bfe_u32 v{t0}, v0, 3, 2
    v_lshl_add_u32 v{vZ}, v{t0}, 8, v{vZ}
    v_lshrrev_b32 v{t0}, 5, v0
    v_mul_u32_u24 v{t0}, 3072, v{t0}
    v_add3_u32 v{vZ}, v{vZ}, v{t0}, s{sT+3}
    s_and_b32 s{sT}, s{sW}, 1
    s_lshl_b32 s{sT}, s{sT}, 10
    s_lshr_b32 s{sT+3}, s{sW}, 1
    s_lshl_b32 s{sT+3}, s{sT+3}, 3
    s_add_u32 s{sT}, s{sT}, s{sT+3}
    s_add_u32 s{sT}, s{sT}, {FIN}
    v_add_u32 v{vFw}, s{sT}, v{vL16}
    v_bfe_u32 v{t0}, v0, 3, 2
    v_lshlrev_b32 v{t0}, 4, v{t0}
    v_lshrrev_b32 v{t0+1}, 5, v0
    v_lshl_add_u32 v{t0}, v{t0+1}, 3, v{t0}
    v_add_u32 v{vZw}, {FIN+2048}, v{t0}
    v_and_b32 v{t0}, 48, v0
    v_add_u32 v{vZr}, {FIN+2048}, v{t0}
    v_add_u32 v{vFr}, {FIN}, v{vL16}
    """)
    spread(lines(B)[:11], 16 * 1 + 6, 16 * 1 + 12)
    spread(lines(B)[11:17], 16 * 2 + 13, 16 * 3)
    spread(lines(B)[17:], 16 * 9, 16 * 10)
    B = Asm()
    for i in (0, 2):
        o = acc[("g6", i)].base
        swiglu_tile(B, 6, i, tq, o)
        swiglu_tile(B, 6, i + 1, tq, o + 2)
        B("s_nop 1")
        B(f"v_permlane16_swap_b32 v{o}, v{o+2}")
        B(f"v_permlane16_swap_b32 v{o+1}, v{o+3}")
        B(f"buffer_store_dwordx4 v[{o}:{o+3}], v{vLn}, s[{sSH}:{sSH+3}], s{sCL} offen offset:{1024*i} sc1")
    spread(tagged(lines(B), "h3"), 16 * 5 + 8, 16 * 7)
    pqb = 240
    B = Asm()
    for i in range(4):
        for dt in range(2):
            qa = acc[(f"q{dt}", i)].base
            for j in range(4): B(f"v_accvgpr_read_b32 v{tq+j}, a{qa+j}")
            phi_tile(B, tq, tq + 4, pqb + 4 * i + 2 * dt)
    spread(lines(B), 16 * 10, 16 * 15)
    kvb, zb, fr, ob = 24, 56, 60, 152
    extra = {}
    for r in range(8):
        extra[16 * 13 + 2 + 4 * r] = [f"s_mov_b32 s{sT+1}, {6144*r}", (f"buffer_load_dwordx4 v[{kvb+4*r}:{kvb+4*r+3}], v{vKv}, s[{sSK}:{sSK+3}], s{sT+1} offen sc1", "kvg")]
    extra[16 * 15 + 2] = [(f"buffer_load_dwordx4 v[{zb}:{zb+3}], v{vZ}, s[{sSK}:{sSK+3}], 0 offen offset:2048 sc1", "kvg")]
    B = Asm()
    for st in (16, 8, 4):
        for r in range(0, st, 2):
            B(f"v_pk_add_f32 v[{kvb+r}:{kvb+r+1}], v[{kvb+r}:{kvb+r+1}], v[{kvb+st+r}:{kvb+st+r+1}]")
    for dpp in ("quad_perm:[1,0,3,2]", "quad_perm:[2,3,0,1]", "row_half_mirror"):
        for j in range(4):
            B(f"v_add_f32_dpp v{zb+j}, v{zb+j}, v{zb+j} {dpp} row_mask:0xf bank_mask:0xf")
    B(f"""
    v_cvt_pk_bf16_f32 v{kvb}, v{kvb}, v{kvb+1}
    v_cvt_pk_bf16_f32 v{kvb+1}, v{kvb+2}, v{kvb+3}
    v_cvt_pk_bf16_f32 v{zb}, v{zb}, v{zb+1}
    v_cvt_pk_bf16_f32 v{zb+1}, v{zb+2}, v{zb+3}
    ds_write_b64 v{vFw}, v[{kvb}:{kvb+1}]
    ds_write_b64 v{vZw}, v[{zb}:{zb+1}]
    """)
    spread(["@vm kvg"] + tagged(lines(B), "fw"), 16 * 17, 16 * 17 + 7)
    barrier_lg[17] = ["fw"]
    spread([(f"ds_read_b128 v[{fr}:{fr+3}], v{vFr}", "frr"), (f"ds_read_b128 v[{fr+4}:{fr+7}], v{vFr} offset:1024", "frr"),
            (f"ds_read_b128 v[{fr+8}:{fr+11}], v{vZr}", "frr")], 16 * 17 + 10, 16 * 17 + 13)
    B = Asm()
    B(f"s_add_u32 s{sT}, s{sHD}, 112")
    B(f"s_lshl_b32 s{sT}, s{sT}, 17")
    for i in range(4):
        for et in (2, 0, 1):
            d = ob + 12 * i + 4 * et
            B(f"v_mfma_f32_16x16x32_bf16 v[{d}:{d+3}], v[{fr+4*et}:{fr+4*et+3}], v[{pqb+4*i}:{pqb+4*i+3}], 0")
    for i in range(4): B(f"v_add_f32 v{ob+12*i+8}, s{sEPS}, v{ob+12*i+8}")
    for i in range(4): B(f"v_rcp_f32 v{ob+12*i+8}, v{ob+12*i+8}")
    for i in range(4):
        d = ob + 12 * i
        for q in range(4):
            B(f"v_pk_mul_f32 v[{d+2*q}:{d+2*q+1}], v[{d+2*q}:{d+2*q+1}], v[{d+8}:{d+9}] op_sel_hi:[1,0]")
        for q in range(4):
            B(f"v_cvt_pk_bf16_f32 v{d+q}, v{d+2*q}, v{d+2*q+1}")
        B(f"buffer_store_dwordx4 v[{d}:{d+3}], v{vX}, s[{sSH}:{sSH+3}], s{sT} offen offset:{1024*i} sc1")
    spread(["@lg frr"] + tagged(lines(B), "os"), 16 * 18 + 2, 16 * 20)
    spread([f"v_pk_mov_b32 v[{r}:{r+1}], 0, 0" for r in range(ACCS, ACCS + 32, 2)], 16 * 22, 16 * 23)
    sSE = 16
    S = Asm(); srd(S, sSE, 14, 15, EX_SIZE, EX_OFF)
    ls = ["\n".join(lines(S)),
          f"s_lshl_b32 s{sT+1}, s2, 2", f"s_add_u32 s{sT+1}, s{sT+1}, s{sW}", f"s_lshl_b32 s{sT+1}, s{sT+1}, 13",
          f"s_add_u32 s{sT+2}, s{sT+1}, 4096", f"s_xor_b32 s{sT+3}, s{sFo}, {4 * LSTR}", f"v_mov_b32 v{vPollE}, s{sT+3}"]
    assert LSTR & (LSTR - 1) == 0
    spread(ls, 16 * (NS - 1), 16 * NS)
    XB = OPT.get("xbf", 1)
    NX = 4 if XB else 8
    if XB:
        ls = []
        for k in range(4):
            for q in range(4): ls.append(f"v_cvt_pk_bf16_f32 v{ACCP+4*k+q}, v{ACCP+8*k+2*q}, v{ACCP+8*k+2*q+1}")
            ls.append((f"buffer_store_dwordx4 v[{ACCP+4*k}:{ACCP+4*k+3}], v{vL16}, s[{sSE}:{sSE+3}], s{sT+1} offen offset:{1024*k} sc1", "ex"))
        spread(ls, 16 * NS + 2, 16 * NS + 22)
    else:
        for k in range(8):
            extra.setdefault(16 * NS + 2 + 4 * k, []).append(
                (f"buffer_store_dwordx4 v[{ACCP+4*k}:{ACCP+4*k+3}], v{vL16}, s[{sSE}:{sSE+3}], s{sT+1+k//4} offen offset:{1024*(k%4)} sc1", "ex"))
    EXF = NS + OPT.get("exf", 3)
    EXL = 16 * (EXF + 2) + 10
    spread([f"s_xor_b32 s{sT+1}, s{sT+1}, {32 << 15}", f"s_xor_b32 s{sT+2}, s{sT+2}, {32 << 15}"], EXL - 8, EXL - 6)
    for k in range(NX):
        extra.setdefault(EXL + 16 // NX * k, []).append(
            (f"buffer_load_dwordx4 v[{ACCP+4*k}:{ACCP+4*k+3}], v{vL16}, s[{sSE}:{sSE+3}], s{sT+1+k//4} offen offset:{1024*(k%4)} sc1", "exl"))
    vXD, tb = 72, 152
    sX0 = 45
    for k in range(4):
        i, pr = k // 2, k % 2
        extra.setdefault(16 * OPT.get('xst', 4) + 2 + 8 * k, []).extend([f"s_mov_b32 s{sX0+i}, {i*16*2048}", (f"buffer_load_dwordx4 v[{vXD+8*i+4*pr}:{vXD+8*i+4*pr+3}], v{vXO}, s[{sSXi}:{sSXi+3}], s{sX0+i} offen offset:{64*pr}", "x")])
    xb0 = 184
    B = Asm()
    if XB:
        for r in range(16):
            B(f"v_lshlrev_b32 v{tb+2*r}, 16, v{ACCP+r}")
            B(f"v_and_b32 v{tb+2*r+1}, 0xffff0000, v{ACCP+r}")
    for r in range(0, 32, 2): B(f"v_pk_add_f32 v[{ACCF+r}:{ACCF+r+1}], v[{ACCF+r}:{ACCF+r+1}], v[{(tb if XB else ACCP)+r}:{(tb if XB else ACCP)+r+1}]")
    for r in range(0, 32, 2): B(f"v_pk_mul_f32 v[{tb+r}:{tb+r+1}], v[{ACCF+r}:{ACCF+r+1}], s[{sNL}:{sNL+1}]")
    for r in range(32): B(f"v_exp_f32 v{tb+r}, v{tb+r}")
    for r in range(0, 32, 2): B(f"v_pk_add_f32 v[{tb+r}:{tb+r+1}], v[{tb+r}:{tb+r+1}], 1.0 op_sel_hi:[1,0]")
    for r in range(32): B(f"v_rcp_f32 v{tb+r}, v{tb+r}")
    for r in range(0, 32, 2): B(f"v_pk_mul_f32 v[{ACCF+r}:{ACCF+r+1}], v[{ACCF+r}:{ACCF+r+1}], v[{tb+r}:{tb+r+1}]")
    S0 = max(EXL + 32, 16 * 28 + 2)
    spread(["@vm exl"] + lines(B), S0, min(S0 + 56, 16 * 36 - 2))
    ls = ["@vm x"]
    for k in range(4):
        for q in range(4):
            ls.append(f"v_lshlrev_b32 v{xb0+8*k+2*q}, 16, v{vXD+4*k+q}")
            ls.append(f"v_and_b32 v{xb0+8*k+2*q+1}, 0xffff0000, v{vXD+4*k+q}")
    spread(ls, 16 * 24, 16 * 26)
    base = F_LN | F_WT | F_A
    FB, FC = OPT.get("fb", 9), OPT.get("fc", 21)
    flags = {0: (base | F_A2, ["h1"]), FB: (base | F_A2 | F_B, ["kvs", "h2", "h3"]), FC: (base | F_A2 | F_B | F_C, ["os"]),
             EXF: (base | F_A2 | F_B | F_C | F_E, ["ex"])}
    checks = {check_pos(first_at[8]): (F_A2, MASK_R, vPollR), check_pos(first_at[16]): (F_B, MASK_R | MASK_U, vPollH),
              check_pos(first_at[28]): (F_C, MASK_R, vPollR), check_pos(EXL): (F_E, MASK_R, vPollE)}
    print("checks at", sorted((c // 16, c % 16) for c in checks), file=sys.stderr)
    Y = OPT.get("y", 0)
    if Y & 1: checks = {k: v for k, v in checks.items() if v[0] == F_C}
    if Y & 2: flags = {k: v for k, v in flags.items() if k == 19}
    if Y & 4:
        for k in list(extra):
            if any(isinstance(x, tuple) and x[1] == "kvg" for x in extra[k]) and k != 16 * 12 + 2: del extra[k]
    if Y & 8:
        for k in list(extra):
            if any(isinstance(x, tuple) and x[1] == "x" for x in extra[k]) and k != 16 * 27 + 2: del extra[k]
    if Y & 16:
        for k in fill: fill[k] = [x for x in fill[k] if isinstance(x, tuple) or not x.startswith(("v_pk", "v_exp", "v_rcp", "v_acc", "v_cvt", "v_max"))]
    for c, (bit, mask, va) in checks.items():
        pc = c - OPT.get("pdist", 19)
        extra.setdefault(pc, []).append(f"#poll {c} {va}")
    def bread(n, F, a):
        q, j = F // 4, F % 4
        sl = n % G2_R
        return (f"ds_read_b64_tr_b16 {BR(F % 8).sub(2*a, 2)}, v{vR[sl // 4][j]} offset:{(sl % 4) * G2_SLOT + 4096*q + 2048*a}", f"b{n}_{F}")
    for F in range(LA):
        for a in range(2): put(bread(0, F, a))
    stamp(A, 5, 1); stamp(A, 1, 3); stamp(A, 5, 4)
    for n in range(36):
        for F in range(16):
            q, j = F * nq(n) // 16, F % 4
            accb = ACCS if n >= 28 else (ACCP if (n < NS and (F >> 2) & 1) else ACCF)
            c = 16 * n + F
            wv, wl = [], []
            if F % 2 == 0: wl = [f"b{n}_{F}", f"b{n}_{F+1}"]
            if j == 0: wv = [f"A{n}q{q}"]
            if F == 10 and n < 35:
                wv += [f"B{n+1}"] + (flags[n][1] if n in flags else [])
                wl += barrier_lg.get(n, [])
            waitfor(vm=wv, lg=wl)
            if F == 10 and n < 35:
                A("s_barrier")
                if n in flags: flag_set(flags[n][0])
            order = (0, 1) if (F % 2 == 0 or not OPT.get("snake")) else (1, 0)
            m = lambda i: f"v_mfma_f32_16x16x32_bf16 v[{accb+16*i+4*j}:{accb+16*i+4*j+3}], {BR(F % 8)}, {AR(ch0[n] + q, i)}, v[{accb+16*i+4*j}:{accb+16*i+4*j+3}]"
            nn, nF = (n, F + LA) if F + LA < 16 else (n + 1, F + LA - 16)
            A(m(order[0]))
            if nn < 36: put(bread(nn, nF, 0))
            A(m(order[1]))
            if nn < 36: put(bread(nn, nF, 1))
            if c in asched:
                for x in aop(*asched[c]): put(x)
            if F in (3, 7) and n + LB - 1 < 36:
                for x in bop(n + LB - 1, 2 + F // 4): put(x)
            if F in (11, 15) and n + LB < 36:
                for x in bop(n + LB, F // 4 - 2): put(x)
            for x in extra.get(c, []): put(x)
            for x in fill.get(c, []): put(x)
            if c in checks:
                bit, mask, va = checks[c]
                A(f"s_cmp_eq_u32 s{sW}, 0"); A(f"s_cbranch_scc0 M_nc{c}")
                poll_check(bit, mask, len(vm) - pmark[c], va)
                if bit != F_C: A.label(f"M_nc{c}")
                if bit == F_C:
                    A(f"""
                    s_or_b32 s{sTm}, s2, s{sW}
                    s_cmp_eq_u32 s{sTm}, 0
                    s_cbranch_scc0 M_nobump
                    v_mov_b32 v{vT}, s{sTag}
                    s_mov_b32 s{sTm}, {EPOCH}
                    s_mov_b64 exec, 1
                    buffer_store_dword v{vT}, off, s[{sSF}:{sSF+3}], s{sTm} sc1
                    s_mov_b64 exec, -1
                    """)
                    A.label("M_nobump"); A.label(f"M_nc{c}")
        if n in (3, 7, 11, 19, 31): stamp(A, {3: 2, 7: 3, 11: 4, 19: 5, 31: 6}[n], 3)
        if n in (19, 21, 23, 25, 27, 29): stamp(A, (n - 17) // 2, 5)
        if n in (11, 13, 15, 17, 19, 21): stamp(A, (n - 9) // 2, 6)
    A("s_nop 4")
    for i in range(2):
        for pr in range(2):
            for r in range(0, 8, 2):
                t = 16 * i + 8 * pr + r
                A(f"v_pk_mul_f32 v[{ACCS+t}:{ACCS+t+1}], v[{ACCS+t}:{ACCS+t+1}], v[{ACCF+t}:{ACCF+t+1}]")
    for i in range(2):
        for pr in range(2):
            t0 = ACCS + 16 * i + 8 * pr; t1 = t0 + 4
            x = vXD + 8 * i + 4 * pr; xb = xb0 + 8 * (2 * i + pr)
            for r in range(4):
                A(f"v_permlane16_swap_b32 v{t0+r}, v{t1+r}")
            for q in range(4):
                A(f"v_pk_add_f32 v[{t0+2*q}:{t0+2*q+1}], v[{t0+2*q}:{t0+2*q+1}], v[{xb+2*q}:{xb+2*q+1}]")
            for q in range(4):
                A(f"v_cvt_pk_bf16_f32 v{x+q}, v{t0+2*q}, v{t0+2*q+1}")
            A(f"buffer_store_dwordx4 v[{x}:{x+3}], v{vXO}, s[{sSO}:{sSO+3}], s{sX0+i} offen offset:{64*pr}")
    stamp(A, 6, 1)
    if OPT["stamp"]:
        A("s_memrealtime s[100:101]")
        A("s_waitcnt lgkmcnt(0)")
        srd(A, 16, 14, 15, 0x10000, STAMP_OFF + 0x10000)
        A(f"s_lshl_b32 s{sT}, s2, 2"); A(f"s_add_u32 s{sT}, s{sT}, s{sW}"); A(f"s_lshl_b32 s{sT}, s{sT}, 6")
        A(f"v_mov_b32 v0, s{sT}")
        for i, r in enumerate(SREG):
            A(f"v_mov_b32 v1, s{r}"); A(f"buffer_store_dword v1, v0, s[16:19], 0 offen offset:{4*i}")
        A(f"v_mov_b32 v1, s100"); A(f"buffer_store_dword v1, v0, s[16:19], 0 offen offset:56")
        A(f"v_mov_b32 v1, s99"); A(f"buffer_store_dword v1, v0, s[16:19], 0 offen offset:60")
    A.label("M_end")
    A("s_endpgm")
    return A.text()

def build():
    K = NAME + "_kernel"
    hdr = open(f"cdna_kernels/{NAME}.s.ref").read().split("; Override")[0]
    out = [hdr.rstrip("\n")]
    if OPT.get("list"):
        out.append(f"; @launch kernel={K} grid=(256,1,1) block=(256,1,1) lds={LDS_BYTES}")
    else:
        out.append(f"; @launch grid=(256,1,1) block=(256,1,1) lds={LDS_BYTES}")
    out.append('.amdgcn_target "amdgcn-amd-amdhsa--gfx950"')
    out.append(".text")
    body, size = align_kernel(gen())
    for p in check_hazards(body): print("HAZARD", p, file=sys.stderr)
    print("code bytes", size, file=sys.stderr)
    assert size < 65536
    out.append(body.rstrip("\n"))
    out.append(".p2align 8")
    out.append(f".fill {(66560 - size) // 4}, 4, 0xbf810000")
    out.append(f""".section .rodata,"a"
.p2align 6
.amdhsa_kernel {K}
  .amdhsa_next_free_vgpr 512
  .amdhsa_next_free_sgpr 102
  .amdhsa_accum_offset 256
  .amdhsa_group_segment_fixed_size 0
  .amdhsa_kernarg_size 80
  .amdhsa_user_sgpr_count 2
  .amdhsa_user_sgpr_kernarg_segment_ptr 1
  .amdhsa_system_sgpr_workgroup_id_x 1
.end_amdhsa_kernel""")
    return "\n".join(out) + "\n"

if __name__ == "__main__":
    for a in sys.argv[2:]:
        k, v = a.split("="); OPT[k] = int(v)
    WS_BASE = OPT.get('wsb', 0) << 20
    LSTR = OPT.get('lstr', LSTR); FLG_SIZE = 33 * LSTR; EPOCH = 32 * LSTR
    XF_OFF += WS_BASE; HF_OFF += WS_BASE; KVP_OFF += WS_BASE; WT_OFF += WS_BASE; FLG_OFF += WS_BASE; EX_OFF += WS_BASE
    open(sys.argv[1], "w").write(build())
```

```python
import sys, struct, re
from asmlib import *

NAME = "recurrent_scan__linear_attn_block__swiglu_ffn__prompt"
XF_OFF = 0x0
HF_OFF = 0x400000
HF_SIZE = 144 * 131072
KVP_OFF = 0x1600000
KVP_SIZE = 32 * 8 * 6144
WT_OFF = 0x1C00000
WT_SIZE = 144 * 65536
FLG_OFF = 0x2800000
LSTR = 128
FLG_SIZE = 33 * LSTR
EPOCH = 32 * LSTR
STAMP_OFF = 0x3000000
EX_OFF = 0x3400000
EX_SIZE = 256 * 32768

def f2u(x): return struct.unpack("<I", struct.pack("<f", x))[0]
LOG2E = 1.4426950408889634
OPT = dict(stamp=0, align=1, snake=1, unpk=1, e0n=48)

G1_S, G1_SLOT = 5, 20480
KVL = G1_S * G1_SLOT
G2_R, G2_SLOT = 6, 16384
FIN = 131072
LDS_BYTES = FIN + 4096
F_LN, F_WT, F_A, F_A2, F_E, F_B, F_C = 1, 2, 4, 8, 16, 32, 64

def srd(A, d, lo, hi, size, off=0):
    if off:
        A(f"s_add_u32 s{d}, s{lo}, 0x{off:x}")
        A(f"s_addc_u32 s{d+1}, s{hi}, 0")
    else:
        A(f"s_mov_b32 s{d}, s{lo}")
        A(f"s_mov_b32 s{d+1}, s{hi}")
    A(f"s_mov_b32 s{d+2}, 0x{size:x}")
    A(f"s_mov_b32 s{d+3}, 0x00020000")

SREG = [6, 7, 86, 87, 96, 97, 98]
def stamp(A, idx, mode):
    if OPT["stamp"] != mode: return
    A("s_memrealtime s[100:101]" if OPT.get("rt") else "s_memtime s[100:101]")
    A("s_waitcnt lgkmcnt(0)")
    A(f"s_mov_b32 s{SREG[idx]}, s100")

def interleave(A, groups, work):
    per = -(-len(work) // len(groups)); wi = 0
    for grp in groups:
        for l in grp: A(l)
        for l in work[wi:wi + per]: A(l)
        wi += per
    for l in work[wi:]: A(l)

def lines(B): return [l.strip() for l in B.lines]

def gen():
    A = Asm()
    K = NAME + "_kernel"
    A.raw(f".globl {K}\n.p2align 8\n.type {K},@function\n{K}:")
    if OPT["align"]: A.raw("    ; @align on")
    vX, vD, vA0, vA1, vAG, vB0, vB1, vBG, vL16 = 1, [2, 3, 4, 5, 6], 7, 8, 9, 10, 11, 12, 13
    vT = 14
    vPollR, vPv, vCd, vPollW, vPollH, vCs, vDum = 17, 18, 16, 20, 21, 22, 23
    vTq, vTg = 20, 21
    names = ["g0", "u0", "g1", "u1", "k0", "k1", "v0", "v1", "q0", "q1"]
    for t in range(2, 7): names += [f"g{t}", f"u{t}"]
    acc = {}
    nv = 24; na = 0
    for nm in ["k0", "k1", "v0", "v1"] + [f"g{t}" for t in range(7)]:
        for i in range(4):
            acc[(nm, i)] = Reg('v', nv); nv += 4
    for t in range(7):
        for i in range(4):
            if t * 4 + i < 14:
                acc[(f"u{t}", i)] = Reg('v', nv); nv += 4
            else:
                acc[(f"u{t}", i)] = Reg('a', na); na += 4
    for nm in ["q0", "q1"]:
        for i in range(4):
            acc[(nm, i)] = Reg('a', na); na += 4
    assert nv == 256 and na == 88
    XR = lambda s, i: Reg('a', 88 + 16 * s + 4 * i)
    WR = lambda p: Reg('a', 152 + 4 * p)
    accm = acc
    if OPT.get("classic"):
        accm = {}; k = 0
        for nm in names:
            for i in range(4):
                accm[(nm, i)] = Reg('a', 4 * k) if k < 52 else Reg('v', 24 + 4 * (k - 52)); k += 1
        XR = lambda s, i: Reg('v', 136 + 16 * s + 4 * i)
        WR = lambda p: Reg('v', 200 + 4 * p)
    PT = lambda t: Reg('a', 88 + 4 * t)
    CT = lambda k: Reg('a', 208 + 4 * k)
    sSX, sSD = 16, [20, 24, 28, 32, 36]
    sSCs, sSCd, sSF = 40, 72, 92
    sST = [76, 80, 44]
    sW, sHD, sRB, sXo, sWoA, sWoB, sStA, sStB, sM, sR, sCnt = 48, 49, 50, 51, 52, 53, 54, 55, 56, 57, 58
    sSLOT, sREND, sMEND, sM0, sCl, sCs = 59, 60, 61, 62, 63, 3
    sToq, sTog, sFo, sSpin, sTag, sTm = 88, 89, 90, 91, 12, 13
    sT = 64
    uid = [0]
    def flag_set(val):
        uid[0] += 1; L = f"M_fs{uid[0]}"
        A(f"""
        s_cmp_eq_u32 s{sW}, 0
        s_cbranch_scc0 {L}
        v_mov_b32 v{vT}, s{sTag}
        v_mov_b32 v{vT+1}, {val}
        s_mov_b64 exec, 1
        buffer_store_dwordx2 v[{vT}:{vT+1}], off, s[{sSF}:{sSF+3}], s{sFo} sc1
        s_mov_b64 exec, -1
        """)
        A.label(L)
    def poll_issue(vaddr):
        return f"buffer_load_dwordx2 v[{vPv}:{vPv+1}], v{vaddr}, s[{sSF}:{sSF+3}], 0 offen sc1"
    MASK_R, MASK_U = 0x00000000ffffffff, 0xffffffff00000000
    def poll_eval(E, bit):
        E(f"""
        v_xor_b32 v{vT}, s{sTag}, v{vPv}
        v_bfe_u32 v{vT+1}, v{vPv+1}, {bit.bit_length()-1}, 1
        v_xor_b32 v{vT+1}, 1, v{vT+1}
        v_or_b32 v{vT}, v{vT}, v{vT+1}
        v_cmp_ne_u32 vcc, 0, v{vT}
        s_nop 3
        """)
    def repoll(L, va=None, slp=None):
        if slp is None: slp = OPT.get('sleep', 8)
        A(f"""
        s_add_u32 s{sSpin}, s{sSpin}, 1
        s_cmp_ge_u32 s{sSpin}, 0x40000
        s_cbranch_scc1 {L}_ok
        s_sleep {slp}
        {poll_issue(vPollR if va is None else va)}
        s_waitcnt vmcnt(0)
        s_branch {L}
        """)
    def poll_check(bit, mask, vm=None, va=None, slp=None):
        uid[0] += 1; L = f"M_pc{uid[0]}"
        if vm is not None: A(f"s_waitcnt vmcnt({vm})")
        A(f"s_mov_b32 s{sSpin}, 0")
        A.label(L)
        poll_eval(A, bit)
        lo, hi = mask & 0xffffffff, mask >> 32
        if hi == 0:
            A(f"s_cmp_eq_u32 vcc_lo, 0")
        elif lo == 0:
            A(f"s_and_b32 s{sTm}, vcc_hi, 0x{hi:x}"); A(f"s_cmp_eq_u32 s{sTm}, 0")
        else:
            A(f"s_and_b32 s{sTm}, vcc_hi, 0x{hi:x}"); A(f"s_or_b32 s{sTm}, s{sTm}, vcc_lo"); A(f"s_cmp_eq_u32 s{sTm}, 0")
        A(f"s_cbranch_scc1 {L}_ok")
        repoll(L, va, slp)
        A.label(L + "_ok")
    def cond_poll(cmp, va):
        uid[0] += 1; L = f"M_cp{uid[0]}"
        return cmp + [f"s_cbranch_scc0 {L}", poll_issue(va), L + ":"]
    def emit(ls):
        for l in ls:
            if l.endswith(":"): A.label(l[:-1])
            else: A(l)
    def lack_mask(E):
        poll_eval(E, F_A)
        E(f"""
        s_lshr_b32 s{sTm}, vcc_lo, 16
        s_or_b32 s{sLack}, s{sTm}, vcc_lo
        s_lshr_b32 s{sTm}, s{sLack}, 8
        s_or_b32 s{sLack}, s{sLack}, s{sTm}
        s_and_b32 s{sLack}, s{sLack}, 0xff
        """)
    def stage_gate(ssig):
        uid[0] += 1; L = f"M_sg{uid[0]}"
        A(f"s_bitcmp0_b32 s{sLack}, s{ssig}")
        A(f"s_cbranch_scc1 {L}_ok")
        A(f"s_mov_b32 s{sSpin}, 0")
        A(poll_issue(vPollR)); A("s_waitcnt vmcnt(0)")
        A.label(L)
        lack_mask(A)
        A(f"s_bitcmp0_b32 s{sLack}, s{ssig}")
        A(f"s_cbranch_scc1 {L}_ok")
        repoll(L)
        A.label(L + "_ok")
    A(f"""
    s_cmp_ge_u32 s2, 256
    s_cbranch_scc1 M_end
    """)
    if OPT.get("scramble"):
        A("s_and_b32 s3, s2, 7"); A("s_lshl_b32 s3, s3, 3"); A("s_bfe_u32 s4, s2, 0x30003"); A("s_and_b32 s2, s2, 0xc0")
        A("s_or_b32 s2, s2, s3"); A("s_or_b32 s2, s2, s4")
    if OPT["stamp"]:
        A("s_memrealtime s[100:101]"); A("s_waitcnt lgkmcnt(0)"); A("s_mov_b32 s99, s100")
        A("s_memrealtime s[100:101]" if OPT.get("rt") else "s_memtime s[100:101]"); A("s_waitcnt lgkmcnt(0)"); A(f"s_mov_b32 s{SREG[0]}, s100")
    A(f"""
    s_load_dwordx4 s[68:71], s[0:1], 0
    s_load_dwordx4 s[8:11], s[0:1], 32
    s_load_dwordx4 s[12:15], s[0:1], 64
    s_load_dwordx2 s[84:85], s[0:1], 16
    s_load_dwordx2 s[{sSCs}:{sSCs+1}], s[0:1], 48
    s_getpc_b64 s[{sT+2}:{sT+3}]
    s_and_b32 s{sT+2}, s{sT+2}, 0xffffff00
    s_bfe_u32 s{sT}, s2, 0x30003
    s_lshl_b32 s{sT}, s{sT}, 12
    v_lshrrev_b32 v{vT}, 3, v0
    v_lshlrev_b32 v{vT}, 7, v{vT}
    v_add_u32 v{vT}, s{sT}, v{vT}
    global_load_dword v{vDum}, v{vT}, s[{sT+2}:{sT+3}]
    v_lshrrev_b32 v{vT}, 6, v0
    v_and_b32 v0, 63, v0
    v_readfirstlane_b32 s{sW}, v{vT}
    s_and_b32 s{sT}, s2, 7
    s_lshr_b32 s{sT+1}, s2, 3
    s_and_b32 s{sRB}, s{sT+1}, 7
    s_lshr_b32 s{sT+1}, s{sT+1}, 3
    s_lshl_b32 s{sHD}, s{sT}, 2
    s_add_u32 s{sHD}, s{sHD}, s{sT+1}
    v_lshlrev_b32 v{vL16}, 4, v0
    s_lshl_b32 s{sFo}, s{sRB}, 5
    s_add_u32 s{sFo}, s{sFo}, s{sHD}
    """)
    lX, lF, lS, lR, lA = 32, 48, 80, 88, 112
    A(f"""
    v_and_b32 v{lA}, 7, v0
    v_lshrrev_b32 v{lA+1}, 3, v0
    v_lshlrev_b32 v{lA+2}, 11, v{lA}
    v_lshl_add_u32 v{lA+2}, v{lA+1}, 4, v{lA+2}
    s_lshl_b32 s{sT}, s{sFo}, 14
    s_lshl_b32 s{sT+1}, s{sW}, 9
    s_add_u32 s{sT}, s{sT}, s{sT+1}
    v_add_u32 v{lA+2}, s{sT}, v{lA+2}
    s_waitcnt lgkmcnt(0)
    """)
    srd(A, sSX, 68, 69, 0x400000)
    for n in range(4):
        A(f"buffer_load_dwordx4 v[{lX+4*n}:{lX+4*n+3}], v{lA+2}, s[{sSX}:{sSX+3}], 0 offen offset:{128*n}")
    A(f"v_and_b32 v{lA+6}, 0xfffff800, v{lA+2}")
    A(f"buffer_load_ushort v{lA+7}, v{lA+6}, s[{sSX}:{sSX+3}], 0 offen")
    A("s_mov_b32 s4, s70"); A("s_mov_b32 s5, s71")
    srd(A, sSF, 14, 15, FLG_SIZE, FLG_OFF)
    A(f"s_mov_b32 s{sT}, {EPOCH}")
    A(f"buffer_load_dword v{vPv}, off, s[{sSF}:{sSF+3}], s{sT} sc1")
    A(f"""
    s_lshr_b32 s{sT}, s2, 3
    s_lshl_b32 s{sT}, s{sT}, 2
    s_add_u32 s{sT}, s{sT}, s{sW}
    s_lshl_b32 s{sT}, s{sT}, 1
    s_and_b32 s{sT+1}, s2, 7
    s_mul_i32 s{sT+2}, s{sT}, 7168
    s_mul_i32 s{sT+3}, s{sT+1}, 896
    s_add_u32 s{sT+2}, s{sT+2}, s{sT+3}
    s_mul_i32 s{sT+3}, s{sT}, 6144
    s_lshl_b32 s{sT+1}, s{sT+1}, 8
    s_add_u32 s{sT+3}, s{sT+3}, s{sT+1}
    v_cmp_le_u32 vcc, 7, v0
    v_lshlrev_b32 v{vTg}, 7, v0
    v_mov_b32 v{vT}, {7168-7*128}
    v_cndmask_b32 v{vT}, 0, v{vT}, vcc
    v_add3_u32 v{vTg}, v{vTg}, v{vT}, s{sT+2}
    v_cmp_le_u32 vcc, 14, v0
    v_mov_b32 v{vT}, 0x70000000
    v_lshrrev_b32 v{vT+1}, 1, v0
    v_cndmask_b32 v{vTg}, v{vTg}, v{vT}, vcc
    v_and_b32 v{vTq}, 1, v0
    v_lshlrev_b32 v{vTq}, 7, v{vTq}
    v_lshl_add_u32 v{vTq}, v{vT+1}, 11, v{vTq}
    v_cmp_le_u32 vcc, 12, v0
    v_add_u32 v{vTq}, s{sT+3}, v{vTq}
    s_mov_b32 s{sToq}, 0
    v_cndmask_b32 v{vTq}, v{vTq}, v{vT}, vcc
    s_mov_b32 s{sTog}, 0
    """)
    srd(A, sST[0], 4, 5, 1024 * 6144)
    srd(A, sST[1], 8, 9, 1024 * 7168)
    srd(A, sST[2], 10, 11, 1024 * 7168)
    def touch(s):
        v = [vTq, vTg, vTg][s]; so = [sToq, sTog, sTog][s]
        return f"buffer_load_dword v{vDum}, v{v}, s[{sST[s]}:{sST[s]+3}], s{so} offen"
    TROW = 1
    TS = OPT.get("ts", 1)
    onerow = f"""
        s_lshr_b32 s{sTm}, s2, 3
        s_lshl_b32 s{sTm}, s{sTm}, 2
        s_add_u32 s{sTm}, s{sTm}, s{sW}
        s_sub_u32 s{sTm}, ROW0, s{sTm}
        s_mul_i32 s{sToq}, s{sTm}, 6144
        s_mul_i32 s{sTog}, s{sTm}, 7168
        v_mov_b32 v{vT}, 0x70000000
        v_cmp_le_u32 vcc, 7, v0
        s_nop 1
        v_cndmask_b32 v{vTg}, v{vTg}, v{vT}, vcc
        v_cmp_le_u32 vcc, 6, v0
        s_nop 1
        v_cndmask_b32 v{vTq}, v{vTq}, v{vT}, vcc
        """
    tadv = [f"s_add_u32 s{sToq}, s{sToq}, {128*6144}", f"s_add_u32 s{sTog}, s{sTog}, {128*7168}"]
    A(onerow.replace("ROW0", "0"))
    A(f"v_add_u32 v{vTq}, s{sToq}, v{vTq}"); A(f"v_add_u32 v{vTg}, s{sTog}, v{vTg}")
    A(f"s_mov_b32 s{sToq}, 0"); A(f"s_mov_b32 s{sTog}, 0")
    if TS == 3:
        for k in range(3): A(touch(k))
        for l in tadv: A(l)
    NY = 2 + (3 if TS == 3 else 0)
    stamp(A, 1, 2)
    A(f"""
    v_lshrrev_b32 v{lA+8}, 4, v0
    v_bfe_u32 v{lA+9}, v0, 2, 2
    v_lshl_add_u32 v{lA+10}, v{lA+8}, 3, v{lA+9}
    v_mul_u32_u24 v{lA+10}, 6144, v{lA+10}
    v_bfe_u32 v{lA+11}, v0, 1, 1
    v_and_b32 v{lA+12}, 1, v{lA+8}
    v_xor_b32 v{lA+11}, v{lA+11}, v{lA+12}
    v_lshl_add_u32 v{lA+10}, v{lA+11}, 5, v{lA+10}
    v_and_b32 v{lA+11}, 1, v0
    v_lshl_add_u32 v{lA+10}, v{lA+11}, 4, v{lA+10}
    s_mul_i32 s{sT+2}, s{sW}, 5
    s_and_b32 s{sT+3}, s{sHD}, 1
    s_lshl_b32 s{sT+3}, s{sT+3}, 1
    s_mul_i32 s{sT+4}, s{sHD}, 224
    """)
    t3, t4, t5, t6, t7 = lA + 11, lA + 12, lA + 13, lA + 14, lA + 15
    for i in range(5):
        d = sSD[i]
        A(f"""
        s_add_u32 s{sT+5}, s{sT+2}, {i}
        s_cmp_lt_u32 s{sT+5}, 6
        s_cbranch_scc0 M_gu{i}
        s_lshr_b32 s{sT+6}, s{sT+5}, 1
        s_lshl_b32 s{sT+6}, s{sT+6}, 11
        s_and_b32 s{sT+7}, s{sT+5}, 1
        s_mul_i32 s{sT+7}, s{sT+7}, 24576
        s_add_u32 s{sT+6}, s{sT+6}, s{sT+7}
        s_lshl_b32 s{sT+7}, s{sHD}, 6
        s_add_u32 s{sT+6}, s{sT+6}, s{sT+7}
        v_add_u32 v{vD[i]}, s{sT+6}, v{lA+10}
        s_mov_b32 s{d}, s4
        s_mov_b32 s{d+1}, s5
        s_mov_b32 s{d+2}, {1024*6144}
        s_mov_b32 s{sStA if i == 0 else sStB}, {32*6144}
        s_branch M_dn{i}
        """)
        A.label(f"M_gu{i}")
        A(f"""
        s_sub_u32 s{sT+6}, s{sT+5}, 6
        s_sub_u32 s{sT+7}, s{sT+5}, 13
        s_cmp_lt_u32 s{sT+5}, 13
        s_cselect_b32 s{sT+6}, s{sT+6}, s{sT+7}
        s_cselect_b32 s{d}, s8, s10
        s_cselect_b32 s{d+1}, s9, s11
        s_mov_b32 s{d+2}, {1024*7168}
        s_mov_b32 s{sStA if i == 0 else sStB}, {32*7168}
        s_lshl_b32 s{sT+6}, s{sT+6}, 6
        v_add_u32 v{t3}, s{sT+6}, v0
        v_mul_u32_u24 v{t4}, 4682, v{t3}
        v_lshrrev_b32 v{t4}, 16, v{t4}
        v_mul_u32_u24 v{t5}, 14, v{t4}
        v_sub_u32 v{t5}, v{t3}, v{t5}
        v_add_u32 v{t5}, s{sT+3}, v{t5}
        v_subrev_u32 v{t6}, 14, v{t5}
        v_min_u32 v{t5}, v{t5}, v{t6}
        v_bfe_u32 v{t6}, v{t4}, 2, 2
        v_lshrrev_b32 v{t7}, 4, v{t4}
        v_and_b32 v{t4}, 3, v{t4}
        v_lshl_add_u32 v{t4}, v{t6}, 3, v{t4}
        v_lshl_add_u32 v{t4}, v{t7}, 2, v{t4}
        v_mul_u32_u24 v{t4}, 7168, v{t4}
        v_lshl_add_u32 v{t4}, v{t5}, 4, v{t4}
        v_add_u32 v{vD[i]}, s{sT+4}, v{t4}
        """)
        A.label(f"M_dn{i}")
        A(f"s_mov_b32 s{d+3}, 0x00020000")
    A(f"""
    s_lshr_b32 s{sT}, s{sFo}, 1
    s_lshl_b32 s{sT}, s{sT}, 10
    s_and_b32 s{sT+1}, s{sFo}, 1
    s_lshl_b32 s{sT+1}, s{sT+1}, 7
    s_add_u32 s{sT}, s{sT}, s{sT+1}
    s_lshl_b32 s{sT+1}, s{sW}, 20
    s_add_u32 s{sT}, s{sT}, s{sT+1}
    v_lshrrev_b32 v{lA+3}, 2, v{lA+1}
    v_lshlrev_b32 v{lA+3}, 17, v{lA+3}
    v_and_b32 v{lA+4}, 3, v{lA+1}
    v_lshl_add_u32 v{lA+3}, v{lA+4}, 8, v{lA+3}
    v_lshl_add_u32 v{lA+3}, v{lA}, 4, v{lA+3}
    v_add_u32 v{lA+3}, s{sT}, v{lA+3}
    v_lshlrev_b32 v{lA+5}, 6, v{lA}
    v_add_u32 v{lA+5}, {KVL}, v{lA+5}
    s_lshl_b32 s{sT}, s{sW}, 4
    v_lshl_add_u32 v{lA+4}, v{lA+8}, 2, v{lA+5}
    v_add_u32 v{lA+4}, s{sT}, v{lA+4}
    """)
    srd(A, sSX, 14, 15, 0x400000, XF_OFF)
    A(f"s_lshr_b32 s{sFo}, s2, 3"); A(f"s_mul_i32 s{sFo}, s{sFo}, {LSTR}"); A(f"s_and_b32 s{sT}, s2, 7"); A(f"s_lshl_b32 s{sT}, s{sT}, 4"); A(f"s_add_u32 s{sFo}, s{sFo}, s{sT}")
    def dma(i):
        return [f"s_add_u32 m0, s{sM}, 0x{1024*(i+1):x}",
                f"buffer_load_dwordx4 v{vD[i]}, s[{sSD[i]}:{sSD[i]+3}], s{sWoA if i == 0 else sWoB} offen lds"]
    def xload(s, i):
        return f"buffer_load_dwordx4 {XR(s, i)}, v{vX}, s[{sSX}:{sSX+3}], s{sXo} offen offset:{1024*i} sc1"
    wadv = [f"s_add_u32 s{sM}, s{sM}, s{sSLOT}", f"s_add_u32 s{sWoA}, s{sWoA}, s{sStA}", f"s_add_u32 s{sWoB}, s{sWoB}, s{sStB}"]
    def wgroups(adv):
        L = []
        for i in range(5):
            m, l = dma(i)
            L.append((wadv if (i == 0 and adv) else []) + [m, "s_nop 0", l])
        return L
    def xgroups(t):
        return [[xload(t, i)] + ([f"s_add_u32 s{sXo}, s{sXo}, 0x20000"] if i == 3 else []) for i in range(4)]
    A(f"""
    s_mov_b32 s{sXo}, 0
    s_mul_i32 s{sM0}, s{sW}, 5120
    s_sub_u32 s{sM0}, s{sM0}, 1024
    s_mov_b32 s{sM}, s{sM0}
    s_mov_b32 s{sWoA}, 0
    s_mov_b32 s{sWoB}, 0
    s_mov_b32 s{sSLOT}, {G1_SLOT}
    """)
    B = Asm()
    B(f"""
    s_lshl_b32 s{sT}, s{sRB}, 14
    s_lshl_b32 s{sT+1}, s{sW}, 12
    s_add_u32 s{sT}, s{sT}, s{sT+1}
    v_add_u32 v{vX}, s{sT}, v{vL16}
    s_lshl_b32 s{sT}, s{sRB}, 3
    v_and_b32 v{vPollR}, 7, v0
    v_bfe_u32 v{t3}, v0, 3, 2
    v_lshl_add_u32 v{vPollR}, v{t3}, 6, v{vPollR}
    v_add_u32 v{vPollR}, s{sT}, v{vPollR}
    v_and_b32 v{vT}, 7, v{vPollR}
    v_lshrrev_b32 v{vPollR}, 3, v{vPollR}
    v_mul_u32_u24 v{vPollR}, {LSTR}, v{vPollR}
    v_lshl_add_u32 v{vPollR}, v{vT}, 4, v{vPollR}
    v_lshrrev_b32 v{t3}, 2, v0
    v_and_b32 v{t4}, 3, v0
    v_lshlrev_b32 v{t4}, 3, v{t4}
    v_lshl_add_u32 v{vB0}, v{t3}, 6, v{t4}
    v_and_b32 v{t5}, 1, v{lA+8}
    v_lshl_add_u32 v{vB0}, v{t5}, 5, v{vB0}
    v_xor_b32 v{vB1}, 32, v{vB0}
    v_mul_u32_u24 v{vBG}, 224, v{t3}
    v_add_u32 v{vBG}, v{vBG}, v{t4}
    v_mov_b32 v{vA0}, v{vB0}
    v_mov_b32 v{vA1}, v{vB1}
    v_mov_b32 v{vAG}, v{vBG}
    s_mov_b32 s{sR}, 0
    s_mov_b32 s{sCnt}, 0
    s_mov_b32 s{sREND}, {G1_S*G1_SLOT}
    s_add_u32 s{sMEND}, s{sM0}, s{sREND}
    """)
    B(f"""
    s_lshl_b32 s{sT}, s2, 2
    s_add_u32 s{sT}, s{sT}, s{sW}
    s_lshl_b32 s{sT}, s{sT}, 10
    v_add_u32 v{vCd}, s{sT}, v{vL16}
    v_lshrrev_b32 v{t3}, 3, v0
    v_bfe_u32 v{t4}, v0, 1, 2
    v_bfe_u32 v{t5}, v0, 4, 2
    v_xor_b32 v{t4}, v{t4}, v{t5}
    v_lshlrev_b32 v{t3}, 11, v{t3}
    v_lshl_add_u32 v{t3}, v{t4}, 5, v{t3}
    v_and_b32 v{t4}, 1, v0
    v_lshl_add_u32 v{t3}, v{t4}, 4, v{t3}
    s_lshl_b32 s{sT}, s{sW}, 14
    s_and_b32 s{sT+1}, s2, 15
    s_lshl_b32 s{sT+1}, s{sT+1}, 7
    s_add_u32 s{sT}, s{sT}, s{sT+1}
    v_add_u32 v{vCs}, s{sT}, v{t3}
    s_lshr_b32 s{sT+1}, s2, 4
    s_mul_i32 s{sT}, s{sT+1}, 7
    s_add_u32 s{sCl}, s{sT}, 1
    s_lshr_b32 s{sCl}, s{sCl}, 1
    s_lshl_b32 s{sCl}, s{sCl}, 16
    s_add_u32 s{sT}, s{sT}, 3
    s_lshl_b32 s{sT}, s{sT}, 16
    s_lshl_b32 s{sT+1}, s{sT+1}, 16
    s_add_u32 s{sT+2}, s{sT+1}, 0x100000
    s_mov_b32 s{sCs}, 0x{(-2 << 20) & 0xffffffff:x}
    s_mov_b32 s{sSCs+2}, {3584*2048}
    s_mov_b32 s{sSCs+3}, 0x00020000
    """)
    sT6, sT7, sT8 = sT, sT + 1, sT + 2
    for l in lines(B): A(l)
    lW, lRd, lSt = lA + 4, lA + 5, lA + 3
    for n in range(4):
        A(f"s_waitcnt vmcnt({3-n+NY})")
        for q in range(4):
            s = lX + 4 * n + q; d = lF + 8 * n + 2 * q
            A(f"v_lshlrev_b32 v{d}, 16, v{s}")
            A(f"v_and_b32 v{d+1}, 0xffff0000, v{s}")
    stamp(A, 2, 2)
    A(f"s_waitcnt vmcnt({NY - 1})")
    if TS in (1, 3, 4):
        for k in range(3): A(touch(k))
        for l in tadv: A(l)
    lM, lMb, lT, lQ = lS + 4, lS + 6, 104, 108
    A(f"""
    v_lshlrev_b32 v{lA+7}, 16, v{lA+7}
    v_sub_f32 v{lM}, 0, v{lA+7}
    v_mov_b32 v{lM+1}, v{lM}
    """)
    for q in range(0, 16, 2):
        d0 = (lS, lS + 2) if q == 0 else (lT, lT + 2)
        A(f"v_pk_add_f32 v[{d0[0]}:{d0[0]+1}], v[{lF+2*q}:{lF+2*q+1}], v[{lM}:{lM+1}]")
        A(f"v_pk_add_f32 v[{d0[1]}:{d0[1]+1}], v[{lF+2*q+2}:{lF+2*q+3}], v[{lM}:{lM+1}]")
        if q == 0:
            A(f"v_pk_mul_f32 v[{lQ}:{lQ+1}], v[{lS}:{lS+1}], v[{lS}:{lS+1}]")
            A(f"v_pk_mul_f32 v[{lQ+2}:{lQ+3}], v[{lS+2}:{lS+3}], v[{lS+2}:{lS+3}]")
        else:
            A(f"v_pk_fma_f32 v[{lQ}:{lQ+1}], v[{lT}:{lT+1}], v[{lT}:{lT+1}], v[{lQ}:{lQ+1}]")
            A(f"v_pk_fma_f32 v[{lQ+2}:{lQ+3}], v[{lT+2}:{lT+3}], v[{lT+2}:{lT+3}], v[{lQ+2}:{lQ+3}]")
            A(f"v_pk_add_f32 v[{lS}:{lS+1}], v[{lS}:{lS+1}], v[{lT}:{lT+1}]")
            A(f"v_pk_add_f32 v[{lS+2}:{lS+3}], v[{lS+2}:{lS+3}], v[{lT+2}:{lT+3}]")
    r = lR; r2 = 128
    A(f"""
    v_pk_add_f32 v[{lS}:{lS+1}], v[{lS}:{lS+1}], v[{lS+2}:{lS+3}]
    v_pk_add_f32 v[{lQ}:{lQ+1}], v[{lQ}:{lQ+1}], v[{lQ+2}:{lQ+3}]
    v_add_f32 v{lS}, v{lS}, v{lS+1}
    v_add_f32 v{lQ}, v{lQ}, v{lQ+1}
    s_nop 0
    v_add_f32_dpp v{lS}, v{lS}, v{lS} row_ror:8 row_mask:0xf bank_mask:0xf
    v_add_f32_dpp v{lQ}, v{lQ}, v{lQ} row_ror:8 row_mask:0xf bank_mask:0xf
    ds_write_b32 v{lW}, v{lS}
    ds_write_b32 v{lW}, v{lQ} offset:512
    s_waitcnt lgkmcnt(0)
    s_barrier
    """)
    for k in range(4): A(f"ds_read_b128 v[{r+4*k}:{r+4*k+3}], v{lRd} offset:{16*k}")
    for k in range(4): A(f"ds_read_b128 v[{r2+4*k}:{r2+4*k+3}], v{lRd} offset:{512+16*k}")
    for wait, rr in ((4, r), (0, r2)):
        A(f"s_waitcnt lgkmcnt({wait})")
        A(f"""
        v_pk_add_f32 v[{rr}:{rr+1}], v[{rr}:{rr+1}], v[{rr+2}:{rr+3}]
        v_pk_add_f32 v[{rr+4}:{rr+5}], v[{rr+4}:{rr+5}], v[{rr+6}:{rr+7}]
        v_pk_add_f32 v[{rr+8}:{rr+9}], v[{rr+8}:{rr+9}], v[{rr+10}:{rr+11}]
        v_pk_add_f32 v[{rr+12}:{rr+13}], v[{rr+12}:{rr+13}], v[{rr+14}:{rr+15}]
        v_pk_add_f32 v[{rr}:{rr+1}], v[{rr}:{rr+1}], v[{rr+4}:{rr+5}]
        v_pk_add_f32 v[{rr+8}:{rr+9}], v[{rr+8}:{rr+9}], v[{rr+12}:{rr+13}]
        v_pk_add_f32 v[{rr}:{rr+1}], v[{rr}:{rr+1}], v[{rr+8}:{rr+9}]
        v_add_f32 v{rr}, v{rr}, v{rr+1}
        v_mul_f32 v{rr}, 0x{f2u(1.0/1024):x}, v{rr}
        """)
    A(f"""
    v_add_f32 v{lMb}, v{lA+7}, v{lR}
    v_fma_f32 v{lR}, -v{lR}, v{lR}, v{r2}
    v_cvt_pk_bf16_f32 v{lMb}, v{lMb}, v{lMb}
    v_max_f32 v{lR}, 0, v{lR}
    v_lshlrev_b32 v{lMb}, 16, v{lMb}
    """)
    A(f"""
    v_cvt_pk_bf16_f32 v{lR}, v{lR}, v{lR}
    v_lshlrev_b32 v{lR}, 16, v{lR}
    v_add_f32 v{lR}, 0x{f2u(1e-5):x}, v{lR}
    v_cvt_pk_bf16_f32 v{lR}, v{lR}, v{lR}
    v_lshlrev_b32 v{lR}, 16, v{lR}
    v_sqrt_f32 v{lR}, v{lR}
    s_nop 0
    v_cvt_pk_bf16_f32 v{lR}, v{lR}, v{lR}
    v_lshlrev_b32 v{lR}, 16, v{lR}
    v_rcp_f32 v{lR}, v{lR}
    v_sub_f32 v{lM}, 0, v{lMb}
    v_mov_b32 v{lM+1}, v{lM}
    v_mov_b32 v{lR+1}, v{lR}
    s_mov_b32 s{sT+3}, 0
    """)
    for n in range(4):
        for q in range(4):
            d = lF + 8 * n + 2 * q; o = lX + 4 * n + q
            A(f"v_pk_add_f32 v[{d}:{d+1}], v[{d}:{d+1}], v[{lM}:{lM+1}]")
        for q in range(4):
            d = lF + 8 * n + 2 * q; o = lX + 4 * n + q
            A(f"v_cvt_pk_bf16_f32 v{o}, v{d}, v{d+1}")
        for q in range(4):
            d = lF + 8 * n + 2 * q; o = lX + 4 * n + q
            A(f"v_lshlrev_b32 v{d}, 16, v{o}")
            A(f"v_and_b32 v{d+1}, 0xffff0000, v{o}")
        for q in range(4):
            d = lF + 8 * n + 2 * q
            A(f"v_pk_mul_f32 v[{d}:{d+1}], v[{d}:{d+1}], v[{lR}:{lR+1}]")
        for q in range(4):
            d = lF + 8 * n + 2 * q; o = lX + 4 * n + q
            A(f"v_cvt_pk_bf16_f32 v{o}, v{d}, v{d+1}")
        A(f"buffer_store_dwordx4 v[{lX+4*n}:{lX+4*n+3}], v{lSt}, s[{sSX}:{sSX+3}], s{sT+3} offen sc1")
        A(f"s_add_u32 s{sT+3}, s{sT+3}, 0x40000")
    stamp(A, 3, 2)
    srd(A, sSCd, 14, 15, WT_SIZE, WT_OFF)
    B = Asm()
    for r in list(range(88)) + list(range(208, 216)):
        B(f"v_accvgpr_write_b32 a{r}, 0")
    for r in range(24, 256, 2):
        B(f"v_pk_mov_b32 v[{r}:{r+1}], 0, 0")
    interleave(A, wgroups(False), lines(B))
    A("s_waitcnt vmcnt(5)")
    A(f"v_readfirstlane_b32 s{sTag}, v{vPv}")
    A("s_barrier")
    A(f"s_mul_i32 s{sTag}, s{sTag}, 0x9e3779b1")
    A(f"s_add_u32 s{sTag}, s{sTag}, 0x7f4a7c15")
    flag_set(F_LN)
    stamp(A, 4, 2)
    if TS == 1:
        for k in range(3): A(touch(k))
        for l in tadv: A(l)
    for g in wgroups(True) + wgroups(True): emit(g)
    A(f"s_cmp_eq_u32 s{sW}, 0"); A("s_cbranch_scc0 M_lng")
    if OPT.get("pre", 0): A(f"s_sleep {OPT['pre']}")
    A(poll_issue(vPollR))
    poll_check(F_LN, MASK_R, 0, None, OPT.get('lnsleep', 1))
    A.label("M_lng")
    A("s_waitcnt vmcnt(0)")
    A("s_barrier")
    sRT, sCT = 68, 69
    A(f"""
    s_and_b32 s{sT+3}, s2, 7
    s_lshr_b32 s{sRT}, s{sT+3}, 1
    s_lshl_b32 s{sRT}, s{sRT}, 2
    s_bfe_u32 s{sT+6}, s2, 0x20003
    s_add_u32 s{sRT}, s{sRT}, s{sT+6}
    s_and_b32 s{sCT}, s{sT+3}, 1
    s_lshl_b32 s{sCT}, s{sCT}, 3
    s_lshr_b32 s{sT+6}, s2, 5
    s_add_u32 s{sCT}, s{sCT}, s{sT+6}
    """)
    stamp(A, 5, 2)
    for g in xgroups(0) + xgroups(1):
        for l in g: A(l)
    if TS == 4:
        for k in range(3): A(touch(k))
        for l in tadv: A(l)
    def copy_op(s):
        if s % 2: return f"buffer_load_dwordx4 {CT(s // 2)}, v{vT+1 if s == 1 else vCs}, s[{sSCs}:{sSCs+3}], s{sCl} offen"
        return f"buffer_store_dwordx4 {CT(s // 2)}, v{vCd}, s[{sSCd}:{sSCd+3}], s{sCs} offen sc1"
    def wread(f, a, pos):
        nm = names[f]
        if nm[0] in "qkv":
            p = "qkv".index(nm[0]); j = int(nm[1])
            addr = vA1 if j else vA0; off = 2048 * p + 1024 * a
        else:
            tl = int(nm[1]); addr = vAG
            off = (6144 if nm[0] == 'g' else 13312) + 3584 * a + 32 * tl
        return f"ds_read_b64_tr_b16 {WR(pos).sub(2*a, 2)}, v{addr} offset:{off}"
    def mfma(f, i, s, pos, par=None):
        if OPT.get("snake") and (f if par is None else par) % 2: i = 3 - i
        nm = names[f]; d = accm[(nm, i)]
        if nm[0] in "kv" or OPT.get("swapab"):
            return f"v_mfma_f32_16x16x32_bf16 {d}, {XR(s, i)}, {WR(pos)}, {d}"
        return f"v_mfma_f32_16x16x32_bf16 {d}, {WR(pos)}, {XR(s, i)}, {d}"
    LA = 6
    A(f"""
    s_lshr_b32 s{sT+3}, s{sRT}, 1
    s_lshl_b32 s{sT+3}, s{sT+3}, 3
    v_and_b32 v{vT}, 7, v0
    v_bfe_u32 v{vT+1}, v0, 3, 2
    v_lshl_add_u32 v{vT+1}, v{vT+1}, 6, v{vT}
    v_add_u32 v{vPollR}, s{sT+3}, v{vT+1}
    """)
    A(f"""
    s_and_b32 s{sT+3}, s{sW}, 1
    s_lshl_b32 s{sT+3}, s{sT+3}, 2
    s_lshr_b32 s{sT+6}, s{sW}, 1
    s_add_u32 s{sT+3}, s{sT+3}, s{sT+6}
    s_lshl_b32 s{sT+3}, s{sT+3}, 13
    v_and_b32 v{vT}, 0x7ff, v{vCs}
    v_bfe_u32 v{vT+1}, v0, 3, 2
    v_lshl_add_u32 v{vT}, v{vT+1}, 11, v{vT}
    v_lshrrev_b32 v{vT+1}, 5, v0
    v_lshl_add_u32 v{vT}, v{vT+1}, 14, v{vT}
    v_add_u32 v{vT}, s{sT+3}, v{vT}
    s_getpc_b64 s[4:5]
    s_and_b32 s4, s4, 0xffffff80
    s_bfe_u32 s{sT+3}, s2, 0x30003
    s_lshl_b32 s{sT+3}, s{sT+3}, 2
    s_add_u32 s{sT+3}, s{sT+3}, s{sW}
    s_mul_i32 s{sT+3}, s{sT+3}, 1408
    s_add_u32 s{sT+3}, s{sT+3}, 5120
    v_min_u32 v{vPv}, 10, v0
    v_lshlrev_b32 v{vPv}, 7, v{vPv}
    v_add_u32 v{vPv}, s{sT+3}, v{vPv}
    """)
    for f in range(LA):
        for a in range(2): A(wread(f, a, f % 8))
    A(f"s_waitcnt vmcnt({7 if TS == 4 else 4})")
    stamp(A, 6, 2); stamp(A, 1, 1)
    madv = [f"s_add_u32 s{sM}, s{sM}, s{sSLOT}", f"s_add_u32 s{sWoA}, s{sWoA}, s{sStA}", f"s_add_u32 s{sWoB}, s{sWoB}, s{sStB}",
            f"s_cmp_eq_u32 s{sM}, s{sMEND}", f"s_cselect_b32 s{sM}, s{sM0}, s{sM}"]
    def Wop(k, i): return dict(tag=f"W{k}", pre=(madv if i == 0 else []) + [dma(i)[0]], ins=dma(i)[1], post=[])
    def Xop(k, i): return dict(tag=f"X{k}", pre=[], ins=xload(k % 4, i), post=[f"s_add_u32 s{sXo}, s{sXo}, 0x20000"] if i == 3 else [])
    def Sop(j): return dict(tag="S", pre=[], ins=copy_op(2 * j), post=[f"s_add_u32 s{sCs}, s{sCs}, 0x100000"])
    sched = {}
    def place(ops, slots):
        assert len(ops) <= len(slots), (len(ops), len(slots))
        for o, sl in zip(ops, slots): sched[sl] = o
    place([Wop(6, i) for i in range(5)], [(3, f) for f in range(15, 20)])
    place([Xop(2, i) for i in range(4)] + [Wop(3, i) for i in range(4)], [(0, f) for f in (1, 2, 4, 6, 8, 9, 11, 12)])
    place([Wop(3, 4)] + [Xop(3, i) for i in range(4)] + [Wop(4, i) for i in range(5)] + [Xop(4, i) for i in range(3)],
          [(0, 15), (0, 16), (0, 18), (0, 19), (1, 1), (1, 2), (1, 4), (1, 5), (1, 7), (1, 8), (1, 10), (1, 11), (1, 12)])
    place([Xop(4, 3)] + [Wop(5, i) for i in range(5)] + [Sop(0)] + [Xop(5, i) for i in range(4)] + [Sop(1)],
          [(1, 15), (1, 16), (1, 18), (1, 19), (2, 1), (2, 2), (2, 4), (2, 5), (2, 7), (2, 8), (2, 10), (2, 11)])
    cl0 = dict(tag="C", pre=[], ins=copy_op(1), post=[f"s_add_u32 s{sCl}, s{sCl}, {56 << 16}", f"s_cmp_eq_u32 s{sCnt}, 3",
               f"s_cselect_b32 s{sCl}, s{sT7}, s{sCl}", f"s_cselect_b32 s{sSCs}, s84, s{sSCs}", f"s_cselect_b32 s{sSCs+1}, s85, s{sSCs+1}",
               f"s_cselect_b32 s{sSCs+2}, {1024*2048}, s{sSCs+2}", f"s_cmp_eq_u32 s{sCnt}, 4", f"s_cselect_b32 s{sSCs+2}, 0, s{sSCs+2}"])
    cl1 = dict(tag="C", pre=[], ins=copy_op(3), post=[])
    place([cl0] + [dict(tag="T", pre=[], ins=touch(k), post=[]) for k in range(3)] + [cl1], [(2, f) for f in range(15, 20)])
    place([dict(tag="T", pre=[], ins=f"global_load_dword v{vDum}, v{vPv}, s[4:5]", post=[])], [(3, 1)])
    order = sorted(sched.keys())
    def vm_at(s):
        seq = [(-1, k) for k in order] + [(0, k) for k in order if k < (s, 14)]
        need = []
        for n, (tr, k) in enumerate(seq):
            t = sched[k]["tag"]
            if t[0] in "WX" and int(t[1:]) + 4 * tr == s + 1: need.append(n)
        return len(seq) - 1 - max(need)
    A.label("M_loop1")
    for s in range(4):
        for f in range(20):
            F = 20 * s + f
            pos = F % 8
            if f == 14:
                if s == 0:
                    A(f"s_cmp_eq_u32 s{sCnt}, 0"); A("s_cbranch_scc0 M_l1w"); A(f"s_waitcnt vmcnt({11 if TS == 4 else 8})"); A.label("M_l1w")
                A(f"s_waitcnt vmcnt({vm_at(s)}) lgkmcnt(8)"); A("s_barrier")
                if s == 0:
                    A(f"s_cmp_eq_u32 s{sCnt}, 6"); A("s_cbranch_scc0 M_l1c")
                    flag_set(F_LN | F_WT); A.label("M_l1c")
            elif f % 2 == 0:
                A("s_waitcnt lgkmcnt(8)")
            nf = (f + LA) % 20
            pre2, mid, post = [], [], []
            if (s, f) in sched:
                o = sched[(s, f)]; pre2, mid, post = o["pre"], [o["ins"]], o["post"]
            elif f == 0: mid = [f"s_add_u32 s{sR}, s{sR}, s{sSLOT}"]; post = [f"s_cmp_eq_u32 s{sR}, s{sREND}", f"s_cselect_b32 s{sR}, 0, s{sR}"]
            elif f == 13:
                mid = [f"v_add_u32 v{vA0}, s{sR}, v{vB0}", f"v_add_u32 v{vA1}, s{sR}, v{vB1}"]
                post = [f"v_add_u32_e64 v{vAG}, s{sR}, v{vBG}"]
            elif s == 2 and f == 12:
                mid = [f"s_cmp_eq_u32 s{sCnt}, 3", f"s_cselect_b64 s[{sT+6}:{sT+7}], -1, 0"]
                post = [f"v_cndmask_b32 v{vT+1}, v{vCs}, v{vT}, s[{sT+6}:{sT+7}]"]
            elif s == 3 and f == 2:
                mid = [f"s_sub_u32 s{sCl}, s{sCl}, {55 << 16}"]; post = [f"s_cmp_eq_u32 s{sCnt}, 2", f"s_cselect_b32 s{sCl}, s{sT6}, s{sCl}"]
            elif s == 3 and f == 3:
                mid = [f"s_cmp_eq_u32 s{sCnt}, 3", f"s_cselect_b32 s{sCl}, s{sT8}, s{sCl}"]
            elif s == 3 and f == 4:
                mid = [f"s_add_u32 s{sToq}, s{sToq}, {128*TROW*6144}"]; post = [f"s_add_u32 s{sTog}, s{sTog}, {128*TROW*7168}"]
            elif s == 3 and f == 5: mid = [f"s_add_u32 s{sCnt}, s{sCnt}, 1"]
            A(mfma(f, 0, s, pos))
            A(wread(nf, 0, (F + LA) % 8))
            for l in pre2[:3 if len(pre2) > 3 else 0]: A(l)
            A(mfma(f, 1, s, pos))
            A(wread(nf, 1, (F + LA) % 8))
            for l in pre2[3 if len(pre2) > 3 else 0:]: A(l)
            A(mfma(f, 2, s, pos))
            emit(mid)
            A(mfma(f, 3, s, pos))
            for l in post: A(l)
    A(f"s_cmp_lt_u32 s{sCnt}, 7")
    A("s_cbranch_scc1 M_loop1")
    sSH, sSK, sSXi, sSO = 20, 24, 28, 32
    sNL, sPL, sEPS, sCB, sCL = 36, 38, 40, 41, 42
    sAo, sBo = 43, 44
    sSA, sSB = sSH, sSCd
    vA, vBd = [2, 3, 4, 5], 6
    vR = [[216, 217, 218, 219], [220, 221, 222, 223]]
    vXO, vKv, vZ, vFw, vZw, vZr, vFr, vLn = 224, 225, 226, 227, 228, 229, 230, 231
    vk0, vk1, vk2 = 11, 12, 22
    NSL = 14
    AR = lambda ch, i: Reg('a', 144 + 8 * (ch % NSL) + 4 * i)
    vAs, vBds, vPollE = [7, 8], 9, 10
    NS = OPT.get('ns', 22)
    def phi_tile(E, src, tmp, dst):
        b = src
        E(f"v_pk_mul_f32 v[{tmp}:{tmp+1}], v[{b}:{b+1}], s[{sPL}:{sPL+1}]")
        E(f"v_pk_mul_f32 v[{tmp+2}:{tmp+3}], v[{b+2}:{b+3}], s[{sPL}:{sPL+1}]")
        for j in range(4): E(f"v_exp_f32_e64 v{tmp+j}, v{tmp+j} clamp")
        for j in range(4): E(f"v_max_f32 v{b+j}, s{sEPS}, v{b+j}")
        E(f"v_pk_add_f32 v[{b}:{b+1}], v[{b}:{b+1}], v[{tmp}:{tmp+1}]")
        E(f"v_pk_add_f32 v[{b+2}:{b+3}], v[{b+2}:{b+3}], v[{tmp+2}:{tmp+3}]")
        E(f"v_cvt_pk_bf16_f32 v{dst}, v{b}, v{b+1}")
        E(f"v_cvt_pk_bf16_f32 v{dst+1}, v{b+2}, v{b+3}")
    def swiglu_tile(E, tl, i, tmp, dst):
        g = acc[(f"g{tl}", i)].base
        ur = acc[(f"u{tl}", i)]
        if ur.kind == 'a':
            u = tmp + 4
            for j in range(4): E(f"v_accvgpr_read_b32 v{u+j}, a{ur.base+j}")
        else:
            u = ur.base
        E(f"v_pk_mul_f32 v[{tmp}:{tmp+1}], v[{g}:{g+1}], s[{sNL}:{sNL+1}]")
        E(f"v_pk_mul_f32 v[{tmp+2}:{tmp+3}], v[{g+2}:{g+3}], s[{sNL}:{sNL+1}]")
        for j in range(4): E(f"v_exp_f32 v{tmp+j}, v{tmp+j}")
        E(f"v_pk_mul_f32 v[{g}:{g+1}], v[{g}:{g+1}], v[{u}:{u+1}]")
        E(f"v_pk_mul_f32 v[{g+2}:{g+3}], v[{g+2}:{g+3}], v[{u+2}:{u+3}]")
        E(f"v_pk_add_f32 v[{tmp}:{tmp+1}], v[{tmp}:{tmp+1}], 1.0 op_sel_hi:[1,0]")
        E(f"v_pk_add_f32 v[{tmp+2}:{tmp+3}], v[{tmp+2}:{tmp+3}], 1.0 op_sel_hi:[1,0]")
        for j in range(4): E(f"v_rcp_f32 v{tmp+j}, v{tmp+j}")
        E(f"v_pk_mul_f32 v[{g}:{g+1}], v[{g}:{g+1}], v[{tmp}:{tmp+1}]")
        E(f"v_pk_mul_f32 v[{g+2}:{g+3}], v[{g+2}:{g+3}], v[{tmp+2}:{tmp+3}]")
        E(f"v_cvt_pk_bf16_f32 v{dst}, v{g}, v{g+1}")
        E(f"v_cvt_pk_bf16_f32 v{dst+1}, v{g+2}, v{g+3}")
    def swiglu_pair(E, p, tmp):
        for i in range(4):
            o = acc[(f"g{2*p}", i)].base
            swiglu_tile(E, 2 * p, i, tmp, o)
            swiglu_tile(E, 2 * p + 1, i, tmp, o + 2)
            E(f"buffer_store_dwordx4 v[{o}:{o+3}], v{vX}, s[{sSH}:{sSH+3}], s{sCB} offen offset:{1024*i} sc1")
        E(f"s_add_u32 s{sCB}, s{sCB}, {32 << 17}")
    S = Asm()
    srd(S, sSH, 14, 15, HF_SIZE, HF_OFF)
    sh_lines = lines(S)
    S = Asm()
    S(f"""
    s_mov_b32 s{sNL}, 0x{f2u(-LOG2E):x}
    s_mov_b32 s{sNL+1}, 0x{f2u(-LOG2E):x}
    s_mov_b32 s{sPL}, 0x{f2u(LOG2E):x}
    s_mov_b32 s{sPL+1}, 0x{f2u(LOG2E):x}
    s_mov_b32 s{sEPS}, 0x{f2u(1e-6):x}
    s_lshl_b32 s{sCB}, s{sHD}, 17
    s_lshr_b32 s{sCL}, s{sHD}, 1
    s_add_u32 s{sCL}, s{sCL}, 96
    s_lshl_b32 s{sCL}, s{sCL}, 17
    s_and_b32 s{sT}, s{sHD}, 1
    s_lshl_b32 s{sT}, s{sT}, 9
    s_add_u32 s{sCL}, s{sCL}, s{sT}
    s_lshl_b32 s{sT}, s{sW}, 4
    s_add_u32 s{sT}, s{sT}, s{sCT}
    s_lshl_b32 s{sT}, s{sT}, 12
    v_add_u32 v{vBd}, s{sT}, v{vL16}
    s_lshl_b32 s{sM0}, s{sW}, 12
    """)
    pre_lines = lines(S)
    Ga, Gb = [0, 1, 2, 3], [4, 5, 6, 7]
    items = [(0, f) for f in range(6)] + [(1, f) for f in Ga] + [(0, 6), (0, 7)] + [(1, f) for f in Gb] + [(0, f) for f in range(8, 12)]
    items += [(2, f) for f in Ga] + [(0, f) for f in range(12, 14)] + [(3, f) for f in Ga] + [(2, f) for f in Gb] + [(3, f) for f in Gb]
    items += [(0, f) for f in range(14, 20)] + [(st, f) for st in range(1, 4) for f in range(8, 20)]
    assert len(items) == 80 and len(set(items)) == 80
    def wreadL(st, f, a, pos):
        l = wread(f, a, pos)
        base, off = l.rsplit(" offset:", 1)
        if st >= 2:
            for x, y in ((vA0, vB0), (vA1, vB1), (vAG, vBG)):
                if base.endswith(f", v{x}"): base = base[:-len(f"v{x}")] + f"v{y}"; break
        return f"{base} offset:{int(off) + G1_SLOT * (st % 2)}"
    B = Asm(); swiglu_pair(B, 0, 2); e0 = lines(B)
    if OPT.get('noe0'): e0 = []
    def unpack(ls):
        out = []
        for l in ls:
            m = re.match(r"v_pk_(mul|add)_f32 v\[(\d+):\d+\], v\[(\d+):\d+\], (\S+)", l)
            if not m: out.append(l); continue
            op, d, a, b = m.group(1), int(m.group(2)), int(m.group(3)), m.group(4)
            for k in range(2):
                if b.startswith("v["): bb = "v%d" % (int(b[2:].split(":")[0]) + k)
                elif b.startswith("s["): bb = "s%d" % int(b[2:].split(":")[0])
                else: bb = b
                out.append(f"v_{op}_f32 v{d+k}, {bb}, v{a+k}")
        return out
    if OPT.get('unpk', 0) & 1: e0 = unpack(e0)
    E0_AT, E0_N = 31, OPT.get('e0n', 44)
    S = Asm()
    S(f"""
    v_and_b32 v{vT}, 7, v0
    v_and_b32 v{vT+1}, 15, v0
    v_lshlrev_b32 v{vT+1}, 4, v{vT+1}
    v_add_u32 v{vT+1}, s{sCT}, v{vT+1}
    v_bfe_u32 v{vPollW}, v0, 4, 1
    v_xor_b32 v{vT+1}, v{vT+1}, v{vPollW}
    v_cmp_gt_u32 vcc, 32, v0
    s_and_b32 s{sT+3}, s2, 0xc7
    v_lshlrev_b32 v{vT}, 3, v{vT}
    v_cndmask_b32 v{vPollW}, v{vT+1}, v{vPollR}, vcc
    v_add_u32 v{vT}, s{sT+3}, v{vT}
    s_mov_b32 s{sT+3}, 0x70000000
    v_cndmask_b32 v{vPollH}, v{vT}, v{vPollR}, vcc
    v_and_b32 v{vT}, 7, v{vPollR}
    v_lshrrev_b32 v{vPollR}, 3, v{vPollR}
    v_mul_u32_u24 v{vPollR}, {LSTR}, v{vPollR}
    v_lshl_add_u32 v{vPollR}, v{vT}, 4, v{vPollR}
    v_and_b32 v{vT}, 7, v{vPollW}
    v_lshrrev_b32 v{vPollW}, 3, v{vPollW}
    v_mul_u32_u24 v{vPollW}, {LSTR}, v{vPollW}
    v_lshl_add_u32 v{vPollW}, v{vT}, 4, v{vPollW}
    v_and_b32 v{vT}, 7, v{vPollH}
    v_lshrrev_b32 v{vPollH}, 3, v{vPollH}
    v_mul_u32_u24 v{vPollH}, {LSTR}, v{vPollH}
    v_lshl_add_u32 v{vPollH}, v{vT}, 4, v{vPollH}
    """)
    poll_lines = lines(S)
    lops = [Xop(2, i) for i in range(4)] + [Wop(3, i) for i in range(5)] + [Xop(3, i) for i in range(4)]
    misc = pre_lines
    for n, (st, f) in enumerate(items):
        pos = n % 8
        lg = 8 if n + LA < 80 else max(0, 2 * (80 - n - 2))
        if n == 0: A(f"s_waitcnt vmcnt(10) lgkmcnt(8)"); A("s_barrier")
        elif n == 14: A(f"s_waitcnt vmcnt(9) lgkmcnt(8)"); A("s_barrier")
        elif n == 20: A(f"s_waitcnt vmcnt(4) lgkmcnt(8)"); A("s_barrier")
        elif n == 26: A(f"s_waitcnt vmcnt(0) lgkmcnt(8)")
        elif n % 2 == 0: A(f"s_waitcnt lgkmcnt({lg})")
        fill = []
        if n < 13:
            o = lops[n]; fill = o["pre"] + ["s_nop 0", o["ins"]] + o["post"]
        elif n == 13: fill = sh_lines
        elif 14 <= n < 22: fill = poll_lines[len(poll_lines) * (n - 14) // 8: len(poll_lines) * (n - 13) // 8]
        elif n == 27: fill = [f"s_cmp_eq_u32 s{sW}, 0\ns_cbranch_scc0 M_npw\n{poll_issue(vPollW)}", "M_npw:"]
        elif 22 <= n < 27: fill = misc[len(misc) * (n - 22) // 5: len(misc) * (n - 21) // 5]
        elif E0_AT <= n < E0_AT + E0_N:
            c = n - E0_AT
            fill = e0[len(e0) * c // E0_N: len(e0) * (c + 1) // E0_N]
        mm = lambda i: mfma(f, i, st, pos, n)
        h = (len(fill) + 1) // 2 if (n > 13 and n != 27) else len(fill)
        A(mm(0))
        if n + LA < 80: A(wreadL(*items[n + LA], 0, (n + LA) % 8))
        A(mm(1))
        if n + LA < 80: A(wreadL(*items[n + LA], 1, (n + LA) % 8))
        A(mm(2))
        emit(fill[:h])
        A(mm(3))
        emit(fill[h:])
    stamp(A, 2, 1); stamp(A, 1, 4)
    A(f"""
    s_load_dwordx2 s[78:79], s[0:1], 0
    s_load_dwordx2 s[80:81], s[0:1], 56
    s_lshl_b32 s{sT}, s{sRT}, 13
    s_lshl_b32 s{sT+3}, s{sW}, 11
    s_add_u32 s{sT}, s{sT}, s{sT+3}
    v_add_u32 v{vA[0]}, s{sT}, v{vL16}
    v_add_u32 v{vA[1]}, 0x20000, v{vA[0]}
    v_add_u32 v{vA[2]}, 0x40000, v{vA[0]}
    v_add_u32 v{vA[3]}, 0x60000, v{vA[0]}
    s_and_b32 s{sT}, s{sCT}, 1
    s_lshl_b32 s{sT+3}, s{sT}, 18
    v_add_u32 v{vAs[0]}, s{sT+3}, v{vA[0]}
    v_add_u32 v{vAs[1]}, s{sT+3}, v{vA[1]}
    s_lshl_b32 s{sT}, s{sT}, 1
    s_lshr_b32 s{sT+3}, s{sW}, 1
    s_add_u32 s{sT}, s{sT}, s{sT+3}
    s_lshl_b32 s{sT}, s{sT}, 4
    s_and_b32 s{sT+3}, s{sW}, 1
    s_xor_b32 s{sT+3}, s{sT+3}, s{sCT}
    s_add_u32 s{sT}, s{sT}, s{sT+3}
    s_lshl_b32 s{sT}, s{sT}, 12
    v_add_u32 v{vBds}, s{sT}, v{vL16}
    """)
    srd(A, sSK, 14, 15, KVP_SIZE, KVP_OFF)
    A("s_waitcnt vmcnt(0)")
    A(f"s_cmp_eq_u32 s{sW}, 0"); A("s_cbranch_scc0 M_wtc")
    poll_check(F_WT, MASK_U, None, vPollW)
    A.label("M_wtc")
    A("s_barrier")
    flag_set(F_LN | F_WT | F_A)
    stamp(A, 2, 4)
    tq = acc[("u0", 0)].base
    LA2 = OPT.get("la2", 3); LB = G2_R - 1
    vm, lg = [], []
    done = {"vm": -1, "lg": -1}
    pmark = {}
    def put(x):
        line, tag = x if isinstance(x, tuple) else (x, None)
        if line.startswith("@"):
            k, t = line[1:].split()
            waitfor(**{k: [t]}); return
        if line.startswith("#poll"):
            _, c, va = line.split()
            A(f"s_cmp_eq_u32 s{sW}, 0"); A(f"s_cbranch_scc0 M_np{c}"); A(poll_issue(int(va))); A.label(f"M_np{c}")
            pmark[int(c)] = len(vm); return
        if line.endswith(":"): A.label(line[:-1]); return
        A(line)
        if line.startswith("buffer_"): vm.append(tag)
        elif line.startswith("ds_"): lg.append(tag)
    def waitfor(vm=(), lg=(), _vm=vm, _lg=lg):
        parts = []
        for name, lst, tags, cap in (("vm", _vm, vm, 63), ("lg", _lg, lg, 15)):
            idx = [i for i, t in enumerate(lst) if t in tags]
            assert len(idx) >= 1 or not tags, tags
            if idx and max(idx) > done[name]:
                n = min(len(lst) - 1 - max(idx), cap)
                done[name] = len(lst) - 1 - n
                parts.append(f"{'vmcnt' if name == 'vm' else 'lgkmcnt'}({n})")
        if parts: A("s_waitcnt " + " ".join(parts))
    def bop(m, b):
        pre = [f"s_mov_b32 s{sBo}, 0x{m * 0x40000:x}", f"s_add_u32 m0, s{sM0}, 0x{(m % G2_R) * G2_SLOT:x}", "s_nop 0"] if b == 0 else []
        return pre + [(f"buffer_load_dwordx4 v{vBds if m < NS else vBd}, s[{sSB}:{sSB+3}], s{sBo} offen offset:{1024*b} sc1 lds", f"B{m}")]
    nq = lambda m: 2 if m < NS else 4
    ch0 = [sum(nq(k) for k in range(m)) for m in range(37)]
    aq = [(m, q, i) for m in range(36) for q in range(nq(m)) for i in range(2)]
    def aop(m, q, i):
        pre = [f"s_mov_b32 s{sAo}, 0x{m * 0x80000:x}"] if (q == 0 and i == 0) else []
        va = vAs[q] if m < NS else vA[q]
        return pre + [(f"buffer_load_dwordx4 {AR(ch0[m] + q, i)}, v{va}, s[{sSA}:{sSA+3}], s{sAo} offen offset:{1024*i} sc1", f"A{m}q{q}")]
    LAC = OPT.get("lac", 8)
    LACS = OPT.get("lacs", 6)
    NPRE = OPT.get("npre", 6)
    asched = {}; first_at = {}
    k = 2 * NPRE
    for c in range(16 * 36):
        n, F = c // 16, c % 16
        cur = ch0[n] + F * nq(n) // 16
        if F % 4 < 2 and k < len(aq):
            m, q, i = aq[k]
            if ch0[m] + q - cur <= (LACS if m < NS else LAC):
                asched[c] = aq[k]; first_at.setdefault(m, c); k += 1
    assert k == len(aq)
    def check_pos(c):
        n = c // 16 if c % 16 >= 10 else c // 16 - 1
        return 16 * n + 9
    def tagged(ls, tag): return [(l, tag) if l.startswith(("buffer_", "ds_")) else l for l in ls]
    def mix(G, work):
        n = len(G)
        for c, grp in enumerate(G):
            for x in grp: put(x)
            for x in work[len(work) * c // n: len(work) * (c + 1) // n]: put(x)
    B = Asm(); swiglu_pair(B, 1, tq)
    G = [bop(m, b) for m in range(LB) for b in range(4 if m < LB - 1 else 2)]
    G.insert(len(G) - 5, [f"#poll 0 {vPollR}"])
    mix(G, tagged(lines(B), "h1"))
    stamp(A, 3, 4)
    A("s_waitcnt lgkmcnt(0)")
    srd(A, sSXi, 78, 79, 0x400000)
    srd(A, sSO, 80, 81, 0x400000)
    A(f"s_cmp_eq_u32 s{sW}, 0"); A("s_cbranch_scc0 M_gate")
    poll_check(F_A, MASK_R, len(vm) - pmark[0], None, 2)
    A.label("M_gate")
    waitfor(vm=["B0"])
    A("s_barrier")
    stamp(A, 3, 1); stamp(A, 4, 4)
    ACCF, ACCP, ACCS = 88, 120, 24
    BR = lambda p: Reg('a', 112 + 4 * p)
    t0 = tq + 12
    B = Asm()
    B(f"""
    v_bfe_u32 v{t0}, v0, 2, 3
    v_lshrrev_b32 v{t0+1}, 5, v0
    v_lshlrev_b32 v{t0+1}, 10, v{t0+1}
    v_lshl_add_u32 v{t0+1}, v{t0}, 7, v{t0+1}
    v_and_b32 v{t0+2}, 3, v0
    v_lshl_add_u32 v{t0+1}, v{t0+2}, 3, v{t0+1}
    v_lshrrev_b32 v{t0}, 1, v{t0}
    v_lshl_add_u32 v{vR[0][0]}, v{t0}, 5, v{t0+1}
    v_xor_b32 v{vR[0][1]}, 32, v{vR[0][0]}
    v_xor_b32 v{vR[0][2]}, 64, v{vR[0][0]}
    v_xor_b32 v{vR[0][3]}, 0x60, v{vR[0][0]}
    """)
    for r in range(ACCF, ACCF + 64, 2): B(f"v_pk_mov_b32 v[{r}:{r+1}], 0, 0")
    kb = acc[("k0", 0)].base; vb = acc[("v0", 0)].base
    for dt in range(2):
        for i in range(4):
            phi_tile(B, kb + 16 * dt + 4 * i, tq, kb + 16 * dt + 8 * (i // 2) + 2 * (i % 2))
    mix([aop(*aq[k]) for k in range(2 * NPRE)], lines(B))
    fill = {}
    def spread(ls, c0, c1):
        n = c1 - c0
        for c in range(n):
            fill.setdefault(c0 + c, []).extend(ls[len(ls) * c // n: len(ls) * (c + 1) // n])
    vONE = tq + 8
    B = Asm()
    for j in range(4): B(f"v_add_u32 v{vR[1][j]}, 0x10000, v{vR[0][j]}")
    for j in range(4): B(f"v_mov_b32 v{vONE+j}, 0x3f803f80")
    for et in range(2):
        for i in range(4):
            src = vb + 16 * et + 4 * i
            dst = vb + 16 * et + 8 * (i // 2) + 2 * (i % 2)
            B(f"v_cvt_pk_bf16_f32 v{dst}, v{src}, v{src+1}")
            B(f"v_cvt_pk_bf16_f32 v{dst+1}, v{src+2}, v{src+3}")
    B(f"""
    s_mul_i32 s{sT}, s{sW}, 6144
    s_add_u32 s{sT}, s{sT}, {KVL}
    v_add_u32 v{vk0}, s{sT}, v{vL16}
    s_lshl_b32 s{sT}, s{sW}, 10
    """)
    for u in range(2):
        for dt in range(2):
            for et in range(3):
                a = kb + 16 * dt + 8 * u
                b = vb + 16 * et + 8 * u if et < 2 else vONE
                p = PT(dt * 3 + et)
                B(f"v_mfma_f32_16x16x32_bf16 {p}, v[{a}:{a+3}], v[{b}:{b+3}], {'0' if u == 0 else p}")
    B(f"""
    s_add_u32 s{sT+1}, s{sT}, {KVL}
    v_add_u32 v{vk1}, s{sT+1}, v{vL16}
    s_lshl_b32 s{sT+1}, s{sHD}, 3
    s_add_u32 s{sT+1}, s{sT+1}, s{sRB}
    s_mul_i32 s{sT+1}, s{sT+1}, 6144
    v_add_u32 v{vk2}, s{sT}, v{vL16}
    s_add_u32 s{sT+2}, s{sT+1}, 4096
    """)
    ls = lines(B) + [f"s_cmp_lt_u32 s{sW}, 2\ns_cselect_b32 s{sT+2}, s{sT+2}, 0x70000000"]
    ls += [(f"ds_write_b128 v{vk0}, {PT(t)} offset:{1024*t}", "kvw") for t in range(6)]
    spread(ls, 0, 16 + 6)
    barrier_lg = {1: ["kvw"]}
    tb = kb
    def sum4(E, b):
        E(f"v_pk_add_f32 v[{b}:{b+1}], v[{b}:{b+1}], v[{b+4}:{b+5}]")
        E(f"v_pk_add_f32 v[{b+2}:{b+3}], v[{b+2}:{b+3}], v[{b+6}:{b+7}]")
        E(f"v_pk_add_f32 v[{b+8}:{b+9}], v[{b+8}:{b+9}], v[{b+12}:{b+13}]")
        E(f"v_pk_add_f32 v[{b+10}:{b+11}], v[{b+10}:{b+11}], v[{b+14}:{b+15}]")
        E(f"v_pk_add_f32 v[{b}:{b+1}], v[{b}:{b+1}], v[{b+8}:{b+9}]")
        E(f"v_pk_add_f32 v[{b+2}:{b+3}], v[{b+2}:{b+3}], v[{b+10}:{b+11}]")
    ls = [(f"ds_read_b128 v[{tb+4*sw}:{tb+4*sw+3}], v{vk1} offset:{6144*sw}", "kvr") for sw in range(4)]
    ls += [(f"ds_read_b128 v[{tb+16+4*sw}:{tb+16+4*sw+3}], v{vk1} offset:{6144*sw+4096}", "kvr") for sw in range(4)]
    spread(ls, 16 + 10, 32 + 2)
    B = Asm()
    sum4(B, tb)
    B(f"buffer_store_dwordx4 v[{tb}:{tb+3}], v{vk2}, s[{sSK}:{sSK+3}], s{sT+1} offen sc1")
    sum4(B, tb + 16)
    B(f"buffer_store_dwordx4 v[{tb+16}:{tb+19}], v{vk2}, s[{sSK}:{sSK+3}], s{sT+2} offen sc1")
    spread(["@lg kvr"] + tagged(lines(B), "kvs"), 32 + 6, 32 + 12)
    B = Asm(); swiglu_pair(B, 2, tq)
    spread(tagged(lines(B), "h2"), 16 * 2 + 12, 16 * 5 + 8)
    B = Asm()
    B(f"""
    v_and_b32 v{vXO}, 15, v0
    v_lshlrev_b32 v{t0+2}, 4, v{vXO}
    v_lshlrev_b32 v{vXO}, 11, v{vXO}
    v_bfe_u32 v{t0+1}, v0, 4, 1
    v_lshl_add_u32 v{vXO}, v{t0+1}, 5, v{vXO}
    v_lshl_add_u32 v{t0+2}, v{t0+1}, 10, v{t0+2}
    v_lshrrev_b32 v{t0+1}, 5, v0
    v_lshl_add_u32 v{vXO}, v{t0+1}, 4, v{vXO}
    v_lshl_add_u32 v{t0+2}, v{t0+1}, 8, v{t0+2}
    v_sub_u32 v{vLn}, v{vX}, v{vL16}
    v_add_u32 v{vLn}, v{vLn}, v{t0+2}
    s_lshl_b32 s{sT}, s{sRT}, 18
    s_lshl_b32 s{sT+3}, s{sW}, 16
    s_add_u32 s{sT}, s{sT}, s{sT+3}
    s_lshl_b32 s{sT+3}, s{sCT}, 7
    s_add_u32 s{sT}, s{sT}, s{sT+3}
    v_add_u32 v{vXO}, s{sT}, v{vXO}
    s_lshr_b32 s{sT}, s{sW}, 1
    s_add_u32 s{sT}, s{sT}, s{sW}
    s_lshl_b32 s{sT}, s{sT}, 10
    s_mul_i32 s{sT+3}, s{sHD}, 49152
    s_add_u32 s{sT}, s{sT}, s{sT+3}
    v_add_u32 v{vKv}, s{sT}, v{vL16}
    v_and_b32 v{t0}, 7, v0
    v_mul_u32_u24 v{vZ}, 6144, v{t0}
    v_bfe_u32 v{t0}, v0, 3, 2
    v_lshl_add_u32 v{vZ}, v{t0}, 8, v{vZ}
    v_lshrrev_b32 v{t0}, 5, v0
    v_mul_u32_u24 v{t0}, 3072, v{t0}
    v_add3_u32 v{vZ}, v{vZ}, v{t0}, s{sT+3}
    s_and_b32 s{sT}, s{sW}, 1
    s_lshl_b32 s{sT}, s{sT}, 10
    s_lshr_b32 s{sT+3}, s{sW}, 1
    s_lshl_b32 s{sT+3}, s{sT+3}, 3
    s_add_u32 s{sT}, s{sT}, s{sT+3}
    s_add_u32 s{sT}, s{sT}, {FIN}
    v_add_u32 v{vFw}, s{sT}, v{vL16}
    v_bfe_u32 v{t0}, v0, 3, 2
    v_lshlrev_b32 v{t0}, 4, v{t0}
    v_lshrrev_b32 v{t0+1}, 5, v0
    v_lshl_add_u32 v{t0}, v{t0+1}, 3, v{t0}
    v_add_u32 v{vZw}, {FIN+2048}, v{t0}
    v_and_b32 v{t0}, 48, v0
    v_add_u32 v{vZr}, {FIN+2048}, v{t0}
    v_add_u32 v{vFr}, {FIN}, v{vL16}
    """)
    spread(lines(B)[:11], 16 * 1 + 6, 16 * 1 + 12)
    spread(lines(B)[11:17], 16 * 2 + 13, 16 * 3)
    spread(lines(B)[17:], 16 * 9, 16 * 10)
    B = Asm()
    for i in (0, 2):
        o = acc[("g6", i)].base
        swiglu_tile(B, 6, i, tq, o)
        swiglu_tile(B, 6, i + 1, tq, o + 2)
        B("s_nop 1")
        B(f"v_permlane16_swap_b32 v{o}, v{o+2}")
        B(f"v_permlane16_swap_b32 v{o+1}, v{o+3}")
        B(f"buffer_store_dwordx4 v[{o}:{o+3}], v{vLn}, s[{sSH}:{sSH+3}], s{sCL} offen offset:{1024*i} sc1")
    spread(tagged(lines(B), "h3"), 16 * 5 + 8, 16 * 7)
    pqb = 240
    B = Asm()
    for i in range(4):
        for dt in range(2):
            qa = acc[(f"q{dt}", i)].base
            for j in range(4): B(f"v_accvgpr_read_b32 v{tq+j}, a{qa+j}")
            phi_tile(B, tq, tq + 4, pqb + 4 * i + 2 * dt)
    spread(lines(B), 16 * 10, 16 * 15)
    kvb, zb, fr, ob = 24, 56, 60, 152
    extra = {}
    for r in range(8):
        extra[16 * 13 + 2 + 4 * r] = [f"s_mov_b32 s{sT+1}, {6144*r}", (f"buffer_load_dwordx4 v[{kvb+4*r}:{kvb+4*r+3}], v{vKv}, s[{sSK}:{sSK+3}], s{sT+1} offen sc1", "kvg")]
    extra[16 * 15 + 2] = [(f"buffer_load_dwordx4 v[{zb}:{zb+3}], v{vZ}, s[{sSK}:{sSK+3}], 0 offen offset:2048 sc1", "kvg")]
    B = Asm()
    for st in (16, 8, 4):
        for r in range(0, st, 2):
            B(f"v_pk_add_f32 v[{kvb+r}:{kvb+r+1}], v[{kvb+r}:{kvb+r+1}], v[{kvb+st+r}:{kvb+st+r+1}]")
    for dpp in ("quad_perm:[1,0,3,2]", "quad_perm:[2,3,0,1]", "row_half_mirror"):
        for j in range(4):
            B(f"v_add_f32_dpp v{zb+j}, v{zb+j}, v{zb+j} {dpp} row_mask:0xf bank_mask:0xf")
    B(f"""
    v_cvt_pk_bf16_f32 v{kvb}, v{kvb}, v{kvb+1}
    v_cvt_pk_bf16_f32 v{kvb+1}, v{kvb+2}, v{kvb+3}
    v_cvt_pk_bf16_f32 v{zb}, v{zb}, v{zb+1}
    v_cvt_pk_bf16_f32 v{zb+1}, v{zb+2}, v{zb+3}
    ds_write_b64 v{vFw}, v[{kvb}:{kvb+1}]
    ds_write_b64 v{vZw}, v[{zb}:{zb+1}]
    """)
    spread(["@vm kvg"] + tagged(lines(B), "fw"), 16 * 17, 16 * 17 + 7)
    barrier_lg[17] = ["fw"]
    spread([(f"ds_read_b128 v[{fr}:{fr+3}], v{vFr}", "frr"), (f"ds_read_b128 v[{fr+4}:{fr+7}], v{vFr} offset:1024", "frr"),
            (f"ds_read_b128 v[{fr+8}:{fr+11}], v{vZr}", "frr")], 16 * 17 + 10, 16 * 17 + 13)
    B = Asm()
    B(f"s_add_u32 s{sT}, s{sHD}, 112")
    B(f"s_lshl_b32 s{sT}, s{sT}, 17")
    for i in range(4):
        for et in (2, 0, 1):
            d = ob + 12 * i + 4 * et
            B(f"v_mfma_f32_16x16x32_bf16 v[{d}:{d+3}], v[{fr+4*et}:{fr+4*et+3}], v[{pqb+4*i}:{pqb+4*i+3}], 0")
    for i in range(4): B(f"v_add_f32 v{ob+12*i+8}, s{sEPS}, v{ob+12*i+8}")
    for i in range(4): B(f"v_rcp_f32 v{ob+12*i+8}, v{ob+12*i+8}")
    for i in range(4):
        d = ob + 12 * i
        for q in range(4):
            B(f"v_pk_mul_f32 v[{d+2*q}:{d+2*q+1}], v[{d+2*q}:{d+2*q+1}], v[{d+8}:{d+9}] op_sel_hi:[1,0]")
        for q in range(4):
            B(f"v_cvt_pk_bf16_f32 v{d+q}, v{d+2*q}, v{d+2*q+1}")
        B(f"buffer_store_dwordx4 v[{d}:{d+3}], v{vX}, s[{sSH}:{sSH+3}], s{sT} offen offset:{1024*i} sc1")
    spread(["@lg frr"] + tagged(lines(B), "os"), 16 * 18 + 2, 16 * 20)
    spread([f"v_pk_mov_b32 v[{r}:{r+1}], 0, 0" for r in range(ACCS, ACCS + 32, 2)], 16 * 22, 16 * 23)
    sSE = 16
    S = Asm(); srd(S, sSE, 14, 15, EX_SIZE, EX_OFF)
    ls = ["\n".join(lines(S)),
          f"s_lshl_b32 s{sT+1}, s2, 2", f"s_add_u32 s{sT+1}, s{sT+1}, s{sW}", f"s_lshl_b32 s{sT+1}, s{sT+1}, 13",
          f"s_add_u32 s{sT+2}, s{sT+1}, 4096", f"s_xor_b32 s{sT+3}, s{sFo}, {4 * LSTR}", f"v_mov_b32 v{vPollE}, s{sT+3}"]
    assert LSTR & (LSTR - 1) == 0
    spread(ls, 16 * (NS - 1), 16 * NS)
    XB = OPT.get("xbf", 1)
    NX = 4 if XB else 8
    if XB:
        ls = []
        for k in range(4):
            for q in range(4): ls.append(f"v_cvt_pk_bf16_f32 v{ACCP+4*k+q}, v{ACCP+8*k+2*q}, v{ACCP+8*k+2*q+1}")
            ls.append((f"buffer_store_dwordx4 v[{ACCP+4*k}:{ACCP+4*k+3}], v{vL16}, s[{sSE}:{sSE+3}], s{sT+1} offen offset:{1024*k} sc1", "ex"))
        spread(ls, 16 * NS + 2, 16 * NS + 22)
    else:
        for k in range(8):
            extra.setdefault(16 * NS + 2 + 4 * k, []).append(
                (f"buffer_store_dwordx4 v[{ACCP+4*k}:{ACCP+4*k+3}], v{vL16}, s[{sSE}:{sSE+3}], s{sT+1+k//4} offen offset:{1024*(k%4)} sc1", "ex"))
    EXF = NS + OPT.get("exf", 3)
    EXL = 16 * (EXF + 2) + 10
    spread([f"s_xor_b32 s{sT+1}, s{sT+1}, {32 << 15}", f"s_xor_b32 s{sT+2}, s{sT+2}, {32 << 15}"], EXL - 8, EXL - 6)
    for k in range(NX):
        extra.setdefault(EXL + 16 // NX * k, []).append(
            (f"buffer_load_dwordx4 v[{ACCP+4*k}:{ACCP+4*k+3}], v{vL16}, s[{sSE}:{sSE+3}], s{sT+1+k//4} offen offset:{1024*(k%4)} sc1", "exl"))
    vXD, tb = 72, 152
    sX0 = 45
    for k in range(4):
        i, pr = k // 2, k % 2
        extra.setdefault(16 * OPT.get('xst', 4) + 2 + 8 * k, []).extend([f"s_mov_b32 s{sX0+i}, {i*16*2048}", (f"buffer_load_dwordx4 v[{vXD+8*i+4*pr}:{vXD+8*i+4*pr+3}], v{vXO}, s[{sSXi}:{sSXi+3}], s{sX0+i} offen offset:{64*pr}", "x")])
    xb0 = 184
    B = Asm()
    if XB:
        for r in range(16):
            B(f"v_lshlrev_b32 v{tb+2*r}, 16, v{ACCP+r}")
            B(f"v_and_b32 v{tb+2*r+1}, 0xffff0000, v{ACCP+r}")
    for r in range(0, 32, 2): B(f"v_pk_add_f32 v[{ACCF+r}:{ACCF+r+1}], v[{ACCF+r}:{ACCF+r+1}], v[{(tb if XB else ACCP)+r}:{(tb if XB else ACCP)+r+1}]")
    for r in range(0, 32, 2): B(f"v_pk_mul_f32 v[{tb+r}:{tb+r+1}], v[{ACCF+r}:{ACCF+r+1}], s[{sNL}:{sNL+1}]")
    for r in range(32): B(f"v_exp_f32 v{tb+r}, v{tb+r}")
    for r in range(0, 32, 2): B(f"v_pk_add_f32 v[{tb+r}:{tb+r+1}], v[{tb+r}:{tb+r+1}], 1.0 op_sel_hi:[1,0]")
    for r in range(32): B(f"v_rcp_f32 v{tb+r}, v{tb+r}")
    for r in range(0, 32, 2): B(f"v_pk_mul_f32 v[{ACCF+r}:{ACCF+r+1}], v[{ACCF+r}:{ACCF+r+1}], v[{tb+r}:{tb+r+1}]")
    S0 = max(EXL + 32, 16 * 28 + 2)
    spread(["@vm exl"] + lines(B), S0, min(S0 + 56, 16 * 36 - 2))
    ls = ["@vm x"]
    for k in range(4):
        for q in range(4):
            ls.append(f"v_lshlrev_b32 v{xb0+8*k+2*q}, 16, v{vXD+4*k+q}")
            ls.append(f"v_and_b32 v{xb0+8*k+2*q+1}, 0xffff0000, v{vXD+4*k+q}")
    spread(ls, 16 * 24, 16 * 26)
    base = F_LN | F_WT | F_A
    FB, FC = OPT.get("fb", 9), OPT.get("fc", 21)
    flags = {0: (base | F_A2, ["h1"]), FB: (base | F_A2 | F_B, ["kvs", "h2", "h3"]), FC: (base | F_A2 | F_B | F_C, ["os"]),
             EXF: (base | F_A2 | F_B | F_C | F_E, ["ex"])}
    checks = {check_pos(first_at[8]): (F_A2, MASK_R, vPollR), check_pos(first_at[16]): (F_B, MASK_R | MASK_U, vPollH),
              check_pos(first_at[28]): (F_C, MASK_R, vPollR), check_pos(EXL): (F_E, MASK_R, vPollE)}
    print("checks at", sorted((c // 16, c % 16) for c in checks), file=sys.stderr)
    Y = OPT.get("y", 0)
    if Y & 1: checks = {k: v for k, v in checks.items() if v[0] == F_C}
    if Y & 2: flags = {k: v for k, v in flags.items() if k == 19}
    if Y & 4:
        for k in list(extra):
            if any(isinstance(x, tuple) and x[1] == "kvg" for x in extra[k]) and k != 16 * 12 + 2: del extra[k]
    if Y & 8:
        for k in list(extra):
            if any(isinstance(x, tuple) and x[1] == "x" for x in extra[k]) and k != 16 * 27 + 2: del extra[k]
    if Y & 16:
        for k in fill: fill[k] = [x for x in fill[k] if isinstance(x, tuple) or not x.startswith(("v_pk", "v_exp", "v_rcp", "v_acc", "v_cvt", "v_max"))]
    for c, (bit, mask, va) in checks.items():
        pc = c - OPT.get("pdist", 19)
        extra.setdefault(pc, []).append(f"#poll {c} {va}")
    def bread(n, F, a):
        q, j = F // 4, F % 4
        sl = n % G2_R
        return (f"ds_read_b64_tr_b16 {BR(F % 8).sub(2*a, 2)}, v{vR[sl // 4][j]} offset:{(sl % 4) * G2_SLOT + 4096*q + 2048*a}", f"b{n}_{F}")
    for F in range(LA):
        for a in range(2): put(bread(0, F, a))
    stamp(A, 5, 1); stamp(A, 1, 3); stamp(A, 5, 4)
    for n in range(36):
        for F in range(16):
            q, j = F * nq(n) // 16, F % 4
            accb = ACCS if n >= 28 else (ACCP if (n < NS and (F >> 2) & 1) else ACCF)
            c = 16 * n + F
            wv, wl = [], []
            if F % 2 == 0: wl = [f"b{n}_{F}", f"b{n}_{F+1}"]
            if j == 0: wv = [f"A{n}q{q}"]
            if F == 10 and n < 35:
                wv += [f"B{n+1}"] + (flags[n][1] if n in flags else [])
                wl += barrier_lg.get(n, [])
            waitfor(vm=wv, lg=wl)
            if F == 10 and n < 35:
                A("s_barrier")
                if n in flags: flag_set(flags[n][0])
            order = (0, 1) if (F % 2 == 0 or not OPT.get("snake")) else (1, 0)
            m = lambda i: f"v_mfma_f32_16x16x32_bf16 v[{accb+16*i+4*j}:{accb+16*i+4*j+3}], {BR(F % 8)}, {AR(ch0[n] + q, i)}, v[{accb+16*i+4*j}:{accb+16*i+4*j+3}]"
            nn, nF = (n, F + LA) if F + LA < 16 else (n + 1, F + LA - 16)
            A(m(order[0]))
            if nn < 36: put(bread(nn, nF, 0))
            A(m(order[1]))
            if nn < 36: put(bread(nn, nF, 1))
            if c in asched:
                for x in aop(*asched[c]): put(x)
            if F in (3, 7) and n + LB - 1 < 36:
                for x in bop(n + LB - 1, 2 + F // 4): put(x)
            if F in (11, 15) and n + LB < 36:
                for x in bop(n + LB, F // 4 - 2): put(x)
            for x in extra.get(c, []): put(x)
            for x in fill.get(c, []): put(x)
            if c in checks:
                bit, mask, va = checks[c]
                A(f"s_cmp_eq_u32 s{sW}, 0"); A(f"s_cbranch_scc0 M_nc{c}")
                poll_check(bit, mask, len(vm) - pmark[c], va)
                if bit != F_C: A.label(f"M_nc{c}")
                if bit == F_C:
                    A(f"""
                    s_or_b32 s{sTm}, s2, s{sW}
                    s_cmp_eq_u32 s{sTm}, 0
                    s_cbranch_scc0 M_nobump
                    v_mov_b32 v{vT}, s{sTag}
                    s_mov_b32 s{sTm}, {EPOCH}
                    s_mov_b64 exec, 1
                    buffer_store_dword v{vT}, off, s[{sSF}:{sSF+3}], s{sTm} sc1
                    s_mov_b64 exec, -1
                    """)
                    A.label("M_nobump"); A.label(f"M_nc{c}")
        if n in (3, 7, 11, 19, 31): stamp(A, {3: 2, 7: 3, 11: 4, 19: 5, 31: 6}[n], 3)
        if n in (19, 21, 23, 25, 27, 29): stamp(A, (n - 17) // 2, 5)
        if n in (11, 13, 15, 17, 19, 21): stamp(A, (n - 9) // 2, 6)
    A("s_nop 4")
    for i in range(2):
        for pr in range(2):
            for r in range(0, 8, 2):
                t = 16 * i + 8 * pr + r
                A(f"v_pk_mul_f32 v[{ACCS+t}:{ACCS+t+1}], v[{ACCS+t}:{ACCS+t+1}], v[{ACCF+t}:{ACCF+t+1}]")
    for i in range(2):
        for pr in range(2):
            t0 = ACCS + 16 * i + 8 * pr; t1 = t0 + 4
            x = vXD + 8 * i + 4 * pr; xb = xb0 + 8 * (2 * i + pr)
            for r in range(4):
                A(f"v_permlane16_swap_b32 v{t0+r}, v{t1+r}")
            for q in range(4):
                A(f"v_pk_add_f32 v[{t0+2*q}:{t0+2*q+1}], v[{t0+2*q}:{t0+2*q+1}], v[{xb+2*q}:{xb+2*q+1}]")
            for q in range(4):
                A(f"v_cvt_pk_bf16_f32 v{x+q}, v{t0+2*q}, v{t0+2*q+1}")
            A(f"buffer_store_dwordx4 v[{x}:{x+3}], v{vXO}, s[{sSO}:{sSO+3}], s{sX0+i} offen offset:{64*pr}")
    stamp(A, 6, 1)
    if OPT["stamp"]:
        A("s_memrealtime s[100:101]")
        A("s_waitcnt lgkmcnt(0)")
        if OPT.get("dbgout"):
            A("s_load_dwordx2 s[20:21], s[0:1], 64"); A("s_waitcnt lgkmcnt(0)")
            srd(A, 16, 20, 21, 256)
            A(f"s_add_u32 s{sT}, s2, 1"); A(f"s_and_b32 s{sT}, s{sT}, 0xfe"); A(f"s_or_b32 s{sT}, s{sT}, s{sW}")
            A(f"s_cmp_eq_u32 s{sT}, 0"); A("s_cbranch_scc0 M_end")
            A(f"s_and_b32 s{sT}, s2, 32"); A(f"v_mov_b32 v0, s{sT}")
            for i, r in enumerate(SREG[1:] + [100]):
                A(f"s_sub_u32 s{sT}, s{r}, s99"); A(f"v_mov_b32 v1, s{sT}"); A(f"buffer_store_dword v1, v0, s[16:19], 0 offen offset:{4*i}")
            A(f"v_mov_b32 v1, s99"); A(f"buffer_store_dword v1, v0, s[16:19], 0 offen offset:28")
            A("s_branch M_end")
        srd(A, 16, 14, 15, 0x10000, STAMP_OFF + 0x10000)
        A(f"s_lshl_b32 s{sT}, s2, 2"); A(f"s_add_u32 s{sT}, s{sT}, s{sW}"); A(f"s_lshl_b32 s{sT}, s{sT}, 6")
        A(f"v_mov_b32 v0, s{sT}")
        for i, r in enumerate(SREG):
            A(f"v_mov_b32 v1, s{r}"); A(f"buffer_store_dword v1, v0, s[16:19], 0 offen offset:{4*i}")
        A(f"v_mov_b32 v1, s100"); A(f"buffer_store_dword v1, v0, s[16:19], 0 offen offset:56")
        A(f"v_mov_b32 v1, s99"); A(f"buffer_store_dword v1, v0, s[16:19], 0 offen offset:60")
    A.label("M_end")
    A("s_endpgm")
    return A.text()

def build():
    K = NAME + "_kernel"
    hdr = open(f"cdna_kernels/{NAME}.s.ref").read().split("; Override")[0]
    out = [hdr.rstrip("\n")]
    if OPT.get("list"):
        out.append(f"; @launch kernel={K} grid=(256,1,1) block=(256,1,1) lds={LDS_BYTES}")
    else:
        out.append(f"; @launch grid=(256,1,1) block=(256,1,1) lds={LDS_BYTES}")
    out.append('.amdgcn_target "amdgcn-amd-amdhsa--gfx950"')
    out.append(".text")
    body, size = align_kernel(gen())
    for p in check_hazards(body): print("HAZARD", p, file=sys.stderr)
    print("code bytes", size, file=sys.stderr)
    assert size < 65536
    out.append(body.rstrip("\n"))
    out.append(".p2align 8")
    out.append(f".fill {(66560 - size) // 4}, 4, 0xbf810000")
    out.append(f""".section .rodata,"a"
.p2align 6
.amdhsa_kernel {K}
  .amdhsa_next_free_vgpr 512
  .amdhsa_next_free_sgpr 102
  .amdhsa_accum_offset 256
  .amdhsa_group_segment_fixed_size 0
  .amdhsa_kernarg_size 80
  .amdhsa_user_sgpr_count 2
  .amdhsa_user_sgpr_kernarg_segment_ptr 1
  .amdhsa_system_sgpr_workgroup_id_x 1
.end_amdhsa_kernel""")
    return "\n".join(out) + "\n"

if __name__ == "__main__":
    for a in sys.argv[2:]:
        k, v = a.split("="); OPT[k] = int(v)
    WS_BASE = OPT.get('wsb', 0) << 20
    LSTR = OPT.get('lstr', LSTR); FLG_SIZE = 33 * LSTR; EPOCH = 32 * LSTR
    XF_OFF += WS_BASE; HF_OFF += WS_BASE; KVP_OFF += WS_BASE; WT_OFF += WS_BASE; FLG_OFF += WS_BASE; EX_OFF += WS_BASE
    open(sys.argv[1], "w").write(build())
```

```python
import sys, struct, re
from asmlib import *

NAME = "recurrent_scan__linear_attn_block__swiglu_ffn__prompt"
XF_OFF = 0x0
HF_OFF = 0x400000
HF_SIZE = 144 * 131072
KVP_OFF = 0x1600000
KVP_SIZE = 32 * 8 * 6144
WT_OFF = 0x1C00000
WT_SIZE = 144 * 65536
FLG_OFF = 0x2800000
LSTR = 128
FLG_SIZE = 33 * LSTR
EPOCH = 32 * LSTR
STAMP_OFF = 0x3000000
EX_OFF = 0x3400000
EX_SIZE = 256 * 32768

def f2u(x): return struct.unpack("<I", struct.pack("<f", x))[0]
LOG2E = 1.4426950408889634
OPT = dict(stamp=0, align=0, snake=1, unpk=3, e0n=48, gap2=1)

G1_S, G1_SLOT = 5, 20480
KVL = G1_S * G1_SLOT
G2_R, G2_SLOT = 6, 16384
FIN = 131072
XL = FIN + 4096
LDS_BYTES = XL + 16384
F_LN, F_WT, F_A, F_A2, F_E, F_B, F_C = 1, 2, 4, 8, 16, 32, 64

def srd(A, d, lo, hi, size, off=0):
    if off:
        A(f"s_add_u32 s{d}, s{lo}, 0x{off:x}")
        A(f"s_addc_u32 s{d+1}, s{hi}, 0")
    else:
        A(f"s_mov_b32 s{d}, s{lo}")
        A(f"s_mov_b32 s{d+1}, s{hi}")
    A(f"s_mov_b32 s{d+2}, 0x{size:x}")
    A(f"s_mov_b32 s{d+3}, 0x00020000")

SREG = [6, 7, 86, 87, 96, 97, 98]
def stamp(A, idx, mode):
    if OPT["stamp"] != mode: return
    A("s_memrealtime s[100:101]" if OPT.get("rt") else "s_memtime s[100:101]")
    A("s_waitcnt lgkmcnt(0)")
    A(f"s_mov_b32 s{SREG[idx]}, s100")

def interleave(A, groups, work):
    per = -(-len(work) // len(groups)); wi = 0
    for grp in groups:
        for l in grp: A(l)
        for l in work[wi:wi + per]: A(l)
        wi += per
    for l in work[wi:]: A(l)

def lines(B): return [l.strip() for l in B.lines]

def gen():
    A = Asm()
    K = NAME + "_kernel"
    A.raw(f".globl {K}\n.p2align 8\n.type {K},@function\n{K}:")
    if OPT["align"]: A.raw("    ; @align on")
    vX, vD, vA0, vA1, vAG, vB0, vB1, vBG, vL16 = 1, [2, 3, 4, 5, 6], 7, 8, 9, 10, 11, 12, 13
    vT = 14
    vPollR, vPv, vCd, vPollW, vPollH, vCs, vDum = 17, 18, 16, 20, 21, 22, 23
    vTq, vTg = 20, 21
    names = ["g0", "u0", "g1", "u1", "k0", "k1", "v0", "v1", "q0", "q1"]
    for t in range(2, 7): names += [f"g{t}", f"u{t}"]
    acc = {}
    nv = 24; na = 0
    for nm in ["k0", "k1", "v0", "v1"] + [f"g{t}" for t in range(7)]:
        for i in range(4):
            acc[(nm, i)] = Reg('v', nv); nv += 4
    for t in range(7):
        for i in range(4):
            if t * 4 + i < 14:
                acc[(f"u{t}", i)] = Reg('v', nv); nv += 4
            else:
                acc[(f"u{t}", i)] = Reg('a', na); na += 4
    for nm in ["q0", "q1"]:
        for i in range(4):
            acc[(nm, i)] = Reg('a', na); na += 4
    assert nv == 256 and na == 88
    XR = lambda s, i: Reg('a', 88 + 16 * s + 4 * i)
    WR = lambda p: Reg('a', 152 + 4 * p)
    accm = acc
    if OPT.get("classic"):
        accm = {}; k = 0
        for nm in names:
            for i in range(4):
                accm[(nm, i)] = Reg('a', 4 * k) if k < 52 else Reg('v', 24 + 4 * (k - 52)); k += 1
        XR = lambda s, i: Reg('v', 136 + 16 * s + 4 * i)
        WR = lambda p: Reg('v', 200 + 4 * p)
    PT = lambda t: Reg('a', 88 + 4 * t)
    CT = lambda k: Reg('a', 208 + 4 * k)
    sSX, sSD = 16, [20, 24, 28, 32, 36]
    sSCs, sSCd, sSF = 40, 72, 92
    sST = [76, 80, 44]
    sW, sHD, sRB, sXo, sWoA, sWoB, sStA, sStB, sM, sR, sCnt = 48, 49, 50, 51, 52, 53, 54, 55, 56, 57, 58
    sSLOT, sREND, sMEND, sM0, sCl, sCs = 59, 60, 61, 62, 63, 3
    sToq, sTog, sFo, sSpin, sTag, sTm = 88, 89, 90, 91, 12, 13
    sT = 64
    uid = [0]
    def flag_set(val):
        uid[0] += 1; L = f"M_fs{uid[0]}"
        A(f"""
        s_cmp_eq_u32 s{sW}, 0
        s_cbranch_scc0 {L}
        v_mov_b32 v{vT}, s{sTag}
        v_mov_b32 v{vT+1}, {val}
        s_mov_b64 exec, 1
        buffer_store_dwordx2 v[{vT}:{vT+1}], off, s[{sSF}:{sSF+3}], s{sFo} sc1
        s_mov_b64 exec, -1
        """)
        A.label(L)
    def poll_issue(vaddr):
        return f"buffer_load_dwordx2 v[{vPv}:{vPv+1}], v{vaddr}, s[{sSF}:{sSF+3}], 0 offen sc1"
    MASK_R, MASK_U = 0x00000000ffffffff, 0xffffffff00000000
    def poll_eval(E, bit):
        E(f"""
        v_xor_b32 v{vT}, s{sTag}, v{vPv}
        v_bfe_u32 v{vT+1}, v{vPv+1}, {bit.bit_length()-1}, 1
        v_xor_b32 v{vT+1}, 1, v{vT+1}
        v_or_b32 v{vT}, v{vT}, v{vT+1}
        v_cmp_ne_u32 vcc, 0, v{vT}
        s_nop 3
        """)
    def repoll(L, va=None, slp=None):
        if slp is None: slp = OPT.get('sleep', 8)
        A(f"""
        s_add_u32 s{sSpin}, s{sSpin}, 1
        s_cmp_ge_u32 s{sSpin}, 0x40000
        s_cbranch_scc1 {L}_ok
        s_sleep {slp}
        {poll_issue(vPollR if va is None else va)}
        s_waitcnt vmcnt(0)
        s_branch {L}
        """)
    def poll_check(bit, mask, vm=None, va=None, slp=None):
        uid[0] += 1; L = f"M_pc{uid[0]}"
        if vm is not None: A(f"s_waitcnt vmcnt({vm})")
        A(f"s_mov_b32 s{sSpin}, 0")
        A.label(L)
        poll_eval(A, bit)
        lo, hi = mask & 0xffffffff, mask >> 32
        if hi == 0:
            A(f"s_cmp_eq_u32 vcc_lo, 0")
        elif lo == 0:
            A(f"s_and_b32 s{sTm}, vcc_hi, 0x{hi:x}"); A(f"s_cmp_eq_u32 s{sTm}, 0")
        else:
            A(f"s_and_b32 s{sTm}, vcc_hi, 0x{hi:x}"); A(f"s_or_b32 s{sTm}, s{sTm}, vcc_lo"); A(f"s_cmp_eq_u32 s{sTm}, 0")
        A(f"s_cbranch_scc1 {L}_ok")
        repoll(L, va, slp)
        A.label(L + "_ok")
    def cond_poll(cmp, va):
        uid[0] += 1; L = f"M_cp{uid[0]}"
        return cmp + [f"s_cbranch_scc0 {L}", poll_issue(va), L + ":"]
    def emit(ls):
        for l in ls:
            if l.endswith(":"): A.label(l[:-1])
            else: A(l)
    def lack_mask(E):
        poll_eval(E, F_A)
        E(f"""
        s_lshr_b32 s{sTm}, vcc_lo, 16
        s_or_b32 s{sLack}, s{sTm}, vcc_lo
        s_lshr_b32 s{sTm}, s{sLack}, 8
        s_or_b32 s{sLack}, s{sLack}, s{sTm}
        s_and_b32 s{sLack}, s{sLack}, 0xff
        """)
    def stage_gate(ssig):
        uid[0] += 1; L = f"M_sg{uid[0]}"
        A(f"s_bitcmp0_b32 s{sLack}, s{ssig}")
        A(f"s_cbranch_scc1 {L}_ok")
        A(f"s_mov_b32 s{sSpin}, 0")
        A(poll_issue(vPollR)); A("s_waitcnt vmcnt(0)")
        A.label(L)
        lack_mask(A)
        A(f"s_bitcmp0_b32 s{sLack}, s{ssig}")
        A(f"s_cbranch_scc1 {L}_ok")
        repoll(L)
        A.label(L + "_ok")
    A(f"""
    s_cmp_ge_u32 s2, 256
    s_cbranch_scc1 M_end
    """)
    if OPT.get("scramble"):
        A("s_and_b32 s3, s2, 7"); A("s_lshl_b32 s3, s3, 3"); A("s_bfe_u32 s4, s2, 0x30003"); A("s_and_b32 s2, s2, 0xc0")
        A("s_or_b32 s2, s2, s3"); A("s_or_b32 s2, s2, s4")
    if OPT["stamp"]:
        A("s_memrealtime s[100:101]"); A("s_waitcnt lgkmcnt(0)"); A("s_mov_b32 s99, s100")
        A("s_memrealtime s[100:101]" if OPT.get("rt") else "s_memtime s[100:101]"); A("s_waitcnt lgkmcnt(0)"); A(f"s_mov_b32 s{SREG[0]}, s100")
    A(f"""
    s_load_dwordx4 s[68:71], s[0:1], 0
    s_load_dwordx4 s[8:11], s[0:1], 32
    s_load_dwordx4 s[12:15], s[0:1], 64
    s_load_dwordx2 s[84:85], s[0:1], 16
    s_load_dwordx2 s[{sSCs}:{sSCs+1}], s[0:1], 48
    s_getpc_b64 s[{sT+2}:{sT+3}]
    s_and_b32 s{sT+2}, s{sT+2}, 0xffffff00
    s_bfe_u32 s{sT}, s2, 0x30003
    s_lshl_b32 s{sT}, s{sT}, 12
    v_lshrrev_b32 v{vT}, 3, v0
    v_lshlrev_b32 v{vT}, 7, v{vT}
    v_add_u32 v{vT}, s{sT}, v{vT}
    global_load_dword v{vDum}, v{vT}, s[{sT+2}:{sT+3}]
    v_lshrrev_b32 v{vT}, 6, v0
    v_and_b32 v0, 63, v0
    v_readfirstlane_b32 s{sW}, v{vT}
    s_and_b32 s{sT}, s2, 7
    s_lshr_b32 s{sT+1}, s2, 3
    s_and_b32 s{sRB}, s{sT+1}, 7
    s_lshr_b32 s{sT+1}, s{sT+1}, 3
    s_lshl_b32 s{sHD}, s{sT}, 2
    s_add_u32 s{sHD}, s{sHD}, s{sT+1}
    v_lshlrev_b32 v{vL16}, 4, v0
    s_lshl_b32 s{sFo}, s{sRB}, 5
    s_add_u32 s{sFo}, s{sFo}, s{sHD}
    """)
    lX, lF, lS, lR, lA = 32, 48, 80, 88, 112
    A(f"""
    v_and_b32 v{lA}, 7, v0
    v_lshrrev_b32 v{lA+1}, 3, v0
    v_lshlrev_b32 v{lA+2}, 11, v{lA}
    v_lshl_add_u32 v{lA+2}, v{lA+1}, 4, v{lA+2}
    s_lshl_b32 s{sT}, s{sFo}, 14
    s_lshl_b32 s{sT+1}, s{sW}, 9
    s_add_u32 s{sT}, s{sT}, s{sT+1}
    v_add_u32 v{lA+2}, s{sT}, v{lA+2}
    s_waitcnt lgkmcnt(0)
    """)
    srd(A, sSX, 68, 69, 0x400000)
    for n in range(4):
        A(f"buffer_load_dwordx4 v[{lX+4*n}:{lX+4*n+3}], v{lA+2}, s[{sSX}:{sSX+3}], 0 offen offset:{128*n}")
    A(f"v_and_b32 v{lA+6}, 0xfffff800, v{lA+2}")
    A(f"buffer_load_ushort v{lA+7}, v{lA+6}, s[{sSX}:{sSX+3}], 0 offen")
    A("s_mov_b32 s4, s70"); A("s_mov_b32 s5, s71")
    srd(A, sSF, 14, 15, FLG_SIZE, FLG_OFF)
    A(f"s_mov_b32 s{sT}, {EPOCH}")
    A(f"buffer_load_dword v{vPv}, off, s[{sSF}:{sSF+3}], s{sT} sc1")
    A(f"""
    s_lshr_b32 s{sT}, s2, 3
    s_lshl_b32 s{sT}, s{sT}, 2
    s_add_u32 s{sT}, s{sT}, s{sW}
    s_lshl_b32 s{sT}, s{sT}, 1
    s_and_b32 s{sT+1}, s2, 7
    s_mul_i32 s{sT+2}, s{sT}, 7168
    s_mul_i32 s{sT+3}, s{sT+1}, 896
    s_add_u32 s{sT+2}, s{sT+2}, s{sT+3}
    s_mul_i32 s{sT+3}, s{sT}, 6144
    s_lshl_b32 s{sT+1}, s{sT+1}, 8
    s_add_u32 s{sT+3}, s{sT+3}, s{sT+1}
    v_cmp_le_u32 vcc, 7, v0
    v_lshlrev_b32 v{vTg}, 7, v0
    v_mov_b32 v{vT}, {7168-7*128}
    v_cndmask_b32 v{vT}, 0, v{vT}, vcc
    v_add3_u32 v{vTg}, v{vTg}, v{vT}, s{sT+2}
    v_cmp_le_u32 vcc, 14, v0
    v_mov_b32 v{vT}, 0x70000000
    v_lshrrev_b32 v{vT+1}, 1, v0
    v_cndmask_b32 v{vTg}, v{vTg}, v{vT}, vcc
    v_and_b32 v{vTq}, 1, v0
    v_lshlrev_b32 v{vTq}, 7, v{vTq}
    v_lshl_add_u32 v{vTq}, v{vT+1}, 11, v{vTq}
    v_cmp_le_u32 vcc, 12, v0
    v_add_u32 v{vTq}, s{sT+3}, v{vTq}
    s_mov_b32 s{sToq}, 0
    v_cndmask_b32 v{vTq}, v{vTq}, v{vT}, vcc
    s_mov_b32 s{sTog}, 0
    """)
    srd(A, sST[0], 4, 5, 1024 * 6144)
    srd(A, sST[1], 8, 9, 1024 * 7168)
    srd(A, sST[2], 10, 11, 1024 * 7168)
    def touch(s):
        v = [vTq, vTg, vTg][s]; so = [sToq, sTog, sTog][s]
        return f"buffer_load_dword v{vDum}, v{v}, s[{sST[s]}:{sST[s]+3}], s{so} offen"
    TROW = 1
    TS = OPT.get("ts", 1)
    onerow = f"""
        s_lshr_b32 s{sTm}, s2, 3
        s_lshl_b32 s{sTm}, s{sTm}, 2
        s_add_u32 s{sTm}, s{sTm}, s{sW}
        s_sub_u32 s{sTm}, ROW0, s{sTm}
        s_mul_i32 s{sToq}, s{sTm}, 6144
        s_mul_i32 s{sTog}, s{sTm}, 7168
        v_mov_b32 v{vT}, 0x70000000
        v_cmp_le_u32 vcc, 7, v0
        s_nop 1
        v_cndmask_b32 v{vTg}, v{vTg}, v{vT}, vcc
        v_cmp_le_u32 vcc, 6, v0
        s_nop 1
        v_cndmask_b32 v{vTq}, v{vTq}, v{vT}, vcc
        """
    tadv = [f"s_add_u32 s{sToq}, s{sToq}, {128*6144}", f"s_add_u32 s{sTog}, s{sTog}, {128*7168}"]
    A(onerow.replace("ROW0", "0"))
    A(f"v_add_u32 v{vTq}, s{sToq}, v{vTq}"); A(f"v_add_u32 v{vTg}, s{sTog}, v{vTg}")
    A(f"s_mov_b32 s{sToq}, 0"); A(f"s_mov_b32 s{sTog}, 0")
    if TS == 3:
        for k in range(3): A(touch(k))
        for l in tadv: A(l)
    NY = 2 + (3 if TS == 3 else 0)
    stamp(A, 1, 2)
    A(f"""
    v_lshrrev_b32 v{lA+8}, 4, v0
    v_bfe_u32 v{lA+9}, v0, 2, 2
    v_lshl_add_u32 v{lA+10}, v{lA+8}, 3, v{lA+9}
    v_mul_u32_u24 v{lA+10}, 6144, v{lA+10}
    v_bfe_u32 v{lA+11}, v0, 1, 1
    v_and_b32 v{lA+12}, 1, v{lA+8}
    v_xor_b32 v{lA+11}, v{lA+11}, v{lA+12}
    v_lshl_add_u32 v{lA+10}, v{lA+11}, 5, v{lA+10}
    v_and_b32 v{lA+11}, 1, v0
    v_lshl_add_u32 v{lA+10}, v{lA+11}, 4, v{lA+10}
    s_mul_i32 s{sT+2}, s{sW}, 5
    s_and_b32 s{sT+3}, s{sHD}, 1
    s_lshl_b32 s{sT+3}, s{sT+3}, 1
    s_mul_i32 s{sT+4}, s{sHD}, 224
    """)
    t3, t4, t5, t6, t7 = lA + 11, lA + 12, lA + 13, lA + 14, lA + 15
    for i in range(5):
        d = sSD[i]
        A(f"""
        s_add_u32 s{sT+5}, s{sT+2}, {i}
        s_cmp_lt_u32 s{sT+5}, 6
        s_cbranch_scc0 M_gu{i}
        s_lshr_b32 s{sT+6}, s{sT+5}, 1
        s_lshl_b32 s{sT+6}, s{sT+6}, 11
        s_and_b32 s{sT+7}, s{sT+5}, 1
        s_mul_i32 s{sT+7}, s{sT+7}, 24576
        s_add_u32 s{sT+6}, s{sT+6}, s{sT+7}
        s_lshl_b32 s{sT+7}, s{sHD}, 6
        s_add_u32 s{sT+6}, s{sT+6}, s{sT+7}
        v_add_u32 v{vD[i]}, s{sT+6}, v{lA+10}
        s_mov_b32 s{d}, s4
        s_mov_b32 s{d+1}, s5
        s_mov_b32 s{d+2}, {1024*6144}
        s_mov_b32 s{sStA if i == 0 else sStB}, {32*6144}
        s_branch M_dn{i}
        """)
        A.label(f"M_gu{i}")
        A(f"""
        s_sub_u32 s{sT+6}, s{sT+5}, 6
        s_sub_u32 s{sT+7}, s{sT+5}, 13
        s_cmp_lt_u32 s{sT+5}, 13
        s_cselect_b32 s{sT+6}, s{sT+6}, s{sT+7}
        s_cselect_b32 s{d}, s8, s10
        s_cselect_b32 s{d+1}, s9, s11
        s_mov_b32 s{d+2}, {1024*7168}
        s_mov_b32 s{sStA if i == 0 else sStB}, {32*7168}
        s_lshl_b32 s{sT+6}, s{sT+6}, 6
        v_add_u32 v{t3}, s{sT+6}, v0
        v_mul_u32_u24 v{t4}, 4682, v{t3}
        v_lshrrev_b32 v{t4}, 16, v{t4}
        v_mul_u32_u24 v{t5}, 14, v{t4}
        v_sub_u32 v{t5}, v{t3}, v{t5}
        v_add_u32 v{t5}, s{sT+3}, v{t5}
        v_subrev_u32 v{t6}, 14, v{t5}
        v_min_u32 v{t5}, v{t5}, v{t6}
        v_bfe_u32 v{t6}, v{t4}, 2, 2
        v_lshrrev_b32 v{t7}, 4, v{t4}
        v_and_b32 v{t4}, 3, v{t4}
        v_lshl_add_u32 v{t4}, v{t6}, 3, v{t4}
        v_lshl_add_u32 v{t4}, v{t7}, 2, v{t4}
        v_mul_u32_u24 v{t4}, 7168, v{t4}
        v_lshl_add_u32 v{t4}, v{t5}, 4, v{t4}
        v_add_u32 v{vD[i]}, s{sT+4}, v{t4}
        """)
        A.label(f"M_dn{i}")
        A(f"s_mov_b32 s{d+3}, 0x00020000")
    A(f"""
    s_lshr_b32 s{sT}, s{sFo}, 1
    s_lshl_b32 s{sT}, s{sT}, 10
    s_and_b32 s{sT+1}, s{sFo}, 1
    s_lshl_b32 s{sT+1}, s{sT+1}, 7
    s_add_u32 s{sT}, s{sT}, s{sT+1}
    s_lshl_b32 s{sT+1}, s{sW}, 20
    s_add_u32 s{sT}, s{sT}, s{sT+1}
    v_lshrrev_b32 v{lA+3}, 2, v{lA+1}
    v_lshlrev_b32 v{lA+3}, 17, v{lA+3}
    v_and_b32 v{lA+4}, 3, v{lA+1}
    v_lshl_add_u32 v{lA+3}, v{lA+4}, 8, v{lA+3}
    v_lshl_add_u32 v{lA+3}, v{lA}, 4, v{lA+3}
    v_add_u32 v{lA+3}, s{sT}, v{lA+3}
    v_lshlrev_b32 v{lA+5}, 6, v{lA}
    v_add_u32 v{lA+5}, {KVL}, v{lA+5}
    s_lshl_b32 s{sT}, s{sW}, 4
    v_lshl_add_u32 v{lA+4}, v{lA+8}, 2, v{lA+5}
    v_add_u32 v{lA+4}, s{sT}, v{lA+4}
    """)
    srd(A, sSX, 14, 15, 0x400000, XF_OFF)
    A(f"s_lshr_b32 s{sFo}, s2, 3"); A(f"s_mul_i32 s{sFo}, s{sFo}, {LSTR}"); A(f"s_and_b32 s{sT}, s2, 7"); A(f"s_lshl_b32 s{sT}, s{sT}, 4"); A(f"s_add_u32 s{sFo}, s{sFo}, s{sT}")
    def dma(i):
        return [f"s_add_u32 m0, s{sM}, 0x{1024*(i+1):x}",
                f"buffer_load_dwordx4 v{vD[i]}, s[{sSD[i]}:{sSD[i]+3}], s{sWoA if i == 0 else sWoB} offen lds"]
    def xload(s, i):
        return f"buffer_load_dwordx4 {XR(s, i)}, v{vX}, s[{sSX}:{sSX+3}], s{sXo} offen offset:{1024*i} sc1"
    wadv = [f"s_add_u32 s{sM}, s{sM}, s{sSLOT}", f"s_add_u32 s{sWoA}, s{sWoA}, s{sStA}", f"s_add_u32 s{sWoB}, s{sWoB}, s{sStB}"]
    def wgroups(adv):
        L = []
        for i in range(5):
            m, l = dma(i)
            L.append((wadv if (i == 0 and adv) else []) + [m, "s_nop 0", l])
        return L
    def xgroups(t):
        return [[xload(t, i)] + ([f"s_add_u32 s{sXo}, s{sXo}, 0x20000"] if i == 3 else []) for i in range(4)]
    A(f"""
    s_mov_b32 s{sXo}, 0
    s_mul_i32 s{sM0}, s{sW}, 5120
    s_sub_u32 s{sM0}, s{sM0}, 1024
    s_mov_b32 s{sM}, s{sM0}
    s_mov_b32 s{sWoA}, 0
    s_mov_b32 s{sWoB}, 0
    s_mov_b32 s{sSLOT}, {G1_SLOT}
    """)
    B = Asm()
    B(f"""
    s_lshl_b32 s{sT}, s{sRB}, 14
    s_lshl_b32 s{sT+1}, s{sW}, 12
    s_add_u32 s{sT}, s{sT}, s{sT+1}
    v_add_u32 v{vX}, s{sT}, v{vL16}
    s_lshl_b32 s{sT}, s{sRB}, 3
    v_and_b32 v{vPollR}, 7, v0
    v_bfe_u32 v{t3}, v0, 3, 2
    v_lshl_add_u32 v{vPollR}, v{t3}, 6, v{vPollR}
    v_add_u32 v{vPollR}, s{sT}, v{vPollR}
    v_and_b32 v{vT}, 7, v{vPollR}
    v_lshrrev_b32 v{vPollR}, 3, v{vPollR}
    v_mul_u32_u24 v{vPollR}, {LSTR}, v{vPollR}
    v_lshl_add_u32 v{vPollR}, v{vT}, 4, v{vPollR}
    v_lshrrev_b32 v{t3}, 2, v0
    v_and_b32 v{t4}, 3, v0
    v_lshlrev_b32 v{t4}, 3, v{t4}
    v_lshl_add_u32 v{vB0}, v{t3}, 6, v{t4}
    v_and_b32 v{t5}, 1, v{lA+8}
    v_lshl_add_u32 v{vB0}, v{t5}, 5, v{vB0}
    v_xor_b32 v{vB1}, 32, v{vB0}
    v_mul_u32_u24 v{vBG}, 224, v{t3}
    v_add_u32 v{vBG}, v{vBG}, v{t4}
    v_mov_b32 v{vA0}, v{vB0}
    v_mov_b32 v{vA1}, v{vB1}
    v_mov_b32 v{vAG}, v{vBG}
    s_mov_b32 s{sR}, 0
    s_mov_b32 s{sCnt}, 0
    s_mov_b32 s{sREND}, {G1_S*G1_SLOT}
    s_add_u32 s{sMEND}, s{sM0}, s{sREND}
    """)
    B(f"""
    s_lshl_b32 s{sT}, s2, 2
    s_add_u32 s{sT}, s{sT}, s{sW}
    s_lshl_b32 s{sT}, s{sT}, 10
    v_add_u32 v{vCd}, s{sT}, v{vL16}
    v_lshrrev_b32 v{t3}, 3, v0
    v_and_b32 v{t4}, 7, v0
    v_lshlrev_b32 v{t3}, 11, v{t3}
    v_lshl_add_u32 v{t3}, v{t4}, 4, v{t3}
    s_lshl_b32 s{sT}, s{sW}, 14
    s_and_b32 s{sT+1}, s2, 15
    s_lshl_b32 s{sT+1}, s{sT+1}, 7
    s_add_u32 s{sT}, s{sT}, s{sT+1}
    v_add_u32 v{vCs}, s{sT}, v{t3}
    s_lshr_b32 s{sT+1}, s2, 4
    s_mul_i32 s{sT}, s{sT+1}, 7
    s_add_u32 s{sCl}, s{sT}, 1
    s_lshr_b32 s{sCl}, s{sCl}, 1
    s_lshl_b32 s{sCl}, s{sCl}, 16
    s_add_u32 s{sT}, s{sT}, 3
    s_lshl_b32 s{sT}, s{sT}, 16
    s_lshl_b32 s{sT+1}, s{sT+1}, 16
    s_add_u32 s{sT+2}, s{sT+1}, 0x100000
    s_mov_b32 s{sCs}, 0x{(-2 << 20) & 0xffffffff:x}
    s_mov_b32 s{sSCs+2}, {3584*2048}
    s_mov_b32 s{sSCs+3}, 0x00020000
    """)
    sT6, sT7, sT8 = sT, sT + 1, sT + 2
    for l in lines(B): A(l)
    lW, lRd, lSt = lA + 4, lA + 5, lA + 3
    for n in range(4):
        A(f"s_waitcnt vmcnt({3-n+NY})")
        for q in range(4):
            s = lX + 4 * n + q; d = lF + 8 * n + 2 * q
            A(f"v_lshlrev_b32 v{d}, 16, v{s}")
            A(f"v_and_b32 v{d+1}, 0xffff0000, v{s}")
    stamp(A, 2, 2)
    A(f"s_waitcnt vmcnt({NY - 1})")
    if TS in (1, 3, 4):
        for k in range(3): A(touch(k))
        for l in tadv: A(l)
    lM, lMb, lT, lQ = lS + 4, lS + 6, 104, 108
    A(f"""
    v_lshlrev_b32 v{lA+7}, 16, v{lA+7}
    v_sub_f32 v{lM}, 0, v{lA+7}
    v_mov_b32 v{lM+1}, v{lM}
    """)
    for q in range(0, 16, 2):
        d0 = (lS, lS + 2) if q == 0 else (lT, lT + 2)
        A(f"v_pk_add_f32 v[{d0[0]}:{d0[0]+1}], v[{lF+2*q}:{lF+2*q+1}], v[{lM}:{lM+1}]")
        A(f"v_pk_add_f32 v[{d0[1]}:{d0[1]+1}], v[{lF+2*q+2}:{lF+2*q+3}], v[{lM}:{lM+1}]")
        if q == 0:
            A(f"v_pk_mul_f32 v[{lQ}:{lQ+1}], v[{lS}:{lS+1}], v[{lS}:{lS+1}]")
            A(f"v_pk_mul_f32 v[{lQ+2}:{lQ+3}], v[{lS+2}:{lS+3}], v[{lS+2}:{lS+3}]")
        else:
            A(f"v_pk_fma_f32 v[{lQ}:{lQ+1}], v[{lT}:{lT+1}], v[{lT}:{lT+1}], v[{lQ}:{lQ+1}]")
            A(f"v_pk_fma_f32 v[{lQ+2}:{lQ+3}], v[{lT+2}:{lT+3}], v[{lT+2}:{lT+3}], v[{lQ+2}:{lQ+3}]")
            A(f"v_pk_add_f32 v[{lS}:{lS+1}], v[{lS}:{lS+1}], v[{lT}:{lT+1}]")
            A(f"v_pk_add_f32 v[{lS+2}:{lS+3}], v[{lS+2}:{lS+3}], v[{lT+2}:{lT+3}]")
    r = lR; r2 = 128
    A(f"""
    v_pk_add_f32 v[{lS}:{lS+1}], v[{lS}:{lS+1}], v[{lS+2}:{lS+3}]
    v_pk_add_f32 v[{lQ}:{lQ+1}], v[{lQ}:{lQ+1}], v[{lQ+2}:{lQ+3}]
    v_add_f32 v{lS}, v{lS}, v{lS+1}
    v_add_f32 v{lQ}, v{lQ}, v{lQ+1}
    s_nop 0
    v_add_f32_dpp v{lS}, v{lS}, v{lS} row_ror:8 row_mask:0xf bank_mask:0xf
    v_add_f32_dpp v{lQ}, v{lQ}, v{lQ} row_ror:8 row_mask:0xf bank_mask:0xf
    ds_write_b32 v{lW}, v{lS}
    ds_write_b32 v{lW}, v{lQ} offset:512
    s_waitcnt lgkmcnt(0)
    s_barrier
    """)
    for k in range(4): A(f"ds_read_b128 v[{r+4*k}:{r+4*k+3}], v{lRd} offset:{16*k}")
    for k in range(4): A(f"ds_read_b128 v[{r2+4*k}:{r2+4*k+3}], v{lRd} offset:{512+16*k}")
    for wait, rr in ((4, r), (0, r2)):
        A(f"s_waitcnt lgkmcnt({wait})")
        A(f"""
        v_pk_add_f32 v[{rr}:{rr+1}], v[{rr}:{rr+1}], v[{rr+2}:{rr+3}]
        v_pk_add_f32 v[{rr+4}:{rr+5}], v[{rr+4}:{rr+5}], v[{rr+6}:{rr+7}]
        v_pk_add_f32 v[{rr+8}:{rr+9}], v[{rr+8}:{rr+9}], v[{rr+10}:{rr+11}]
        v_pk_add_f32 v[{rr+12}:{rr+13}], v[{rr+12}:{rr+13}], v[{rr+14}:{rr+15}]
        v_pk_add_f32 v[{rr}:{rr+1}], v[{rr}:{rr+1}], v[{rr+4}:{rr+5}]
        v_pk_add_f32 v[{rr+8}:{rr+9}], v[{rr+8}:{rr+9}], v[{rr+12}:{rr+13}]
        v_pk_add_f32 v[{rr}:{rr+1}], v[{rr}:{rr+1}], v[{rr+8}:{rr+9}]
        v_add_f32 v{rr}, v{rr}, v{rr+1}
        v_mul_f32 v{rr}, 0x{f2u(1.0/1024):x}, v{rr}
        """)
    A(f"""
    v_add_f32 v{lMb}, v{lA+7}, v{lR}
    v_fma_f32 v{lR}, -v{lR}, v{lR}, v{r2}
    v_cvt_pk_bf16_f32 v{lMb}, v{lMb}, v{lMb}
    v_max_f32 v{lR}, 0, v{lR}
    v_lshlrev_b32 v{lMb}, 16, v{lMb}
    """)
    A(f"""
    v_cvt_pk_bf16_f32 v{lR}, v{lR}, v{lR}
    v_lshlrev_b32 v{lR}, 16, v{lR}
    v_add_f32 v{lR}, 0x{f2u(1e-5):x}, v{lR}
    v_cvt_pk_bf16_f32 v{lR}, v{lR}, v{lR}
    v_lshlrev_b32 v{lR}, 16, v{lR}
    v_sqrt_f32 v{lR}, v{lR}
    s_nop 0
    v_cvt_pk_bf16_f32 v{lR}, v{lR}, v{lR}
    v_lshlrev_b32 v{lR}, 16, v{lR}
    v_rcp_f32 v{lR}, v{lR}
    v_sub_f32 v{lM}, 0, v{lMb}
    v_mov_b32 v{lM+1}, v{lM}
    v_mov_b32 v{lR+1}, v{lR}
    s_mov_b32 s{sT+3}, 0
    """)
    for n in range(4):
        for q in range(4):
            d = lF + 8 * n + 2 * q; o = lX + 4 * n + q
            A(f"v_pk_add_f32 v[{d}:{d+1}], v[{d}:{d+1}], v[{lM}:{lM+1}]")
        for q in range(4):
            d = lF + 8 * n + 2 * q; o = lX + 4 * n + q
            A(f"v_cvt_pk_bf16_f32 v{o}, v{d}, v{d+1}")
        for q in range(4):
            d = lF + 8 * n + 2 * q; o = lX + 4 * n + q
            A(f"v_lshlrev_b32 v{d}, 16, v{o}")
            A(f"v_and_b32 v{d+1}, 0xffff0000, v{o}")
        for q in range(4):
            d = lF + 8 * n + 2 * q
            A(f"v_pk_mul_f32 v[{d}:{d+1}], v[{d}:{d+1}], v[{lR}:{lR+1}]")
        for q in range(4):
            d = lF + 8 * n + 2 * q; o = lX + 4 * n + q
            A(f"v_cvt_pk_bf16_f32 v{o}, v{d}, v{d+1}")
        A(f"buffer_store_dwordx4 v[{lX+4*n}:{lX+4*n+3}], v{lSt}, s[{sSX}:{sSX+3}], s{sT+3} offen sc1")
        A(f"s_add_u32 s{sT+3}, s{sT+3}, 0x40000")
    stamp(A, 3, 2)
    srd(A, sSCd, 14, 15, WT_SIZE, WT_OFF)
    B = Asm()
    for r in list(range(88)) + list(range(208, 216)):
        B(f"v_accvgpr_write_b32 a{r}, 0")
    for r in range(24, 256, 2):
        B(f"v_pk_mov_b32 v[{r}:{r+1}], 0, 0")
    interleave(A, wgroups(False), lines(B))
    A("s_waitcnt vmcnt(5)")
    A(f"v_readfirstlane_b32 s{sTag}, v{vPv}")
    A("s_barrier")
    A(f"s_mul_i32 s{sTag}, s{sTag}, 0x9e3779b1")
    A(f"s_add_u32 s{sTag}, s{sTag}, 0x7f4a7c15")
    flag_set(F_LN)
    stamp(A, 4, 2)
    if TS == 1:
        for k in range(3): A(touch(k))
        for l in tadv: A(l)
    for g in wgroups(True) + wgroups(True): emit(g)
    A(f"s_cmp_eq_u32 s{sW}, 0"); A("s_cbranch_scc0 M_lng")
    if OPT.get("pre", 0): A(f"s_sleep {OPT['pre']}")
    A(poll_issue(vPollR))
    poll_check(F_LN, MASK_R, 0, None, OPT.get('lnsleep', 1))
    A.label("M_lng")
    A("s_waitcnt vmcnt(0)")
    A("s_barrier")
    sRT, sCT = 68, 69
    A(f"""
    s_and_b32 s{sT+3}, s2, 7
    s_lshr_b32 s{sRT}, s{sT+3}, 1
    s_lshl_b32 s{sRT}, s{sRT}, 2
    s_bfe_u32 s{sT+6}, s2, 0x20003
    s_add_u32 s{sRT}, s{sRT}, s{sT+6}
    s_and_b32 s{sCT}, s{sT+3}, 1
    s_lshl_b32 s{sCT}, s{sCT}, 3
    s_lshr_b32 s{sT+6}, s2, 5
    s_add_u32 s{sCT}, s{sCT}, s{sT+6}
    """)
    stamp(A, 5, 2)
    for g in xgroups(0) + xgroups(1):
        for l in g: A(l)
    if TS == 4:
        for k in range(3): A(touch(k))
        for l in tadv: A(l)
    def copy_op(s):
        if s % 2: return f"buffer_load_dwordx4 v{vT+1 if s == 1 else vCs}, s[{sSCs}:{sSCs+3}], s{sCl} offen lds"
        return f"buffer_store_dwordx4 {CT(s // 2)}, v{vCd}, s[{sSCd}:{sSCd+3}], s{sCs} offen sc1"
    def wread(f, a, pos):
        nm = names[f]
        if nm[0] in "qkv":
            p = "qkv".index(nm[0]); j = int(nm[1])
            addr = vA1 if j else vA0; off = 2048 * p + 1024 * a
        else:
            tl = int(nm[1]); addr = vAG
            off = (6144 if nm[0] == 'g' else 13312) + 3584 * a + 32 * tl
        return f"ds_read_b64_tr_b16 {WR(pos).sub(2*a, 2)}, v{addr} offset:{off}"
    def mfma(f, i, s, pos, par=None):
        if OPT.get("snake") and (f if par is None else par) % 2: i = 3 - i
        nm = names[f]; d = accm[(nm, i)]
        if nm[0] in "kv" or OPT.get("swapab"):
            return f"v_mfma_f32_16x16x32_bf16 {d}, {XR(s, i)}, {WR(pos)}, {d}"
        return f"v_mfma_f32_16x16x32_bf16 {d}, {WR(pos)}, {XR(s, i)}, {d}"
    LA = 6
    A(f"""
    s_lshr_b32 s{sT+3}, s{sRT}, 1
    s_lshl_b32 s{sT+3}, s{sT+3}, 3
    v_and_b32 v{vT}, 7, v0
    v_bfe_u32 v{vT+1}, v0, 3, 2
    v_lshl_add_u32 v{vT+1}, v{vT+1}, 6, v{vT}
    v_add_u32 v{vPollR}, s{sT+3}, v{vT+1}
    """)
    A(f"""
    s_and_b32 s{sT+3}, s{sW}, 1
    s_lshl_b32 s{sT+3}, s{sT+3}, 2
    s_lshr_b32 s{sT+6}, s{sW}, 1
    s_add_u32 s{sT+3}, s{sT+3}, s{sT+6}
    s_lshl_b32 s{sT+3}, s{sT+3}, 13
    v_and_b32 v{vT}, 0x7ff, v{vCs}
    v_bfe_u32 v{vT+1}, v0, 3, 2
    v_lshl_add_u32 v{vT}, v{vT+1}, 11, v{vT}
    v_lshrrev_b32 v{vT+1}, 5, v0
    v_lshl_add_u32 v{vT}, v{vT+1}, 14, v{vT}
    v_add_u32 v{vT}, s{sT+3}, v{vT}
    s_getpc_b64 s[4:5]
    s_and_b32 s4, s4, 0xffffff80
    s_bfe_u32 s{sT+3}, s2, 0x30003
    s_lshl_b32 s{sT+3}, s{sT+3}, 2
    s_add_u32 s{sT+3}, s{sT+3}, s{sW}
    s_mul_i32 s{sT+3}, s{sT+3}, 1408
    s_add_u32 s{sT+3}, s{sT+3}, 5120
    v_min_u32 v{vPv}, 10, v0
    v_lshlrev_b32 v{vPv}, 7, v{vPv}
    v_add_u32 v{vPv}, s{sT+3}, v{vPv}
    v_lshrrev_b32 v{vPv+1}, 2, v0
    v_lshlrev_b32 v{vPv+1}, 7, v{vPv+1}
    v_and_b32 v{vT+1}, 3, v0
    v_lshl_add_u32 v{vPv+1}, v{vT+1}, 4, v{vPv+1}
    s_lshr_b32 s{sT+3}, s{sW}, 1
    s_lshl_b32 s{sT+3}, s{sT+3}, 6
    s_and_b32 s{sT+6}, s{sW}, 1
    s_lshl_b32 s{sT+6}, s{sT+6}, 3
    s_add_u32 s{sT+3}, s{sT+3}, s{sT+6}
    s_add_u32 s{sT+3}, s{sT+3}, {KVL}
    v_add_u32 v{vPv+1}, s{sT+3}, v{vPv+1}
    s_lshl_b32 s{sT+3}, s{sW}, 10
    """)
    for f in range(LA):
        for a in range(2): A(wread(f, a, f % 8))
    A(f"s_waitcnt vmcnt({7 if TS == 4 else 4})")
    stamp(A, 6, 2); stamp(A, 1, 1)
    madv = [f"s_add_u32 s{sM}, s{sM}, s{sSLOT}", f"s_add_u32 s{sWoA}, s{sWoA}, s{sStA}", f"s_add_u32 s{sWoB}, s{sWoB}, s{sStB}",
            f"s_cmp_eq_u32 s{sM}, s{sMEND}", f"s_cselect_b32 s{sM}, s{sM0}, s{sM}"]
    def Wop(k, i): return dict(tag=f"W{k}", pre=(madv if i == 0 else []) + [dma(i)[0]], ins=dma(i)[1], post=[])
    def Xop(k, i): return dict(tag=f"X{k}", pre=[], ins=xload(k % 4, i), post=[f"s_add_u32 s{sXo}, s{sXo}, 0x20000"] if i == 3 else [])
    def Sop(j): return dict(tag="S", pre=[], ins=copy_op(2 * j), post=[f"s_add_u32 s{sCs}, s{sCs}, 0x100000"])
    sched = {}
    def place(ops, slots):
        assert len(ops) <= len(slots), (len(ops), len(slots))
        for o, sl in zip(ops, slots): sched[sl] = o
    place([Wop(6, i) for i in range(5)], [(3, f) for f in range(15, 20)])
    place([Xop(2, i) for i in range(4)] + [Wop(3, i) for i in range(4)], [(0, f) for f in (1, 2, 4, 6, 8, 9, 11, 12)])
    place([Wop(3, 4)] + [Xop(3, i) for i in range(4)] + [Wop(4, i) for i in range(5)] + [Xop(4, i) for i in range(3)],
          [(0, 15), (0, 16), (0, 18), (0, 19), (1, 1), (1, 2), (1, 4), (1, 5), (1, 7), (1, 8), (1, 10), (1, 11), (1, 12)])
    place([Xop(4, 3)] + [Wop(5, i) for i in range(5)] + [Sop(0)] + [Xop(5, i) for i in range(4)] + [Sop(1)],
          [(1, 15), (1, 16), (1, 18), (1, 19), (2, 1), (2, 2), (2, 4), (2, 5), (2, 7), (2, 8), (2, 10), (2, 11)])
    cl0 = dict(tag="C", pre=[f"s_add_u32 m0, s{sT+3}, {KVL}"], ins=copy_op(1), post=[f"s_add_u32 s{sCl}, s{sCl}, {56 << 16}", f"s_cmp_eq_u32 s{sCnt}, 3",
               f"s_cselect_b32 s{sCl}, s{sT7}, s{sCl}", f"s_cselect_b32 s{sSCs}, s84, s{sSCs}", f"s_cselect_b32 s{sSCs+1}, s85, s{sSCs+1}",
               f"s_cselect_b32 s{sSCs+2}, {1024*2048}, s{sSCs+2}", f"s_cmp_eq_u32 s{sCnt}, 4", f"s_cselect_b32 s{sSCs+2}, 0, s{sSCs+2}"])
    cl1 = dict(tag="C", pre=[f"s_add_u32 m0, s{sT+3}, {KVL + 4096}"], ins=copy_op(3), post=[])
    place([cl0] + [dict(tag="T", pre=[], ins=touch(k), post=[]) for k in range(3)] + [cl1], [(2, f) for f in range(15, 20)])
    place([dict(tag="T", pre=[], ins=f"global_load_dword v{vDum}, v{vPv}, s[4:5]", post=[])], [(3, 1)])
    order = sorted(sched.keys())
    def vm_at(s):
        seq = [(-1, k) for k in order] + [(0, k) for k in order if k < (s, 14)]
        need = []
        for n, (tr, k) in enumerate(seq):
            t = sched[k]["tag"]
            if t[0] in "WX" and int(t[1:]) + 4 * tr == s + 1: need.append(n)
        return len(seq) - 1 - max(need)
    A.label("M_loop1")
    for s in range(4):
        for f in range(20):
            F = 20 * s + f
            pos = F % 8
            if f == 14:
                if s == 0:
                    A(f"s_cmp_eq_u32 s{sCnt}, 0"); A("s_cbranch_scc0 M_l1w"); A(f"s_waitcnt vmcnt({11 if TS == 4 else 8})"); A.label("M_l1w")
                A(f"s_waitcnt vmcnt({vm_at(s)}) lgkmcnt(8)"); A("s_barrier")
                if s == 0:
                    A(f"s_cmp_eq_u32 s{sCnt}, 6"); A("s_cbranch_scc0 M_l1c")
                    flag_set(F_LN | F_WT); A.label("M_l1c")
            elif f % 2 == 0:
                A("s_waitcnt lgkmcnt(8)")
            nf = (f + LA) % 20
            pre2, mid, post = [], [], []
            if (s, f) in sched:
                o = sched[(s, f)]; pre2, mid, post = o["pre"], [o["ins"]], o["post"]
            elif f == 0: mid = [f"s_add_u32 s{sR}, s{sR}, s{sSLOT}"]; post = [f"s_cmp_eq_u32 s{sR}, s{sREND}", f"s_cselect_b32 s{sR}, 0, s{sR}"]
            elif f == 13:
                mid = [f"v_add_u32 v{vA0}, s{sR}, v{vB0}", f"v_add_u32 v{vA1}, s{sR}, v{vB1}"]
                post = [f"v_add_u32_e64 v{vAG}, s{sR}, v{vBG}"]
            elif (s, f) in ((1, 14), (1, 17)):
                k = 0 if f == 14 else 1
                mid = [f"ds_read_b64_tr_b16 {CT(k).sub(0, 2)}, v{vPv+1} offset:{4096*k}"]
                post = [f"ds_read_b64_tr_b16 {CT(k).sub(2, 2)}, v{vPv+1} offset:{4096*k + 2048}"]
            elif s == 2 and f == 12:
                mid = [f"s_cmp_eq_u32 s{sCnt}, 3", f"s_cselect_b64 s[{sT+6}:{sT+7}], -1, 0"]
                post = [f"v_cndmask_b32 v{vT+1}, v{vCs}, v{vT}, s[{sT+6}:{sT+7}]"]
            elif s == 3 and f == 2:
                mid = [f"s_sub_u32 s{sCl}, s{sCl}, {55 << 16}"]; post = [f"s_cmp_eq_u32 s{sCnt}, 2", f"s_cselect_b32 s{sCl}, s{sT6}, s{sCl}"]
            elif s == 3 and f == 3:
                mid = [f"s_cmp_eq_u32 s{sCnt}, 3", f"s_cselect_b32 s{sCl}, s{sT8}, s{sCl}"]
            elif s == 3 and f == 4:
                mid = [f"s_add_u32 s{sToq}, s{sToq}, {128*TROW*6144}"]; post = [f"s_add_u32 s{sTog}, s{sTog}, {128*TROW*7168}"]
            elif s == 3 and f == 5: mid = [f"s_add_u32 s{sCnt}, s{sCnt}, 1"]
            A(mfma(f, 0, s, pos))
            A(wread(nf, 0, (F + LA) % 8))
            for l in pre2[:3 if len(pre2) > 3 else 0]: A(l)
            A(mfma(f, 1, s, pos))
            A(wread(nf, 1, (F + LA) % 8))
            for l in pre2[3 if len(pre2) > 3 else 0:]: A(l)
            A(mfma(f, 2, s, pos))
            emit(mid)
            A(mfma(f, 3, s, pos))
            for l in post: A(l)
    A(f"s_cmp_lt_u32 s{sCnt}, 7")
    A("s_cbranch_scc1 M_loop1")
    sSH, sSK, sSXi, sSO = 20, 24, 28, 32
    sNL, sPL, sEPS, sCB, sCL = 36, 38, 40, 41, 42
    sAo, sBo = 43, 44
    sSA, sSB = sSH, sSCd
    vA, vBd = [2, 3, 4, 5], 6
    vRh, vXf, vXf2, vXl = 216, 217, 218, 219
    vXO, vKv, vZ, vFw, vZw, vZr, vFr, vLn = 224, 225, 226, 227, 228, 229, 230, 231
    vk0, vk1, vk2 = 11, 12, 22
    NSL = 14
    AR = lambda ch, i: Reg('a', 144 + 8 * (ch % NSL) + 4 * i)
    vAs, vBds, vPollE = [7, 8], 9, 10
    NS = OPT.get('ns', 28)
    def phi_tile(E, src, tmp, dst):
        b = src
        E(f"v_pk_mul_f32 v[{tmp}:{tmp+1}], v[{b}:{b+1}], s[{sPL}:{sPL+1}]")
        E(f"v_pk_mul_f32 v[{tmp+2}:{tmp+3}], v[{b+2}:{b+3}], s[{sPL}:{sPL+1}]")
        for j in range(4): E(f"v_exp_f32_e64 v{tmp+j}, v{tmp+j} clamp")
        for j in range(4): E(f"v_max_f32 v{b+j}, s{sEPS}, v{b+j}")
        E(f"v_pk_add_f32 v[{b}:{b+1}], v[{b}:{b+1}], v[{tmp}:{tmp+1}]")
        E(f"v_pk_add_f32 v[{b+2}:{b+3}], v[{b+2}:{b+3}], v[{tmp+2}:{tmp+3}]")
        E(f"v_cvt_pk_bf16_f32 v{dst}, v{b}, v{b+1}")
        E(f"v_cvt_pk_bf16_f32 v{dst+1}, v{b+2}, v{b+3}")
    def swiglu_tile(E, tl, i, tmp, dst):
        g = acc[(f"g{tl}", i)].base
        ur = acc[(f"u{tl}", i)]
        if ur.kind == 'a':
            u = tmp + 4
            for j in range(4): E(f"v_accvgpr_read_b32 v{u+j}, a{ur.base+j}")
        else:
            u = ur.base
        E(f"v_pk_mul_f32 v[{tmp}:{tmp+1}], v[{g}:{g+1}], s[{sNL}:{sNL+1}]")
        E(f"v_pk_mul_f32 v[{tmp+2}:{tmp+3}], v[{g+2}:{g+3}], s[{sNL}:{sNL+1}]")
        for j in range(4): E(f"v_exp_f32 v{tmp+j}, v{tmp+j}")
        E(f"v_pk_mul_f32 v[{g}:{g+1}], v[{g}:{g+1}], v[{u}:{u+1}]")
        E(f"v_pk_mul_f32 v[{g+2}:{g+3}], v[{g+2}:{g+3}], v[{u+2}:{u+3}]")
        E(f"v_pk_add_f32 v[{tmp}:{tmp+1}], v[{tmp}:{tmp+1}], 1.0 op_sel_hi:[1,0]")
        E(f"v_pk_add_f32 v[{tmp+2}:{tmp+3}], v[{tmp+2}:{tmp+3}], 1.0 op_sel_hi:[1,0]")
        for j in range(4): E(f"v_rcp_f32 v{tmp+j}, v{tmp+j}")
        E(f"v_pk_mul_f32 v[{g}:{g+1}], v[{g}:{g+1}], v[{tmp}:{tmp+1}]")
        E(f"v_pk_mul_f32 v[{g+2}:{g+3}], v[{g+2}:{g+3}], v[{tmp+2}:{tmp+3}]")
        E(f"v_cvt_pk_bf16_f32 v{dst}, v{g}, v{g+1}")
        E(f"v_cvt_pk_bf16_f32 v{dst+1}, v{g+2}, v{g+3}")
    def swiglu_pair(E, p, tmp):
        for i in range(4):
            o = acc[(f"g{2*p}", i)].base
            swiglu_tile(E, 2 * p, i, tmp, o)
            swiglu_tile(E, 2 * p + 1, i, tmp, o + 2)
            E(f"buffer_store_dwordx4 v[{o}:{o+3}], v{vX}, s[{sSH}:{sSH+3}], s{sCB} offen offset:{1024*i} sc1")
        E(f"s_add_u32 s{sCB}, s{sCB}, {32 << 17}")
    S = Asm()
    srd(S, sSH, 14, 15, HF_SIZE, HF_OFF)
    sh_lines = lines(S)
    S = Asm()
    S(f"""
    s_mov_b32 s{sNL}, 0x{f2u(-LOG2E):x}
    s_mov_b32 s{sNL+1}, 0x{f2u(-LOG2E):x}
    s_mov_b32 s{sPL}, 0x{f2u(LOG2E):x}
    s_mov_b32 s{sPL+1}, 0x{f2u(LOG2E):x}
    s_mov_b32 s{sEPS}, 0x{f2u(1e-6):x}
    s_lshl_b32 s{sCB}, s{sHD}, 17
    s_lshr_b32 s{sCL}, s{sHD}, 1
    s_add_u32 s{sCL}, s{sCL}, 96
    s_lshl_b32 s{sCL}, s{sCL}, 17
    s_and_b32 s{sT}, s{sHD}, 1
    s_lshl_b32 s{sT}, s{sT}, 9
    s_add_u32 s{sCL}, s{sCL}, s{sT}
    s_lshl_b32 s{sT}, s{sW}, 4
    s_add_u32 s{sT}, s{sT}, s{sCT}
    s_lshl_b32 s{sT}, s{sT}, 12
    v_add_u32 v{vBd}, s{sT}, v{vL16}
    s_lshl_b32 s{sM0}, s{sW}, 12
    """)
    pre_lines = lines(S)
    Ga, Gb = [0, 1, 2, 3], [4, 5, 6, 7]
    items = [(0, f) for f in range(6)] + [(1, f) for f in Ga] + [(0, 6), (0, 7)] + [(1, f) for f in Gb] + [(0, f) for f in range(8, 12)]
    items += [(2, f) for f in Ga] + [(0, f) for f in range(12, 14)] + [(3, f) for f in Ga] + [(2, f) for f in Gb] + [(3, f) for f in Gb]
    items += [(0, f) for f in range(14, 20)] + [(st, f) for st in range(1, 4) for f in range(8, 20)]
    assert len(items) == 80 and len(set(items)) == 80
    def wreadL(st, f, a, pos):
        l = wread(f, a, pos)
        base, off = l.rsplit(" offset:", 1)
        if st >= 2:
            for x, y in ((vA0, vB0), (vA1, vB1), (vAG, vBG)):
                if base.endswith(f", v{x}"): base = base[:-len(f"v{x}")] + f"v{y}"; break
        return f"{base} offset:{int(off) + G1_SLOT * (st % 2)}"
    B = Asm(); swiglu_pair(B, 0, 2); e0 = lines(B)
    if OPT.get('noe0'): e0 = []
    def unpack(ls):
        out = []
        for l in ls:
            m = re.match(r"v_pk_(mul|add)_f32 v\[(\d+):\d+\], v\[(\d+):\d+\], (\S+)", l)
            if not m: out.append(l); continue
            op, d, a, b = m.group(1), int(m.group(2)), int(m.group(3)), m.group(4)
            for k in range(2):
                if b.startswith("v["): bb = "v%d" % (int(b[2:].split(":")[0]) + k)
                elif b.startswith("s["): bb = "s%d" % int(b[2:].split(":")[0])
                else: bb = b
                out.append(f"v_{op}_f32 v{d+k}, {bb}, v{a+k}")
        return out
    if OPT.get('unpk', 0) & 1: e0 = unpack(e0)
    E0_AT, E0_N = 31, OPT.get('e0n', 44)
    S = Asm()
    S(f"""
    v_and_b32 v{vT}, 7, v0
    v_and_b32 v{vT+1}, 15, v0
    v_lshlrev_b32 v{vT+1}, 4, v{vT+1}
    v_add_u32 v{vT+1}, s{sCT}, v{vT+1}
    v_bfe_u32 v{vPollW}, v0, 4, 1
    v_xor_b32 v{vT+1}, v{vT+1}, v{vPollW}
    v_cmp_gt_u32 vcc, 32, v0
    s_and_b32 s{sT+3}, s2, 0xc7
    v_lshlrev_b32 v{vT}, 3, v{vT}
    v_cndmask_b32 v{vPollW}, v{vT+1}, v{vPollR}, vcc
    v_add_u32 v{vT}, s{sT+3}, v{vT}
    s_mov_b32 s{sT+3}, 0x70000000
    v_cndmask_b32 v{vPollH}, v{vT}, v{vPollR}, vcc
    v_and_b32 v{vT}, 7, v{vPollR}
    v_lshrrev_b32 v{vPollR}, 3, v{vPollR}
    v_mul_u32_u24 v{vPollR}, {LSTR}, v{vPollR}
    v_lshl_add_u32 v{vPollR}, v{vT}, 4, v{vPollR}
    v_and_b32 v{vT}, 7, v{vPollW}
    v_lshrrev_b32 v{vPollW}, 3, v{vPollW}
    v_mul_u32_u24 v{vPollW}, {LSTR}, v{vPollW}
    v_lshl_add_u32 v{vPollW}, v{vT}, 4, v{vPollW}
    v_and_b32 v{vT}, 7, v{vPollH}
    v_lshrrev_b32 v{vPollH}, 3, v{vPollH}
    v_mul_u32_u24 v{vPollH}, {LSTR}, v{vPollH}
    v_lshl_add_u32 v{vPollH}, v{vT}, 4, v{vPollH}
    """)
    poll_lines = lines(S)
    lops = [Xop(2, i) for i in range(4)] + [Wop(3, i) for i in range(5)] + [Xop(3, i) for i in range(4)]
    misc = pre_lines
    for n, (st, f) in enumerate(items):
        pos = n % 8
        lg = 8 if n + LA < 80 else max(0, 2 * (80 - n - 2))
        if n == 0: A(f"s_waitcnt vmcnt(10) lgkmcnt(8)"); A("s_barrier")
        elif n == 14: A(f"s_waitcnt vmcnt(9) lgkmcnt(8)"); A("s_barrier")
        elif n == 20: A(f"s_waitcnt vmcnt(4) lgkmcnt(8)"); A("s_barrier")
        elif n == 26: A(f"s_waitcnt vmcnt(0) lgkmcnt(8)")
        elif n % 2 == 0: A(f"s_waitcnt lgkmcnt({lg})")
        fill = []
        if n < 13:
            o = lops[n]; fill = o["pre"] + ["s_nop 0", o["ins"]] + o["post"]
        elif n == 13: fill = sh_lines
        elif 14 <= n < 22: fill = poll_lines[len(poll_lines) * (n - 14) // 8: len(poll_lines) * (n - 13) // 8]
        elif n == 27: fill = [f"s_cmp_eq_u32 s{sW}, 0\ns_cbranch_scc0 M_npw\n{poll_issue(vPollW)}", "M_npw:"]
        elif 22 <= n < 27: fill = misc[len(misc) * (n - 22) // 5: len(misc) * (n - 21) // 5]
        elif E0_AT <= n < E0_AT + E0_N:
            c = n - E0_AT
            fill = e0[len(e0) * c // E0_N: len(e0) * (c + 1) // E0_N]
        mm = lambda i: mfma(f, i, st, pos, n)
        h = (len(fill) + 1) // 2 if (n > 13 and n != 27) else len(fill)
        A(mm(0))
        if n + LA < 80: A(wreadL(*items[n + LA], 0, (n + LA) % 8))
        A(mm(1))
        if n + LA < 80: A(wreadL(*items[n + LA], 1, (n + LA) % 8))
        A(mm(2))
        emit(fill[:h])
        A(mm(3))
        emit(fill[h:])
    stamp(A, 2, 1); stamp(A, 1, 4)
    A(f"""
    s_load_dwordx2 s[78:79], s[0:1], 0
    s_load_dwordx2 s[80:81], s[0:1], 56
    s_lshl_b32 s{sT}, s{sRT}, 13
    s_lshl_b32 s{sT+3}, s{sW}, 11
    s_add_u32 s{sT}, s{sT}, s{sT+3}
    v_add_u32 v{vA[0]}, s{sT}, v{vL16}
    v_add_u32 v{vA[1]}, 0x20000, v{vA[0]}
    v_add_u32 v{vA[2]}, 0x40000, v{vA[0]}
    v_add_u32 v{vA[3]}, 0x60000, v{vA[0]}
    s_and_b32 s{sT}, s{sCT}, 1
    s_lshl_b32 s{sT+3}, s{sT}, 18
    v_add_u32 v{vAs[0]}, s{sT+3}, v{vA[0]}
    v_add_u32 v{vAs[1]}, s{sT+3}, v{vA[1]}
    s_lshl_b32 s{sT}, s{sT}, 1
    s_lshr_b32 s{sT+3}, s{sW}, 1
    s_add_u32 s{sT}, s{sT}, s{sT+3}
    s_lshl_b32 s{sT}, s{sT}, 4
    s_and_b32 s{sT+3}, s{sW}, 1
    s_xor_b32 s{sT+3}, s{sT+3}, s{sCT}
    s_add_u32 s{sT}, s{sT}, s{sT+3}
    s_lshl_b32 s{sT}, s{sT}, 12
    v_add_u32 v{vBds}, s{sT}, v{vL16}
    s_lshr_b32 s{sT}, s2, 3
    s_lshr_b32 s{sT+3}, s2, 6
    s_add_u32 s{sT}, s{sT}, s{sT+3}
    s_and_b32 s{sT}, s{sT}, 3
    s_lshl_b32 s{sT}, s{sT}, 3
    s_or_b32 s47, s{sT}, 0x80000
    """)
    srd(A, sSK, 14, 15, KVP_SIZE, KVP_OFF)
    A("s_waitcnt vmcnt(0)")
    A(f"s_cmp_eq_u32 s{sW}, 0"); A("s_cbranch_scc0 M_wtc")
    poll_check(F_WT, MASK_U, None, vPollW)
    A.label("M_wtc")
    A("s_barrier")
    flag_set(F_LN | F_WT | F_A)
    stamp(A, 2, 4)
    tq = acc[("u0", 0)].base
    LA2 = OPT.get("la2", 3); LB = G2_R - 1
    vm, lg = [], []
    done = {"vm": -1, "lg": -1}
    pmark = {}
    def put(x):
        line, tag = x if isinstance(x, tuple) else (x, None)
        if line.startswith("@"):
            k, t = line[1:].split()
            waitfor(**{k: [t]}); return
        if line == "#excheck":
            A(f"s_mov_b32 s{sSpin}, 0")
            A.label("M_exc")
            poll_eval(A, 1)
            A(f"""
            s_cmp_eq_u32 vcc_lo, 0
            s_cbranch_scc1 M_exc_ok
            s_add_u32 s{sSpin}, s{sSpin}, 1
            s_cmp_ge_u32 s{sSpin}, 0x40000
            s_cbranch_scc1 M_exc_ok
            s_sleep 1
            {expoll}
            s_waitcnt vmcnt(0)
            s_branch M_exc
            """)
            A.label("M_exc_ok"); return
        if line.startswith("#poll"):
            _, c, va = line.split()
            A(f"s_cmp_eq_u32 s{sW}, 0"); A(f"s_cbranch_scc0 M_np{c}"); A(poll_issue(int(va))); A.label(f"M_np{c}")
            pmark[int(c)] = len(vm); return
        if line.endswith(":"): A.label(line[:-1]); return
        A(line)
        if line.startswith("buffer_"): vm.append(tag)
        elif line.startswith("ds_"): lg.append(tag)
    def waitfor(vm=(), lg=(), _vm=vm, _lg=lg):
        parts = []
        for name, lst, tags, cap in (("vm", _vm, vm, 63), ("lg", _lg, lg, 15)):
            idx = [i for i, t in enumerate(lst) if t in tags]
            assert len(idx) >= 1 or not tags, tags
            if idx and max(idx) > done[name]:
                n = min(len(lst) - 1 - max(idx), cap)
                done[name] = len(lst) - 1 - n
                parts.append(f"{'vmcnt' if name == 'vm' else 'lgkmcnt'}({n})")
        if parts: A("s_waitcnt " + " ".join(parts))
    LEAD = OPT.get("lead", 0)
    sCls = 47
    def perm(r):
        o = list(range(36))
        for lo, hi in ((0, 8), (8, 16), (16, 28), (28, 36)):
            for st in range(lo + LEAD, hi):
                if st % 4 == r and LEAD:
                    o[st - LEAD: st + 1] = [st] + list(range(st - LEAD, st))
        return o
    P = [perm(r) for r in range(4)]
    for r in range(4): assert sorted(P[r]) == list(range(36))
    def soff(dst, m, sh):
        v = [P[r][m] for r in range(4)]
        if len(set(v)) == 1: return [f"s_mov_b32 s{dst}, 0x{v[0] << sh:x}"]
        lit = sum(x << (8 * r) for r, x in enumerate(v))
        return [f"s_bfe_u32 s{dst}, 0x{lit:x}, s{sCls}", f"s_lshl_b32 s{dst}, s{dst}, {sh}"]
    def bop(m, b):
        pre = soff(sBo, m, 18) + [ f"s_add_u32 m0, s{sM0}, 0x{(m % G2_R) * G2_SLOT:x}", "s_nop 0"] if b == 0 else []
        return pre + [(f"buffer_load_dwordx4 v{vBds if m < NS else vBd}, s[{sSB}:{sSB+3}], s{sBo} offen offset:{1024*b} sc1 lds", f"B{m}")]
    nq = lambda m: 2 if m < NS else 4
    ch0 = [sum(nq(k) for k in range(m)) for m in range(37)]
    aq = [(m, q, i) for m in range(36) for q in range(nq(m)) for i in range(2)]
    def aop(m, q, i):
        pre = soff(sAo, m, 19) if (q == 0 and i == 0) else []
        va = vAs[q] if m < NS else vA[q]
        return pre + [(f"buffer_load_dwordx4 {AR(ch0[m] + q, i)}, v{va}, s[{sSA}:{sSA+3}], s{sAo} offen offset:{1024*i} sc1", f"A{m}q{q}")]
    LAC = OPT.get("lac", 8)
    LACS = OPT.get("lacs", 6)
    NPRE = OPT.get("npre", 6)
    asched = {}; first_at = {}
    k = 2 * NPRE
    for c in range(16 * 36):
        n, F = c // 16, c % 16
        cur = ch0[n] + F * nq(n) // 16
        if F % 4 < 2 and k < len(aq):
            m, q, i = aq[k]
            if ch0[m] + q - cur <= (LACS if m < NS else LAC):
                asched[c] = aq[k]; first_at.setdefault(m, c); k += 1
    assert k == len(aq)
    M1 = OPT.get("m1", 99)
    db = lambda m: LB if m < M1 else max(OPT.get("dmin", 3), LB - 1 - (m - M1) // OPT.get("mstep", 3))
    bsched = {}
    k = 4 * (LB - 1) + 2
    for c in range(16 * 36):
        if c % 4 == 3 and k < 4 * 36:
            m = k // 4
            if c >= 16 * (m - db(m)) + 11:
                bsched[c] = (m, k % 4); k += 1
    assert k == 4 * 36
    def check_pos(c):
        n = c // 16 if c % 16 >= 10 else c // 16 - 1
        return 16 * n + 9
    def tagged(ls, tag): return [(l, tag) if l.startswith(("buffer_", "ds_")) else l for l in ls]
    def mix(G, work):
        n = len(G)
        for c, grp in enumerate(G):
            for x in grp: put(x)
            for x in work[len(work) * c // n: len(work) * (c + 1) // n]: put(x)
    B = Asm(); swiglu_pair(B, 1, tq)
    G = [bop(m, b) for m in range(LB) for b in range(4 if m < LB - 1 else 2)]
    G.insert(len(G) - 5, [f"#poll 0 {vPollR}"])
    mix(G, tagged(lines(B), "h1"))
    stamp(A, 3, 4)
    A("s_waitcnt lgkmcnt(0)")
    srd(A, sSXi, 78, 79, 0x400000)
    srd(A, sSO, 80, 81, 0x400000)
    A(f"s_cmp_eq_u32 s{sW}, 0"); A("s_cbranch_scc0 M_gate")
    poll_check(F_A, MASK_R, len(vm) - pmark[0], None, 2)
    A.label("M_gate")
    waitfor(vm=["B0"])
    A("s_barrier")
    stamp(A, 3, 1); stamp(A, 4, 4)
    ACCF, ACCP, ACCS = 88, 120, 24
    BR = lambda p: Reg('a', 112 + 4 * p)
    t0 = tq + 12
    B = Asm()
    for r in range(ACCF, ACCF + 64, 2): B(f"v_pk_mov_b32 v[{r}:{r+1}], 0, 0")
    kb = acc[("k0", 0)].base; vb = acc[("v0", 0)].base
    for dt in range(2):
        for i in range(4):
            phi_tile(B, kb + 16 * dt + 4 * i, tq, kb + 16 * dt + 8 * (i // 2) + 2 * (i % 2))
    mix([aop(*aq[k]) for k in range(2 * NPRE)], lines(B))
    fill = {}
    def spread(ls, c0, c1):
        n = c1 - c0
        for c in range(n):
            fill.setdefault(c0 + c, []).extend(ls[len(ls) * c // n: len(ls) * (c + 1) // n])
    vONE = tq + 8
    B = Asm()
    B(f"v_add_u32 v{vRh}, 0x10000, v{vL16}")
    for j in range(4): B(f"v_mov_b32 v{vONE+j}, 0x3f803f80")
    for et in range(2):
        for i in range(4):
            src = vb + 16 * et + 4 * i
            dst = vb + 16 * et + 8 * (i // 2) + 2 * (i % 2)
            B(f"v_cvt_pk_bf16_f32 v{dst}, v{src}, v{src+1}")
            B(f"v_cvt_pk_bf16_f32 v{dst+1}, v{src+2}, v{src+3}")
    B(f"""
    s_mul_i32 s{sT}, s{sW}, 6144
    s_add_u32 s{sT}, s{sT}, {KVL}
    v_add_u32 v{vk0}, s{sT}, v{vL16}
    s_lshl_b32 s{sT}, s{sW}, 10
    """)
    for u in range(2):
        for dt in range(2):
            for et in range(3):
                a = kb + 16 * dt + 8 * u
                b = vb + 16 * et + 8 * u if et < 2 else vONE
                p = PT(dt * 3 + et)
                B(f"v_mfma_f32_16x16x32_bf16 {p}, v[{a}:{a+3}], v[{b}:{b+3}], {'0' if u == 0 else p}")
    B(f"""
    s_add_u32 s{sT+1}, s{sT}, {KVL}
    v_add_u32 v{vk1}, s{sT+1}, v{vL16}
    s_lshl_b32 s{sT+1}, s{sHD}, 3
    s_add_u32 s{sT+1}, s{sT+1}, s{sRB}
    s_mul_i32 s{sT+1}, s{sT+1}, 6144
    v_add_u32 v{vk2}, s{sT}, v{vL16}
    s_add_u32 s{sT+2}, s{sT+1}, 4096
    """)
    ls = lines(B) + [f"s_cmp_lt_u32 s{sW}, 2\ns_cselect_b32 s{sT+2}, s{sT+2}, 0x70000000"]
    ls += [(f"ds_write_b128 v{vk0}, {PT(t)} offset:{1024*t}", "kvw") for t in range(6)]
    spread(ls, 0, 16 + 6)
    barrier_lg = {1: ["kvw"]}
    tb = kb
    def sum4(E, b):
        E(f"v_pk_add_f32 v[{b}:{b+1}], v[{b}:{b+1}], v[{b+4}:{b+5}]")
        E(f"v_pk_add_f32 v[{b+2}:{b+3}], v[{b+2}:{b+3}], v[{b+6}:{b+7}]")
        E(f"v_pk_add_f32 v[{b+8}:{b+9}], v[{b+8}:{b+9}], v[{b+12}:{b+13}]")
        E(f"v_pk_add_f32 v[{b+10}:{b+11}], v[{b+10}:{b+11}], v[{b+14}:{b+15}]")
        E(f"v_pk_add_f32 v[{b}:{b+1}], v[{b}:{b+1}], v[{b+8}:{b+9}]")
        E(f"v_pk_add_f32 v[{b+2}:{b+3}], v[{b+2}:{b+3}], v[{b+10}:{b+11}]")
    ls = [(f"ds_read_b128 v[{tb+4*sw}:{tb+4*sw+3}], v{vk1} offset:{6144*sw}", "kvr") for sw in range(4)]
    ls += [(f"ds_read_b128 v[{tb+16+4*sw}:{tb+16+4*sw+3}], v{vk1} offset:{6144*sw+4096}", "kvr") for sw in range(4)]
    spread(ls, 16 + 10, 32 + 2)
    B = Asm()
    sum4(B, tb)
    B(f"buffer_store_dwordx4 v[{tb}:{tb+3}], v{vk2}, s[{sSK}:{sSK+3}], s{sT+1} offen sc1")
    sum4(B, tb + 16)
    B(f"buffer_store_dwordx4 v[{tb+16}:{tb+19}], v{vk2}, s[{sSK}:{sSK+3}], s{sT+2} offen sc1")
    spread(["@lg kvr"] + tagged(lines(B), "kvs"), 32 + 6, 32 + 12)
    B = Asm(); swiglu_pair(B, 2, tq)
    spread(tagged(lines(B), "h2"), 16 * 2 + 12, 16 * 5 + 8)
    B = Asm()
    B(f"""
    v_and_b32 v{t0}, 15, v0
    v_lshlrev_b32 v{t0+2}, 4, v{t0}
    v_bfe_u32 v{t0+1}, v0, 4, 1
    v_lshl_add_u32 v{t0+2}, v{t0+1}, 10, v{t0+2}
    v_lshrrev_b32 v{t0+1}, 5, v0
    v_lshl_add_u32 v{t0+2}, v{t0+1}, 8, v{t0+2}
    v_sub_u32 v{vLn}, v{vX}, v{vL16}
    v_add_u32 v{vLn}, v{vLn}, v{t0+2}
    v_lshrrev_b32 v{t0+1}, 4, v0
    v_and_b32 v{t0+2}, 7, v0
    v_xor_b32 v{t0+1}, v{t0+1}, v{t0+2}
    v_lshlrev_b32 v{t0+1}, 4, v{t0+1}
    v_lshl_add_u32 v{vXf}, v{t0}, 7, v{t0+1}
    v_lshrrev_b32 v{t0}, 3, v0
    v_xor_b32 v{t0+2}, v{t0+2}, v{t0}
    v_lshlrev_b32 v{t0}, 11, v{t0}
    v_lshl_add_u32 v{vXO}, v{t0+2}, 4, v{t0}
    s_lshl_b32 s{sT}, s{sRT}, 18
    s_lshl_b32 s{sT+3}, s{sW}, 16
    s_add_u32 s{sT}, s{sT}, s{sT+3}
    s_lshl_b32 s{sT+3}, s{sCT}, 7
    s_add_u32 s{sT}, s{sT}, s{sT+3}
    v_add_u32 v{vXO}, s{sT}, v{vXO}
    s_add_u32 s{sT}, s{sM0}, {XL}
    v_add_u32 v{vXf}, s{sT}, v{vXf}
    v_xor_b32 v{vXf2}, 64, v{vXf}
    v_add_u32 v{vXl}, s{sT}, v{vL16}
    s_lshr_b32 s{sT}, s{sW}, 1
    s_add_u32 s{sT}, s{sT}, s{sW}
    s_lshl_b32 s{sT}, s{sT}, 10
    s_mul_i32 s{sT+3}, s{sHD}, 49152
    s_add_u32 s{sT}, s{sT}, s{sT+3}
    v_add_u32 v{vKv}, s{sT}, v{vL16}
    v_and_b32 v{t0}, 7, v0
    v_mul_u32_u24 v{vZ}, 6144, v{t0}
    v_bfe_u32 v{t0}, v0, 3, 2
    v_lshl_add_u32 v{vZ}, v{t0}, 8, v{vZ}
    v_lshrrev_b32 v{t0}, 5, v0
    v_mul_u32_u24 v{t0}, 3072, v{t0}
    v_add3_u32 v{vZ}, v{vZ}, v{t0}, s{sT+3}
    s_and_b32 s{sT}, s{sW}, 1
    s_lshl_b32 s{sT}, s{sT}, 10
    s_lshr_b32 s{sT+3}, s{sW}, 1
    s_lshl_b32 s{sT+3}, s{sT+3}, 3
    s_add_u32 s{sT}, s{sT}, s{sT+3}
    s_add_u32 s{sT}, s{sT}, {FIN}
    v_add_u32 v{vFw}, s{sT}, v{vL16}
    v_bfe_u32 v{t0}, v0, 3, 2
    v_lshlrev_b32 v{t0}, 4, v{t0}
    v_lshrrev_b32 v{t0+1}, 5, v0
    v_lshl_add_u32 v{t0}, v{t0+1}, 3, v{t0}
    v_add_u32 v{vZw}, {FIN+2048}, v{t0}
    v_and_b32 v{t0}, 48, v0
    v_add_u32 v{vZr}, {FIN+2048}, v{t0}
    v_add_u32 v{vFr}, {FIN}, v{vL16}
    """)
    spread(lines(B)[:8], 16 * 1 + 6, 16 * 1 + 12)
    spread([f"v_and_b32 v{t0}, 15, v0"] + lines(B)[8:], 16 * 8, 16 * 10)
    B = Asm()
    for i in (0, 2):
        o = acc[("g6", i)].base
        swiglu_tile(B, 6, i, tq, o)
        swiglu_tile(B, 6, i + 1, tq, o + 2)
        B("s_nop 1")
        B(f"v_permlane16_swap_b32 v{o}, v{o+2}")
        B(f"v_permlane16_swap_b32 v{o+1}, v{o+3}")
        B(f"buffer_store_dwordx4 v[{o}:{o+3}], v{vLn}, s[{sSH}:{sSH+3}], s{sCL} offen offset:{1024*i} sc1")
    spread(tagged(lines(B), "h3"), 16 * 5 + 8, 16 * 7)
    pqb = 240
    B = Asm()
    for i in range(4):
        for dt in range(2):
            qa = acc[(f"q{dt}", i)].base
            for j in range(4): B(f"v_accvgpr_read_b32 v{tq+j}, a{qa+j}")
            phi_tile(B, tq, tq + 4, pqb + 4 * i + 2 * dt)
    spread(lines(B), 16 * 10, 16 * 15)
    kvb, zb, fr, ob = 24, 56, 60, 152
    extra = {}
    for r in range(8):
        extra[16 * 13 + 2 + 4 * r] = [f"s_mov_b32 s{sT+1}, {6144*r}", (f"buffer_load_dwordx4 v[{kvb+4*r}:{kvb+4*r+3}], v{vKv}, s[{sSK}:{sSK+3}], s{sT+1} offen sc1", "kvg")]
    extra[16 * 15 + 2] = [(f"buffer_load_dwordx4 v[{zb}:{zb+3}], v{vZ}, s[{sSK}:{sSK+3}], 0 offen offset:2048 sc1", "kvg")]
    B = Asm()
    for st in (16, 8, 4):
        for r in range(0, st, 2):
            B(f"v_pk_add_f32 v[{kvb+r}:{kvb+r+1}], v[{kvb+r}:{kvb+r+1}], v[{kvb+st+r}:{kvb+st+r+1}]")
    for dpp in ("quad_perm:[1,0,3,2]", "quad_perm:[2,3,0,1]", "row_half_mirror"):
        for j in range(4):
            B(f"v_add_f32_dpp v{zb+j}, v{zb+j}, v{zb+j} {dpp} row_mask:0xf bank_mask:0xf")
    B(f"""
    v_cvt_pk_bf16_f32 v{kvb}, v{kvb}, v{kvb+1}
    v_cvt_pk_bf16_f32 v{kvb+1}, v{kvb+2}, v{kvb+3}
    v_cvt_pk_bf16_f32 v{zb}, v{zb}, v{zb+1}
    v_cvt_pk_bf16_f32 v{zb+1}, v{zb+2}, v{zb+3}
    ds_write_b64 v{vFw}, v[{kvb}:{kvb+1}]
    ds_write_b64 v{vZw}, v[{zb}:{zb+1}]
    """)
    spread(["@vm kvg"] + tagged(lines(B), "fw"), 16 * 17, 16 * 17 + 7)
    barrier_lg[17] = ["fw"]
    spread([(f"ds_read_b128 v[{fr}:{fr+3}], v{vFr}", "frr"), (f"ds_read_b128 v[{fr+4}:{fr+7}], v{vFr} offset:1024", "frr"),
            (f"ds_read_b128 v[{fr+8}:{fr+11}], v{vZr}", "frr")], 16 * 17 + 10, 16 * 17 + 13)
    B = Asm()
    B(f"s_add_u32 s{sT}, s{sHD}, 112")
    B(f"s_lshl_b32 s{sT}, s{sT}, 17")
    for i in range(4):
        for et in (2, 0, 1):
            d = ob + 12 * i + 4 * et
            B(f"v_mfma_f32_16x16x32_bf16 v[{d}:{d+3}], v[{fr+4*et}:{fr+4*et+3}], v[{pqb+4*i}:{pqb+4*i+3}], 0")
    for i in range(4): B(f"v_add_f32 v{ob+12*i+8}, s{sEPS}, v{ob+12*i+8}")
    for i in range(4): B(f"v_rcp_f32 v{ob+12*i+8}, v{ob+12*i+8}")
    for i in range(4):
        d = ob + 12 * i
        for q in range(4):
            B(f"v_pk_mul_f32 v[{d+2*q}:{d+2*q+1}], v[{d+2*q}:{d+2*q+1}], v[{d+8}:{d+9}] op_sel_hi:[1,0]")
        for q in range(4):
            B(f"v_cvt_pk_bf16_f32 v{d+q}, v{d+2*q}, v{d+2*q+1}")
        B(f"buffer_store_dwordx4 v[{d}:{d+3}], v{vX}, s[{sSH}:{sSH+3}], s{sT} offen offset:{1024*i} sc1")
    spread(["@lg frr"] + tagged(lines(B), "os"), 16 * 18 + 2, 16 * 20)
    spread([f"v_pk_mov_b32 v[{r}:{r+1}], 0, 0" for r in range(ACCS, ACCS + 32, 2)], 16 * 22, 16 * 23)
    sSE = 16
    S = Asm(); srd(S, sSE, 14, 15, EX_SIZE, EX_OFF)
    ls = ["\n".join(lines(S)),
          f"s_lshl_b32 s{sT+1}, s2, 2", f"s_add_u32 s{sT+1}, s{sT+1}, s{sW}", f"s_lshl_b32 s{sT+1}, s{sT+1}, 13",
          f"s_add_u32 s{sT+2}, s{sT+1}, 4096"]
    assert LSTR & (LSTR - 1) == 0
    spread(ls, 16 * (NS - 1), 16 * NS)
    XB = OPT.get("xbf", 1)
    NX = 4 if XB else 8
    if XB:
        ls = []
        for k in range(4):
            for q in range(4): ls.append(f"v_cvt_pk_bf16_f32 v{ACCP+4*k+q}, v{ACCP+8*k+2*q}, v{ACCP+8*k+2*q+1}")
            ls.append((f"buffer_store_dwordx4 v[{ACCP+4*k}:{ACCP+4*k+3}], v{vL16}, s[{sSE}:{sSE+3}], s{sT+1} offen offset:{1024*k} sc1", "ex"))
        spread(ls, 16 * NS + 2, 16 * NS + OPT.get("exs", 14))
    else:
        for k in range(8):
            extra.setdefault(16 * NS + 2 + 4 * k, []).append(
                (f"buffer_store_dwordx4 v[{ACCP+4*k}:{ACCP+4*k+3}], v{vL16}, s[{sSE}:{sSE+3}], s{sT+1+k//4} offen offset:{1024*(k%4)} sc1", "ex"))
    assert XB
    EXG = 16 * NS + OPT.get("exg", 38)
    EXP = EXG + OPT.get("exp", 16)
    EXL = EXP + OPT.get("exc", 16)
    extra.setdefault(EXG, []).extend(["@vm ex", f"v_mov_b32 v{vT}, s{sTag}", f"v_mov_b32 v{vT+1}, 1", "s_mov_b64 exec, 1",
        (f"buffer_store_dwordx2 v[{vT}:{vT+1}], off, s[{sSE}:{sSE+3}], s{sT+2} sc1", "exf"), "s_mov_b64 exec, -1",
        f"s_xor_b32 s{sT+1}, s{sT+1}, {32 << 15}", f"s_xor_b32 s{sT+2}, s{sT+2}, {32 << 15}"])
    expoll = f"buffer_load_dwordx2 v[{vPv}:{vPv+1}], off, s[{sSE}:{sSE+3}], s{sT+2} sc1"
    extra.setdefault(EXP, []).append((expoll, "exp"))
    extra.setdefault(EXL, []).extend(["@vm exp", "#excheck"])
    for k in range(NX):
        extra.setdefault(EXL + 2 * k, []).append(
            (f"buffer_load_dwordx4 v[{ACCP+4*k}:{ACCP+4*k+3}], v{vL16}, s[{sSE}:{sSE+3}], s{sT+1+k//4} offen offset:{1024*(k%4)} sc1", "exl"))
    vXD, tb = 72, 152
    sX0 = 45
    XST = OPT.get('xst', 10)
    for k in range(4):
        c = 16 * (XST + k) + 10
        assert bsched[c + 1][1] == 0
        extra.setdefault(c, []).extend([f"s_mov_b32 s{sX0}, {k*16384}", f"s_add_u32 m0, s{sM0}, {XL + 1024*k}", "s_nop 0",
            (f"buffer_load_dwordx4 v{vXO}, s[{sSXi}:{sSXi+3}], s{sX0} offen lds", "x")])
    xb0 = 184
    B = Asm()
    if XB:
        for r in range(16):
            B(f"v_lshlrev_b32 v{tb+2*r}, 16, v{ACCP+r}")
            B(f"v_and_b32 v{tb+2*r+1}, 0xffff0000, v{ACCP+r}")
    for r in range(0, 32, 2): B(f"v_pk_add_f32 v[{ACCF+r}:{ACCF+r+1}], v[{ACCF+r}:{ACCF+r+1}], v[{(tb if XB else ACCP)+r}:{(tb if XB else ACCP)+r+1}]")
    for r in range(0, 32, 2): B(f"v_pk_mul_f32 v[{tb+r}:{tb+r+1}], v[{ACCF+r}:{ACCF+r+1}], s[{sNL}:{sNL+1}]")
    for r in range(32): B(f"v_exp_f32 v{tb+r}, v{tb+r}")
    for r in range(0, 32, 2): B(f"v_pk_add_f32 v[{tb+r}:{tb+r+1}], v[{tb+r}:{tb+r+1}], 1.0 op_sel_hi:[1,0]")
    for r in range(32): B(f"v_rcp_f32 v{tb+r}, v{tb+r}")
    for r in range(0, 32, 2): B(f"v_pk_mul_f32 v[{ACCF+r}:{ACCF+r+1}], v[{ACCF+r}:{ACCF+r+1}], v[{tb+r}:{tb+r+1}]")
    S0 = max(EXL + OPT.get("exw", 22), 16 * 28 + 2)
    spread(["@vm exl"] + lines(B), S0, min(S0 + 56, 16 * 36 - 2))
    spread(["@vm x"] + [(f"ds_read_b128 v[{vXD+4*k}:{vXD+4*k+3}], v{vXf2 if k % 2 else vXf} offset:{2048*(k//2)}", "xr") for k in range(4)], 16 * 23, 16 * 23 + 5)
    ls = ["@lg xr"]
    for k in range(4):
        for q in range(4):
            ls.append(f"v_lshlrev_b32 v{xb0+8*k+2*q}, 16, v{vXD+4*k+q}")
            ls.append(f"v_and_b32 v{xb0+8*k+2*q+1}, 0xffff0000, v{vXD+4*k+q}")
    spread(ls, 16 * 24, 16 * 26)
    base = F_LN | F_WT | F_A
    FB, FC = OPT.get("fb", 8), OPT.get("fc", 21)
    flags = {0: (base | F_A2, ["h1"]), FB: (base | F_A2 | F_B, ["kvs", "h2", "h3"]), FC: (base | F_A2 | F_B | F_C, ["os"])}
    checks = {check_pos(first_at[8]): (F_A2, MASK_R, vPollR), check_pos(first_at[16]): (F_B, MASK_R | MASK_U, vPollH),
              check_pos(first_at[28]): (F_C, MASK_R, vPollR)}
    print("checks at", sorted((c // 16, c % 16) for c in checks), file=sys.stderr)
    Y = OPT.get("y", 0)
    if Y & 1: checks = {k: v for k, v in checks.items() if v[0] == F_C}
    if Y & 2: flags = {k: v for k, v in flags.items() if k == 19}
    if Y & 4:
        for k in list(extra):
            if any(isinstance(x, tuple) and x[1] == "kvg" for x in extra[k]) and k != 16 * 12 + 2: del extra[k]
    if Y & 8:
        for k in list(extra):
            if any(isinstance(x, tuple) and x[1] == "x" for x in extra[k]) and k != 16 * 27 + 2: del extra[k]
    if Y & 16:
        for k in fill: fill[k] = [x for x in fill[k] if isinstance(x, tuple) or not x.startswith(("v_pk", "v_exp", "v_rcp", "v_acc", "v_cvt", "v_max"))]
    for c, (bit, mask, va) in checks.items():
        pc = c - OPT.get("pdist", 19)
        extra.setdefault(pc, []).append(f"#poll {c} {va}")
    if OPT.get("unpk", 0) & 2:
        for k in fill:
            out = []
            for x in fill[k]:
                if isinstance(x, str) and x.startswith("v_pk_") and "op_sel_hi:[1,0]" not in x.replace("1.0 op_sel_hi:[1,0]", "") and not x.startswith(("v_pk_mov", "v_pk_fma")):
                    out += unpack([x])
                else: out.append(x)
            fill[k] = out
    def bread(n, F):
        sl = n % G2_R
        return (f"ds_read_b128 {BR(F % 8)}, v{vRh if sl >= 4 else vL16} offset:{(sl % 4) * G2_SLOT + 1024*F}", f"b{n}_{F}")
    for F in range(LA): put(bread(0, F))
    stamp(A, 5, 1); stamp(A, 1, 3); stamp(A, 5, 4)
    for n in range(36):
        for F in range(16):
            q, j = F * nq(n) // 16, F % 4
            accb = ACCS if n >= 28 else (ACCP if (n < NS and (F >> 2) & 1) else ACCF)
            c = 16 * n + F
            wv, wl = [], []
            if F % 2 == 0: wl = [f"b{n}_{F}", f"b{n}_{F+1}"]
            if j == 0: wv = [f"A{n}q{q}"]
            if F == 10 and n < 35:
                wv += [f"B{n+1}"] + (flags[n][1] if n in flags else [])
                wl += barrier_lg.get(n, [])
            waitfor(vm=wv, lg=wl)
            if F == 10 and n < 35:
                A("s_barrier")
                if n in flags: flag_set(flags[n][0])
            order = (0, 1) if (F % 2 == 0 or not OPT.get("snake")) else (1, 0)
            m = lambda i: f"v_mfma_f32_16x16x32_bf16 v[{accb+16*i+4*j}:{accb+16*i+4*j+3}], {BR(F % 8)}, {AR(ch0[n] + q, i)}, v[{accb+16*i+4*j}:{accb+16*i+4*j+3}]"
            nn, nF = (n, F + LA) if F + LA < 16 else (n + 1, F + LA - 16)
            fl = fill.get(c, [])
            h = len(fl) // 2 if OPT.get("gap2") else 0
            A(m(order[0]))
            if nn < 36: put(bread(nn, nF))
            for x in fl[:h]: put(x)
            A(m(order[1]))
            if c in asched:
                for x in aop(*asched[c]): put(x)
            if c in bsched:
                for x in bop(*bsched[c]): put(x)
            for x in extra.get(c, []): put(x)
            for x in fl[h:]: put(x)
            if c in checks:
                bit, mask, va = checks[c]
                A(f"s_cmp_eq_u32 s{sW}, 0"); A(f"s_cbranch_scc0 M_nc{c}")
                poll_check(bit, mask, len(vm) - pmark[c], va)
                if bit != F_C: A.label(f"M_nc{c}")
                if bit == F_C:
                    A(f"""
                    s_or_b32 s{sTm}, s2, s{sW}
                    s_cmp_eq_u32 s{sTm}, 0
                    s_cbranch_scc0 M_nobump
                    v_mov_b32 v{vT}, s{sTag}
                    s_mov_b32 s{sTm}, {EPOCH}
                    s_mov_b64 exec, 1
                    buffer_store_dword v{vT}, off, s[{sSF}:{sSF+3}], s{sTm} sc1
                    s_mov_b64 exec, -1
                    """)
                    A.label("M_nobump"); A.label(f"M_nc{c}")
        if n in (3, 7, 11, 19, 31): stamp(A, {3: 2, 7: 3, 11: 4, 19: 5, 31: 6}[n], 3)
        if n in (19, 21, 23, 25, 27, 29): stamp(A, (n - 17) // 2, 5)
        if n in (11, 13, 15, 17, 19, 21): stamp(A, (n - 9) // 2, 6)
    A("s_nop 4")
    for i in range(2):
        for pr in range(2):
            t0 = 16 * i + 8 * pr
            x = vXD + 8 * i + 4 * pr
            for q in range(4):
                t = t0 + 2 * q
                A(f"v_pk_fma_f32 v[{ACCS+t}:{ACCS+t+1}], v[{ACCS+t}:{ACCS+t+1}], v[{ACCF+t}:{ACCF+t+1}], v[{xb0+t}:{xb0+t+1}]")
            for q in range(4):
                A(f"v_cvt_pk_bf16_f32 v{x+q}, v{ACCS+t0+2*q}, v{ACCS+t0+2*q+1}")
            A(f"ds_write_b128 v{vXf2 if pr else vXf}, v[{x}:{x+3}] offset:{2048*i}")
        if i == 0: A(f"s_mov_b32 s{sX0}, 16384"); A(f"s_mov_b32 s{sX0+1}, 32768"); A(f"s_mov_b32 s{sT}, 49152")
        for k in (2 * i, 2 * i + 1):
            A(f"ds_read_b128 v[{tb+4*k}:{tb+4*k+3}], v{vXl} offset:{1024*k}")
    for k in range(4):
        A(f"s_waitcnt lgkmcnt({[5, 4, 1, 0][k]})")
        A(f"buffer_store_dwordx4 v[{tb+4*k}:{tb+4*k+3}], v{vXO}, s[{sSO}:{sSO+3}], {['0', f's{sX0}', f's{sX0+1}', f's{sT}'][k]} offen")
    stamp(A, 6, 1)
    if OPT["stamp"]:
        A("s_memrealtime s[100:101]")
        A("s_waitcnt lgkmcnt(0)")
        if OPT.get("dbgout"):
            A("s_load_dwordx2 s[20:21], s[0:1], 64"); A("s_waitcnt lgkmcnt(0)")
            srd(A, 16, 20, 21, 256)
            A(f"s_add_u32 s{sT}, s2, 1"); A(f"s_and_b32 s{sT}, s{sT}, 0xfe"); A(f"s_or_b32 s{sT}, s{sT}, s{sW}")
            A(f"s_cmp_eq_u32 s{sT}, 0"); A("s_cbranch_scc0 M_end")
            A(f"s_and_b32 s{sT}, s2, 32"); A(f"v_mov_b32 v0, s{sT}")
            for i, r in enumerate(SREG[1:] + [100]):
                A(f"s_sub_u32 s{sT}, s{r}, s99"); A(f"v_mov_b32 v1, s{sT}"); A(f"buffer_store_dword v1, v0, s[16:19], 0 offen offset:{4*i}")
            A(f"v_mov_b32 v1, s99"); A(f"buffer_store_dword v1, v0, s[16:19], 0 offen offset:28")
            A("s_branch M_end")
        srd(A, 16, 14, 15, 0x10000, STAMP_OFF + 0x10000)
        A(f"s_lshl_b32 s{sT}, s2, 2"); A(f"s_add_u32 s{sT}, s{sT}, s{sW}"); A(f"s_lshl_b32 s{sT}, s{sT}, 6")
        A(f"v_mov_b32 v0, s{sT}")
        for i, r in enumerate(SREG):
            A(f"v_mov_b32 v1, s{r}"); A(f"buffer_store_dword v1, v0, s[16:19], 0 offen offset:{4*i}")
        A(f"v_mov_b32 v1, s100"); A(f"buffer_store_dword v1, v0, s[16:19], 0 offen offset:56")
        A(f"v_mov_b32 v1, s99"); A(f"buffer_store_dword v1, v0, s[16:19], 0 offen offset:60")
    A.label("M_end")
    A("s_endpgm")
    return A.text()

def build():
    K = NAME + "_kernel"
    hdr = open(f"cdna_kernels/{NAME}.s.ref").read().split("; Override")[0]
    out = [hdr.rstrip("\n")]
    if OPT.get("list"):
        out.append(f"; @launch kernel={K} grid=(256,1,1) block=(256,1,1) lds={LDS_BYTES}")
    else:
        out.append(f"; @launch grid=(256,1,1) block=(256,1,1) lds={LDS_BYTES}")
    out.append('.amdgcn_target "amdgcn-amd-amdhsa--gfx950"')
    out.append(".text")
    NO_NOP[0] = OPT['align'] == 2
    body, size = align_kernel(gen())
    for p in check_hazards(body): print("HAZARD", p, file=sys.stderr)
    print("code bytes", size, file=sys.stderr)
    assert size < 65536
    out.append(body.rstrip("\n"))
    out.append(".p2align 8")
    out.append(f".fill {(66560 - size) // 4}, 4, 0xbf810000")
    out.append(f""".section .rodata,"a"
.p2align 6
.amdhsa_kernel {K}
  .amdhsa_next_free_vgpr 512
  .amdhsa_next_free_sgpr 102
  .amdhsa_accum_offset 256
  .amdhsa_group_segment_fixed_size 0
  .amdhsa_kernarg_size 80
  .amdhsa_user_sgpr_count 2
  .amdhsa_user_sgpr_kernarg_segment_ptr 1
  .amdhsa_system_sgpr_workgroup_id_x 1
.end_amdhsa_kernel""")
    return "\n".join(out) + "\n"

if __name__ == "__main__":
    for a in sys.argv[2:]:
        k, v = a.split("="); OPT[k] = int(v)
    WS_BASE = OPT.get('wsb', 0) << 20
    LSTR = OPT.get('lstr', LSTR); FLG_SIZE = 33 * LSTR; EPOCH = 32 * LSTR
    XF_OFF += WS_BASE; HF_OFF += WS_BASE; KVP_OFF += WS_BASE; WT_OFF += WS_BASE; FLG_OFF += WS_BASE; EX_OFF += WS_BASE
    open(sys.argv[1], "w").write(build())
```

```python
import sys, struct, re
from asmlib import *

NAME = "recurrent_scan__linear_attn_block__swiglu_ffn__prompt"
XF_OFF = 0x0
HF_OFF = 0x400000
HF_SIZE = 144 * 131072
KVP_OFF = 0x1600000
KVP_SIZE = 32 * 8 * 6144
WT_OFF = 0x1C00000
WT_SIZE = 144 * 65536
FLG_OFF = 0x2800000
LSTR = 128
FLG_SIZE = 33 * LSTR
EPOCH = 32 * LSTR
STAMP_OFF = 0x3000000
EX_OFF = 0x3400000
EX_SIZE = 256 * 32768

def f2u(x): return struct.unpack("<I", struct.pack("<f", x))[0]
LOG2E = 1.4426950408889634
OPT = dict(stamp=0, align=0, snake=1, unpk=3, e0n=44, gap2=1)

G1_S, G1_SLOT = 6, 20480
CSC = G1_S * G1_SLOT
G2_R, G2_SLOT = 7, 16384
KVL = G2_R * G2_SLOT
FIN = KVL + 26624
XL = FIN + 4096 + 1024
LDS_BYTES = XL + 16384
F_LN, F_WT, F_A, F_A2, F_E, F_B, F_C = 1, 2, 4, 8, 16, 32, 64

def srd(A, d, lo, hi, size, off=0):
    if off:
        A(f"s_add_u32 s{d}, s{lo}, 0x{off:x}")
        A(f"s_addc_u32 s{d+1}, s{hi}, 0")
    else:
        A(f"s_mov_b32 s{d}, s{lo}")
        A(f"s_mov_b32 s{d+1}, s{hi}")
    A(f"s_mov_b32 s{d+2}, 0x{size:x}")
    A(f"s_mov_b32 s{d+3}, 0x00020000")

SREG = [6, 7, 86, 87, 96, 97, 98]
def stamp(A, idx, mode):
    if OPT["stamp"] != mode: return
    A("s_memrealtime s[100:101]" if OPT.get("rt") else "s_memtime s[100:101]")
    A("s_waitcnt lgkmcnt(0)")
    A(f"s_mov_b32 s{SREG[idx]}, s100")

def interleave(A, groups, work):
    per = -(-len(work) // len(groups)); wi = 0
    for grp in groups:
        for l in grp: A(l)
        for l in work[wi:wi + per]: A(l)
        wi += per
    for l in work[wi:]: A(l)

def NT(b): return " nt" if OPT.get("nt", 5) & b else ""
def lines(B): return [l.strip() for l in B.lines]

def gen():
    A = Asm()
    K = NAME + "_kernel"
    A.raw(f".globl {K}\n.p2align 8\n.type {K},@function\n{K}:")
    if OPT["align"]: A.raw("    ; @align on")
    vX, vD, vA0, vA1, vAG, vB0, vB1, vBG, vL16 = 1, [2, 3, 4, 5, 6], 7, 8, 9, 10, 11, 12, 13
    vT = 14
    vPollR, vPv, vCd, vPollW, vPollH, vCs, vDum = 17, 18, 16, 20, 21, 22, 23
    vTq, vTg = 20, 21
    names = ["g0", "u0", "g1", "u1", "k0", "k1", "v0", "v1", "q0", "q1"]
    for t in range(2, 7): names += [f"g{t}", f"u{t}"]
    acc = {}
    nv = 24; na = 0
    for nm in ["k0", "k1", "v0", "v1"] + [f"g{t}" for t in range(7)]:
        for i in range(4):
            acc[(nm, i)] = Reg('v', nv); nv += 4
    for t in range(7):
        for i in range(4):
            if t * 4 + i < 14:
                acc[(f"u{t}", i)] = Reg('v', nv); nv += 4
            else:
                acc[(f"u{t}", i)] = Reg('a', na); na += 4
    for nm in ["q0", "q1"]:
        for i in range(4):
            acc[(nm, i)] = Reg('a', na); na += 4
    assert nv == 256 and na == 88
    XR = lambda s, i: Reg('a', 88 + 16 * s + 4 * i)
    WR = lambda p: Reg('a', 152 + 4 * p)
    accm = acc
    if OPT.get("classic"):
        accm = {}; k = 0
        for nm in names:
            for i in range(4):
                accm[(nm, i)] = Reg('a', 4 * k) if k < 52 else Reg('v', 24 + 4 * (k - 52)); k += 1
        XR = lambda s, i: Reg('v', 136 + 16 * s + 4 * i)
        WR = lambda p: Reg('v', 200 + 4 * p)
    PT = lambda t: Reg('a', 88 + 4 * t)
    CT = lambda k: Reg('a', 208 + 4 * k)
    sSX, sSD = 16, [20, 24, 28, 32, 36]
    sSCs, sSCd, sSF = 40, 72, 92
    sST = [76, 80, 44]
    sW, sHD, sRB, sXo, sWoA, sWoB, sStA, sStB, sM, sR, sCnt = 48, 49, 50, 51, 52, 53, 54, 55, 56, 57, 58
    sSLOT, sREND, sMEND, sM0, sCl, sCs = 59, 60, 61, 62, 63, 3
    sToq, sTog, sFo, sSpin, sTag, sTm = 88, 89, 90, 91, 12, 13
    sT = 64
    uid = [0]
    def flag_set(val):
        uid[0] += 1; L = f"M_fs{uid[0]}"
        A(f"""
        s_cmp_eq_u32 s{sW}, 0
        s_cbranch_scc0 {L}
        v_mov_b32 v{vT}, s{sTag}
        v_mov_b32 v{vT+1}, {val}
        s_mov_b64 exec, 1
        buffer_store_dwordx2 v[{vT}:{vT+1}], off, s[{sSF}:{sSF+3}], s{sFo} sc1
        s_mov_b64 exec, -1
        """)
        A.label(L)
    def poll_issue(vaddr):
        return f"buffer_load_dwordx2 v[{vPv}:{vPv+1}], v{vaddr}, s[{sSF}:{sSF+3}], 0 offen sc1"
    MASK_R, MASK_U = 0x00000000ffffffff, 0xffffffff00000000
    def poll_eval(E, bit):
        E(f"""
        v_xor_b32 v{vT}, s{sTag}, v{vPv}
        v_bfe_u32 v{vT+1}, v{vPv+1}, {bit.bit_length()-1}, 1
        v_xor_b32 v{vT+1}, 1, v{vT+1}
        v_or_b32 v{vT}, v{vT}, v{vT+1}
        v_cmp_ne_u32 vcc, 0, v{vT}
        s_nop 3
        """)
    def repoll(L, va=None, slp=None):
        if slp is None: slp = OPT.get('sleep', 8)
        A(f"""
        s_add_u32 s{sSpin}, s{sSpin}, 1
        s_cmp_ge_u32 s{sSpin}, 0x40000
        s_cbranch_scc1 {L}_ok
        s_sleep {slp}
        {poll_issue(vPollR if va is None else va)}
        s_waitcnt vmcnt(0)
        s_branch {L}
        """)
    def poll_check(bit, mask, vm=None, va=None, slp=None):
        uid[0] += 1; L = f"M_pc{uid[0]}"
        if vm is not None: A(f"s_waitcnt vmcnt({vm})")
        A(f"s_mov_b32 s{sSpin}, 0")
        A.label(L)
        poll_eval(A, bit)
        lo, hi = mask & 0xffffffff, mask >> 32
        if hi == 0:
            A(f"s_cmp_eq_u32 vcc_lo, 0")
        elif lo == 0:
            A(f"s_and_b32 s{sTm}, vcc_hi, 0x{hi:x}"); A(f"s_cmp_eq_u32 s{sTm}, 0")
        else:
            A(f"s_and_b32 s{sTm}, vcc_hi, 0x{hi:x}"); A(f"s_or_b32 s{sTm}, s{sTm}, vcc_lo"); A(f"s_cmp_eq_u32 s{sTm}, 0")
        A(f"s_cbranch_scc1 {L}_ok")
        repoll(L, va, slp)
        A.label(L + "_ok")
    def cond_poll(cmp, va):
        uid[0] += 1; L = f"M_cp{uid[0]}"
        return cmp + [f"s_cbranch_scc0 {L}", poll_issue(va), L + ":"]
    def emit(ls):
        for l in ls:
            if l.endswith(":"): A.label(l[:-1])
            else: A(l)
    def lack_mask(E):
        poll_eval(E, F_A)
        E(f"""
        s_lshr_b32 s{sTm}, vcc_lo, 16
        s_or_b32 s{sLack}, s{sTm}, vcc_lo
        s_lshr_b32 s{sTm}, s{sLack}, 8
        s_or_b32 s{sLack}, s{sLack}, s{sTm}
        s_and_b32 s{sLack}, s{sLack}, 0xff
        """)
    def stage_gate(ssig):
        uid[0] += 1; L = f"M_sg{uid[0]}"
        A(f"s_bitcmp0_b32 s{sLack}, s{ssig}")
        A(f"s_cbranch_scc1 {L}_ok")
        A(f"s_mov_b32 s{sSpin}, 0")
        A(poll_issue(vPollR)); A("s_waitcnt vmcnt(0)")
        A.label(L)
        lack_mask(A)
        A(f"s_bitcmp0_b32 s{sLack}, s{ssig}")
        A(f"s_cbranch_scc1 {L}_ok")
        repoll(L)
        A.label(L + "_ok")
    A(f"""
    s_cmp_ge_u32 s2, 256
    s_cbranch_scc1 M_end
    """)
    if OPT.get("scramble"):
        A("s_and_b32 s3, s2, 7"); A("s_lshl_b32 s3, s3, 3"); A("s_bfe_u32 s4, s2, 0x30003"); A("s_and_b32 s2, s2, 0xc0")
        A("s_or_b32 s2, s2, s3"); A("s_or_b32 s2, s2, s4")
    if OPT["stamp"]:
        A("s_memrealtime s[100:101]"); A("s_waitcnt lgkmcnt(0)"); A("s_mov_b32 s99, s100")
        A("s_memrealtime s[100:101]" if OPT.get("rt") else "s_memtime s[100:101]"); A("s_waitcnt lgkmcnt(0)"); A(f"s_mov_b32 s{SREG[0]}, s100")
    A(f"""
    s_load_dwordx4 s[68:71], s[0:1], 0
    s_load_dwordx4 s[8:11], s[0:1], 32
    s_load_dwordx4 s[12:15], s[0:1], 64
    s_load_dwordx2 s[84:85], s[0:1], 16
    s_load_dwordx2 s[{sSCs}:{sSCs+1}], s[0:1], 48
    s_getpc_b64 s[{sT+2}:{sT+3}]
    s_and_b32 s{sT+2}, s{sT+2}, 0xffffff00
    s_bfe_u32 s{sT}, s2, 0x30003
    s_lshl_b32 s{sT}, s{sT}, 12
    v_lshrrev_b32 v{vT}, 3, v0
    v_lshlrev_b32 v{vT}, 7, v{vT}
    v_add_u32 v{vT}, s{sT}, v{vT}
    global_load_dword v{vDum}, v{vT}, s[{sT+2}:{sT+3}]
    v_lshrrev_b32 v{vT}, 6, v0
    v_and_b32 v0, 63, v0
    v_readfirstlane_b32 s{sW}, v{vT}
    s_and_b32 s{sT}, s2, 7
    s_lshr_b32 s{sT+1}, s2, 3
    s_and_b32 s{sRB}, s{sT+1}, 7
    s_lshr_b32 s{sT+1}, s{sT+1}, 3
    s_lshl_b32 s{sHD}, s{sT}, 2
    s_add_u32 s{sHD}, s{sHD}, s{sT+1}
    v_lshlrev_b32 v{vL16}, 4, v0
    s_lshl_b32 s{sFo}, s{sRB}, 5
    s_add_u32 s{sFo}, s{sFo}, s{sHD}
    """)
    lX, lF, lS, lR, lA = 32, 48, 80, 88, 112
    A(f"""
    v_and_b32 v{lA}, 7, v0
    v_lshrrev_b32 v{lA+1}, 3, v0
    v_lshlrev_b32 v{lA+2}, 11, v{lA}
    v_lshl_add_u32 v{lA+2}, v{lA+1}, 4, v{lA+2}
    s_lshl_b32 s{sT}, s{sFo}, 14
    s_lshl_b32 s{sT+1}, s{sW}, 9
    s_add_u32 s{sT}, s{sT}, s{sT+1}
    v_add_u32 v{lA+2}, s{sT}, v{lA+2}
    s_waitcnt lgkmcnt(0)
    """)
    srd(A, sSX, 68, 69, 0x400000)
    for n in range(4):
        A(f"buffer_load_dwordx4 v[{lX+4*n}:{lX+4*n+3}], v{lA+2}, s[{sSX}:{sSX+3}], 0 offen offset:{128*n}{NT(4)}")
    A(f"v_and_b32 v{lA+6}, 0xfffff800, v{lA+2}")
    A(f"buffer_load_ushort v{lA+7}, v{lA+6}, s[{sSX}:{sSX+3}], 0 offen")
    A("s_mov_b32 s4, s70"); A("s_mov_b32 s5, s71")
    srd(A, sSF, 14, 15, FLG_SIZE, FLG_OFF)
    A(f"s_mov_b32 s{sT}, {EPOCH}")
    A(f"buffer_load_dword v{vPv}, off, s[{sSF}:{sSF+3}], s{sT} sc1")
    A(f"""
    s_lshr_b32 s{sT}, s2, 3
    s_lshl_b32 s{sT}, s{sT}, 2
    s_add_u32 s{sT}, s{sT}, s{sW}
    s_lshl_b32 s{sT}, s{sT}, 1
    s_and_b32 s{sT+1}, s2, 7
    s_mul_i32 s{sT+2}, s{sT}, 7168
    s_mul_i32 s{sT+3}, s{sT+1}, 896
    s_add_u32 s{sT+2}, s{sT+2}, s{sT+3}
    s_mul_i32 s{sT+3}, s{sT}, 6144
    s_lshl_b32 s{sT+1}, s{sT+1}, 8
    s_add_u32 s{sT+3}, s{sT+3}, s{sT+1}
    v_cmp_le_u32 vcc, 7, v0
    v_lshlrev_b32 v{vTg}, 7, v0
    v_mov_b32 v{vT}, {7168-7*128}
    v_cndmask_b32 v{vT}, 0, v{vT}, vcc
    v_add3_u32 v{vTg}, v{vTg}, v{vT}, s{sT+2}
    v_cmp_le_u32 vcc, 14, v0
    v_mov_b32 v{vT}, 0x70000000
    v_lshrrev_b32 v{vT+1}, 1, v0
    v_cndmask_b32 v{vTg}, v{vTg}, v{vT}, vcc
    v_and_b32 v{vTq}, 1, v0
    v_lshlrev_b32 v{vTq}, 7, v{vTq}
    v_lshl_add_u32 v{vTq}, v{vT+1}, 11, v{vTq}
    v_cmp_le_u32 vcc, 12, v0
    v_add_u32 v{vTq}, s{sT+3}, v{vTq}
    s_mov_b32 s{sToq}, 0
    v_cndmask_b32 v{vTq}, v{vTq}, v{vT}, vcc
    s_mov_b32 s{sTog}, 0
    """)
    srd(A, sST[0], 4, 5, 1024 * 6144)
    srd(A, sST[1], 8, 9, 1024 * 7168)
    srd(A, sST[2], 10, 11, 1024 * 7168)
    def touch(s, b=2):
        v = [vTq, vTg, vTg][s]; so = [sToq, sTog, sTog][s]
        return f"buffer_load_dword v{vDum}, v{v}, s[{sST[s]}:{sST[s]+3}], s{so} offen{NT(b)}"
    TROW = 1
    TS = OPT.get("ts", 1)
    onerow = f"""
        s_lshr_b32 s{sTm}, s2, 3
        s_lshl_b32 s{sTm}, s{sTm}, 2
        s_add_u32 s{sTm}, s{sTm}, s{sW}
        s_sub_u32 s{sTm}, ROW0, s{sTm}
        s_mul_i32 s{sToq}, s{sTm}, 6144
        s_mul_i32 s{sTog}, s{sTm}, 7168
        v_mov_b32 v{vT}, 0x70000000
        v_cmp_le_u32 vcc, 7, v0
        s_nop 1
        v_cndmask_b32 v{vTg}, v{vTg}, v{vT}, vcc
        v_cmp_le_u32 vcc, 6, v0
        s_nop 1
        v_cndmask_b32 v{vTq}, v{vTq}, v{vT}, vcc
        """
    tadv = [f"s_add_u32 s{sToq}, s{sToq}, {128*6144}", f"s_add_u32 s{sTog}, s{sTog}, {128*7168}"]
    A(onerow.replace("ROW0", "0"))
    A(f"v_add_u32 v{vTq}, s{sToq}, v{vTq}"); A(f"v_add_u32 v{vTg}, s{sTog}, v{vTg}")
    A(f"s_mov_b32 s{sToq}, 0"); A(f"s_mov_b32 s{sTog}, 0")
    if TS == 3:
        for k in range(3): A(touch(k))
        for l in tadv: A(l)
    NY = 2 + (3 if TS == 3 else 0)
    stamp(A, 1, 2)
    A(f"""
    v_lshrrev_b32 v{lA+8}, 4, v0
    v_bfe_u32 v{lA+9}, v0, 2, 2
    v_lshl_add_u32 v{lA+10}, v{lA+8}, 3, v{lA+9}
    v_mul_u32_u24 v{lA+10}, 6144, v{lA+10}
    v_bfe_u32 v{lA+11}, v0, 1, 1
    v_and_b32 v{lA+12}, 1, v{lA+8}
    v_xor_b32 v{lA+11}, v{lA+11}, v{lA+12}
    v_lshl_add_u32 v{lA+10}, v{lA+11}, 5, v{lA+10}
    v_and_b32 v{lA+11}, 1, v0
    v_lshl_add_u32 v{lA+10}, v{lA+11}, 4, v{lA+10}
    s_mul_i32 s{sT+2}, s{sW}, 5
    s_and_b32 s{sT+3}, s{sHD}, 1
    s_lshl_b32 s{sT+3}, s{sT+3}, 1
    s_mul_i32 s{sT+4}, s{sHD}, 224
    """)
    t3, t4, t5, t6, t7 = lA + 11, lA + 12, lA + 13, lA + 14, lA + 15
    for i in range(5):
        d = sSD[i]
        A(f"""
        s_add_u32 s{sT+5}, s{sT+2}, {i}
        s_cmp_lt_u32 s{sT+5}, 6
        s_cbranch_scc0 M_gu{i}
        s_lshr_b32 s{sT+6}, s{sT+5}, 1
        s_lshl_b32 s{sT+6}, s{sT+6}, 11
        s_and_b32 s{sT+7}, s{sT+5}, 1
        s_mul_i32 s{sT+7}, s{sT+7}, 24576
        s_add_u32 s{sT+6}, s{sT+6}, s{sT+7}
        s_lshl_b32 s{sT+7}, s{sHD}, 6
        s_add_u32 s{sT+6}, s{sT+6}, s{sT+7}
        v_add_u32 v{vD[i]}, s{sT+6}, v{lA+10}
        s_mov_b32 s{d}, s4
        s_mov_b32 s{d+1}, s5
        s_mov_b32 s{d+2}, {1024*6144}
        s_mov_b32 s{sStA if i == 0 else sStB}, {32*6144}
        s_branch M_dn{i}
        """)
        A.label(f"M_gu{i}")
        A(f"""
        s_sub_u32 s{sT+6}, s{sT+5}, 6
        s_sub_u32 s{sT+7}, s{sT+5}, 13
        s_cmp_lt_u32 s{sT+5}, 13
        s_cselect_b32 s{sT+6}, s{sT+6}, s{sT+7}
        s_cselect_b32 s{d}, s8, s10
        s_cselect_b32 s{d+1}, s9, s11
        s_mov_b32 s{d+2}, {1024*7168}
        s_mov_b32 s{sStA if i == 0 else sStB}, {32*7168}
        s_lshl_b32 s{sT+6}, s{sT+6}, 6
        v_add_u32 v{t3}, s{sT+6}, v0
        v_mul_u32_u24 v{t4}, 4682, v{t3}
        v_lshrrev_b32 v{t4}, 16, v{t4}
        v_mul_u32_u24 v{t5}, 14, v{t4}
        v_sub_u32 v{t5}, v{t3}, v{t5}
        v_add_u32 v{t5}, s{sT+3}, v{t5}
        v_subrev_u32 v{t6}, 14, v{t5}
        v_min_u32 v{t5}, v{t5}, v{t6}
        v_bfe_u32 v{t6}, v{t4}, 2, 2
        v_lshrrev_b32 v{t7}, 4, v{t4}
        v_and_b32 v{t4}, 3, v{t4}
        v_lshl_add_u32 v{t4}, v{t6}, 3, v{t4}
        v_lshl_add_u32 v{t4}, v{t7}, 2, v{t4}
        v_mul_u32_u24 v{t4}, 7168, v{t4}
        v_lshl_add_u32 v{t4}, v{t5}, 4, v{t4}
        v_add_u32 v{vD[i]}, s{sT+4}, v{t4}
        """)
        A.label(f"M_dn{i}")
        if OPT.get("lin"):
            A(f"""
            s_add_u32 s{sT+5}, s{sT+2}, {i}
            s_sub_u32 s{sT+6}, s{sT+5}, 6
            s_sub_u32 s{sT+7}, s{sT+5}, 13
            s_cmp_lt_u32 s{sT+5}, 13
            s_cselect_b32 s{sT+6}, s{sT+6}, s{sT+7}
            s_cmp_lt_u32 s{sT+5}, 6
            s_cselect_b32 s{sT+6}, s{sT+5}, s{sT+6}
            s_cselect_b32 s{sT+7}, 6, 7
            s_mul_i32 s{sT+7}, s{sT+7}, s{sHD}
            s_add_u32 s{sT+6}, s{sT+6}, s{sT+7}
            s_lshl_b32 s{sT+6}, s{sT+6}, 10
            v_add_u32 v{vD[i]}, s{sT+6}, v{vL16}
            """)
        A(f"s_mov_b32 s{d+3}, 0x00020000")
    A("s_mov_b32 s8, s{0}".format(sSX)); A("s_mov_b32 s9, s{0}".format(sSX + 1))
    A(f"""
    s_lshr_b32 s{sT}, s{sFo}, 1
    s_lshl_b32 s{sT}, s{sT}, 10
    s_and_b32 s{sT+1}, s{sFo}, 1
    s_lshl_b32 s{sT+1}, s{sT+1}, 7
    s_add_u32 s{sT}, s{sT}, s{sT+1}
    s_lshl_b32 s{sT+1}, s{sW}, 20
    s_add_u32 s{sT}, s{sT}, s{sT+1}
    v_lshrrev_b32 v{lA+3}, 2, v{lA+1}
    v_lshlrev_b32 v{lA+3}, 17, v{lA+3}
    v_and_b32 v{lA+4}, 3, v{lA+1}
    v_lshl_add_u32 v{lA+3}, v{lA+4}, 8, v{lA+3}
    v_lshl_add_u32 v{lA+3}, v{lA}, 4, v{lA+3}
    v_add_u32 v{lA+3}, s{sT}, v{lA+3}
    v_lshlrev_b32 v{lA+5}, 6, v{lA}
    v_add_u32 v{lA+5}, {CSC}, v{lA+5}
    s_lshl_b32 s{sT}, s{sW}, 4
    v_lshl_add_u32 v{lA+4}, v{lA+8}, 2, v{lA+5}
    v_add_u32 v{lA+4}, s{sT}, v{lA+4}
    """)
    srd(A, sSX, 14, 15, 0x400000, XF_OFF)
    A(f"s_lshr_b32 s{sFo}, s2, 3"); A(f"s_mul_i32 s{sFo}, s{sFo}, {LSTR}"); A(f"s_and_b32 s{sT}, s2, 7"); A(f"s_lshl_b32 s{sT}, s{sT}, 4"); A(f"s_add_u32 s{sFo}, s{sFo}, s{sT}")
    def dma(i):
        return [f"s_add_u32 m0, s{sM}, 0x{1024*(i+1):x}",
                f"buffer_load_dwordx4 v{vD[i]}, s[{sSD[i]}:{sSD[i]+3}], s{sWoA if i == 0 else sWoB} offen lds"]
    def xload(s, i):
        return f"buffer_load_dwordx4 {XR(s, i)}, v{vX}, s[{sSX}:{sSX+3}], s{sXo} offen offset:{1024*i} sc1"
    wadv = [f"s_add_u32 s{sM}, s{sM}, s{sSLOT}", f"s_add_u32 s{sWoA}, s{sWoA}, s{sStA}", f"s_add_u32 s{sWoB}, s{sWoB}, s{sStB}"]
    def wgroups(adv):
        L = []
        for i in range(5):
            m, l = dma(i)
            L.append((wadv if (i == 0 and adv) else []) + [m, "s_nop 0", l])
        return L
    def xgroups(t):
        return [[xload(t, i)] + ([f"s_add_u32 s{sXo}, s{sXo}, 0x20000"] if i == 3 else []) for i in range(4)]
    A(f"""
    s_mov_b32 s{sXo}, 0
    s_mul_i32 s{sM0}, s{sW}, 5120
    s_sub_u32 s{sM0}, s{sM0}, 1024
    s_mov_b32 s{sM}, s{sM0}
    s_mov_b32 s{sWoA}, 0
    s_mov_b32 s{sWoB}, 0
    s_mov_b32 s{sSLOT}, {G1_SLOT}
    """)
    B = Asm()
    B(f"""
    s_lshl_b32 s{sT}, s{sRB}, 14
    s_lshl_b32 s{sT+1}, s{sW}, 12
    s_add_u32 s{sT}, s{sT}, s{sT+1}
    v_add_u32 v{vX}, s{sT}, v{vL16}
    s_lshl_b32 s{sT}, s{sRB}, 3
    v_and_b32 v{vPollR}, 7, v0
    v_bfe_u32 v{t3}, v0, 3, 2
    v_lshl_add_u32 v{vPollR}, v{t3}, 6, v{vPollR}
    v_add_u32 v{vPollR}, s{sT}, v{vPollR}
    v_and_b32 v{vT}, 7, v{vPollR}
    v_lshrrev_b32 v{vPollR}, 3, v{vPollR}
    v_mul_u32_u24 v{vPollR}, {LSTR}, v{vPollR}
    v_lshl_add_u32 v{vPollR}, v{vT}, 4, v{vPollR}
    v_lshrrev_b32 v{t3}, 2, v0
    v_and_b32 v{t4}, 3, v0
    v_lshlrev_b32 v{t4}, 3, v{t4}
    v_lshl_add_u32 v{vB0}, v{t3}, 6, v{t4}
    v_and_b32 v{t5}, 1, v{lA+8}
    v_lshl_add_u32 v{vB0}, v{t5}, 5, v{vB0}
    v_xor_b32 v{vB1}, 32, v{vB0}
    v_mul_u32_u24 v{vBG}, 224, v{t3}
    v_add_u32 v{vBG}, v{vBG}, v{t4}
    v_mov_b32 v{vA0}, v{vB0}
    v_mov_b32 v{vA1}, v{vB1}
    v_mov_b32 v{vAG}, v{vBG}
    s_mov_b32 s{sR}, 0
    s_mov_b32 s{sCnt}, 0
    s_mov_b32 s{sREND}, {G1_S*G1_SLOT}
    s_add_u32 s{sMEND}, s{sM0}, s{sREND}
    """)
    B(f"""
    s_lshl_b32 s{sT}, s2, 2
    s_add_u32 s{sT}, s{sT}, s{sW}
    s_lshl_b32 s{sT}, s{sT}, 10
    v_add_u32 v{vCd}, s{sT}, v{vL16}
    v_lshrrev_b32 v{t3}, 3, v0
    v_and_b32 v{t4}, 7, v0
    v_xor_b32 v{t4}, v{t4}, v{t3}
    v_lshlrev_b32 v{t3}, 11, v{t3}
    v_lshl_add_u32 v{vCs}, v{t4}, 4, v{t3}
    s_lshl_b32 s{sT+2}, s{sW}, 14
    s_and_b32 s{sT+3}, s2, 15
    s_lshl_b32 s{sT+3}, s{sT+3}, 7
    s_add_u32 s{sT+2}, s{sT+2}, s{sT+3}
    s_lshr_b32 s{sT+1}, s2, 4
    s_mul_i32 s{sT}, s{sT+1}, 7
    s_add_u32 s{sCl}, s{sT}, 1
    s_lshr_b32 s{sCl}, s{sCl}, 1
    s_lshl_b32 s{sCl}, s{sCl}, 16
    s_add_u32 s{sCl}, s{sCl}, s{sT+2}
    s_add_u32 s{sT}, s{sT}, 3
    s_lshl_b32 s{sT}, s{sT}, 16
    s_add_u32 s{sT}, s{sT}, s{sT+3}
    s_lshl_b32 s{sT+1}, s{sT+1}, 16
    s_add_u32 s{sT+1}, s{sT+1}, s{sT+2}
    s_add_u32 s{sT+2}, s{sT+1}, 0x100000
    s_mov_b32 s{sCs}, 0x{(-2 << 20) & 0xffffffff:x}
    s_mov_b32 s{sSCs+2}, {3584*2048}
    s_mov_b32 s{sSCs+3}, 0x00020000
    """)
    sT6, sT7, sT8 = sT, sT + 1, sT + 2
    for l in lines(B): A(l)
    lW, lRd, lSt = lA + 4, lA + 5, lA + 3
    for n in range(4):
        A(f"s_waitcnt vmcnt({3-n+NY})")
        for q in range(4):
            s = lX + 4 * n + q; d = lF + 8 * n + 2 * q
            A(f"v_lshlrev_b32 v{d}, 16, v{s}")
            A(f"v_and_b32 v{d+1}, 0xffff0000, v{s}")
    stamp(A, 2, 2)
    A(f"s_waitcnt vmcnt({NY - 1})")
    if TS in (1, 3, 4):
        for k in range(3): A(touch(k, 8))
        for l in tadv: A(l)
    lM, lMb, lT, lQ = lS + 4, lS + 6, 104, 108
    A(f"""
    v_lshlrev_b32 v{lA+7}, 16, v{lA+7}
    v_sub_f32 v{lM}, 0, v{lA+7}
    v_mov_b32 v{lM+1}, v{lM}
    """)
    for q in range(0, 16, 2):
        d0 = (lS, lS + 2) if q == 0 else (lT, lT + 2)
        A(f"v_pk_add_f32 v[{d0[0]}:{d0[0]+1}], v[{lF+2*q}:{lF+2*q+1}], v[{lM}:{lM+1}]")
        A(f"v_pk_add_f32 v[{d0[1]}:{d0[1]+1}], v[{lF+2*q+2}:{lF+2*q+3}], v[{lM}:{lM+1}]")
        if q == 0:
            A(f"v_pk_mul_f32 v[{lQ}:{lQ+1}], v[{lS}:{lS+1}], v[{lS}:{lS+1}]")
            A(f"v_pk_mul_f32 v[{lQ+2}:{lQ+3}], v[{lS+2}:{lS+3}], v[{lS+2}:{lS+3}]")
        else:
            A(f"v_pk_fma_f32 v[{lQ}:{lQ+1}], v[{lT}:{lT+1}], v[{lT}:{lT+1}], v[{lQ}:{lQ+1}]")
            A(f"v_pk_fma_f32 v[{lQ+2}:{lQ+3}], v[{lT+2}:{lT+3}], v[{lT+2}:{lT+3}], v[{lQ+2}:{lQ+3}]")
            A(f"v_pk_add_f32 v[{lS}:{lS+1}], v[{lS}:{lS+1}], v[{lT}:{lT+1}]")
            A(f"v_pk_add_f32 v[{lS+2}:{lS+3}], v[{lS+2}:{lS+3}], v[{lT+2}:{lT+3}]")
    r = lR; r2 = 128
    A(f"""
    v_pk_add_f32 v[{lS}:{lS+1}], v[{lS}:{lS+1}], v[{lS+2}:{lS+3}]
    v_pk_add_f32 v[{lQ}:{lQ+1}], v[{lQ}:{lQ+1}], v[{lQ+2}:{lQ+3}]
    v_add_f32 v{lS}, v{lS}, v{lS+1}
    v_add_f32 v{lQ}, v{lQ}, v{lQ+1}
    s_nop 0
    v_add_f32_dpp v{lS}, v{lS}, v{lS} row_ror:8 row_mask:0xf bank_mask:0xf
    v_add_f32_dpp v{lQ}, v{lQ}, v{lQ} row_ror:8 row_mask:0xf bank_mask:0xf
    ds_write_b32 v{lW}, v{lS}
    ds_write_b32 v{lW}, v{lQ} offset:512
    s_waitcnt lgkmcnt(0)
    s_barrier
    """)
    for k in range(4): A(f"ds_read_b128 v[{r+4*k}:{r+4*k+3}], v{lRd} offset:{16*k}")
    for k in range(4): A(f"ds_read_b128 v[{r2+4*k}:{r2+4*k+3}], v{lRd} offset:{512+16*k}")
    for wait, rr in ((4, r), (0, r2)):
        A(f"s_waitcnt lgkmcnt({wait})")
        A(f"""
        v_pk_add_f32 v[{rr}:{rr+1}], v[{rr}:{rr+1}], v[{rr+2}:{rr+3}]
        v_pk_add_f32 v[{rr+4}:{rr+5}], v[{rr+4}:{rr+5}], v[{rr+6}:{rr+7}]
        v_pk_add_f32 v[{rr+8}:{rr+9}], v[{rr+8}:{rr+9}], v[{rr+10}:{rr+11}]
        v_pk_add_f32 v[{rr+12}:{rr+13}], v[{rr+12}:{rr+13}], v[{rr+14}:{rr+15}]
        v_pk_add_f32 v[{rr}:{rr+1}], v[{rr}:{rr+1}], v[{rr+4}:{rr+5}]
        v_pk_add_f32 v[{rr+8}:{rr+9}], v[{rr+8}:{rr+9}], v[{rr+12}:{rr+13}]
        v_pk_add_f32 v[{rr}:{rr+1}], v[{rr}:{rr+1}], v[{rr+8}:{rr+9}]
        v_add_f32 v{rr}, v{rr}, v{rr+1}
        v_mul_f32 v{rr}, 0x{f2u(1.0/1024):x}, v{rr}
        """)
    A(f"""
    v_add_f32 v{lMb}, v{lA+7}, v{lR}
    v_fma_f32 v{lR}, -v{lR}, v{lR}, v{r2}
    v_cvt_pk_bf16_f32 v{lMb}, v{lMb}, v{lMb}
    v_max_f32 v{lR}, 0, v{lR}
    v_lshlrev_b32 v{lMb}, 16, v{lMb}
    """)
    A(f"""
    v_cvt_pk_bf16_f32 v{lR}, v{lR}, v{lR}
    v_lshlrev_b32 v{lR}, 16, v{lR}
    v_add_f32 v{lR}, 0x{f2u(1e-5):x}, v{lR}
    v_cvt_pk_bf16_f32 v{lR}, v{lR}, v{lR}
    v_lshlrev_b32 v{lR}, 16, v{lR}
    v_sqrt_f32 v{lR}, v{lR}
    s_nop 0
    v_cvt_pk_bf16_f32 v{lR}, v{lR}, v{lR}
    v_lshlrev_b32 v{lR}, 16, v{lR}
    v_rcp_f32 v{lR}, v{lR}
    v_sub_f32 v{lM}, 0, v{lMb}
    v_mov_b32 v{lM+1}, v{lM}
    v_mov_b32 v{lR+1}, v{lR}
    s_mov_b32 s{sT+3}, 0
    """)
    for n in range(4):
        for q in range(4):
            d = lF + 8 * n + 2 * q; o = lX + 4 * n + q
            A(f"v_pk_add_f32 v[{d}:{d+1}], v[{d}:{d+1}], v[{lM}:{lM+1}]")
        for q in range(4):
            d = lF + 8 * n + 2 * q; o = lX + 4 * n + q
            A(f"v_cvt_pk_bf16_f32 v{o}, v{d}, v{d+1}")
        for q in range(4):
            d = lF + 8 * n + 2 * q; o = lX + 4 * n + q
            A(f"v_lshlrev_b32 v{d}, 16, v{o}")
            A(f"v_and_b32 v{d+1}, 0xffff0000, v{o}")
        for q in range(4):
            d = lF + 8 * n + 2 * q
            A(f"v_pk_mul_f32 v[{d}:{d+1}], v[{d}:{d+1}], v[{lR}:{lR+1}]")
        for q in range(4):
            d = lF + 8 * n + 2 * q; o = lX + 4 * n + q
            A(f"v_cvt_pk_bf16_f32 v{o}, v{d}, v{d+1}")
        A(f"buffer_store_dwordx4 v[{lX+4*n}:{lX+4*n+3}], v{lSt}, s[{sSX}:{sSX+3}], s{sT+3} offen sc1")
        A(f"s_add_u32 s{sT+3}, s{sT+3}, 0x40000")
    stamp(A, 3, 2)
    srd(A, sSCd, 14, 15, WT_SIZE, WT_OFF)
    B = Asm()
    for r in list(range(208 if OPT.get('classic') else 88)) + list(range(208, 216)):
        B(f"v_accvgpr_write_b32 a{r}, 0")
    for r in range(24, 256, 2):
        B(f"v_pk_mov_b32 v[{r}:{r+1}], 0, 0")
    interleave(A, wgroups(False), lines(B))
    A("s_waitcnt vmcnt(5)")
    A(f"v_readfirstlane_b32 s{sTag}, v{vPv}")
    A("s_barrier")
    A(f"s_mul_i32 s{sTag}, s{sTag}, 0x9e3779b1")
    A(f"s_add_u32 s{sTag}, s{sTag}, 0x7f4a7c15")
    flag_set(F_LN)
    stamp(A, 4, 2)
    if TS == 1:
        for k in range(3): A(touch(k, 16))
        for l in tadv: A(l)
    for g in wgroups(True) + wgroups(True): emit(g)
    A(f"s_cmp_eq_u32 s{sW}, 0"); A("s_cbranch_scc0 M_lng")
    if OPT.get("pre", 0): A(f"s_sleep {OPT['pre']}")
    A(poll_issue(vPollR))
    poll_check(F_LN, MASK_R, 0, None, OPT.get('lnsleep', 1))
    A.label("M_lng")
    A("s_waitcnt vmcnt(0)")
    A("s_barrier")
    sRT, sCT = 68, 69
    A(f"""
    s_and_b32 s{sT+3}, s2, 7
    s_lshr_b32 s{sRT}, s{sT+3}, 1
    s_lshl_b32 s{sRT}, s{sRT}, 2
    s_bfe_u32 s{sT+6}, s2, 0x20003
    s_add_u32 s{sRT}, s{sRT}, s{sT+6}
    s_and_b32 s{sCT}, s{sT+3}, 1
    s_lshl_b32 s{sCT}, s{sCT}, 3
    s_lshr_b32 s{sT+6}, s2, 5
    s_add_u32 s{sCT}, s{sCT}, s{sT+6}
    """)
    stamp(A, 5, 2)
    for g in xgroups(0) + xgroups(1):
        for l in g: A(l)
    if TS == 4:
        for k in range(3): A(touch(k))
        for l in tadv: A(l)
    def copy_op(s):
        if s % 2: return f"buffer_load_dwordx4 v{vT+1 if s == 1 else vCs}, s[{sSCs}:{sSCs+3}], s{sCl} offen{NT(1)} lds"
        return f"buffer_store_dwordx4 {CT(s // 2)}, v{vCd}, s[{sSCd}:{sSCd+3}], s{sCs} offen sc1"
    def wread(f, a, pos, kh=0, lo=False):
        nm = names[f]
        if nm[0] in "qkv":
            p = "qkv".index(nm[0]); j = int(nm[1])
            addr = vA1 if j else vA0; off = 2048 * p + 1024 * a
        else:
            tl = int(nm[1]); addr = vAG
            off = (6144 if nm[0] == 'g' else 13312) + 3584 * a + 32 * tl
        if lo: addr = {vA0: vB0, vA1: vB1, vAG: vBG}[addr]
        return f"ds_read_b64_tr_b16 {WR(pos).sub(2*a, 2)}, v{addr} offset:{off + G1_SLOT * kh}"
    def mfma(f, k, u, p0, rev):
        ti, hf = k // 2, k % 2
        if ti % 2: hf = 1 - hf
        if rev: ti = 3 - ti
        nm = names[f]; d = acc[(nm, ti)]
        x, w = XR(2 * (u % 2) + hf, ti), WR(p0 + hf)
        if nm[0] in "kv": return f"v_mfma_f32_16x16x32_bf16 {d}, {x}, {w}, {d}"
        return f"v_mfma_f32_16x16x32_bf16 {d}, {w}, {x}, {d}"
    LA = 6
    A(f"""
    s_lshr_b32 s{sT+3}, s{sRT}, 1
    s_lshl_b32 s{sT+3}, s{sT+3}, 3
    v_and_b32 v{vT}, 7, v0
    v_bfe_u32 v{vT+1}, v0, 3, 2
    v_lshl_add_u32 v{vT+1}, v{vT+1}, 6, v{vT}
    v_add_u32 v{vPollR}, s{sT+3}, v{vT+1}
    """)
    A(f"""
    s_and_b32 s{sT+3}, s{sW}, 1
    s_lshl_b32 s{sT+3}, s{sT+3}, 2
    s_lshr_b32 s{sT+6}, s{sW}, 1
    s_add_u32 s{sT+3}, s{sT+3}, s{sT+6}
    s_lshl_b32 s{sT+3}, s{sT+3}, 13
    v_and_b32 v{vT}, 0x7ff, v{vCs}
    v_bfe_u32 v{vT+1}, v0, 3, 2
    v_lshl_add_u32 v{vT}, v{vT+1}, 11, v{vT}
    v_lshrrev_b32 v{vT+1}, 5, v0
    v_lshl_add_u32 v{vT}, v{vT+1}, 14, v{vT}
    v_add_u32 v{vT}, s{sT+3}, v{vT}
    s_getpc_b64 s[4:5]
    s_and_b32 s4, s4, 0xffffff80
    s_bfe_u32 s{sT+3}, s2, 0x30003
    s_lshl_b32 s{sT+3}, s{sT+3}, 2
    s_add_u32 s{sT+3}, s{sT+3}, s{sW}
    s_mul_i32 s{sT+3}, s{sT+3}, 1408
    s_add_u32 s{sT+3}, s{sT+3}, 5120
    v_min_u32 v{vPv}, 10, v0
    v_lshlrev_b32 v{vPv}, 7, v{vPv}
    v_add_u32 v{vPv}, s{sT+3}, v{vPv}
    s_lshr_b32 s{sT+3}, s{sW}, 1
    s_lshl_b32 s{sT+3}, s{sT+3}, 2
    v_and_b32 v{vT+1}, 3, v0
    v_or_b32 v{vT+1}, s{sT+3}, v{vT+1}
    v_bfe_u32 v{vPv+1}, v0, 2, 3
    v_xor_b32 v{vT+1}, v{vT+1}, v{vPv+1}
    v_lshrrev_b32 v{vPv+1}, 2, v0
    v_lshlrev_b32 v{vPv+1}, 7, v{vPv+1}
    v_lshl_add_u32 v{vPv+1}, v{vT+1}, 4, v{vPv+1}
    s_and_b32 s{sT+6}, s{sW}, 1
    s_lshl_b32 s{sT+6}, s{sT+6}, 3
    s_add_u32 s{sT+3}, s{sT+6}, {CSC}
    v_add_u32 v{vPv+1}, s{sT+3}, v{vPv+1}
    s_lshl_b32 s10, s{sRT}, 18
    s_lshl_b32 s{sT+3}, s{sW}, 16
    s_add_u32 s10, s10, s{sT+3}
    s_lshl_b32 s{sT+3}, s{sCT}, 7
    s_add_u32 s10, s10, s{sT+3}
    s_sub_u32 s10, s10, {10*16384}
    s_lshl_b32 s11, s{sW}, 12
    s_add_u32 s11, s11, {XL - 10*1024}
    s_lshl_b32 s{sT+3}, s{sW}, 10
    """)
    for n in range(LA):
        for a in range(2): A(wread(n // 2, a, n % 8, n % 2))
    A(f"s_waitcnt vmcnt({3 if TS == 4 else 0})")
    stamp(A, 6, 2); stamp(A, 1, 1)
    madv = [f"s_add_u32 s{sM}, s{sM}, s{sSLOT}", f"s_add_u32 s{sWoA}, s{sWoA}, s{sStA}", f"s_add_u32 s{sWoB}, s{sWoB}, s{sStB}",
            f"s_cmp_eq_u32 s{sM}, s{sMEND}", f"s_cselect_b32 s{sM}, s{sM0}, s{sM}"]
    def Wop(k, i): return dict(tag=f"W{k}", pre=(madv if i == 0 else []) + [dma(i)[0]], ins=dma(i)[1], post=[])
    def Xop(k, i): return dict(tag=f"X{k}", pre=[], ins=xload(k % 4, i), post=[f"s_add_u32 s{sXo}, s{sXo}, 0x20000"] if i == 3 else [])
    def Sop(j): return dict(tag="S", pre=[], ins=copy_op(2 * j), post=[f"s_add_u32 s{sCs}, s{sCs}, 0x100000"])
    sched = {}
    def place(ops, slots):
        assert len(ops) <= len(slots), (len(ops), len(slots))
        for o, sl in zip(ops, slots): sched[sl] = o
    for u in range(2):
        place([Wop(2 * u + 4, i) for i in range(5)], [(u, g) for g in range(35, 40)])
        place([Wop(2 * u + 3, i) for i in range(5)] + [Xop(2 * u + 2, i) for i in range(4)] + [Xop(2 * u + 3, i) for i in range(4)] + [Sop(u)],
              [(u, g) for g in (1, 3, 4, 6, 7, 9, 10, 11, 13, 14, 15, 17, 18, 19)])
    def xsel(base):
        return [f"s_add_u32 m0, s{sT+3}, {base}", f"s_cmp_ge_u32 s{sCnt}, 5", f"s_cselect_b32 m0, s11, m0",
                f"s_cselect_b32 s{sCl}, s10, s{sCl}", "s_add_u32 s10, s10, 16384", "s_add_u32 s11, s11, 1024"]
    cl0 = dict(tag="C", pre=xsel(CSC), ins=copy_op(1), post=[f"s_add_u32 s{sCl}, s{sCl}, {56 << 16}", f"s_cmp_eq_u32 s{sCnt}, 3",
               f"s_cselect_b32 s{sCl}, s{sT7}, s{sCl}", f"s_cselect_b32 s{sSCs}, s84, s{sSCs}", f"s_cselect_b32 s{sSCs+1}, s85, s{sSCs+1}",
               f"s_cselect_b32 s{sSCs+2}, {1024*2048}, s{sSCs+2}", f"s_cmp_eq_u32 s{sCnt}, 4", f"s_cselect_b32 s{sSCs+2}, 0, s{sSCs+2}"])
    cl1 = dict(tag="C", pre=xsel(CSC + 4096), ins=copy_op(3), post=[])
    place([cl0, cl1], [(0, 21), (0, 23)])
    place([dict(tag="T", pre=[], ins=touch(k), post=[]) for k in range(3)] +
          [dict(tag="T", pre=[], ins=f"global_load_dword v{vDum}, v{vPv}, s[4:5]", post=[])], [(1, g) for g in range(21, 25)])
    order = sorted(sched.keys())
    def vm_at(pos, kind, steps):
        seq = [(-1, k) for k in order] + [(0, k) for k in order if k < pos]
        need = [n for n, (tr, k) in enumerate(seq) if sched[k]["tag"][0] == kind and int(sched[k]["tag"][1:]) + 4 * tr in steps]
        return len(seq) - 1 - max(need)
    A.label("M_loop1")
    for u in range(2):
        for g in range(40):
            f = g // 2
            if g == 34:
                A(f"s_waitcnt vmcnt({vm_at((u, 34), 'W', (2*u+2, 2*u+3))}) lgkmcnt(8)"); A("s_barrier")
                if u == 0:
                    A(f"s_cmp_eq_u32 s{sCnt}, 6"); A("s_cbranch_scc0 M_l1c")
                    flag_set(F_LN | F_WT); A.label("M_l1c")
            elif g == 0:
                A(f"s_waitcnt vmcnt({vm_at((u, 0), 'X', (2*u, 2*u+1))}) lgkmcnt(8)")
            elif g % 2 == 0:
                A("s_waitcnt lgkmcnt(8)")
            ng = (g + LA) % 40
            pre2, mid, post = [], [], []
            if (u, g) in sched:
                o = sched[(u, g)]; pre2, mid, post = o["pre"], [o["ins"]], o["post"]
            elif g == 26: mid = [f"s_add_u32 s{sR}, s{sR}, {2*G1_SLOT}"]; post = [f"s_cmp_eq_u32 s{sR}, s{sREND}", f"s_cselect_b32 s{sR}, 0, s{sR}"]
            elif g == 33:
                mid = [f"v_add_u32 v{vA0}, s{sR}, v{vB0}", f"v_add_u32 v{vA1}, s{sR}, v{vB1}"]
                post = [f"v_add_u32 v{vAG}, s{sR}, v{vBG}"]
            elif u == 0 and g in (2, 5):
                k = 0 if g == 2 else 1
                mid = [f"ds_read_b64_tr_b16 {CT(k).sub(0, 2)}, v{vPv+1} offset:{4096*k}"]
                post = [f"ds_read_b64_tr_b16 {CT(k).sub(2, 2)}, v{vPv+1} offset:{4096*k + 2048}"]
            elif u == 0 and g == 8:
                mid = [f"v_xor_b32 v{vPv+1}, 0x{CSC ^ (CSC + 8192):x}, v{vPv+1}"]; post = [f"s_xor_b32 s{sT+3}, s{sT+3}, 0x2000"]
            elif u == 0 and g == 20:
                mid = [f"s_cmp_eq_u32 s{sCnt}, 3", f"s_cselect_b64 s[{sT+6}:{sT+7}], -1, 0"]
                post = [f"v_cndmask_b32 v{vT+1}, v{vCs}, v{vT}, s[{sT+6}:{sT+7}]"]
            elif u == 1 and g == 27:
                mid = [f"s_sub_u32 s{sCl}, s{sCl}, {55 << 16}"]; post = [f"s_cmp_eq_u32 s{sCnt}, 2", f"s_cselect_b32 s{sCl}, s{sT6}, s{sCl}"]
            elif u == 1 and g == 28:
                mid = [f"s_cmp_eq_u32 s{sCnt}, 3", f"s_cselect_b32 s{sCl}, s{sT8}, s{sCl}"]
                post = [f"s_cmp_eq_u32 s{sCnt}, 4", f"s_cselect_b32 s{sSCs}, s8, s{sSCs}", f"s_cselect_b32 s{sSCs+1}, s9, s{sSCs+1}",
                        f"s_cselect_b32 s{sSCs+2}, 0x400000, s{sSCs+2}"]
            elif u == 1 and g == 29: mid = [tadv[0]]; post = [tadv[1]]
            elif u == 1 and g == 30: mid = [f"s_add_u32 s{sCnt}, s{sCnt}, 1"]
            mm = lambda i: mfma(f, 4 * (g % 2) + i, u, (g - g % 2) % 8, f % 2)
            A(mm(0))
            A(wread(ng // 2, 0, (g + LA) % 8, ng % 2))
            for l in pre2[:3 if len(pre2) > 3 else 0]: A(l)
            A(mm(1))
            A(wread(ng // 2, 1, (g + LA) % 8, ng % 2))
            for l in pre2[3 if len(pre2) > 3 else 0:]: A(l)
            A(mm(2))
            emit(mid)
            A(mm(3))
            for l in post: A(l)
    A(f"s_cmp_lt_u32 s{sCnt}, 7")
    A("s_cbranch_scc1 M_loop1")
    sSH, sSK, sSXi, sSO = 20, 24, 28, 32
    sNL, sPL, sEPS, sCB, sCL = 36, 38, 40, 41, 42
    sAo, sBo = 43, 44
    sSA, sSB = sSH, sSCd
    vA, vBd = [2, 3, 4, 5], 6
    vRh, vXf, vXf2, vXl = 216, 217, 218, 219
    vXO, vKv, vZ, vFw, vZw, vZr, vFr, vLn = 224, 225, 226, 227, 228, 229, 230, 231
    vk0, vk1, vk2 = 11, 12, 22
    NSL = 14
    AR = lambda ch, i: Reg('a', 144 + 8 * (ch % NSL) + 4 * i)
    vAs, vBds, vPollE = [7, 8], 9, 10
    NS = OPT.get('ns', 28)
    def phi_tile(E, src, tmp, dst):
        b = src
        E(f"v_pk_mul_f32 v[{tmp}:{tmp+1}], v[{b}:{b+1}], s[{sPL}:{sPL+1}]")
        E(f"v_pk_mul_f32 v[{tmp+2}:{tmp+3}], v[{b+2}:{b+3}], s[{sPL}:{sPL+1}]")
        for j in range(4): E(f"v_exp_f32_e64 v{tmp+j}, v{tmp+j} clamp")
        for j in range(4): E(f"v_max_f32 v{b+j}, s{sEPS}, v{b+j}")
        E(f"v_pk_add_f32 v[{b}:{b+1}], v[{b}:{b+1}], v[{tmp}:{tmp+1}]")
        E(f"v_pk_add_f32 v[{b+2}:{b+3}], v[{b+2}:{b+3}], v[{tmp+2}:{tmp+3}]")
        E(f"v_cvt_pk_bf16_f32 v{dst}, v{b}, v{b+1}")
        E(f"v_cvt_pk_bf16_f32 v{dst+1}, v{b+2}, v{b+3}")
    def swiglu_tile(E, tl, i, tmp, dst):
        g = acc[(f"g{tl}", i)].base
        ur = acc[(f"u{tl}", i)]
        if ur.kind == 'a':
            u = tmp + 4
            for j in range(4): E(f"v_accvgpr_read_b32 v{u+j}, a{ur.base+j}")
        else:
            u = ur.base
        E(f"v_pk_mul_f32 v[{tmp}:{tmp+1}], v[{g}:{g+1}], s[{sNL}:{sNL+1}]")
        E(f"v_pk_mul_f32 v[{tmp+2}:{tmp+3}], v[{g+2}:{g+3}], s[{sNL}:{sNL+1}]")
        for j in range(4): E(f"v_exp_f32 v{tmp+j}, v{tmp+j}")
        E(f"v_pk_mul_f32 v[{g}:{g+1}], v[{g}:{g+1}], v[{u}:{u+1}]")
        E(f"v_pk_mul_f32 v[{g+2}:{g+3}], v[{g+2}:{g+3}], v[{u+2}:{u+3}]")
        E(f"v_pk_add_f32 v[{tmp}:{tmp+1}], v[{tmp}:{tmp+1}], 1.0 op_sel_hi:[1,0]")
        E(f"v_pk_add_f32 v[{tmp+2}:{tmp+3}], v[{tmp+2}:{tmp+3}], 1.0 op_sel_hi:[1,0]")
        for j in range(4): E(f"v_rcp_f32 v{tmp+j}, v{tmp+j}")
        E(f"v_pk_mul_f32 v[{g}:{g+1}], v[{g}:{g+1}], v[{tmp}:{tmp+1}]")
        E(f"v_pk_mul_f32 v[{g+2}:{g+3}], v[{g+2}:{g+3}], v[{tmp+2}:{tmp+3}]")
        E(f"v_cvt_pk_bf16_f32 v{dst}, v{g}, v{g+1}")
        E(f"v_cvt_pk_bf16_f32 v{dst+1}, v{g+2}, v{g+3}")
    def swiglu_pair(E, p, tmp):
        for i in range(4):
            o = acc[(f"g{2*p}", i)].base
            swiglu_tile(E, 2 * p, i, tmp, o)
            swiglu_tile(E, 2 * p + 1, i, tmp, o + 2)
            E(f"buffer_store_dwordx4 v[{o}:{o+3}], v{vX}, s[{sSH}:{sSH+3}], s{sCB} offen offset:{1024*i} sc1")
        E(f"s_add_u32 s{sCB}, s{sCB}, {32 << 17}")
    S = Asm()
    srd(S, sSH, 14, 15, HF_SIZE, HF_OFF)
    sh_lines = lines(S)
    S = Asm()
    S(f"""
    s_mov_b32 s{sNL}, 0x{f2u(-LOG2E):x}
    s_mov_b32 s{sNL+1}, 0x{f2u(-LOG2E):x}
    s_mov_b32 s{sPL}, 0x{f2u(LOG2E):x}
    s_mov_b32 s{sPL+1}, 0x{f2u(LOG2E):x}
    s_mov_b32 s{sEPS}, 0x{f2u(1e-6):x}
    s_lshl_b32 s{sCB}, s{sHD}, 17
    s_lshr_b32 s{sCL}, s{sHD}, 1
    s_add_u32 s{sCL}, s{sCL}, 96
    s_lshl_b32 s{sCL}, s{sCL}, 17
    s_and_b32 s{sT}, s{sHD}, 1
    s_lshl_b32 s{sT}, s{sT}, 9
    s_add_u32 s{sCL}, s{sCL}, s{sT}
    s_lshl_b32 s{sT}, s{sW}, 4
    s_add_u32 s{sT}, s{sT}, s{sCT}
    s_lshl_b32 s{sT}, s{sT}, 12
    v_add_u32 v{vBd}, s{sT}, v{vL16}
    s_lshl_b32 s{sM0}, s{sW}, 12
    """)
    pre_lines = lines(S)
    tiles = [(0, f) for f in range(11)] + [(1, f) for f in range(4)] + [(0, f) for f in range(11, 20)] + [(1, f) for f in range(4, 20)]
    items = [(u, f, kh) for u, f in tiles for kh in range(2)]
    assert len(items) == 80 and len(set(items)) == 80
    def wreadL(u, f, kh, a, pos):
        return wread(f, a, pos, kh, lo=(u == 1))
    B = Asm(); swiglu_pair(B, 0, 2); e0 = lines(B)
    if OPT.get('noe0'): e0 = []
    def unpack(ls):
        out = []
        for l in ls:
            m = re.match(r"v_pk_(mul|add)_f32 v\[(\d+):\d+\], v\[(\d+):\d+\], (\S+)", l)
            if not m: out.append(l); continue
            op, d, a, b = m.group(1), int(m.group(2)), int(m.group(3)), m.group(4)
            for k in range(2):
                if b.startswith("v["): bb = "v%d" % (int(b[2:].split(":")[0]) + k)
                elif b.startswith("s["): bb = "s%d" % int(b[2:].split(":")[0])
                else: bb = b
                out.append(f"v_{op}_f32 v{d+k}, {bb}, v{a+k}")
        return out
    if OPT.get('unpk', 0) & 1: e0 = unpack(e0)
    E0_AT, E0_N = 31, OPT.get('e0n', 44)
    S = Asm()
    S(f"""
    v_and_b32 v{vT}, 7, v0
    v_and_b32 v{vT+1}, 15, v0
    v_lshlrev_b32 v{vT+1}, 4, v{vT+1}
    v_add_u32 v{vT+1}, s{sCT}, v{vT+1}
    v_bfe_u32 v{vPollW}, v0, 4, 1
    v_xor_b32 v{vT+1}, v{vT+1}, v{vPollW}
    v_cmp_gt_u32 vcc, 32, v0
    s_and_b32 s{sT+3}, s2, 0xc7
    v_lshlrev_b32 v{vT}, 3, v{vT}
    v_cndmask_b32 v{vPollW}, v{vT+1}, v{vPollR}, vcc
    v_add_u32 v{vT}, s{sT+3}, v{vT}
    s_mov_b32 s{sT+3}, 0x70000000
    v_cndmask_b32 v{vPollH}, v{vT}, v{vPollR}, vcc
    v_and_b32 v{vT}, 7, v{vPollR}
    v_lshrrev_b32 v{vPollR}, 3, v{vPollR}
    v_mul_u32_u24 v{vPollR}, {LSTR}, v{vPollR}
    v_lshl_add_u32 v{vPollR}, v{vT}, 4, v{vPollR}
    v_and_b32 v{vT}, 7, v{vPollW}
    v_lshrrev_b32 v{vPollW}, 3, v{vPollW}
    v_mul_u32_u24 v{vPollW}, {LSTR}, v{vPollW}
    v_lshl_add_u32 v{vPollW}, v{vT}, 4, v{vPollW}
    v_and_b32 v{vT}, 7, v{vPollH}
    v_lshrrev_b32 v{vPollH}, 3, v{vPollH}
    v_mul_u32_u24 v{vPollH}, {LSTR}, v{vPollH}
    v_lshl_add_u32 v{vPollH}, v{vT}, 4, v{vPollH}
    """)
    poll_lines = lines(S)
    lops = [Wop(3, i) for i in range(5)] + [Xop(2, i) for i in range(4)] + [Xop(3, i) for i in range(4)]
    misc = pre_lines
    for n, (st, f, kh) in enumerate(items):
        A.comment(f"last trip item {n}: super-step {st} {names[f]}")
        lg = 8 if n + LA < 80 else max(0, 2 * (80 - n - 2))
        if n == 0: A(f"s_waitcnt vmcnt({vm_at((0, 0), 'X', (0, 1))}) lgkmcnt(8)")
        elif n == 16: A(f"s_waitcnt vmcnt(8) lgkmcnt(8)"); A("s_barrier")
        elif n == 22: A(f"s_waitcnt vmcnt(0) lgkmcnt(8)")
        elif n % 2 == 0: A(f"s_waitcnt lgkmcnt({lg})")
        fill = []
        if n < 13:
            o = lops[n]; fill = o["pre"] + ["s_nop 0", o["ins"]] + o["post"]
        elif n == 13: fill = sh_lines
        elif 14 <= n < 22: fill = poll_lines[len(poll_lines) * (n - 14) // 8: len(poll_lines) * (n - 13) // 8]
        elif n == 27: fill = [f"s_cmp_eq_u32 s{sW}, 0\ns_cbranch_scc0 M_npw\n{poll_issue(vPollW)}", "M_npw:"]
        elif 22 <= n < 27: fill = misc[len(misc) * (n - 22) // 5: len(misc) * (n - 21) // 5]
        elif E0_AT <= n < E0_AT + E0_N:
            c = n - E0_AT
            fill = e0[len(e0) * c // E0_N: len(e0) * (c + 1) // E0_N]
        mm = lambda i: mfma(f, 4 * kh + i, st, (n - kh) % 8, (n // 2) % 2)
        h = (len(fill) + 1) // 2 if (n > 13 and n != 27) else len(fill)
        A(mm(0))
        if n + LA < 80: A(wreadL(*items[n + LA], 0, (n + LA) % 8))
        A(mm(1))
        if n + LA < 80: A(wreadL(*items[n + LA], 1, (n + LA) % 8))
        A(mm(2))
        emit(fill[:h])
        A(mm(3))
        emit(fill[h:])
    stamp(A, 2, 1); stamp(A, 1, 4)
    A(f"""
    s_load_dwordx2 s[80:81], s[0:1], 56
    s_lshl_b32 s{sT}, s{sRT}, 13
    s_lshl_b32 s{sT+3}, s{sW}, 11
    s_add_u32 s{sT}, s{sT}, s{sT+3}
    v_add_u32 v{vA[0]}, s{sT}, v{vL16}
    v_add_u32 v{vA[1]}, 0x20000, v{vA[0]}
    v_add_u32 v{vA[2]}, 0x40000, v{vA[0]}
    v_add_u32 v{vA[3]}, 0x60000, v{vA[0]}
    s_and_b32 s{sT}, s{sCT}, 1
    s_lshl_b32 s{sT+3}, s{sT}, 18
    v_add_u32 v{vAs[0]}, s{sT+3}, v{vA[0]}
    v_add_u32 v{vAs[1]}, s{sT+3}, v{vA[1]}
    s_lshl_b32 s{sT}, s{sT}, 1
    s_lshr_b32 s{sT+3}, s{sW}, 1
    s_add_u32 s{sT}, s{sT}, s{sT+3}
    s_lshl_b32 s{sT}, s{sT}, 4
    s_and_b32 s{sT+3}, s{sW}, 1
    s_xor_b32 s{sT+3}, s{sT+3}, s{sCT}
    s_add_u32 s{sT}, s{sT}, s{sT+3}
    s_lshl_b32 s{sT}, s{sT}, 12
    v_add_u32 v{vBds}, s{sT}, v{vL16}
    s_lshr_b32 s{sT}, s2, 3
    s_lshr_b32 s{sT+3}, s2, 6
    s_add_u32 s{sT}, s{sT}, s{sT+3}
    s_and_b32 s{sT}, s{sT}, 3
    s_lshl_b32 s{sT}, s{sT}, 3
    s_or_b32 s47, s{sT}, 0x80000
    """)
    srd(A, sSK, 14, 15, KVP_SIZE, KVP_OFF)
    FAK = OPT.get("fak", 3)
    if not FAK: A("s_waitcnt vmcnt(0)")
    A(f"s_cmp_eq_u32 s{sW}, 0"); A("s_cbranch_scc0 M_wtc")
    poll_check(F_WT, MASK_U, 4, vPollW)
    A.label("M_wtc")
    A("s_barrier")
    if not FAK: flag_set(F_LN | F_WT | F_A)
    stamp(A, 2, 4)
    tq = acc[("u0", 0)].base
    LA2 = OPT.get("la2", 3); BP = OPT.get("bp", 2); LB = OPT.get("lb", G2_R - 1)
    vm, lg = [], []
    done = {"vm": -1, "lg": -1}
    pmark = {}
    def put(x):
        line, tag = x if isinstance(x, tuple) else (x, None)
        if line.startswith("@"):
            k, t = line[1:].split()
            waitfor(**{k: [t]}); return
        if line == "#flagA":
            A(f"s_waitcnt vmcnt({len(vm)})")
            A("s_barrier")
            flag_set(F_LN | F_WT | F_A); return
        if line == "#excheck":
            A(f"s_mov_b32 s{sSpin}, 0")
            A.label("M_exc")
            poll_eval(A, 1)
            A(f"""
            s_cmp_eq_u32 vcc_lo, 0
            s_cbranch_scc1 M_exc_ok
            s_add_u32 s{sSpin}, s{sSpin}, 1
            s_cmp_ge_u32 s{sSpin}, 0x40000
            s_cbranch_scc1 M_exc_ok
            s_sleep 1
            {expoll}
            s_waitcnt vmcnt(0)
            s_branch M_exc
            """)
            A.label("M_exc_ok"); return
        if line.startswith("#poll"):
            _, c, va = line.split()
            A(f"s_cmp_eq_u32 s{sW}, 0"); A(f"s_cbranch_scc0 M_np{c}"); A(poll_issue(int(va))); A.label(f"M_np{c}")
            pmark[int(c)] = len(vm); return
        if line.endswith(":"): A.label(line[:-1]); return
        A(line)
        if line.startswith("buffer_"): vm.append(tag)
        elif line.startswith("ds_"): lg.append(tag)
    def waitfor(vm=(), lg=(), _vm=vm, _lg=lg):
        parts = []
        for name, lst, tags, cap in (("vm", _vm, vm, 63), ("lg", _lg, lg, 15)):
            idx = [i for i, t in enumerate(lst) if t in tags]
            assert len(idx) >= 1 or not tags, tags
            if idx and max(idx) > done[name]:
                n = min(len(lst) - 1 - max(idx), cap)
                done[name] = len(lst) - 1 - n
                parts.append(f"{'vmcnt' if name == 'vm' else 'lgkmcnt'}({n})")
        if parts: A("s_waitcnt " + " ".join(parts))
    LEAD = OPT.get("lead", 0)
    sCls = 47
    def perm(r):
        o = list(range(36))
        for lo, hi in ((0, 8), (8, 16), (16, 28), (28, 36)):
            for st in range(lo + LEAD, hi):
                if st % 4 == r and LEAD:
                    o[st - LEAD: st + 1] = [st] + list(range(st - LEAD, st))
        return o
    P = [perm(r) for r in range(4)]
    for r in range(4): assert sorted(P[r]) == list(range(36))
    def soff(dst, m, sh):
        v = [P[r][m] for r in range(4)]
        if OPT.get("same"): v = [m % OPT["same"]] * 4
        if len(set(v)) == 1: return [f"s_mov_b32 s{dst}, 0x{v[0] << sh:x}"]
        lit = sum(x << (8 * r) for r, x in enumerate(v))
        return [f"s_bfe_u32 s{dst}, 0x{lit:x}, s{sCls}", f"s_lshl_b32 s{dst}, s{dst}, {sh}"]
    def bop(m, b):
        pre = soff(sBo, m, 18) + [ f"s_add_u32 m0, s{sM0}, 0x{(m % G2_R) * G2_SLOT:x}", "s_nop 0"] if b == 0 else []
        return pre + [(f"buffer_load_dwordx4 v{vBds if m < NS else vBd}, s[{sSB}:{sSB+3}], s{sBo} offen offset:{1024*b} sc1 lds", f"B{m}")]
    nq = lambda m: 2 if m < NS else 4
    ch0 = [sum(nq(k) for k in range(m)) for m in range(37)]
    aq = [(m, q, i) for m in range(36) for q in range(nq(m)) for i in range(2)]
    def aop(m, q, i):
        pre = soff(sAo, m, 19) if (q == 0 and i == 0) else []
        va = vAs[q] if m < NS else vA[q]
        return pre + [(f"buffer_load_dwordx4 {AR(ch0[m] + q, i)}, v{va}, s[{sSA}:{sSA+3}], s{sAo} offen offset:{1024*i} sc1", f"A{m}q{q}")]
    LAC = OPT.get("lac", 8)
    LACS = OPT.get("lacs", 6)
    NPRE = OPT.get("npre", 6)
    asched = {}; first_at = {}
    k = 2 * NPRE
    for c in range(16 * 36):
        n, F = c // 16, c % 16
        cur = ch0[n] + F * nq(n) // 16
        if F % 4 < 2 and k < len(aq):
            m, q, i = aq[k]
            if ch0[m] + q - cur <= (LACS if m < NS else LAC):
                asched[c] = aq[k]; first_at.setdefault(m, c); k += 1
    assert k == len(aq)
    M1 = OPT.get("m1", 99)
    db = lambda m: LB if m < M1 else max(OPT.get("dmin", 3), LB - 1 - (m - M1) // OPT.get("mstep", 3))
    bsched = {}
    k = 4 * (LB - 1) + 2
    for c in range(16 * 36):
        if c % 4 == 3 and k < 4 * 36:
            m = k // 4
            nb = m - min(db(m), G2_R - 1)
            nb = -(-nb // BP) * BP
            if c >= 16 * nb + 11:
                bsched[c] = (m, k % 4); k += 1
    assert k == 4 * 36
    def check_pos(c):
        n = c // 16 if c % 16 >= 10 else c // 16 - 1
        return 16 * n + 9
    def tagged(ls, tag): return [(l, tag) if l.startswith(("buffer_", "ds_")) else l for l in ls]
    def mix(G, work):
        n = len(G)
        for c, grp in enumerate(G):
            for x in grp: put(x)
            for x in work[len(work) * c // n: len(work) * (c + 1) // n]: put(x)
    B = Asm(); swiglu_pair(B, 1, tq)
    G = [bop(m, b) for m in range(LB) for b in range(4 if m < LB - 1 else 2)]
    G.insert(len(G) - OPT.get("gp", 3), [f"#poll 0 {vPollR}"])
    if FAK: G.insert(FAK, ["#flagA"])
    mix(G, tagged(lines(B), "h1"))
    stamp(A, 3, 4)
    A("s_waitcnt lgkmcnt(0)")
    srd(A, sSO, 80, 81, 0x400000)
    A(f"s_cmp_eq_u32 s{sW}, 0"); A("s_cbranch_scc0 M_gate")
    poll_check(F_A, MASK_R, len(vm) - pmark[0], None, 2)
    A.label("M_gate")
    waitfor(vm=["B0"])
    A("s_barrier")
    stamp(A, 3, 1); stamp(A, 4, 4)
    ACCF, ACCP, ACCS = 88, 120, 24
    BR = lambda p: Reg('a', 112 + 4 * p)
    t0 = tq + 12
    B = Asm()
    for r in range(ACCF, ACCF + 64, 2): B(f"v_pk_mov_b32 v[{r}:{r+1}], 0, 0")
    kb = acc[("k0", 0)].base; vb = acc[("v0", 0)].base
    for dt in range(2):
        for i in range(4):
            phi_tile(B, kb + 16 * dt + 4 * i, tq, kb + 16 * dt + 8 * (i // 2) + 2 * (i % 2))
    mix([aop(*aq[k]) for k in range(2 * NPRE)], lines(B))
    fill = {}
    def spread(ls, c0, c1):
        n = c1 - c0
        for c in range(n):
            fill.setdefault(c0 + c, []).extend(ls[len(ls) * c // n: len(ls) * (c + 1) // n])
    vONE = tq + 8
    B = Asm()
    B(f"v_add_u32 v{vRh}, 0x10000, v{vL16}")
    for j in range(4): B(f"v_mov_b32 v{vONE+j}, 0x3f803f80")
    for et in range(2):
        for i in range(4):
            src = vb + 16 * et + 4 * i
            dst = vb + 16 * et + 8 * (i // 2) + 2 * (i % 2)
            B(f"v_cvt_pk_bf16_f32 v{dst}, v{src}, v{src+1}")
            B(f"v_cvt_pk_bf16_f32 v{dst+1}, v{src+2}, v{src+3}")
    B(f"""
    s_mul_i32 s{sT}, s{sW}, 6144
    s_add_u32 s{sT}, s{sT}, {KVL}
    v_add_u32 v{vk0}, s{sT}, v{vL16}
    s_lshl_b32 s{sT}, s{sW}, 10
    """)
    for u in range(2):
        for dt in range(2):
            for et in range(3):
                a = kb + 16 * dt + 8 * u
                b = vb + 16 * et + 8 * u if et < 2 else vONE
                p = PT(dt * 3 + et)
                B(f"v_mfma_f32_16x16x32_bf16 {p}, v[{a}:{a+3}], v[{b}:{b+3}], {'0' if u == 0 else p}")
    B(f"""
    s_add_u32 s{sT+1}, s{sT}, {KVL}
    v_add_u32 v{vk1}, s{sT+1}, v{vL16}
    s_lshl_b32 s{sT+1}, s{sHD}, 3
    s_add_u32 s{sT+1}, s{sT+1}, s{sRB}
    s_mul_i32 s{sT+1}, s{sT+1}, 6144
    v_add_u32 v{vk2}, s{sT}, v{vL16}
    s_add_u32 s{sT+2}, s{sT+1}, 4096
    """)
    ls = lines(B) + [f"s_cmp_lt_u32 s{sW}, 2\ns_cselect_b32 s{sT+2}, s{sT+2}, 0x70000000"]
    ls += [(f"ds_write_b128 v{vk0}, {PT(t)} offset:{1024*t}", "kvw") for t in range(6)]
    spread(ls, 0, 16 + 6)
    barrier_lg = {1: ["kvw"]}
    tb = kb
    def sum4(E, b):
        E(f"v_pk_add_f32 v[{b}:{b+1}], v[{b}:{b+1}], v[{b+4}:{b+5}]")
        E(f"v_pk_add_f32 v[{b+2}:{b+3}], v[{b+2}:{b+3}], v[{b+6}:{b+7}]")
        E(f"v_pk_add_f32 v[{b+8}:{b+9}], v[{b+8}:{b+9}], v[{b+12}:{b+13}]")
        E(f"v_pk_add_f32 v[{b+10}:{b+11}], v[{b+10}:{b+11}], v[{b+14}:{b+15}]")
        E(f"v_pk_add_f32 v[{b}:{b+1}], v[{b}:{b+1}], v[{b+8}:{b+9}]")
        E(f"v_pk_add_f32 v[{b+2}:{b+3}], v[{b+2}:{b+3}], v[{b+10}:{b+11}]")
    ls = [(f"ds_read_b128 v[{tb+4*sw}:{tb+4*sw+3}], v{vk1} offset:{6144*sw}", "kvr") for sw in range(4)]
    ls += [(f"ds_read_b128 v[{tb+16+4*sw}:{tb+16+4*sw+3}], v{vk1} offset:{6144*sw+4096}", "kvr") for sw in range(4)]
    spread(ls, 16 + 10, 32 + 2)
    B = Asm()
    sum4(B, tb)
    B(f"buffer_store_dwordx4 v[{tb}:{tb+3}], v{vk2}, s[{sSK}:{sSK+3}], s{sT+1} offen sc1")
    sum4(B, tb + 16)
    B(f"buffer_store_dwordx4 v[{tb+16}:{tb+19}], v{vk2}, s[{sSK}:{sSK+3}], s{sT+2} offen sc1")
    spread(["@lg kvr"] + tagged(lines(B), "kvs"), 32 + 6, 32 + 12)
    B = Asm(); swiglu_pair(B, 2, tq)
    spread(tagged(lines(B), "h2"), 16 * 2 + 12, 16 * 5 + 8)
    B = Asm()
    B(f"""
    v_and_b32 v{t0}, 15, v0
    v_lshlrev_b32 v{t0+2}, 4, v{t0}
    v_bfe_u32 v{t0+1}, v0, 4, 1
    v_lshl_add_u32 v{t0+2}, v{t0+1}, 10, v{t0+2}
    v_lshrrev_b32 v{t0+1}, 5, v0
    v_lshl_add_u32 v{t0+2}, v{t0+1}, 8, v{t0+2}
    v_sub_u32 v{vLn}, v{vX}, v{vL16}
    v_add_u32 v{vLn}, v{vLn}, v{t0+2}
    v_lshrrev_b32 v{t0+1}, 4, v0
    v_and_b32 v{t0+2}, 7, v0
    v_xor_b32 v{t0+1}, v{t0+1}, v{t0+2}
    v_lshlrev_b32 v{t0+1}, 4, v{t0+1}
    v_lshl_add_u32 v{vXf}, v{t0}, 7, v{t0+1}
    v_lshrrev_b32 v{t0}, 3, v0
    v_xor_b32 v{t0+2}, v{t0+2}, v{t0}
    v_lshlrev_b32 v{t0}, 11, v{t0}
    v_lshl_add_u32 v{vXO}, v{t0+2}, 4, v{t0}
    s_lshl_b32 s{sT}, s{sRT}, 18
    s_lshl_b32 s{sT+3}, s{sW}, 16
    s_add_u32 s{sT}, s{sT}, s{sT+3}
    s_lshl_b32 s{sT+3}, s{sCT}, 7
    s_add_u32 s{sT}, s{sT}, s{sT+3}
    v_add_u32 v{vXO}, s{sT}, v{vXO}
    s_add_u32 s{sT}, s{sM0}, {XL}
    v_add_u32 v{vXf}, s{sT}, v{vXf}
    v_xor_b32 v{vXf2}, 64, v{vXf}
    v_add_u32 v{vXl}, s{sT}, v{vL16}
    s_lshr_b32 s{sT}, s{sW}, 1
    s_add_u32 s{sT}, s{sT}, s{sW}
    s_lshl_b32 s{sT}, s{sT}, 10
    s_mul_i32 s{sT+3}, s{sHD}, 49152
    s_add_u32 s{sT}, s{sT}, s{sT+3}
    v_add_u32 v{vKv}, s{sT}, v{vL16}
    v_and_b32 v{t0}, 7, v0
    v_mul_u32_u24 v{vZ}, 6144, v{t0}
    v_bfe_u32 v{t0}, v0, 3, 2
    v_lshl_add_u32 v{vZ}, v{t0}, 8, v{vZ}
    v_lshrrev_b32 v{t0}, 5, v0
    v_mul_u32_u24 v{t0}, 3072, v{t0}
    v_add3_u32 v{vZ}, v{vZ}, v{t0}, s{sT+3}
    s_and_b32 s{sT}, s{sW}, 1
    s_lshl_b32 s{sT}, s{sT}, 10
    s_lshr_b32 s{sT+3}, s{sW}, 1
    s_lshl_b32 s{sT+3}, s{sT+3}, 3
    s_add_u32 s{sT}, s{sT}, s{sT+3}
    s_add_u32 s{sT}, s{sT}, {FIN}
    v_add_u32 v{vFw}, s{sT}, v{vL16}
    v_bfe_u32 v{t0}, v0, 3, 2
    v_lshlrev_b32 v{t0}, 4, v{t0}
    v_lshrrev_b32 v{t0+1}, 5, v0
    v_lshl_add_u32 v{t0}, v{t0+1}, 3, v{t0}
    v_add_u32 v{vZw}, {FIN+2048}, v{t0}
    v_and_b32 v{t0}, 48, v0
    v_add_u32 v{vZr}, {FIN+2048}, v{t0}
    v_add_u32 v{vFr}, {FIN}, v{vL16}
    """)
    spread(lines(B)[:8], 16 * 1 + 6, 16 * 1 + 12)
    spread([f"v_and_b32 v{t0}, 15, v0"] + lines(B)[8:], 16 * 8, 16 * 10)
    B = Asm()
    for i in (0, 2):
        o = acc[("g6", i)].base
        swiglu_tile(B, 6, i, tq, o)
        swiglu_tile(B, 6, i + 1, tq, o + 2)
        B("s_nop 1")
        B(f"v_permlane16_swap_b32 v{o}, v{o+2}")
        B(f"v_permlane16_swap_b32 v{o+1}, v{o+3}")
        B(f"buffer_store_dwordx4 v[{o}:{o+3}], v{vLn}, s[{sSH}:{sSH+3}], s{sCL} offen offset:{1024*i} sc1")
    spread(tagged(lines(B), "h3"), 16 * 5 + 8, 16 * 7)
    pqb = 240
    B = Asm()
    for i in range(4):
        for dt in range(2):
            qa = acc[(f"q{dt}", i)].base
            for j in range(4): B(f"v_accvgpr_read_b32 v{tq+j}, a{qa+j}")
            phi_tile(B, tq, tq + 4, pqb + 4 * i + 2 * dt)
    spread(lines(B), 16 * 10, 16 * 15)
    kvb, zb, fr, ob = 24, 56, 60, 152
    GB = check_pos(first_at[16]) // 16
    extra = {}
    for r in range(8):
        extra[16 * GB + 12 + 4 * r] = [f"s_mov_b32 s{sT+1}, {6144*r}", (f"buffer_load_dwordx4 v[{kvb+4*r}:{kvb+4*r+3}], v{vKv}, s[{sSK}:{sSK+3}], s{sT+1} offen sc1", "kvg")]
    extra[16 * (GB + 2) + 14] = [(f"buffer_load_dwordx4 v[{zb}:{zb+3}], v{vZ}, s[{sSK}:{sSK+3}], 0 offen offset:2048 sc1", "kvg")]
    B = Asm()
    for st in (16, 8, 4):
        for r in range(0, st, 2):
            B(f"v_pk_add_f32 v[{kvb+r}:{kvb+r+1}], v[{kvb+r}:{kvb+r+1}], v[{kvb+st+r}:{kvb+st+r+1}]")
    for dpp in ("quad_perm:[1,0,3,2]", "quad_perm:[2,3,0,1]", "row_half_mirror"):
        for j in range(4):
            B(f"v_add_f32_dpp v{zb+j}, v{zb+j}, v{zb+j} {dpp} row_mask:0xf bank_mask:0xf")
    B(f"""
    v_cvt_pk_bf16_f32 v{kvb}, v{kvb}, v{kvb+1}
    v_cvt_pk_bf16_f32 v{kvb+1}, v{kvb+2}, v{kvb+3}
    v_cvt_pk_bf16_f32 v{zb}, v{zb}, v{zb+1}
    v_cvt_pk_bf16_f32 v{zb+1}, v{zb+2}, v{zb+3}
    ds_write_b64 v{vFw}, v[{kvb}:{kvb+1}]
    ds_write_b64 v{vZw}, v[{zb}:{zb+1}]
    """)
    spread(["@vm kvg"] + tagged(lines(B), "fw"), 16 * (GB + 4), 16 * (GB + 4) + 7)
    barrier_lg[GB + 4] = ["fw"]
    spread([(f"ds_read_b128 v[{fr}:{fr+3}], v{vFr}", "frr"), (f"ds_read_b128 v[{fr+4}:{fr+7}], v{vFr} offset:1024", "frr"),
            (f"ds_read_b128 v[{fr+8}:{fr+11}], v{vZr}", "frr")], 16 * (GB + 4) + 10, 16 * (GB + 4) + 13)
    B = Asm()
    B(f"s_add_u32 s{sT}, s{sHD}, 112")
    B(f"s_lshl_b32 s{sT}, s{sT}, 17")
    for i in range(4):
        for et in (2, 0, 1):
            d = ob + 12 * i + 4 * et
            B(f"v_mfma_f32_16x16x32_bf16 v[{d}:{d+3}], v[{fr+4*et}:{fr+4*et+3}], v[{pqb+4*i}:{pqb+4*i+3}], 0")
    for i in range(4): B(f"v_add_f32 v{ob+12*i+8}, s{sEPS}, v{ob+12*i+8}")
    for i in range(4): B(f"v_rcp_f32 v{ob+12*i+8}, v{ob+12*i+8}")
    for i in range(4):
        d = ob + 12 * i
        for q in range(4):
            B(f"v_pk_mul_f32 v[{d+2*q}:{d+2*q+1}], v[{d+2*q}:{d+2*q+1}], v[{d+8}:{d+9}] op_sel_hi:[1,0]")
        for q in range(4):
            B(f"v_cvt_pk_bf16_f32 v{d+q}, v{d+2*q}, v{d+2*q+1}")
        B(f"buffer_store_dwordx4 v[{d}:{d+3}], v{vX}, s[{sSH}:{sSH+3}], s{sT} offen offset:{1024*i} sc1")
    spread(["@lg frr"] + tagged(lines(B), "os"), 16 * (GB + 5) + 2, 16 * (GB + 5) + OPT.get("ow", 32))
    spread([f"v_pk_mov_b32 v[{r}:{r+1}], 0, 0" for r in range(ACCS, ACCS + 32, 2)], 16 * 22, 16 * 23)
    sSE = 16
    S = Asm(); srd(S, sSE, 14, 15, EX_SIZE, EX_OFF)
    ls = ["\n".join(lines(S)),
          f"s_lshl_b32 s{sT+1}, s2, 2", f"s_add_u32 s{sT+1}, s{sT+1}, s{sW}", f"s_lshl_b32 s{sT+1}, s{sT+1}, 13",
          f"s_add_u32 s{sT+2}, s{sT+1}, 4096"]
    assert LSTR & (LSTR - 1) == 0
    spread(ls, 16 * (NS - 1), 16 * NS)
    XB = OPT.get("xbf", 1)
    NX = 4 if XB else 8
    if XB:
        ls = []
        for k in range(4):
            for q in range(4): ls.append(f"v_cvt_pk_bf16_f32 v{ACCP+4*k+q}, v{ACCP+8*k+2*q}, v{ACCP+8*k+2*q+1}")
            ls.append((f"buffer_store_dwordx4 v[{ACCP+4*k}:{ACCP+4*k+3}], v{vL16}, s[{sSE}:{sSE+3}], s{sT+1} offen offset:{1024*k} sc1", "ex"))
        spread(ls, 16 * NS + 2, 16 * NS + OPT.get("exs", 14))
    else:
        for k in range(8):
            extra.setdefault(16 * NS + 2 + 4 * k, []).append(
                (f"buffer_store_dwordx4 v[{ACCP+4*k}:{ACCP+4*k+3}], v{vL16}, s[{sSE}:{sSE+3}], s{sT+1+k//4} offen offset:{1024*(k%4)} sc1", "ex"))
    assert XB
    EXG = 16 * NS + OPT.get("exg", 38)
    EXP = EXG + OPT.get("exp", 16)
    EXL = EXP + OPT.get("exc", 16)
    extra.setdefault(EXG, []).extend(["@vm ex", f"v_mov_b32 v{vT}, s{sTag}", f"v_mov_b32 v{vT+1}, 1", "s_mov_b64 exec, 1",
        (f"buffer_store_dwordx2 v[{vT}:{vT+1}], off, s[{sSE}:{sSE+3}], s{sT+2} sc1", "exf"), "s_mov_b64 exec, -1",
        f"s_xor_b32 s{sT+1}, s{sT+1}, {32 << 15}", f"s_xor_b32 s{sT+2}, s{sT+2}, {32 << 15}"])
    expoll = f"buffer_load_dwordx2 v[{vPv}:{vPv+1}], off, s[{sSE}:{sSE+3}], s{sT+2} sc1"
    extra.setdefault(EXP, []).append((expoll, "exp"))
    extra.setdefault(EXL, []).extend(["@vm exp", "#excheck"])
    for k in range(NX):
        extra.setdefault(EXL + 2 * k, []).append(
            (f"buffer_load_dwordx4 v[{ACCP+4*k}:{ACCP+4*k+3}], v{vL16}, s[{sSE}:{sSE+3}], s{sT+1+k//4} offen offset:{1024*(k%4)} sc1", "exl"))
    vXD, tb = 72, 152
    sX0 = 45
    xb0 = 184
    B = Asm()
    if XB:
        for r in range(16):
            B(f"v_lshlrev_b32 v{tb+2*r}, 16, v{ACCP+r}")
            B(f"v_and_b32 v{tb+2*r+1}, 0xffff0000, v{ACCP+r}")
    for r in range(0, 32, 2): B(f"v_pk_add_f32 v[{ACCF+r}:{ACCF+r+1}], v[{ACCF+r}:{ACCF+r+1}], v[{(tb if XB else ACCP)+r}:{(tb if XB else ACCP)+r+1}]")
    for r in range(0, 32, 2): B(f"v_pk_mul_f32 v[{tb+r}:{tb+r+1}], v[{ACCF+r}:{ACCF+r+1}], s[{sNL}:{sNL+1}]")
    for r in range(32): B(f"v_exp_f32 v{tb+r}, v{tb+r}")
    for r in range(0, 32, 2): B(f"v_pk_add_f32 v[{tb+r}:{tb+r+1}], v[{tb+r}:{tb+r+1}], 1.0 op_sel_hi:[1,0]")
    for r in range(32): B(f"v_rcp_f32 v{tb+r}, v{tb+r}")
    for r in range(0, 32, 2): B(f"v_pk_mul_f32 v[{ACCF+r}:{ACCF+r+1}], v[{ACCF+r}:{ACCF+r+1}], v[{tb+r}:{tb+r+1}]")
    S0 = max(EXL + OPT.get("exw", 22), 16 * 28 + 2)
    spread(["@vm exl"] + lines(B), S0, min(S0 + 56, 16 * 36 - 2))
    spread([(f"ds_read_b128 v[{vXD+4*k}:{vXD+4*k+3}], v{vXf2 if k % 2 else vXf} offset:{2048*(k//2)}", "xr") for k in range(4)], 16 * 23, 16 * 23 + 5)
    ls = ["@lg xr"]
    for k in range(4):
        for q in range(4):
            ls.append(f"v_lshlrev_b32 v{xb0+8*k+2*q}, 16, v{vXD+4*k+q}")
            ls.append(f"v_and_b32 v{xb0+8*k+2*q+1}, 0xffff0000, v{vXD+4*k+q}")
    spread(ls, 16 * 24, 16 * 26)
    base = F_LN | F_WT | F_A
    FB, FL, FC = OPT.get("fb", 6), OPT.get("fl", 8), GB + OPT.get("fc", 8)
    F_L = F_E
    flags = {0: (base | F_A2, ["h1"]), FB: (base | F_A2 | F_B, ["kvs", "h2"]), FL: (base | F_A2 | F_B | F_L, ["h3"]),
             FC: (base | F_A2 | F_B | F_L | F_C, ["os"])}
    checks = {check_pos(first_at[8]): (F_A2, MASK_R, vPollR), check_pos(first_at[16]): (F_B, MASK_R | MASK_U, vPollH),
              check_pos(first_at[24]): (F_L, MASK_R, None), check_pos(first_at[28]): (F_C, MASK_R, vPollR)}
    print("checks at", sorted((c // 16, c % 16) for c in checks), file=sys.stderr)
    Y = OPT.get("y", 0)
    if Y & 1: checks = {k: v for k, v in checks.items() if v[0] == F_C}
    if Y & 2: flags = {k: v for k, v in flags.items() if k == 19}
    if Y & 4:
        for k in list(extra):
            if any(isinstance(x, tuple) and x[1] == "kvg" for x in extra[k]) and k != 16 * 14 + 14: del extra[k]
    if Y & 8:
        for k in list(extra):
            extra[k] = [x for x in extra[k] if not ((isinstance(x, tuple) and x[1] in ("exl", "exp", "exf")) or x in ("@vm ex", "@vm exp", "#excheck"))]
        for k in fill: fill[k] = [x for x in fill[k] if not ((isinstance(x, tuple) and x[1] == "ex") or x == "@vm exl")]
    if Y & 16:
        for k in fill: fill[k] = [x for x in fill[k] if isinstance(x, tuple) or not x.startswith(("v_exp", "v_rcp"))]
    for c, (bit, mask, va) in checks.items():
        pc = c - OPT.get("pdist", 19)
        if va is not None: extra.setdefault(pc, []).append(f"#poll {c} {va}")
    if OPT.get("unpk", 0) & 2:
        for k in fill:
            out = []
            for x in fill[k]:
                if isinstance(x, str) and x.startswith("v_pk_") and "op_sel_hi:[1,0]" not in x.replace("1.0 op_sel_hi:[1,0]", "") and not x.startswith(("v_pk_mov", "v_pk_fma")):
                    out += unpack([x])
                else: out.append(x)
            fill[k] = out
    CH2 = OPT.get("ch2", 0)
    def fmap(n, F):
        if not CH2: return (F * nq(n) // 16, F // 4, F % 4)
        hi, j, e = F >> 3, (F >> 1) & 3, F & 1
        if n < NS: return (e, 2 * e + hi, j)
        return (2 * hi + e, 2 * hi + e, j)
    def bread(n, F):
        sl = n % G2_R
        q, ss, j = fmap(n, F)
        return (f"ds_read_b128 {BR(F % 8)}, v{vRh if sl >= 4 else vL16} offset:{(sl % 4) * G2_SLOT + 4096*ss + 1024*j}", f"b{n}_{F}")
    for F in range(LA): put(bread(0, F))
    stamp(A, 5, 1); stamp(A, 1, 3); stamp(A, 5, 4)
    for n in range(36):
        for F in range(16):
            q, ss, j = fmap(n, F)
            accb = ACCS if n >= 28 else (ACCP if (n < NS and ss & 1) else ACCF)
            c = 16 * n + F
            wv, wl = [], []
            if F % 2 == 0: wl = [f"b{n}_{F}", f"b{n}_{F+1}"]
            if not CH2 and j == 0: wv = [f"A{n}q{q}"]
            if CH2 and F % 8 == 0: wv = [f"A{n}q{q}", f"A{n}q{q+1}"]
            bar = F == 10 and n < 35 and (n % BP == 0 or n in barrier_lg or n in flags or 16 * n + 9 in checks)
            if bar:
                if n % BP == 0: wv += [f"B{m}" for m in range(n + 1, min(n + BP, 35) + 1)]
                wv += flags[n][1] if n in flags else []
                wl += barrier_lg.get(n, [])
            waitfor(vm=wv, lg=wl)
            if bar:
                A("s_barrier")
                if n in flags: flag_set(flags[n][0])
            order = (0, 1) if (F % 2 == 0 or not OPT.get("snake")) else (1, 0)
            m = lambda i: f"v_mfma_f32_16x16x32_bf16 v[{accb+16*i+4*j}:{accb+16*i+4*j+3}], {BR(F % 8)}, {AR(ch0[n] + q, i)}, v[{accb+16*i+4*j}:{accb+16*i+4*j+3}]"
            if CH2:
                F0 = F & ~1; q0 = q - (F & 1)
                ti = (F & 1) ^ ((F >> 1) & 1)
                order = (0, 1) if F % 2 == 0 else (1, 0)
                m = lambda e: f"v_mfma_f32_16x16x32_bf16 v[{accb+16*ti+4*j}:{accb+16*ti+4*j+3}], {BR((F0 + e) % 8)}, {AR(ch0[n] + q0 + e, ti)}, v[{accb+16*ti+4*j}:{accb+16*ti+4*j+3}]"
            nn, nF = (n, F + LA) if F + LA < 16 else (n + 1, F + LA - 16)
            fl = fill.get(c, [])
            h = len(fl) // 2 if OPT.get("gap2") else 0
            A(m(order[0]))
            if nn < 36: put(bread(nn, nF))
            for x in fl[:h]: put(x)
            A(m(order[1]))
            if c in asched:
                for x in aop(*asched[c]): put(x)
            if c in bsched:
                for x in bop(*bsched[c]): put(x)
            for x in extra.get(c, []): put(x)
            for x in fl[h:]: put(x)
            if c in checks:
                bit, mask, va = checks[c]
                A(f"s_cmp_eq_u32 s{sW}, 0"); A(f"s_cbranch_scc0 M_nc{c}")
                poll_check(bit, mask, len(vm) - pmark[c] if va is not None else None, va)
                if bit != F_C: A.label(f"M_nc{c}")
                if bit == F_C:
                    A(f"""
                    s_or_b32 s{sTm}, s2, s{sW}
                    s_cmp_eq_u32 s{sTm}, 0
                    s_cbranch_scc0 M_nobump
                    v_mov_b32 v{vT}, s{sTag}
                    s_mov_b32 s{sTm}, {EPOCH}
                    s_mov_b64 exec, 1
                    buffer_store_dword v{vT}, off, s[{sSF}:{sSF+3}], s{sTm} sc1
                    s_mov_b64 exec, -1
                    """)
                    A.label("M_nobump"); A.label(f"M_nc{c}")
        if n in (3, 7, 11, 19, 31): stamp(A, {3: 2, 7: 3, 11: 4, 19: 5, 31: 6}[n], 3)
        if n in (19, 21, 23, 25, 27, 29): stamp(A, (n - 17) // 2, 5)
        if n in (11, 13, 15, 17, 19, 21): stamp(A, (n - 9) // 2, 6)
    A("s_nop 4")
    for i in range(2):
        for pr in range(2):
            t0 = 16 * i + 8 * pr
            x = vXD + 8 * i + 4 * pr
            for q in range(4):
                t = t0 + 2 * q
                A(f"v_pk_fma_f32 v[{ACCS+t}:{ACCS+t+1}], v[{ACCS+t}:{ACCS+t+1}], v[{ACCF+t}:{ACCF+t+1}], v[{xb0+t}:{xb0+t+1}]")
            for q in range(4):
                A(f"v_cvt_pk_bf16_f32 v{x+q}, v{ACCS+t0+2*q}, v{ACCS+t0+2*q+1}")
            A(f"ds_write_b128 v{vXf2 if pr else vXf}, v[{x}:{x+3}] offset:{2048*i}")
        if i == 0: A(f"s_mov_b32 s{sX0}, 16384"); A(f"s_mov_b32 s{sX0+1}, 32768"); A(f"s_mov_b32 s{sT}, 49152")
        for k in (2 * i, 2 * i + 1):
            A(f"ds_read_b128 v[{tb+4*k}:{tb+4*k+3}], v{vXl} offset:{1024*k}")
    for k in range(4):
        A(f"s_waitcnt lgkmcnt({[5, 4, 1, 0][k]})")
        A(f"buffer_store_dwordx4 v[{tb+4*k}:{tb+4*k+3}], v{vXO}, s[{sSO}:{sSO+3}], {['0', f's{sX0}', f's{sX0+1}', f's{sT}'][k]} offen sc0 sc1 nt")
    stamp(A, 6, 1)
    if OPT["stamp"]:
        A("s_memrealtime s[100:101]")
        A("s_waitcnt lgkmcnt(0)")
        if OPT.get("dbgout"):
            A("s_load_dwordx2 s[20:21], s[0:1], 64"); A("s_waitcnt lgkmcnt(0)")
            srd(A, 16, 20, 21, 256)
            A(f"s_add_u32 s{sT}, s2, 1"); A(f"s_and_b32 s{sT}, s{sT}, 0xfe"); A(f"s_or_b32 s{sT}, s{sT}, s{sW}")
            A(f"s_cmp_eq_u32 s{sT}, 0"); A("s_cbranch_scc0 M_end")
            A(f"s_and_b32 s{sT}, s2, 32"); A(f"v_mov_b32 v0, s{sT}")
            for i, r in enumerate(SREG[1:] + [100]):
                A(f"s_sub_u32 s{sT}, s{r}, s99"); A(f"v_mov_b32 v1, s{sT}"); A(f"buffer_store_dword v1, v0, s[16:19], 0 offen offset:{4*i}")
            A(f"v_mov_b32 v1, s99"); A(f"buffer_store_dword v1, v0, s[16:19], 0 offen offset:28")
            A("s_branch M_end")
        srd(A, 16, 14, 15, 0x10000, STAMP_OFF + 0x10000)
        A(f"s_lshl_b32 s{sT}, s2, 2"); A(f"s_add_u32 s{sT}, s{sT}, s{sW}"); A(f"s_lshl_b32 s{sT}, s{sT}, 6")
        A(f"v_mov_b32 v0, s{sT}")
        for i, r in enumerate(SREG):
            A(f"v_mov_b32 v1, s{r}"); A(f"buffer_store_dword v1, v0, s[16:19], 0 offen offset:{4*i}")
        A(f"v_mov_b32 v1, s100"); A(f"buffer_store_dword v1, v0, s[16:19], 0 offen offset:56")
        A(f"v_mov_b32 v1, s99"); A(f"buffer_store_dword v1, v0, s[16:19], 0 offen offset:60")
    A.label("M_end")
    A("s_endpgm")
    return A.text()

def build():
    K = NAME + "_kernel"
    hdr = open(f"cdna_kernels/{NAME}.s.ref").read().split("; Override")[0]
    out = [hdr.rstrip("\n")]
    if OPT.get("list"):
        out.append(f"; @launch kernel={K} grid=(256,1,1) block=(256,1,1) lds={LDS_BYTES}")
    else:
        out.append(f"; @launch grid=(256,1,1) block=(256,1,1) lds={LDS_BYTES}")
    out.append('.amdgcn_target "amdgcn-amd-amdhsa--gfx950"')
    out.append(".text")
    NO_NOP[0] = OPT['align'] == 2
    body, size = align_kernel(gen())
    for p in check_hazards(body): print("HAZARD", p, file=sys.stderr)
    print("code bytes", size, file=sys.stderr)
    assert size < 65536
    out.append(body.rstrip("\n"))
    out.append(".p2align 8")
    out.append(f".fill {(66560 - size) // 4}, 4, 0xbf810000")
    out.append(f""".section .rodata,"a"
.p2align 6
.amdhsa_kernel {K}
  .amdhsa_next_free_vgpr 512
  .amdhsa_next_free_sgpr 102
  .amdhsa_accum_offset 256
  .amdhsa_group_segment_fixed_size 0
  .amdhsa_kernarg_size 80
  .amdhsa_user_sgpr_count 2
  .amdhsa_user_sgpr_kernarg_segment_ptr 1
  .amdhsa_system_sgpr_workgroup_id_x 1
.end_amdhsa_kernel""")
    return "\n".join(out) + "\n"

if __name__ == "__main__":
    for a in sys.argv[2:]:
        k, v = a.split("="); OPT[k] = int(v)
    WS_BASE = OPT.get('wsb', 0) << 20
    LSTR = OPT.get('lstr', LSTR); FLG_SIZE = 33 * LSTR; EPOCH = 32 * LSTR
    XF_OFF += WS_BASE; HF_OFF += WS_BASE; KVP_OFF += WS_BASE; WT_OFF += WS_BASE; FLG_OFF += WS_BASE; EX_OFF += WS_BASE
    open(sys.argv[1], "w").write(build())
```

```python
import sys, struct, re
from asmlib import *

NAME = "recurrent_scan__linear_attn_block__swiglu_ffn__prompt"
XF_OFF = 0x0
HF_OFF = 0x400000
HF_SIZE = 144 * 131072
KVP_OFF = 0x1600000
KVP_SIZE = 32 * 8 * 6144
WT_OFF = 0x1C00000
WT_SIZE = 144 * 65536
FLG_OFF = 0x2800000
LSTR = 128
FLG_SIZE = 33 * LSTR
EPOCH = 32 * LSTR
STAMP_OFF = 0x3000000
EX_OFF = 0x3400000
EX_SIZE = 256 * 32768

def f2u(x): return struct.unpack("<I", struct.pack("<f", x))[0]
LOG2E = 1.4426950408889634
OPT = dict(stamp=0, align=0, snake=1, unpk=3, e0n=44, gap2=1)

G1_S, G1_SLOT = 6, 20480
CSC = G1_S * G1_SLOT
G2_R, G2_SLOT = 7, 16384
KVL = G2_R * G2_SLOT
FIN = KVL + 26624
XL = FIN + 4096 + 1024
LDS_BYTES = XL + 16384
F_LN, F_WT, F_A, F_A2, F_E, F_B, F_C = 1, 2, 4, 8, 16, 32, 64

def srd(A, d, lo, hi, size, off=0):
    if off:
        A(f"s_add_u32 s{d}, s{lo}, 0x{off:x}")
        A(f"s_addc_u32 s{d+1}, s{hi}, 0")
    else:
        A(f"s_mov_b32 s{d}, s{lo}")
        A(f"s_mov_b32 s{d+1}, s{hi}")
    A(f"s_mov_b32 s{d+2}, 0x{size:x}")
    A(f"s_mov_b32 s{d+3}, 0x00020000")

SREG = [6, 7, 86, 87, 96, 97, 98]
def stamp(A, idx, mode):
    if OPT["stamp"] != mode: return
    A("s_memrealtime s[100:101]" if OPT.get("rt") else "s_memtime s[100:101]")
    A("s_waitcnt lgkmcnt(0)")
    A(f"s_mov_b32 s{SREG[idx]}, s100")

def interleave(A, groups, work):
    per = -(-len(work) // len(groups)); wi = 0
    for grp in groups:
        for l in grp: A(l)
        for l in work[wi:wi + per]: A(l)
        wi += per
    for l in work[wi:]: A(l)

def NT(b): return " nt" if OPT.get("nt", 5) & b else ""
def lines(B): return [l.strip() for l in B.lines]

def gen():
    A = Asm()
    K = NAME + "_kernel"
    A.raw(f".globl {K}\n.p2align 8\n.type {K},@function\n{K}:")
    if OPT["align"]: A.raw("    ; @align on")
    vX, vD, vA0, vA1, vAG, vB0, vB1, vBG, vL16 = 1, [2, 3, 4, 5, 6], 7, 8, 9, 10, 11, 12, 13
    vT = 14
    vPollR, vPv, vCd, vPollW, vPollH, vCs, vDum = 17, 18, 16, 20, 21, 22, 23
    vTq, vTg = 20, 21
    names = ["g0", "u0", "g1", "u1", "k0", "k1", "v0", "v1", "q0", "q1"]
    for t in range(2, 7): names += [f"g{t}", f"u{t}"]
    acc = {}
    nv = 24; na = 0
    for nm in ["k0", "k1", "v0", "v1"] + [f"g{t}" for t in range(7)]:
        for i in range(4):
            acc[(nm, i)] = Reg('v', nv); nv += 4
    for t in range(7):
        for i in range(4):
            if t * 4 + i < 14:
                acc[(f"u{t}", i)] = Reg('v', nv); nv += 4
            else:
                acc[(f"u{t}", i)] = Reg('a', na); na += 4
    for nm in ["q0", "q1"]:
        for i in range(4):
            acc[(nm, i)] = Reg('a', na); na += 4
    assert nv == 256 and na == 88
    XR = lambda s, i: Reg('a', 88 + 16 * s + 4 * i)
    WR = lambda p: Reg('a', 152 + 4 * p)
    accm = acc
    if OPT.get("classic"):
        accm = {}; k = 0
        for nm in names:
            for i in range(4):
                accm[(nm, i)] = Reg('a', 4 * k) if k < 52 else Reg('v', 24 + 4 * (k - 52)); k += 1
        XR = lambda s, i: Reg('v', 136 + 16 * s + 4 * i)
        WR = lambda p: Reg('v', 200 + 4 * p)
    PT = lambda t: Reg('a', 88 + 4 * t)
    CT = lambda k: Reg('a', 208 + 4 * k)
    sSX, sSD = 16, [20, 24, 28, 32, 36]
    sSCs, sSCd, sSF = 40, 72, 92
    sST = [76, 80, 44]
    sW, sHD, sRB, sXo, sWoA, sWoB, sStA, sStB, sM, sR, sCnt = 48, 49, 50, 51, 52, 53, 54, 55, 56, 57, 58
    sSLOT, sREND, sMEND, sM0, sCl, sCs = 59, 60, 61, 62, 63, 3
    sToq, sTog, sFo, sSpin, sTag, sTm = 88, 89, 90, 91, 12, 13
    sT = 64
    uid = [0]; site = [0]
    def flag_set(val):
        uid[0] += 1; L = f"M_fs{uid[0]}"
        A(f"""
        s_cmp_eq_u32 s{sW}, 0
        s_cbranch_scc0 {L}
        v_mov_b32 v{vT}, s{sTag}
        v_mov_b32 v{vT+1}, {val}
        s_mov_b64 exec, 1
        buffer_store_dwordx2 v[{vT}:{vT+1}], off, s[{sSF}:{sSF+3}], s{sFo} sc1
        s_mov_b64 exec, -1
        """)
        A.label(L)
    def poll_issue(vaddr):
        return f"buffer_load_dwordx2 v[{vPv}:{vPv+1}], v{vaddr}, s[{sSF}:{sSF+3}], 0 offen sc1"
    MASK_R, MASK_U = 0x00000000ffffffff, 0xffffffff00000000
    def poll_eval(E, bit):
        E(f"""
        v_xor_b32 v{vT}, s{sTag}, v{vPv}
        v_bfe_u32 v{vT+1}, v{vPv+1}, {bit.bit_length()-1}, 1
        v_xor_b32 v{vT+1}, 1, v{vT+1}
        v_or_b32 v{vT}, v{vT}, v{vT+1}
        v_cmp_ne_u32 vcc, 0, v{vT}
        s_nop 3
        """)
    def repoll(L, va=None, slp=None):
        if slp is None: slp = OPT.get('sleep', 8)
        if OPT["stamp"] == 1:
            A(f"s_add_u32 s96, s96, 0x{1 << (4 * site[0]):x}"); site[0] += 1
        A(f"""
        s_add_u32 s{sSpin}, s{sSpin}, 1
        s_cmp_ge_u32 s{sSpin}, 0x40000
        s_cbranch_scc1 {L}_ok
        s_sleep {slp}
        {poll_issue(vPollR if va is None else va)}
        s_waitcnt vmcnt(0)
        s_branch {L}
        """)
    def poll_check(bit, mask, vm=None, va=None, slp=None):
        uid[0] += 1; L = f"M_pc{uid[0]}"
        if vm is not None: A(f"s_waitcnt vmcnt({vm})")
        A(f"s_mov_b32 s{sSpin}, 0")
        A.label(L)
        poll_eval(A, bit)
        lo, hi = mask & 0xffffffff, mask >> 32
        if hi == 0:
            A(f"s_cmp_eq_u32 vcc_lo, 0")
        elif lo == 0:
            A(f"s_and_b32 s{sTm}, vcc_hi, 0x{hi:x}"); A(f"s_cmp_eq_u32 s{sTm}, 0")
        else:
            A(f"s_and_b32 s{sTm}, vcc_hi, 0x{hi:x}"); A(f"s_or_b32 s{sTm}, s{sTm}, vcc_lo"); A(f"s_cmp_eq_u32 s{sTm}, 0")
        A(f"s_cbranch_scc1 {L}_ok")
        repoll(L, va, slp)
        A.label(L + "_ok")
    def cond_poll(cmp, va):
        uid[0] += 1; L = f"M_cp{uid[0]}"
        return cmp + [f"s_cbranch_scc0 {L}", poll_issue(va), L + ":"]
    def emit(ls):
        for l in ls:
            if l.endswith(":"): A.label(l[:-1])
            else: A(l)
    def lack_mask(E):
        poll_eval(E, F_A)
        E(f"""
        s_lshr_b32 s{sTm}, vcc_lo, 16
        s_or_b32 s{sLack}, s{sTm}, vcc_lo
        s_lshr_b32 s{sTm}, s{sLack}, 8
        s_or_b32 s{sLack}, s{sLack}, s{sTm}
        s_and_b32 s{sLack}, s{sLack}, 0xff
        """)
    def stage_gate(ssig):
        uid[0] += 1; L = f"M_sg{uid[0]}"
        A(f"s_bitcmp0_b32 s{sLack}, s{ssig}")
        A(f"s_cbranch_scc1 {L}_ok")
        A(f"s_mov_b32 s{sSpin}, 0")
        A(poll_issue(vPollR)); A("s_waitcnt vmcnt(0)")
        A.label(L)
        lack_mask(A)
        A(f"s_bitcmp0_b32 s{sLack}, s{ssig}")
        A(f"s_cbranch_scc1 {L}_ok")
        repoll(L)
        A.label(L + "_ok")
    A(f"""
    s_cmp_ge_u32 s2, 256
    s_cbranch_scc1 M_end
    """)
    if OPT.get("scramble"):
        A("s_and_b32 s3, s2, 7"); A("s_lshl_b32 s3, s3, 3"); A("s_bfe_u32 s4, s2, 0x30003"); A("s_and_b32 s2, s2, 0xc0")
        A("s_or_b32 s2, s2, s3"); A("s_or_b32 s2, s2, s4")
    if OPT["stamp"]:
        A("s_memrealtime s[100:101]"); A("s_waitcnt lgkmcnt(0)"); A("s_mov_b32 s99, s100"); A("s_mov_b32 s96, 0")
        A("s_memrealtime s[100:101]" if OPT.get("rt") else "s_memtime s[100:101]"); A("s_waitcnt lgkmcnt(0)"); A(f"s_mov_b32 s{SREG[0]}, s100")
    A(f"""
    s_load_dwordx4 s[68:71], s[0:1], 0
    s_load_dwordx4 s[8:11], s[0:1], 32
    s_load_dwordx4 s[12:15], s[0:1], 64
    s_load_dwordx2 s[84:85], s[0:1], 16
    s_load_dwordx2 s[{sSCs}:{sSCs+1}], s[0:1], 48
    s_getpc_b64 s[{sT+2}:{sT+3}]
    s_and_b32 s{sT+2}, s{sT+2}, 0xffffff00
    s_bfe_u32 s{sT}, s2, 0x30003
    s_lshl_b32 s{sT}, s{sT}, 12
    v_lshrrev_b32 v{vT}, 3, v0
    v_lshlrev_b32 v{vT}, 7, v{vT}
    v_add_u32 v{vT}, s{sT}, v{vT}
    global_load_dword v{vDum}, v{vT}, s[{sT+2}:{sT+3}]
    v_lshrrev_b32 v{vT}, 6, v0
    v_and_b32 v0, 63, v0
    v_readfirstlane_b32 s{sW}, v{vT}
    s_and_b32 s{sT}, s2, 7
    s_lshr_b32 s{sT+1}, s2, 3
    s_and_b32 s{sRB}, s{sT+1}, 7
    s_lshr_b32 s{sT+1}, s{sT+1}, 3
    s_lshl_b32 s{sHD}, s{sT}, 2
    s_add_u32 s{sHD}, s{sHD}, s{sT+1}
    v_lshlrev_b32 v{vL16}, 4, v0
    s_lshl_b32 s{sFo}, s{sRB}, 5
    s_add_u32 s{sFo}, s{sFo}, s{sHD}
    """)
    lX, lF, lS, lR, lA = 32, 48, 80, 88, 112
    A(f"""
    v_and_b32 v{lA}, 7, v0
    v_lshrrev_b32 v{lA+1}, 3, v0
    v_lshlrev_b32 v{lA+2}, 11, v{lA}
    v_lshl_add_u32 v{lA+2}, v{lA+1}, 4, v{lA+2}
    s_lshl_b32 s{sT}, s{sFo}, 14
    s_lshl_b32 s{sT+1}, s{sW}, 9
    s_add_u32 s{sT}, s{sT}, s{sT+1}
    v_add_u32 v{lA+2}, s{sT}, v{lA+2}
    s_waitcnt lgkmcnt(0)
    """)
    srd(A, sSX, 68, 69, 0x400000)
    for n in range(4):
        A(f"buffer_load_dwordx4 v[{lX+4*n}:{lX+4*n+3}], v{lA+2}, s[{sSX}:{sSX+3}], 0 offen offset:{128*n}{NT(4)}")
    A(f"v_and_b32 v{lA+6}, 0xfffff800, v{lA+2}")
    A(f"buffer_load_ushort v{lA+7}, v{lA+6}, s[{sSX}:{sSX+3}], 0 offen")
    A("s_mov_b32 s4, s70"); A("s_mov_b32 s5, s71")
    srd(A, sSF, 14, 15, FLG_SIZE, FLG_OFF)
    A(f"s_mov_b32 s{sT}, {EPOCH}")
    A(f"buffer_load_dword v{vPv}, off, s[{sSF}:{sSF+3}], s{sT} sc1")
    A(f"""
    s_lshr_b32 s{sT}, s2, 3
    s_lshl_b32 s{sT}, s{sT}, 2
    s_add_u32 s{sT}, s{sT}, s{sW}
    s_lshl_b32 s{sT}, s{sT}, 1
    s_and_b32 s{sT+1}, s2, 7
    s_mul_i32 s{sT+2}, s{sT}, 7168
    s_mul_i32 s{sT+3}, s{sT+1}, 896
    s_add_u32 s{sT+2}, s{sT+2}, s{sT+3}
    s_mul_i32 s{sT+3}, s{sT}, 6144
    s_lshl_b32 s{sT+1}, s{sT+1}, 8
    s_add_u32 s{sT+3}, s{sT+3}, s{sT+1}
    v_cmp_le_u32 vcc, 7, v0
    v_lshlrev_b32 v{vTg}, 7, v0
    v_mov_b32 v{vT}, {7168-7*128}
    v_cndmask_b32 v{vT}, 0, v{vT}, vcc
    v_add3_u32 v{vTg}, v{vTg}, v{vT}, s{sT+2}
    v_cmp_le_u32 vcc, 14, v0
    v_mov_b32 v{vT}, 0x70000000
    v_lshrrev_b32 v{vT+1}, 1, v0
    v_cndmask_b32 v{vTg}, v{vTg}, v{vT}, vcc
    v_and_b32 v{vTq}, 1, v0
    v_lshlrev_b32 v{vTq}, 7, v{vTq}
    v_lshl_add_u32 v{vTq}, v{vT+1}, 11, v{vTq}
    v_cmp_le_u32 vcc, 12, v0
    v_add_u32 v{vTq}, s{sT+3}, v{vTq}
    s_mov_b32 s{sToq}, 0
    v_cndmask_b32 v{vTq}, v{vTq}, v{vT}, vcc
    s_mov_b32 s{sTog}, 0
    """)
    srd(A, sST[0], 4, 5, 1024 * 6144)
    srd(A, sST[1], 8, 9, 1024 * 7168)
    srd(A, sST[2], 10, 11, 1024 * 7168)
    def touch(s, b=2):
        v = [vTq, vTg, vTg][s]; so = [sToq, sTog, sTog][s]
        return f"buffer_load_dword v{vDum}, v{v}, s[{sST[s]}:{sST[s]+3}], s{so} offen{NT(b)}"
    TROW = 1
    TS = OPT.get("ts", 4)
    onerow = f"""
        s_lshr_b32 s{sTm}, s2, 3
        s_lshl_b32 s{sTm}, s{sTm}, 2
        s_add_u32 s{sTm}, s{sTm}, s{sW}
        s_sub_u32 s{sTm}, ROW0, s{sTm}
        s_mul_i32 s{sToq}, s{sTm}, 6144
        s_mul_i32 s{sTog}, s{sTm}, 7168
        v_mov_b32 v{vT}, 0x70000000
        v_cmp_le_u32 vcc, 7, v0
        s_nop 1
        v_cndmask_b32 v{vTg}, v{vTg}, v{vT}, vcc
        v_cmp_le_u32 vcc, 6, v0
        s_nop 1
        v_cndmask_b32 v{vTq}, v{vTq}, v{vT}, vcc
        """
    tadv = [f"s_add_u32 s{sToq}, s{sToq}, {128*6144}", f"s_add_u32 s{sTog}, s{sTog}, {128*7168}"]
    A(onerow.replace("ROW0", "0"))
    A(f"v_add_u32 v{vTq}, s{sToq}, v{vTq}"); A(f"v_add_u32 v{vTg}, s{sTog}, v{vTg}")
    A(f"s_mov_b32 s{sToq}, 0"); A(f"s_mov_b32 s{sTog}, 0")
    if TS == 3:
        for k in range(3): A(touch(k))
        for l in tadv: A(l)
    NY = 2 + (3 if TS == 3 else 0)
    stamp(A, 1, 2)
    A(f"""
    v_lshrrev_b32 v{lA+8}, 4, v0
    v_bfe_u32 v{lA+9}, v0, 2, 2
    v_lshl_add_u32 v{lA+10}, v{lA+8}, 3, v{lA+9}
    v_mul_u32_u24 v{lA+10}, 6144, v{lA+10}
    v_bfe_u32 v{lA+11}, v0, 1, 1
    v_and_b32 v{lA+12}, 1, v{lA+8}
    v_xor_b32 v{lA+11}, v{lA+11}, v{lA+12}
    v_lshl_add_u32 v{lA+10}, v{lA+11}, 5, v{lA+10}
    v_and_b32 v{lA+11}, 1, v0
    v_lshl_add_u32 v{lA+10}, v{lA+11}, 4, v{lA+10}
    s_mul_i32 s{sT+2}, s{sW}, 5
    s_and_b32 s{sT+3}, s{sHD}, 1
    s_lshl_b32 s{sT+3}, s{sT+3}, 1
    s_mul_i32 s{sT+4}, s{sHD}, 224
    """)
    t3, t4, t5, t6, t7 = lA + 11, lA + 12, lA + 13, lA + 14, lA + 15
    for i in range(5):
        d = sSD[i]
        A(f"""
        s_add_u32 s{sT+5}, s{sT+2}, {i}
        s_cmp_lt_u32 s{sT+5}, 6
        s_cbranch_scc0 M_gu{i}
        s_lshr_b32 s{sT+6}, s{sT+5}, 1
        s_lshl_b32 s{sT+6}, s{sT+6}, 11
        s_and_b32 s{sT+7}, s{sT+5}, 1
        s_mul_i32 s{sT+7}, s{sT+7}, 24576
        s_add_u32 s{sT+6}, s{sT+6}, s{sT+7}
        s_lshl_b32 s{sT+7}, s{sHD}, 6
        s_add_u32 s{sT+6}, s{sT+6}, s{sT+7}
        v_add_u32 v{vD[i]}, s{sT+6}, v{lA+10}
        s_mov_b32 s{d}, s4
        s_mov_b32 s{d+1}, s5
        s_mov_b32 s{d+2}, {1024*6144}
        s_mov_b32 s{sStA if i == 0 else sStB}, {32*6144}
        s_branch M_dn{i}
        """)
        A.label(f"M_gu{i}")
        A(f"""
        s_sub_u32 s{sT+6}, s{sT+5}, 6
        s_sub_u32 s{sT+7}, s{sT+5}, 13
        s_cmp_lt_u32 s{sT+5}, 13
        s_cselect_b32 s{sT+6}, s{sT+6}, s{sT+7}
        s_cselect_b32 s{d}, s8, s10
        s_cselect_b32 s{d+1}, s9, s11
        s_mov_b32 s{d+2}, {1024*7168}
        s_mov_b32 s{sStA if i == 0 else sStB}, {32*7168}
        s_lshl_b32 s{sT+6}, s{sT+6}, 6
        v_add_u32 v{t3}, s{sT+6}, v0
        v_mul_u32_u24 v{t4}, 4682, v{t3}
        v_lshrrev_b32 v{t4}, 16, v{t4}
        v_mul_u32_u24 v{t5}, 14, v{t4}
        v_sub_u32 v{t5}, v{t3}, v{t5}
        v_add_u32 v{t5}, s{sT+3}, v{t5}
        v_subrev_u32 v{t6}, 14, v{t5}
        v_min_u32 v{t5}, v{t5}, v{t6}
        v_bfe_u32 v{t6}, v{t4}, 2, 2
        v_lshrrev_b32 v{t7}, 4, v{t4}
        v_and_b32 v{t4}, 3, v{t4}
        v_lshl_add_u32 v{t4}, v{t6}, 3, v{t4}
        v_lshl_add_u32 v{t4}, v{t7}, 2, v{t4}
        v_mul_u32_u24 v{t4}, 7168, v{t4}
        v_lshl_add_u32 v{t4}, v{t5}, 4, v{t4}
        v_add_u32 v{vD[i]}, s{sT+4}, v{t4}
        """)
        A.label(f"M_dn{i}")
        if OPT.get("lin"):
            A(f"""
            s_add_u32 s{sT+5}, s{sT+2}, {i}
            s_sub_u32 s{sT+6}, s{sT+5}, 6
            s_sub_u32 s{sT+7}, s{sT+5}, 13
            s_cmp_lt_u32 s{sT+5}, 13
            s_cselect_b32 s{sT+6}, s{sT+6}, s{sT+7}
            s_cmp_lt_u32 s{sT+5}, 6
            s_cselect_b32 s{sT+6}, s{sT+5}, s{sT+6}
            s_cselect_b32 s{sT+7}, 6, 7
            s_mul_i32 s{sT+7}, s{sT+7}, s{sHD}
            s_add_u32 s{sT+6}, s{sT+6}, s{sT+7}
            s_lshl_b32 s{sT+6}, s{sT+6}, 10
            v_add_u32 v{vD[i]}, s{sT+6}, v{vL16}
            """)
        A(f"s_mov_b32 s{d+3}, 0x00020000")
    A("s_mov_b32 s8, s{0}".format(sSX)); A("s_mov_b32 s9, s{0}".format(sSX + 1))
    A(f"""
    s_lshr_b32 s{sT}, s{sFo}, 1
    s_lshl_b32 s{sT}, s{sT}, 10
    s_and_b32 s{sT+1}, s{sFo}, 1
    s_lshl_b32 s{sT+1}, s{sT+1}, 7
    s_add_u32 s{sT}, s{sT}, s{sT+1}
    s_lshl_b32 s{sT+1}, s{sW}, 20
    s_add_u32 s{sT}, s{sT}, s{sT+1}
    v_lshrrev_b32 v{lA+3}, 2, v{lA+1}
    v_lshlrev_b32 v{lA+3}, 17, v{lA+3}
    v_and_b32 v{lA+4}, 3, v{lA+1}
    v_lshl_add_u32 v{lA+3}, v{lA+4}, 8, v{lA+3}
    v_lshl_add_u32 v{lA+3}, v{lA}, 4, v{lA+3}
    v_add_u32 v{lA+3}, s{sT}, v{lA+3}
    v_lshlrev_b32 v{lA+5}, 6, v{lA}
    v_add_u32 v{lA+5}, {CSC}, v{lA+5}
    s_lshl_b32 s{sT}, s{sW}, 4
    v_lshl_add_u32 v{lA+4}, v{lA+8}, 2, v{lA+5}
    v_add_u32 v{lA+4}, s{sT}, v{lA+4}
    """)
    srd(A, sSX, 14, 15, 0x400000, XF_OFF)
    A(f"s_lshr_b32 s{sFo}, s2, 3"); A(f"s_mul_i32 s{sFo}, s{sFo}, {LSTR}"); A(f"s_and_b32 s{sT}, s2, 7"); A(f"s_lshl_b32 s{sT}, s{sT}, 4"); A(f"s_add_u32 s{sFo}, s{sFo}, s{sT}")
    def dma(i):
        return [f"s_add_u32 m0, s{sM}, 0x{1024*(i+1):x}",
                f"buffer_load_dwordx4 v{vD[i]}, s[{sSD[i]}:{sSD[i]+3}], s{sWoA if i == 0 else sWoB} offen lds"]
    def xload(s, i):
        return f"buffer_load_dwordx4 {XR(s, i)}, v{vX}, s[{sSX}:{sSX+3}], s{sXo} offen offset:{1024*i} sc1"
    wadv = [f"s_add_u32 s{sM}, s{sM}, s{sSLOT}", f"s_add_u32 s{sWoA}, s{sWoA}, s{sStA}", f"s_add_u32 s{sWoB}, s{sWoB}, s{sStB}"]
    def wgroups(adv):
        L = []
        for i in range(5):
            m, l = dma(i)
            L.append((wadv if (i == 0 and adv) else []) + [m, "s_nop 0", l])
        return L
    def xgroups(t):
        return [[xload(t, i)] + ([f"s_add_u32 s{sXo}, s{sXo}, 0x20000"] if i == 3 else []) for i in range(4)]
    A(f"""
    s_mov_b32 s{sXo}, 0
    s_mul_i32 s{sM0}, s{sW}, 5120
    s_sub_u32 s{sM0}, s{sM0}, 1024
    s_mov_b32 s{sM}, s{sM0}
    s_mov_b32 s{sWoA}, 0
    s_mov_b32 s{sWoB}, 0
    s_mov_b32 s{sSLOT}, {G1_SLOT}
    """)
    B = Asm()
    B(f"""
    s_lshl_b32 s{sT}, s{sRB}, 14
    s_lshl_b32 s{sT+1}, s{sW}, 12
    s_add_u32 s{sT}, s{sT}, s{sT+1}
    v_add_u32 v{vX}, s{sT}, v{vL16}
    s_lshl_b32 s{sT}, s{sRB}, 3
    v_and_b32 v{vPollR}, 7, v0
    v_bfe_u32 v{t3}, v0, 3, 2
    v_lshl_add_u32 v{vPollR}, v{t3}, 6, v{vPollR}
    v_add_u32 v{vPollR}, s{sT}, v{vPollR}
    v_and_b32 v{vT}, 7, v{vPollR}
    v_lshrrev_b32 v{vPollR}, 3, v{vPollR}
    v_mul_u32_u24 v{vPollR}, {LSTR}, v{vPollR}
    v_lshl_add_u32 v{vPollR}, v{vT}, 4, v{vPollR}
    v_lshrrev_b32 v{t3}, 2, v0
    v_and_b32 v{t4}, 3, v0
    v_lshlrev_b32 v{t4}, 3, v{t4}
    v_lshl_add_u32 v{vB0}, v{t3}, 6, v{t4}
    v_and_b32 v{t5}, 1, v{lA+8}
    v_lshl_add_u32 v{vB0}, v{t5}, 5, v{vB0}
    v_xor_b32 v{vB1}, 32, v{vB0}
    v_mul_u32_u24 v{vBG}, 224, v{t3}
    v_add_u32 v{vBG}, v{vBG}, v{t4}
    v_mov_b32 v{vA0}, v{vB0}
    v_mov_b32 v{vA1}, v{vB1}
    v_mov_b32 v{vAG}, v{vBG}
    s_mov_b32 s{sR}, 0
    s_mov_b32 s{sCnt}, 0
    s_mov_b32 s{sREND}, {G1_S*G1_SLOT}
    s_add_u32 s{sMEND}, s{sM0}, s{sREND}
    """)
    B(f"""
    s_lshl_b32 s{sT}, s2, 2
    s_add_u32 s{sT}, s{sT}, s{sW}
    s_lshl_b32 s{sT}, s{sT}, 10
    v_add_u32 v{vCd}, s{sT}, v{vL16}
    v_lshrrev_b32 v{t3}, 3, v0
    v_and_b32 v{t4}, 7, v0
    v_xor_b32 v{t4}, v{t4}, v{t3}
    v_lshlrev_b32 v{t3}, 11, v{t3}
    v_lshl_add_u32 v{vCs}, v{t4}, 4, v{t3}
    s_lshl_b32 s{sT+2}, s{sW}, 14
    s_and_b32 s{sT+3}, s2, 15
    s_lshl_b32 s{sT+3}, s{sT+3}, 7
    s_add_u32 s{sT+2}, s{sT+2}, s{sT+3}
    s_lshr_b32 s{sT+1}, s2, 4
    s_mul_i32 s{sT}, s{sT+1}, 7
    s_add_u32 s{sCl}, s{sT}, 1
    s_lshr_b32 s{sCl}, s{sCl}, 1
    s_lshl_b32 s{sCl}, s{sCl}, 16
    s_add_u32 s{sCl}, s{sCl}, s{sT+2}
    s_add_u32 s{sT}, s{sT}, 3
    s_lshl_b32 s{sT}, s{sT}, 16
    s_add_u32 s{sT}, s{sT}, s{sT+3}
    s_lshl_b32 s{sT+1}, s{sT+1}, 16
    s_add_u32 s{sT+1}, s{sT+1}, s{sT+2}
    s_add_u32 s{sT+2}, s{sT+1}, 0x100000
    s_mov_b32 s{sCs}, 0x{(-2 << 20) & 0xffffffff:x}
    s_mov_b32 s{sSCs+2}, {3584*2048}
    s_mov_b32 s{sSCs+3}, 0x00020000
    """)
    sT6, sT7, sT8 = sT, sT + 1, sT + 2
    for l in lines(B): A(l)
    zero_all = [f"v_accvgpr_write_b32 a{r}, 0" for r in list(range(88)) + list(range(208, 216))]
    zero_all += [f"v_pk_mov_b32 v[{r}:{r+1}], 0, 0" for r in list(range(144, 256, 2)) + list(range(24, 144, 2))]
    ZE, ZM = OPT.get("ze", 0), OPT.get("zm", 212)
    assert ZE <= 152
    for l in zero_all[:ZE]: A(l)
    lW, lRd, lSt = lA + 4, lA + 5, lA + 3
    for n in range(4):
        A(f"s_waitcnt vmcnt({3-n+NY})")
        for q in range(4):
            s = lX + 4 * n + q; d = lF + 8 * n + 2 * q
            A(f"v_lshlrev_b32 v{d}, 16, v{s}")
            A(f"v_and_b32 v{d+1}, 0xffff0000, v{s}")
    stamp(A, 2, 2)
    A(f"s_waitcnt vmcnt({NY - 1})")
    if TS in (1, 3, 4):
        for k in range(3): A(touch(k, 8))
        for l in tadv: A(l)
    lM, lMb, lT, lQ = lS + 4, lS + 6, 104, 108
    A(f"""
    v_lshlrev_b32 v{lA+7}, 16, v{lA+7}
    v_sub_f32 v{lM}, 0, v{lA+7}
    v_mov_b32 v{lM+1}, v{lM}
    """)
    for q in range(0, 16, 2):
        d0 = (lS, lS + 2) if q == 0 else (lT, lT + 2)
        A(f"v_pk_add_f32 v[{d0[0]}:{d0[0]+1}], v[{lF+2*q}:{lF+2*q+1}], v[{lM}:{lM+1}]")
        A(f"v_pk_add_f32 v[{d0[1]}:{d0[1]+1}], v[{lF+2*q+2}:{lF+2*q+3}], v[{lM}:{lM+1}]")
        if q == 0:
            A(f"v_pk_mul_f32 v[{lQ}:{lQ+1}], v[{lS}:{lS+1}], v[{lS}:{lS+1}]")
            A(f"v_pk_mul_f32 v[{lQ+2}:{lQ+3}], v[{lS+2}:{lS+3}], v[{lS+2}:{lS+3}]")
        else:
            A(f"v_pk_fma_f32 v[{lQ}:{lQ+1}], v[{lT}:{lT+1}], v[{lT}:{lT+1}], v[{lQ}:{lQ+1}]")
            A(f"v_pk_fma_f32 v[{lQ+2}:{lQ+3}], v[{lT+2}:{lT+3}], v[{lT+2}:{lT+3}], v[{lQ+2}:{lQ+3}]")
            A(f"v_pk_add_f32 v[{lS}:{lS+1}], v[{lS}:{lS+1}], v[{lT}:{lT+1}]")
            A(f"v_pk_add_f32 v[{lS+2}:{lS+3}], v[{lS+2}:{lS+3}], v[{lT+2}:{lT+3}]")
    r = lR; r2 = 128
    A(f"""
    v_pk_add_f32 v[{lS}:{lS+1}], v[{lS}:{lS+1}], v[{lS+2}:{lS+3}]
    v_pk_add_f32 v[{lQ}:{lQ+1}], v[{lQ}:{lQ+1}], v[{lQ+2}:{lQ+3}]
    v_add_f32 v{lS}, v{lS}, v{lS+1}
    v_add_f32 v{lQ}, v{lQ}, v{lQ+1}
    s_nop 0
    v_add_f32_dpp v{lS}, v{lS}, v{lS} row_ror:8 row_mask:0xf bank_mask:0xf
    v_add_f32_dpp v{lQ}, v{lQ}, v{lQ} row_ror:8 row_mask:0xf bank_mask:0xf
    ds_write_b32 v{lW}, v{lS}
    ds_write_b32 v{lW}, v{lQ} offset:512
    s_waitcnt lgkmcnt(0)
    s_barrier
    """)
    for k in range(4): A(f"ds_read_b128 v[{r+4*k}:{r+4*k+3}], v{lRd} offset:{16*k}")
    for k in range(4): A(f"ds_read_b128 v[{r2+4*k}:{r2+4*k+3}], v{lRd} offset:{512+16*k}")
    for wait, rr in ((4, r), (0, r2)):
        A(f"s_waitcnt lgkmcnt({wait})")
        A(f"""
        v_pk_add_f32 v[{rr}:{rr+1}], v[{rr}:{rr+1}], v[{rr+2}:{rr+3}]
        v_pk_add_f32 v[{rr+4}:{rr+5}], v[{rr+4}:{rr+5}], v[{rr+6}:{rr+7}]
        v_pk_add_f32 v[{rr+8}:{rr+9}], v[{rr+8}:{rr+9}], v[{rr+10}:{rr+11}]
        v_pk_add_f32 v[{rr+12}:{rr+13}], v[{rr+12}:{rr+13}], v[{rr+14}:{rr+15}]
        v_pk_add_f32 v[{rr}:{rr+1}], v[{rr}:{rr+1}], v[{rr+4}:{rr+5}]
        v_pk_add_f32 v[{rr+8}:{rr+9}], v[{rr+8}:{rr+9}], v[{rr+12}:{rr+13}]
        v_pk_add_f32 v[{rr}:{rr+1}], v[{rr}:{rr+1}], v[{rr+8}:{rr+9}]
        v_add_f32 v{rr}, v{rr}, v{rr+1}
        v_mul_f32 v{rr}, 0x{f2u(1.0/1024):x}, v{rr}
        """)
    A(f"""
    v_add_f32 v{lMb}, v{lA+7}, v{lR}
    v_fma_f32 v{lR}, -v{lR}, v{lR}, v{r2}
    v_cvt_pk_bf16_f32 v{lMb}, v{lMb}, v{lMb}
    v_max_f32 v{lR}, 0, v{lR}
    v_lshlrev_b32 v{lMb}, 16, v{lMb}
    """)
    A(f"""
    v_cvt_pk_bf16_f32 v{lR}, v{lR}, v{lR}
    v_lshlrev_b32 v{lR}, 16, v{lR}
    v_add_f32 v{lR}, 0x{f2u(1e-5):x}, v{lR}
    v_cvt_pk_bf16_f32 v{lR}, v{lR}, v{lR}
    v_lshlrev_b32 v{lR}, 16, v{lR}
    v_sqrt_f32 v{lR}, v{lR}
    s_nop 0
    v_cvt_pk_bf16_f32 v{lR}, v{lR}, v{lR}
    v_lshlrev_b32 v{lR}, 16, v{lR}
    v_rcp_f32 v{lR}, v{lR}
    v_sub_f32 v{lM}, 0, v{lMb}
    v_mov_b32 v{lM+1}, v{lM}
    v_mov_b32 v{lR+1}, v{lR}
    s_mov_b32 s{sT+3}, 0
    """)
    for n in range(4):
        for q in range(4):
            d = lF + 8 * n + 2 * q; o = lX + 4 * n + q
            A(f"v_pk_add_f32 v[{d}:{d+1}], v[{d}:{d+1}], v[{lM}:{lM+1}]")
        for q in range(4):
            d = lF + 8 * n + 2 * q; o = lX + 4 * n + q
            A(f"v_cvt_pk_bf16_f32 v{o}, v{d}, v{d+1}")
        for q in range(4):
            d = lF + 8 * n + 2 * q; o = lX + 4 * n + q
            A(f"v_lshlrev_b32 v{d}, 16, v{o}")
            A(f"v_and_b32 v{d+1}, 0xffff0000, v{o}")
        for q in range(4):
            d = lF + 8 * n + 2 * q
            A(f"v_pk_mul_f32 v[{d}:{d+1}], v[{d}:{d+1}], v[{lR}:{lR+1}]")
        for q in range(4):
            d = lF + 8 * n + 2 * q; o = lX + 4 * n + q
            A(f"v_cvt_pk_bf16_f32 v{o}, v{d}, v{d+1}")
        A(f"buffer_store_dwordx4 v[{lX+4*n}:{lX+4*n+3}], v{lSt}, s[{sSX}:{sSX+3}], s{sT+3} offen sc1")
        A(f"s_add_u32 s{sT+3}, s{sT+3}, 0x40000")
    stamp(A, 3, 2)
    srd(A, sSCd, 14, 15, WT_SIZE, WT_OFF)
    B = Asm()
    for l in zero_all[ZE:ZE + ZM]: B(l)
    interleave(A, wgroups(False), lines(B))
    A("s_waitcnt vmcnt(5)")
    A(f"v_readfirstlane_b32 s{sTag}, v{vPv}")
    A("s_barrier")
    A(f"s_mul_i32 s{sTag}, s{sTag}, 0x9e3779b1")
    A(f"s_add_u32 s{sTag}, s{sTag}, 0x7f4a7c15")
    flag_set(F_LN)
    stamp(A, 4, 2)
    if TS == 1:
        for k in range(3): A(touch(k, 16))
        for l in tadv: A(l)
    interleave(A, wgroups(True) + wgroups(True), zero_all[ZE + ZM:])
    A(f"s_cmp_eq_u32 s{sW}, 0"); A("s_cbranch_scc0 M_lng")
    if OPT.get("pre", 0): A(f"s_sleep {OPT['pre']}")
    A(poll_issue(vPollR))
    poll_check(F_LN, MASK_R, 0, None, OPT.get('lnsleep', 1))
    A.label("M_lng")
    A("s_waitcnt vmcnt(0)")
    A("s_barrier")
    sRT, sCT = 68, 69
    A(f"""
    s_and_b32 s{sT+3}, s2, 7
    s_lshr_b32 s{sRT}, s{sT+3}, 1
    s_lshl_b32 s{sRT}, s{sRT}, 2
    s_bfe_u32 s{sT+6}, s2, 0x20003
    s_add_u32 s{sRT}, s{sRT}, s{sT+6}
    s_and_b32 s{sCT}, s{sT+3}, 1
    s_lshl_b32 s{sCT}, s{sCT}, 3
    s_lshr_b32 s{sT+6}, s2, 5
    s_add_u32 s{sCT}, s{sCT}, s{sT+6}
    """)
    stamp(A, 5, 2)
    for g in xgroups(0) + xgroups(1):
        for l in g: A(l)
    if TS == 4:
        for k in range(3): A(touch(k))
        for l in tadv: A(l)
    def copy_op(s):
        if s % 2: return f"buffer_load_dwordx4 v{vT+1 if s == 1 else vCs}, s[{sSCs}:{sSCs+3}], s{sCl} offen{NT(1)} lds"
        return f"buffer_store_dwordx4 {CT(s // 2)}, v{vCd}, s[{sSCd}:{sSCd+3}], s{sCs} offen sc1"
    def wread(f, a, pos, kh=0, lo=False):
        nm = names[f]
        if nm[0] in "qkv":
            p = "qkv".index(nm[0]); j = int(nm[1])
            addr = vA1 if j else vA0; off = 2048 * p + 1024 * a
        else:
            tl = int(nm[1]); addr = vAG
            off = (6144 if nm[0] == 'g' else 13312) + 3584 * a + 32 * tl
        if lo: addr = {vA0: vB0, vA1: vB1, vAG: vBG}[addr]
        return f"ds_read_b64_tr_b16 {WR(pos).sub(2*a, 2)}, v{addr} offset:{off + G1_SLOT * kh}"
    def mfma(f, k, u, p0, rev):
        ti, hf = k // 2, k % 2
        if ti % 2: hf = 1 - hf
        if rev: ti = 3 - ti
        nm = names[f]; d = acc[(nm, ti)]
        x, w = XR(2 * (u % 2) + hf, ti), WR(p0 + hf)
        if nm[0] in "kv": return f"v_mfma_f32_16x16x32_bf16 {d}, {x}, {w}, {d}"
        return f"v_mfma_f32_16x16x32_bf16 {d}, {w}, {x}, {d}"
    LA = 6
    A(f"""
    s_lshr_b32 s{sT+3}, s{sRT}, 1
    s_lshl_b32 s{sT+3}, s{sT+3}, 3
    v_and_b32 v{vT}, 7, v0
    v_bfe_u32 v{vT+1}, v0, 3, 2
    v_lshl_add_u32 v{vT+1}, v{vT+1}, 6, v{vT}
    v_add_u32 v{vPollR}, s{sT+3}, v{vT+1}
    """)
    A(f"""
    s_and_b32 s{sT+3}, s{sW}, 1
    s_lshl_b32 s{sT+3}, s{sT+3}, 2
    s_lshr_b32 s{sT+6}, s{sW}, 1
    s_add_u32 s{sT+3}, s{sT+3}, s{sT+6}
    s_lshl_b32 s{sT+3}, s{sT+3}, 13
    v_and_b32 v{vT}, 0x7ff, v{vCs}
    v_bfe_u32 v{vT+1}, v0, 3, 2
    v_lshl_add_u32 v{vT}, v{vT+1}, 11, v{vT}
    v_lshrrev_b32 v{vT+1}, 5, v0
    v_lshl_add_u32 v{vT}, v{vT+1}, 14, v{vT}
    v_add_u32 v{vT}, s{sT+3}, v{vT}
    s_getpc_b64 s[4:5]
    s_and_b32 s4, s4, 0xffffff80
    s_bfe_u32 s{sT+3}, s2, 0x30003
    s_lshl_b32 s{sT+3}, s{sT+3}, 2
    s_add_u32 s{sT+3}, s{sT+3}, s{sW}
    s_mul_i32 s{sT+3}, s{sT+3}, 1408
    s_add_u32 s{sT+3}, s{sT+3}, 5120
    v_min_u32 v{vPv}, 10, v0
    v_lshlrev_b32 v{vPv}, 7, v{vPv}
    v_add_u32 v{vPv}, s{sT+3}, v{vPv}
    s_lshr_b32 s{sT+3}, s{sW}, 1
    s_lshl_b32 s{sT+3}, s{sT+3}, 2
    v_and_b32 v{vT+1}, 3, v0
    v_or_b32 v{vT+1}, s{sT+3}, v{vT+1}
    v_bfe_u32 v{vPv+1}, v0, 2, 3
    v_xor_b32 v{vT+1}, v{vT+1}, v{vPv+1}
    v_lshrrev_b32 v{vPv+1}, 2, v0
    v_lshlrev_b32 v{vPv+1}, 7, v{vPv+1}
    v_lshl_add_u32 v{vPv+1}, v{vT+1}, 4, v{vPv+1}
    s_and_b32 s{sT+6}, s{sW}, 1
    s_lshl_b32 s{sT+6}, s{sT+6}, 3
    s_add_u32 s{sT+3}, s{sT+6}, {CSC}
    v_add_u32 v{vPv+1}, s{sT+3}, v{vPv+1}
    s_lshl_b32 s10, s{sRT}, 18
    s_lshl_b32 s{sT+3}, s{sW}, 16
    s_add_u32 s10, s10, s{sT+3}
    s_lshl_b32 s{sT+3}, s{sCT}, 7
    s_add_u32 s10, s10, s{sT+3}
    s_sub_u32 s10, s10, {10*16384}
    s_lshl_b32 s11, s{sW}, 12
    s_add_u32 s11, s11, {XL - 10*1024}
    s_lshl_b32 s{sT+3}, s{sW}, 10
    """)
    for n in range(LA):
        for a in range(2): A(wread(n // 2, a, n % 8, n % 2))
    A(f"s_waitcnt vmcnt({3 if TS == 4 else 0})")
    stamp(A, 6, 2); stamp(A, 1, 1)
    madv = [f"s_add_u32 s{sM}, s{sM}, s{sSLOT}", f"s_add_u32 s{sWoA}, s{sWoA}, s{sStA}", f"s_add_u32 s{sWoB}, s{sWoB}, s{sStB}",
            f"s_cmp_eq_u32 s{sM}, s{sMEND}", f"s_cselect_b32 s{sM}, s{sM0}, s{sM}"]
    def Wop(k, i): return dict(tag=f"W{k}", pre=(madv if i == 0 else []) + [dma(i)[0]], ins=dma(i)[1], post=[])
    def Xop(k, i): return dict(tag=f"X{k}", pre=[], ins=xload(k % 4, i), post=[f"s_add_u32 s{sXo}, s{sXo}, 0x20000"] if i == 3 else [])
    def Sop(j): return dict(tag="S", pre=[], ins=copy_op(2 * j), post=[f"s_add_u32 s{sCs}, s{sCs}, 0x100000"])
    sched = {}
    def place(ops, slots):
        assert len(ops) <= len(slots), (len(ops), len(slots))
        for o, sl in zip(ops, slots): sched[sl] = o
    for u in range(2):
        place([Wop(2 * u + 4, i) for i in range(5)], [(u, g) for g in range(35, 40)])
        place([Wop(2 * u + 3, i) for i in range(5)] + [Xop(2 * u + 2, i) for i in range(4)] + [Xop(2 * u + 3, i) for i in range(4)] + [Sop(u)],
              [(u, g) for g in (1, 3, 4, 6, 7, 9, 10, 11, 13, 14, 15, 17, 18, 19)])
    def xsel(base):
        return [f"s_add_u32 m0, s{sT+3}, {base}", f"s_cmp_ge_u32 s{sCnt}, 5", f"s_cselect_b32 m0, s11, m0",
                f"s_cselect_b32 s{sCl}, s10, s{sCl}", "s_add_u32 s10, s10, 16384", "s_add_u32 s11, s11, 1024"]
    cl0 = dict(tag="C", pre=xsel(CSC), ins=copy_op(1), post=[f"s_add_u32 s{sCl}, s{sCl}, {56 << 16}", f"s_cmp_eq_u32 s{sCnt}, 3",
               f"s_cselect_b32 s{sCl}, s{sT7}, s{sCl}", f"s_cselect_b32 s{sSCs}, s84, s{sSCs}", f"s_cselect_b32 s{sSCs+1}, s85, s{sSCs+1}",
               f"s_cselect_b32 s{sSCs+2}, {1024*2048}, s{sSCs+2}", f"s_cmp_eq_u32 s{sCnt}, 4", f"s_cselect_b32 s{sSCs+2}, 0, s{sSCs+2}"])
    cl1 = dict(tag="C", pre=xsel(CSC + 4096), ins=copy_op(3), post=[])
    place([cl0, cl1], [(0, 21), (0, 23)])
    place([dict(tag="T", pre=[], ins=touch(k), post=[]) for k in range(3)] +
          [dict(tag="T", pre=[], ins=f"global_load_dword v{vDum}, v{vPv}, s[4:5]", post=[])], [(1, g) for g in range(21, 25)])
    order = sorted(sched.keys())
    def vm_at(pos, kind, steps):
        seq = [(-1, k) for k in order] + [(0, k) for k in order if k < pos]
        need = [n for n, (tr, k) in enumerate(seq) if sched[k]["tag"][0] == kind and int(sched[k]["tag"][1:]) + 4 * tr in steps]
        return len(seq) - 1 - max(need)
    for k in range(OPT.get("shift1", 0)): A("s_nop 0")
    if OPT.get("al1"): A.raw("    ; @align on")
    A.label("M_loop1")
    for u in range(2):
        for g in range(40):
            f = g // 2
            if g == 34:
                A(f"s_waitcnt vmcnt({vm_at((u, 34), 'W', (2*u+2, 2*u+3))}) lgkmcnt(8)"); A("s_barrier")
                if u == 0:
                    A(f"s_cmp_eq_u32 s{sCnt}, 6"); A("s_cbranch_scc0 M_l1c")
                    flag_set(F_LN | F_WT); A.label("M_l1c")
            elif g == 0:
                A(f"s_waitcnt vmcnt({vm_at((u, 0), 'X', (2*u, 2*u+1))}) lgkmcnt(8)")
            elif g % 2 == 0:
                A("s_waitcnt lgkmcnt(8)")
            ng = (g + LA) % 40
            pre2, mid, post = [], [], []
            if (u, g) in sched:
                o = sched[(u, g)]; pre2, mid, post = o["pre"], [o["ins"]], o["post"]
            elif g == 26: mid = [f"s_add_u32 s{sR}, s{sR}, {2*G1_SLOT}"]; post = [f"s_cmp_eq_u32 s{sR}, s{sREND}", f"s_cselect_b32 s{sR}, 0, s{sR}"]
            elif g == 33:
                mid = [f"v_add_u32 v{vA0}, s{sR}, v{vB0}", f"v_add_u32 v{vA1}, s{sR}, v{vB1}"]
                post = [f"v_add_u32 v{vAG}, s{sR}, v{vBG}"]
            elif u == 0 and g in (2, 5):
                k = 0 if g == 2 else 1
                mid = [f"ds_read_b64_tr_b16 {CT(k).sub(0, 2)}, v{vPv+1} offset:{4096*k}"]
                post = [f"ds_read_b64_tr_b16 {CT(k).sub(2, 2)}, v{vPv+1} offset:{4096*k + 2048}"]
            elif u == 0 and g == 8:
                mid = [f"v_xor_b32 v{vPv+1}, 0x{CSC ^ (CSC + 8192):x}, v{vPv+1}"]; post = [f"s_xor_b32 s{sT+3}, s{sT+3}, 0x2000"]
            elif u == 0 and g == 20:
                mid = [f"s_cmp_eq_u32 s{sCnt}, 3", f"s_cselect_b64 s[{sT+6}:{sT+7}], -1, 0"]
                post = [f"v_cndmask_b32 v{vT+1}, v{vCs}, v{vT}, s[{sT+6}:{sT+7}]"]
            elif u == 1 and g == 27:
                mid = [f"s_sub_u32 s{sCl}, s{sCl}, {55 << 16}"]; post = [f"s_cmp_eq_u32 s{sCnt}, 2", f"s_cselect_b32 s{sCl}, s{sT6}, s{sCl}"]
            elif u == 1 and g == 28:
                mid = [f"s_cmp_eq_u32 s{sCnt}, 3", f"s_cselect_b32 s{sCl}, s{sT8}, s{sCl}"]
                post = [f"s_cmp_eq_u32 s{sCnt}, 4", f"s_cselect_b32 s{sSCs}, s8, s{sSCs}", f"s_cselect_b32 s{sSCs+1}, s9, s{sSCs+1}",
                        f"s_cselect_b32 s{sSCs+2}, 0x400000, s{sSCs+2}"]
            elif u == 1 and g == 29: mid = [tadv[0]]; post = [tadv[1]]
            elif u == 1 and g == 30: mid = [f"s_add_u32 s{sCnt}, s{sCnt}, 1"]
            mm = lambda i: mfma(f, 4 * (g % 2) + i, u, (g - g % 2) % 8, f % 2)
            if OPT.get("c4"):
                def mm(i):
                    ti, kk = g % 4, i
                    if ti % 2: kk = 3 - kk
                    if (g // 4) % 2: ti = 3 - ti
                    d = acc[(names[2 * (g // 4) + u], ti)]
                    return f"v_mfma_f32_16x16x32_bf16 {d}, {WR((g - g % 4 + kk) % 8)}, {XR(kk, ti)}, {d}"
            A(mm(0))
            A(wread(ng // 2, 0, (g + LA) % 8, ng % 2))
            for l in pre2[:3 if len(pre2) > 3 else 0]: A(l)
            A(mm(1))
            A(wread(ng // 2, 1, (g + LA) % 8, ng % 2))
            for l in pre2[3 if len(pre2) > 3 else 0:]: A(l)
            A(mm(2))
            emit(mid)
            A(mm(3))
            for l in post: A(l)
    A(f"s_cmp_lt_u32 s{sCnt}, 7")
    A("s_cbranch_scc1 M_loop1")
    sSH, sSK, sSXi, sSO = 20, 24, 28, 32
    sNL, sPL, sEPS, sCB, sCL = 36, 38, 40, 41, 42
    sAo, sBo = 43, 44
    sSA, sSB = sSH, sSCd
    vA, vBd = [2, 3, 4, 5], 6
    vRh, vXf, vXf2, vXl = 216, 217, 218, 219
    vXO, vKv, vZ, vFw, vZw, vZr, vFr, vLn = 224, 225, 226, 227, 228, 229, 230, 231
    vk0, vk1, vk2 = 11, 12, 22
    NSL = 14
    AR = lambda ch, i: Reg('a', 144 + 8 * (ch % NSL) + 4 * i)
    vAs, vBds, vPollE = [7, 8], 9, 10
    NS = OPT.get('ns', 28)
    def phi_tile(E, src, tmp, dst):
        b = src
        E(f"v_pk_mul_f32 v[{tmp}:{tmp+1}], v[{b}:{b+1}], s[{sPL}:{sPL+1}]")
        E(f"v_pk_mul_f32 v[{tmp+2}:{tmp+3}], v[{b+2}:{b+3}], s[{sPL}:{sPL+1}]")
        for j in range(4): E(f"v_exp_f32_e64 v{tmp+j}, v{tmp+j} clamp")
        for j in range(4): E(f"v_max_f32 v{b+j}, s{sEPS}, v{b+j}")
        E(f"v_pk_add_f32 v[{b}:{b+1}], v[{b}:{b+1}], v[{tmp}:{tmp+1}]")
        E(f"v_pk_add_f32 v[{b+2}:{b+3}], v[{b+2}:{b+3}], v[{tmp+2}:{tmp+3}]")
        E(f"v_cvt_pk_bf16_f32 v{dst}, v{b}, v{b+1}")
        E(f"v_cvt_pk_bf16_f32 v{dst+1}, v{b+2}, v{b+3}")
    def swiglu_tile(E, tl, i, tmp, dst):
        g = acc[(f"g{tl}", i)].base
        ur = acc[(f"u{tl}", i)]
        if ur.kind == 'a':
            u = tmp + 4
            for j in range(4): E(f"v_accvgpr_read_b32 v{u+j}, a{ur.base+j}")
        else:
            u = ur.base
        E(f"v_pk_mul_f32 v[{tmp}:{tmp+1}], v[{g}:{g+1}], s[{sNL}:{sNL+1}]")
        E(f"v_pk_mul_f32 v[{tmp+2}:{tmp+3}], v[{g+2}:{g+3}], s[{sNL}:{sNL+1}]")
        for j in range(4): E(f"v_exp_f32 v{tmp+j}, v{tmp+j}")
        E(f"v_pk_mul_f32 v[{g}:{g+1}], v[{g}:{g+1}], v[{u}:{u+1}]")
        E(f"v_pk_mul_f32 v[{g+2}:{g+3}], v[{g+2}:{g+3}], v[{u+2}:{u+3}]")
        E(f"v_pk_add_f32 v[{tmp}:{tmp+1}], v[{tmp}:{tmp+1}], 1.0 op_sel_hi:[1,0]")
        E(f"v_pk_add_f32 v[{tmp+2}:{tmp+3}], v[{tmp+2}:{tmp+3}], 1.0 op_sel_hi:[1,0]")
        for j in range(4): E(f"v_rcp_f32 v{tmp+j}, v{tmp+j}")
        E(f"v_pk_mul_f32 v[{g}:{g+1}], v[{g}:{g+1}], v[{tmp}:{tmp+1}]")
        E(f"v_pk_mul_f32 v[{g+2}:{g+3}], v[{g+2}:{g+3}], v[{tmp+2}:{tmp+3}]")
        E(f"v_cvt_pk_bf16_f32 v{dst}, v{g}, v{g+1}")
        E(f"v_cvt_pk_bf16_f32 v{dst+1}, v{g+2}, v{g+3}")
    def swiglu_pair(E, p, tmp):
        for i in range(4):
            o = acc[(f"g{2*p}", i)].base
            swiglu_tile(E, 2 * p, i, tmp, o)
            swiglu_tile(E, 2 * p + 1, i, tmp, o + 2)
            E(f"buffer_store_dwordx4 v[{o}:{o+3}], v{vX}, s[{sSH}:{sSH+3}], s{sCB} offen offset:{1024*i} sc1")
        E(f"s_add_u32 s{sCB}, s{sCB}, {32 << 17}")
    S = Asm()
    srd(S, sSH, 14, 15, HF_SIZE, HF_OFF)
    sh_lines = lines(S)
    S = Asm()
    S(f"""
    s_mov_b32 s{sNL}, 0x{f2u(-LOG2E):x}
    s_mov_b32 s{sNL+1}, 0x{f2u(-LOG2E):x}
    s_mov_b32 s{sPL}, 0x{f2u(LOG2E):x}
    s_mov_b32 s{sPL+1}, 0x{f2u(LOG2E):x}
    s_mov_b32 s{sEPS}, 0x{f2u(1e-6):x}
    s_lshl_b32 s{sCB}, s{sHD}, 17
    s_lshr_b32 s{sCL}, s{sHD}, 1
    s_add_u32 s{sCL}, s{sCL}, 96
    s_lshl_b32 s{sCL}, s{sCL}, 17
    s_and_b32 s{sT}, s{sHD}, 1
    s_lshl_b32 s{sT}, s{sT}, 9
    s_add_u32 s{sCL}, s{sCL}, s{sT}
    s_lshl_b32 s{sT}, s{sW}, 4
    s_add_u32 s{sT}, s{sT}, s{sCT}
    s_lshl_b32 s{sT}, s{sT}, 12
    v_add_u32 v{vBd}, s{sT}, v{vL16}
    s_lshl_b32 s{sM0}, s{sW}, 12
    """)
    pre_lines = lines(S)
    tiles = [(0, f) for f in range(11)] + [(1, f) for f in range(4)] + [(0, f) for f in range(11, 20)] + [(1, f) for f in range(4, 20)]
    items = [(u, f, kh) for u, f in tiles for kh in range(2)]
    assert len(items) == 80 and len(set(items)) == 80
    def wreadL(u, f, kh, a, pos):
        return wread(f, a, pos, kh, lo=(u == 1))
    B = Asm(); swiglu_pair(B, 0, 2); e0 = lines(B)
    if OPT.get('noe0'): e0 = []
    def unpack(ls):
        out = []
        for l in ls:
            m = re.match(r"v_pk_(mul|add)_f32 v\[(\d+):\d+\], v\[(\d+):\d+\], (\S+)", l)
            if not m: out.append(l); continue
            op, d, a, b = m.group(1), int(m.group(2)), int(m.group(3)), m.group(4)
            for k in range(2):
                if b.startswith("v["): bb = "v%d" % (int(b[2:].split(":")[0]) + k)
                elif b.startswith("s["): bb = "s%d" % int(b[2:].split(":")[0])
                else: bb = b
                out.append(f"v_{op}_f32 v{d+k}, {bb}, v{a+k}")
        return out
    if OPT.get('unpk', 0) & 1: e0 = unpack(e0)
    E0_AT, E0_N = 31, OPT.get('e0n', 44)
    S = Asm()
    S(f"""
    v_and_b32 v{vT}, 7, v0
    v_and_b32 v{vT+1}, 15, v0
    v_lshlrev_b32 v{vT+1}, 4, v{vT+1}
    v_add_u32 v{vT+1}, s{sCT}, v{vT+1}
    v_bfe_u32 v{vPollW}, v0, 4, 1
    v_xor_b32 v{vT+1}, v{vT+1}, v{vPollW}
    v_cmp_gt_u32 vcc, 32, v0
    s_and_b32 s{sT+3}, s2, 0xc7
    v_lshlrev_b32 v{vT}, 3, v{vT}
    v_cndmask_b32 v{vPollW}, v{vT+1}, v{vPollR}, vcc
    v_add_u32 v{vT}, s{sT+3}, v{vT}
    s_mov_b32 s{sT+3}, 0x70000000
    v_cndmask_b32 v{vPollH}, v{vT}, v{vPollR}, vcc
    v_and_b32 v{vT}, 7, v{vPollR}
    v_lshrrev_b32 v{vPollR}, 3, v{vPollR}
    v_mul_u32_u24 v{vPollR}, {LSTR}, v{vPollR}
    v_lshl_add_u32 v{vPollR}, v{vT}, 4, v{vPollR}
    v_and_b32 v{vT}, 7, v{vPollW}
    v_lshrrev_b32 v{vPollW}, 3, v{vPollW}
    v_mul_u32_u24 v{vPollW}, {LSTR}, v{vPollW}
    v_lshl_add_u32 v{vPollW}, v{vT}, 4, v{vPollW}
    v_and_b32 v{vT}, 7, v{vPollH}
    v_lshrrev_b32 v{vPollH}, 3, v{vPollH}
    v_mul_u32_u24 v{vPollH}, {LSTR}, v{vPollH}
    v_lshl_add_u32 v{vPollH}, v{vT}, 4, v{vPollH}
    """)
    poll_lines = lines(S)
    lops = [Wop(3, i) for i in range(5)] + [Xop(2, i) for i in range(4)] + [Xop(3, i) for i in range(4)]
    misc = pre_lines
    for n, (st, f, kh) in enumerate(items):
        A.comment(f"last trip item {n}: super-step {st} {names[f]}")
        lg = 8 if n + LA < 80 else max(0, 2 * (80 - n - 2))
        if n == 0: A(f"s_waitcnt vmcnt({vm_at((0, 0), 'X', (0, 1))}) lgkmcnt(8)")
        elif n == 16: A(f"s_waitcnt vmcnt(8) lgkmcnt(8)"); A("s_barrier")
        elif n == 22: A(f"s_waitcnt vmcnt(0) lgkmcnt(8)")
        elif n % 2 == 0: A(f"s_waitcnt lgkmcnt({lg})")
        fill = []
        if n < 13:
            o = lops[n]; fill = o["pre"] + ["s_nop 0", o["ins"]] + o["post"]
        elif n == 13: fill = sh_lines
        elif 14 <= n < 22: fill = poll_lines[len(poll_lines) * (n - 14) // 8: len(poll_lines) * (n - 13) // 8]
        elif n == 27: fill = [f"s_cmp_eq_u32 s{sW}, 0\ns_cbranch_scc0 M_npw\n{poll_issue(vPollW)}", "M_npw:"]
        elif 22 <= n < 27: fill = misc[len(misc) * (n - 22) // 5: len(misc) * (n - 21) // 5]
        elif E0_AT <= n < E0_AT + E0_N:
            c = n - E0_AT
            fill = e0[len(e0) * c // E0_N: len(e0) * (c + 1) // E0_N]
        mm = lambda i: mfma(f, 4 * kh + i, st, (n - kh) % 8, (n // 2) % 2)
        h = (len(fill) + 1) // 2 if (n > 13 and n != 27) else len(fill)
        A(mm(0))
        if n + LA < 80: A(wreadL(*items[n + LA], 0, (n + LA) % 8))
        A(mm(1))
        if n + LA < 80: A(wreadL(*items[n + LA], 1, (n + LA) % 8))
        A(mm(2))
        emit(fill[:h])
        A(mm(3))
        emit(fill[h:])
    if OPT.get("al1") and not OPT["align"]: A.raw("    ; @align off")
    stamp(A, 2, 1); stamp(A, 1, 4)
    A(f"""
    s_load_dwordx2 s[80:81], s[0:1], 56
    s_lshl_b32 s{sT}, s{sRT}, 13
    s_lshl_b32 s{sT+3}, s{sW}, 11
    s_add_u32 s{sT}, s{sT}, s{sT+3}
    v_add_u32 v{vA[0]}, s{sT}, v{vL16}
    v_add_u32 v{vA[1]}, 0x20000, v{vA[0]}
    v_add_u32 v{vA[2]}, 0x40000, v{vA[0]}
    v_add_u32 v{vA[3]}, 0x60000, v{vA[0]}
    s_and_b32 s{sT}, s{sCT}, 1
    s_lshl_b32 s{sT+3}, s{sT}, 18
    v_add_u32 v{vAs[0]}, s{sT+3}, v{vA[0]}
    v_add_u32 v{vAs[1]}, s{sT+3}, v{vA[1]}
    s_lshl_b32 s{sT}, s{sT}, 1
    s_lshr_b32 s{sT+3}, s{sW}, 1
    s_add_u32 s{sT}, s{sT}, s{sT+3}
    s_lshl_b32 s{sT}, s{sT}, 4
    s_and_b32 s{sT+3}, s{sW}, 1
    s_xor_b32 s{sT+3}, s{sT+3}, s{sCT}
    s_add_u32 s{sT}, s{sT}, s{sT+3}
    s_lshl_b32 s{sT}, s{sT}, 12
    v_add_u32 v{vBds}, s{sT}, v{vL16}
    s_lshr_b32 s{sT}, s2, 3
    s_lshr_b32 s{sT+3}, s2, 6
    s_add_u32 s{sT}, s{sT}, s{sT+3}
    s_and_b32 s{sT}, s{sT}, 3
    s_lshl_b32 s{sT}, s{sT}, 3
    s_or_b32 s47, s{sT}, 0x80000
    """)
    srd(A, sSK, 14, 15, KVP_SIZE, KVP_OFF)
    FAK = OPT.get("fak", 3)
    if not FAK: A("s_waitcnt vmcnt(0)")
    A(f"s_cmp_eq_u32 s{sW}, 0"); A("s_cbranch_scc0 M_wtc")
    poll_check(F_WT, MASK_U, 4, vPollW)
    A.label("M_wtc")
    A("s_barrier")
    if not FAK: flag_set(F_LN | F_WT | F_A)
    stamp(A, 2, 4)
    tq = acc[("u0", 0)].base
    LA2 = OPT.get("la2", 3); BP = OPT.get("bp", 2); LB = OPT.get("lb", G2_R - 1)
    vm, lg = [], []
    done = {"vm": -1, "lg": -1}
    pmark = {}
    def put(x):
        line, tag = x if isinstance(x, tuple) else (x, None)
        if line.startswith("@"):
            k, t = line[1:].split()
            waitfor(**{k: [t]}); return
        if line == "#flagA":
            A(f"s_waitcnt vmcnt({len(vm)})")
            A("s_barrier")
            flag_set(F_LN | F_WT | F_A); return
        if line == "#excheck":
            A(f"s_mov_b32 s{sSpin}, 0")
            A.label("M_exc")
            poll_eval(A, 1)
            A(f"""
            s_cmp_eq_u32 vcc_lo, 0
            s_cbranch_scc1 M_exc_ok
            {"s_add_u32 s96, s96, 0x10000000" if OPT["stamp"] == 1 else ""}
            s_add_u32 s{sSpin}, s{sSpin}, 1
            s_cmp_ge_u32 s{sSpin}, 0x40000
            s_cbranch_scc1 M_exc_ok
            s_sleep 1
            {expoll}
            s_waitcnt vmcnt(0)
            s_branch M_exc
            """)
            A.label("M_exc_ok"); return
        if line.startswith("#poll"):
            _, c, va = line.split()
            A(f"s_cmp_eq_u32 s{sW}, 0"); A(f"s_cbranch_scc0 M_np{c}"); A(poll_issue(int(va))); A.label(f"M_np{c}")
            pmark[int(c)] = len(vm); return
        if line.endswith(":"): A.label(line[:-1]); return
        A(line)
        if line.startswith("buffer_"): vm.append(tag)
        elif line.startswith("ds_"): lg.append(tag)
    def waitfor(vm=(), lg=(), _vm=vm, _lg=lg):
        parts = []
        for name, lst, tags, cap in (("vm", _vm, vm, 63), ("lg", _lg, lg, 15)):
            idx = [i for i, t in enumerate(lst) if t in tags]
            assert len(idx) >= 1 or not tags, tags
            if idx and max(idx) > done[name]:
                n = min(len(lst) - 1 - max(idx), cap)
                done[name] = len(lst) - 1 - n
                parts.append(f"{'vmcnt' if name == 'vm' else 'lgkmcnt'}({n})")
        if parts: A("s_waitcnt " + " ".join(parts))
    LEAD = OPT.get("lead", 0)
    sCls = 47
    def perm(r):
        o = list(range(36))
        for lo, hi in ((0, 8), (8, 16), (16, 28), (28, 36)):
            for st in range(lo + LEAD, hi):
                if st % 4 == r and LEAD:
                    o[st - LEAD: st + 1] = [st] + list(range(st - LEAD, st))
        return o
    P = [perm(r) for r in range(4)]
    for r in range(4): assert sorted(P[r]) == list(range(36))
    def soff(dst, m, sh):
        v = [P[r][m] for r in range(4)]
        if OPT.get("same"): v = [m % OPT["same"]] * 4
        if len(set(v)) == 1: return [f"s_mov_b32 s{dst}, 0x{v[0] << sh:x}"]
        lit = sum(x << (8 * r) for r, x in enumerate(v))
        return [f"s_bfe_u32 s{dst}, 0x{lit:x}, s{sCls}", f"s_lshl_b32 s{dst}, s{dst}, {sh}"]
    def bop(m, b):
        pre = soff(sBo, m, 18) + [ f"s_add_u32 m0, s{sM0}, 0x{(m % G2_R) * G2_SLOT:x}", "s_nop 0"] if b == 0 else []
        return pre + [(f"buffer_load_dwordx4 v{vBds if m < NS else vBd}, s[{sSB}:{sSB+3}], s{sBo} offen offset:{1024*b} sc1 lds", f"B{m}")]
    nq = lambda m: 2 if m < NS else 4
    ch0 = [sum(nq(k) for k in range(m)) for m in range(37)]
    aq = [(m, q, i) for m in range(36) for q in range(nq(m)) for i in range(2)]
    def aop(m, q, i):
        pre = soff(sAo, m, 19) if (q == 0 and i == 0) else []
        va = vAs[q] if m < NS else vA[q]
        return pre + [(f"buffer_load_dwordx4 {AR(ch0[m] + q, i)}, v{va}, s[{sSA}:{sSA+3}], s{sAo} offen offset:{1024*i} sc1", f"A{m}q{q}")]
    LAC = OPT.get("lac", 8)
    LACS = OPT.get("lacs", 6)
    NPRE = OPT.get("npre", 6)
    asched = {}; first_at = {}
    k = 2 * NPRE
    for c in range(16 * 36):
        n, F = c // 16, c % 16
        cur = ch0[n] + F * nq(n) // 16
        if F % 4 < 2 and k < len(aq):
            m, q, i = aq[k]
            if ch0[m] + q - cur <= (LACS if m < NS else LAC):
                asched[c] = aq[k]; first_at.setdefault(m, c); k += 1
    assert k == len(aq)
    M1 = OPT.get("m1", 99)
    db = lambda m: LB if m < M1 else max(OPT.get("dmin", 3), LB - 1 - (m - M1) // OPT.get("mstep", 3))
    bsched = {}
    k = 4 * (LB - 1) + 2
    for c in range(16 * 36):
        if c % 4 == 3 and k < 4 * 36:
            m = k // 4
            nb = m - min(db(m), G2_R - 1)
            nb = -(-nb // BP) * BP
            if c >= 16 * nb + 11:
                bsched[c] = (m, k % 4); k += 1
    assert k == 4 * 36
    def check_pos(c):
        n = c // 16 if c % 16 >= 10 else c // 16 - 1
        return 16 * n + 9
    def tagged(ls, tag): return [(l, tag) if l.startswith(("buffer_", "ds_")) else l for l in ls]
    def mix(G, work):
        n = len(G)
        for c, grp in enumerate(G):
            for x in grp: put(x)
            for x in work[len(work) * c // n: len(work) * (c + 1) // n]: put(x)
    B = Asm(); swiglu_pair(B, 1, tq)
    w1 = tagged(lines(B), "h1")
    Gall = [bop(m, b) for m in range(LB) for b in range(4 if m < LB - 1 else 2)]
    NB0 = OPT.get("nb0", len(Gall)); NW0 = len(w1) * OPT.get("w0", 100) // 100
    G, Grest = Gall[:NB0], Gall[NB0:]
    G.insert(len(G) - OPT.get("gp", 3), [f"#poll 0 {vPollR}"])
    if FAK: G.insert(FAK, ["#flagA"])
    mix(G, w1[:NW0])
    stamp(A, 3, 4)
    A("s_waitcnt lgkmcnt(0)")
    srd(A, sSO, 80, 81, 0x400000)
    A(f"s_cmp_eq_u32 s{sW}, 0"); A("s_cbranch_scc0 M_gate")
    poll_check(F_A, MASK_R, len(vm) - pmark[0], None, 2)
    A.label("M_gate")
    waitfor(vm=["B0"])
    A("s_barrier")
    stamp(A, 3, 1); stamp(A, 4, 4)
    ACCF, ACCP, ACCS = 88, 120, 24
    BR = lambda p: Reg('a', 112 + 4 * p)
    t0 = tq + 12
    B = Asm()
    for r in range(ACCF, ACCF + 64, 2): B(f"v_pk_mov_b32 v[{r}:{r+1}], 0, 0")
    kb = acc[("k0", 0)].base; vb = acc[("v0", 0)].base
    zl = lines(B)
    B = Asm()
    for dt in range(2):
        for i in range(4):
            phi_tile(B, kb + 16 * dt + 4 * i, tq, kb + 16 * dt + 8 * (i // 2) + 2 * (i % 2))
    pk = lines(B); NK1 = len(pk) * OPT.get("k1", 100) // 100
    mix([aop(*aq[k]) for k in range(2 * NPRE)] + Grest, w1[NW0:] + ["s_nop 1"] + zl + pk[:NK1])
    fill = {}
    def spread(ls, c0, c1):
        n = c1 - c0
        for c in range(n):
            fill.setdefault(c0 + c, []).extend(ls[len(ls) * c // n: len(ls) * (c + 1) // n])
    vONE = tq + 8
    B = Asm()
    B(f"v_add_u32 v{vRh}, 0x10000, v{vL16}")
    for j in range(4): B(f"v_mov_b32 v{vONE+j}, 0x3f803f80")
    for et in range(2):
        for i in range(4):
            src = vb + 16 * et + 4 * i
            dst = vb + 16 * et + 8 * (i // 2) + 2 * (i % 2)
            B(f"v_cvt_pk_bf16_f32 v{dst}, v{src}, v{src+1}")
            B(f"v_cvt_pk_bf16_f32 v{dst+1}, v{src+2}, v{src+3}")
    B(f"""
    s_mul_i32 s{sT}, s{sW}, 6144
    s_add_u32 s{sT}, s{sT}, {KVL}
    v_add_u32 v{vk0}, s{sT}, v{vL16}
    s_lshl_b32 s{sT}, s{sW}, 10
    """)
    for u in range(2):
        for dt in range(2):
            for et in range(3):
                a = kb + 16 * dt + 8 * u
                b = vb + 16 * et + 8 * u if et < 2 else vONE
                p = PT(dt * 3 + et)
                B(f"v_mfma_f32_16x16x32_bf16 {p}, v[{a}:{a+3}], v[{b}:{b+3}], {'0' if u == 0 else p}")
    B(f"""
    s_add_u32 s{sT+1}, s{sT}, {KVL}
    v_add_u32 v{vk1}, s{sT+1}, v{vL16}
    s_lshl_b32 s{sT+1}, s{sHD}, 3
    s_add_u32 s{sT+1}, s{sT+1}, s{sRB}
    s_mul_i32 s{sT+1}, s{sT+1}, 6144
    v_add_u32 v{vk2}, s{sT}, v{vL16}
    s_add_u32 s{sT+2}, s{sT+1}, 4096
    """)
    ls = pk[NK1:] + lines(B) + [f"s_cmp_lt_u32 s{sW}, 2\ns_cselect_b32 s{sT+2}, s{sT+2}, 0x70000000"]
    ls += [(f"ds_write_b128 v{vk0}, {PT(t)} offset:{1024*t}", "kvw") for t in range(6)]
    spread(ls, 0, 16 + 6)
    barrier_lg = {1: ["kvw"]}
    tb = kb
    def sum4(E, b):
        E(f"v_pk_add_f32 v[{b}:{b+1}], v[{b}:{b+1}], v[{b+4}:{b+5}]")
        E(f"v_pk_add_f32 v[{b+2}:{b+3}], v[{b+2}:{b+3}], v[{b+6}:{b+7}]")
        E(f"v_pk_add_f32 v[{b+8}:{b+9}], v[{b+8}:{b+9}], v[{b+12}:{b+13}]")
        E(f"v_pk_add_f32 v[{b+10}:{b+11}], v[{b+10}:{b+11}], v[{b+14}:{b+15}]")
        E(f"v_pk_add_f32 v[{b}:{b+1}], v[{b}:{b+1}], v[{b+8}:{b+9}]")
        E(f"v_pk_add_f32 v[{b+2}:{b+3}], v[{b+2}:{b+3}], v[{b+10}:{b+11}]")
    ls = [(f"ds_read_b128 v[{tb+4*sw}:{tb+4*sw+3}], v{vk1} offset:{6144*sw}", "kvr") for sw in range(4)]
    ls += [(f"ds_read_b128 v[{tb+16+4*sw}:{tb+16+4*sw+3}], v{vk1} offset:{6144*sw+4096}", "kvr") for sw in range(4)]
    spread(ls, 16 + 10, 32 + 2)
    B = Asm()
    sum4(B, tb)
    B(f"buffer_store_dwordx4 v[{tb}:{tb+3}], v{vk2}, s[{sSK}:{sSK+3}], s{sT+1} offen sc1")
    sum4(B, tb + 16)
    B(f"buffer_store_dwordx4 v[{tb+16}:{tb+19}], v{vk2}, s[{sSK}:{sSK+3}], s{sT+2} offen sc1")
    spread(["@lg kvr"] + tagged(lines(B), "kvs"), 32 + 6, 32 + 12)
    B = Asm(); swiglu_pair(B, 2, tq)
    spread(tagged(lines(B), "h2"), 16 * 2 + 12, 16 * 5 + 8)
    B = Asm()
    B(f"""
    v_and_b32 v{t0}, 15, v0
    v_lshlrev_b32 v{t0+2}, 4, v{t0}
    v_bfe_u32 v{t0+1}, v0, 4, 1
    v_lshl_add_u32 v{t0+2}, v{t0+1}, 10, v{t0+2}
    v_lshrrev_b32 v{t0+1}, 5, v0
    v_lshl_add_u32 v{t0+2}, v{t0+1}, 8, v{t0+2}
    v_sub_u32 v{vLn}, v{vX}, v{vL16}
    v_add_u32 v{vLn}, v{vLn}, v{t0+2}
    v_lshrrev_b32 v{t0+1}, 4, v0
    v_and_b32 v{t0+2}, 7, v0
    v_xor_b32 v{t0+1}, v{t0+1}, v{t0+2}
    v_lshlrev_b32 v{t0+1}, 4, v{t0+1}
    v_lshl_add_u32 v{vXf}, v{t0}, 7, v{t0+1}
    v_lshrrev_b32 v{t0}, 3, v0
    v_xor_b32 v{t0+2}, v{t0+2}, v{t0}
    v_lshlrev_b32 v{t0}, 11, v{t0}
    v_lshl_add_u32 v{vXO}, v{t0+2}, 4, v{t0}
    s_lshl_b32 s{sT}, s{sRT}, 18
    s_lshl_b32 s{sT+3}, s{sW}, 16
    s_add_u32 s{sT}, s{sT}, s{sT+3}
    s_lshl_b32 s{sT+3}, s{sCT}, 7
    s_add_u32 s{sT}, s{sT}, s{sT+3}
    v_add_u32 v{vXO}, s{sT}, v{vXO}
    s_add_u32 s{sT}, s{sM0}, {XL}
    v_add_u32 v{vXf}, s{sT}, v{vXf}
    v_xor_b32 v{vXf2}, 64, v{vXf}
    v_add_u32 v{vXl}, s{sT}, v{vL16}
    s_lshr_b32 s{sT}, s{sW}, 1
    s_add_u32 s{sT}, s{sT}, s{sW}
    s_lshl_b32 s{sT}, s{sT}, 10
    s_mul_i32 s{sT+3}, s{sHD}, 49152
    s_add_u32 s{sT}, s{sT}, s{sT+3}
    v_add_u32 v{vKv}, s{sT}, v{vL16}
    v_and_b32 v{t0}, 7, v0
    v_mul_u32_u24 v{vZ}, 6144, v{t0}
    v_bfe_u32 v{t0}, v0, 3, 2
    v_lshl_add_u32 v{vZ}, v{t0}, 8, v{vZ}
    v_lshrrev_b32 v{t0}, 5, v0
    v_mul_u32_u24 v{t0}, 3072, v{t0}
    v_add3_u32 v{vZ}, v{vZ}, v{t0}, s{sT+3}
    s_and_b32 s{sT}, s{sW}, 1
    s_lshl_b32 s{sT}, s{sT}, 10
    s_lshr_b32 s{sT+3}, s{sW}, 1
    s_lshl_b32 s{sT+3}, s{sT+3}, 3
    s_add_u32 s{sT}, s{sT}, s{sT+3}
    s_add_u32 s{sT}, s{sT}, {FIN}
    v_add_u32 v{vFw}, s{sT}, v{vL16}
    v_bfe_u32 v{t0}, v0, 3, 2
    v_lshlrev_b32 v{t0}, 4, v{t0}
    v_lshrrev_b32 v{t0+1}, 5, v0
    v_lshl_add_u32 v{t0}, v{t0+1}, 3, v{t0}
    v_add_u32 v{vZw}, {FIN+2048}, v{t0}
    v_and_b32 v{t0}, 48, v0
    v_add_u32 v{vZr}, {FIN+2048}, v{t0}
    v_add_u32 v{vFr}, {FIN}, v{vL16}
    """)
    spread(lines(B)[:8], 16 * 1 + 6, 16 * 1 + 12)
    spread([f"v_and_b32 v{t0}, 15, v0"] + lines(B)[8:], 16 * 8, 16 * 10)
    B = Asm()
    for i in (0, 2):
        o = acc[("g6", i)].base
        swiglu_tile(B, 6, i, tq, o)
        swiglu_tile(B, 6, i + 1, tq, o + 2)
        B("s_nop 1")
        B(f"v_permlane16_swap_b32 v{o}, v{o+2}")
        B(f"v_permlane16_swap_b32 v{o+1}, v{o+3}")
        B(f"buffer_store_dwordx4 v[{o}:{o+3}], v{vLn}, s[{sSH}:{sSH+3}], s{sCL} offen offset:{1024*i} sc1")
    spread(tagged(lines(B), "h3"), 16 * 5 + 8, 16 * 7)
    pqb = 240
    B = Asm()
    for i in range(4):
        for dt in range(2):
            qa = acc[(f"q{dt}", i)].base
            for j in range(4): B(f"v_accvgpr_read_b32 v{tq+j}, a{qa+j}")
            phi_tile(B, tq, tq + 4, pqb + 4 * i + 2 * dt)
    spread(lines(B), 16 * 10, 16 * 15)
    kvb, zb, fr, ob = 24, 56, 60, 152
    GB = check_pos(first_at[16]) // 16
    extra = {}
    for r in range(8):
        extra[16 * GB + 12 + 4 * r] = [f"s_mov_b32 s{sT+1}, {6144*r}", (f"buffer_load_dwordx4 v[{kvb+4*r}:{kvb+4*r+3}], v{vKv}, s[{sSK}:{sSK+3}], s{sT+1} offen sc1", "kvg")]
    extra[16 * (GB + 2) + 14] = [(f"buffer_load_dwordx4 v[{zb}:{zb+3}], v{vZ}, s[{sSK}:{sSK+3}], 0 offen offset:2048 sc1", "kvg")]
    B = Asm()
    for st in (16, 8, 4):
        for r in range(0, st, 2):
            B(f"v_pk_add_f32 v[{kvb+r}:{kvb+r+1}], v[{kvb+r}:{kvb+r+1}], v[{kvb+st+r}:{kvb+st+r+1}]")
    for dpp in ("quad_perm:[1,0,3,2]", "quad_perm:[2,3,0,1]", "row_half_mirror"):
        for j in range(4):
            B(f"v_add_f32_dpp v{zb+j}, v{zb+j}, v{zb+j} {dpp} row_mask:0xf bank_mask:0xf")
    B(f"""
    v_cvt_pk_bf16_f32 v{kvb}, v{kvb}, v{kvb+1}
    v_cvt_pk_bf16_f32 v{kvb+1}, v{kvb+2}, v{kvb+3}
    v_cvt_pk_bf16_f32 v{zb}, v{zb}, v{zb+1}
    v_cvt_pk_bf16_f32 v{zb+1}, v{zb+2}, v{zb+3}
    ds_write_b64 v{vFw}, v[{kvb}:{kvb+1}]
    ds_write_b64 v{vZw}, v[{zb}:{zb+1}]
    """)
    spread(["@vm kvg"] + tagged(lines(B), "fw"), 16 * (GB + 4), 16 * (GB + 4) + 7)
    barrier_lg[GB + 4] = ["fw"]
    spread([(f"ds_read_b128 v[{fr}:{fr+3}], v{vFr}", "frr"), (f"ds_read_b128 v[{fr+4}:{fr+7}], v{vFr} offset:1024", "frr"),
            (f"ds_read_b128 v[{fr+8}:{fr+11}], v{vZr}", "frr")], 16 * (GB + 4) + 10, 16 * (GB + 4) + 13)
    B = Asm()
    B(f"s_add_u32 s{sT}, s{sHD}, 112")
    B(f"s_lshl_b32 s{sT}, s{sT}, 17")
    for i in range(4):
        for et in (2, 0, 1):
            d = ob + 12 * i + 4 * et
            B(f"v_mfma_f32_16x16x32_bf16 v[{d}:{d+3}], v[{fr+4*et}:{fr+4*et+3}], v[{pqb+4*i}:{pqb+4*i+3}], 0")
    for i in range(4): B(f"v_add_f32 v{ob+12*i+8}, s{sEPS}, v{ob+12*i+8}")
    for i in range(4): B(f"v_rcp_f32 v{ob+12*i+8}, v{ob+12*i+8}")
    for i in range(4):
        d = ob + 12 * i
        for q in range(4):
            B(f"v_pk_mul_f32 v[{d+2*q}:{d+2*q+1}], v[{d+2*q}:{d+2*q+1}], v[{d+8}:{d+9}] op_sel_hi:[1,0]")
        for q in range(4):
            B(f"v_cvt_pk_bf16_f32 v{d+q}, v{d+2*q}, v{d+2*q+1}")
        B(f"buffer_store_dwordx4 v[{d}:{d+3}], v{vX}, s[{sSH}:{sSH+3}], s{sT} offen offset:{1024*i} sc1")
    spread(["@lg frr"] + tagged(lines(B), "os"), 16 * (GB + 5) + 2, 16 * (GB + 5) + OPT.get("ow", 32))
    spread([f"v_pk_mov_b32 v[{r}:{r+1}], 0, 0" for r in range(ACCS, ACCS + 32, 2)], 16 * 22, 16 * 23)
    sSE = 16
    S = Asm(); srd(S, sSE, 14, 15, EX_SIZE, EX_OFF)
    ls = ["\n".join(lines(S)),
          f"s_lshl_b32 s{sT+1}, s2, 2", f"s_add_u32 s{sT+1}, s{sT+1}, s{sW}", f"s_lshl_b32 s{sT+1}, s{sT+1}, 13",
          f"s_add_u32 s{sT+2}, s{sT+1}, 4096"]
    assert LSTR & (LSTR - 1) == 0
    spread(ls, 16 * (NS - 1), 16 * NS)
    XB = OPT.get("xbf", 1)
    NX = 4 if XB else 8
    if XB:
        ls = []
        for k in range(4):
            for q in range(4): ls.append(f"v_cvt_pk_bf16_f32 v{ACCP+4*k+q}, v{ACCP+8*k+2*q}, v{ACCP+8*k+2*q+1}")
            ls.append((f"buffer_store_dwordx4 v[{ACCP+4*k}:{ACCP+4*k+3}], v{vL16}, s[{sSE}:{sSE+3}], s{sT+1} offen offset:{1024*k} sc1", "ex"))
        spread(ls, 16 * NS + 2, 16 * NS + OPT.get("exs", 14))
    else:
        for k in range(8):
            extra.setdefault(16 * NS + 2 + 4 * k, []).append(
                (f"buffer_store_dwordx4 v[{ACCP+4*k}:{ACCP+4*k+3}], v{vL16}, s[{sSE}:{sSE+3}], s{sT+1+k//4} offen offset:{1024*(k%4)} sc1", "ex"))
    assert XB
    EXG = 16 * NS + OPT.get("exg", 38)
    EXP = EXG + OPT.get("exp", 16)
    EXL = EXP + OPT.get("exc", 16)
    extra.setdefault(EXG, []).extend(["@vm ex", f"v_mov_b32 v{vT}, s{sTag}", f"v_mov_b32 v{vT+1}, 1", "s_mov_b64 exec, 1",
        (f"buffer_store_dwordx2 v[{vT}:{vT+1}], off, s[{sSE}:{sSE+3}], s{sT+2} sc1", "exf"), "s_mov_b64 exec, -1",
        f"s_xor_b32 s{sT+1}, s{sT+1}, {32 << 15}", f"s_xor_b32 s{sT+2}, s{sT+2}, {32 << 15}"])
    expoll = f"buffer_load_dwordx2 v[{vPv}:{vPv+1}], off, s[{sSE}:{sSE+3}], s{sT+2} sc1"
    extra.setdefault(EXP, []).append((expoll, "exp"))
    extra.setdefault(EXL, []).extend(["@vm exp", "#excheck"])
    for k in range(NX):
        extra.setdefault(EXL + 2 * k, []).append(
            (f"buffer_load_dwordx4 v[{ACCP+4*k}:{ACCP+4*k+3}], v{vL16}, s[{sSE}:{sSE+3}], s{sT+1+k//4} offen offset:{1024*(k%4)} sc1", "exl"))
    vXD, tb = 72, 152
    sX0 = 45
    xb0 = 184
    B = Asm()
    if XB:
        for r in range(16):
            B(f"v_lshlrev_b32 v{tb+2*r}, 16, v{ACCP+r}")
            B(f"v_and_b32 v{tb+2*r+1}, 0xffff0000, v{ACCP+r}")
    for r in range(0, 32, 2): B(f"v_pk_add_f32 v[{ACCF+r}:{ACCF+r+1}], v[{ACCF+r}:{ACCF+r+1}], v[{(tb if XB else ACCP)+r}:{(tb if XB else ACCP)+r+1}]")
    for r in range(0, 32, 2): B(f"v_pk_mul_f32 v[{tb+r}:{tb+r+1}], v[{ACCF+r}:{ACCF+r+1}], s[{sNL}:{sNL+1}]")
    for r in range(32): B(f"v_exp_f32 v{tb+r}, v{tb+r}")
    for r in range(0, 32, 2): B(f"v_pk_add_f32 v[{tb+r}:{tb+r+1}], v[{tb+r}:{tb+r+1}], 1.0 op_sel_hi:[1,0]")
    for r in range(32): B(f"v_rcp_f32 v{tb+r}, v{tb+r}")
    for r in range(0, 32, 2): B(f"v_pk_mul_f32 v[{ACCF+r}:{ACCF+r+1}], v[{ACCF+r}:{ACCF+r+1}], v[{tb+r}:{tb+r+1}]")
    S0 = max(EXL + OPT.get("exw", 22), 16 * 28 + 2)
    spread(["@vm exl"] + lines(B), S0, min(S0 + 56, 16 * 36 - 2))
    spread([(f"ds_read_b128 v[{vXD+4*k}:{vXD+4*k+3}], v{vXf2 if k % 2 else vXf} offset:{2048*(k//2)}", "xr") for k in range(4)], 16 * 23, 16 * 23 + 5)
    ls = ["@lg xr"]
    for k in range(4):
        for q in range(4):
            ls.append(f"v_lshlrev_b32 v{xb0+8*k+2*q}, 16, v{vXD+4*k+q}")
            ls.append(f"v_and_b32 v{xb0+8*k+2*q+1}, 0xffff0000, v{vXD+4*k+q}")
    spread(ls, 16 * 24, 16 * 26)
    base = F_LN | F_WT | F_A
    FB, FL, FC = OPT.get("fb", 6), OPT.get("fl", 8), GB + OPT.get("fc", 8)
    F_L = F_E
    flags = {OPT.get("fa2", 0): (base | F_A2, ["h1"]), FB: (base | F_A2 | F_B, ["kvs", "h2"]), FL: (base | F_A2 | F_B | F_L, ["h3"]),
             FC: (base | F_A2 | F_B | F_L | F_C, ["os"])}
    checks = {check_pos(first_at[8]): (F_A2, MASK_R, vPollR), check_pos(first_at[16]): (F_B, MASK_R | MASK_U, vPollH),
              check_pos(first_at[24]): (F_L, MASK_R, vPollR if OPT.get('lp', 0) else None), check_pos(first_at[28]): (F_C, MASK_R, vPollR)}
    print("checks at", sorted((c // 16, c % 16) for c in checks), file=sys.stderr)
    Y = OPT.get("y", 0)
    if Y & 1: checks = {k: v for k, v in checks.items() if v[0] == F_C}
    if Y & 2: flags = {k: v for k, v in flags.items() if k == 19}
    if Y & 4:
        for k in list(extra):
            if any(isinstance(x, tuple) and x[1] == "kvg" for x in extra[k]) and k != 16 * 14 + 14: del extra[k]
    if Y & 8:
        for k in list(extra):
            extra[k] = [x for x in extra[k] if not ((isinstance(x, tuple) and x[1] in ("exl", "exp", "exf")) or x in ("@vm ex", "@vm exp", "#excheck"))]
        for k in fill: fill[k] = [x for x in fill[k] if not ((isinstance(x, tuple) and x[1] == "ex") or x == "@vm exl")]
    if Y & 16:
        for k in fill: fill[k] = [x for x in fill[k] if isinstance(x, tuple) or not x.startswith(("v_exp", "v_rcp"))]
    for c, (bit, mask, va) in checks.items():
        pc = c - OPT.get("pdist", 19)
        if va is not None: extra.setdefault(pc, []).append(f"#poll {c} {va}")
    if OPT.get("unpk", 0) & 2:
        for k in fill:
            out = []
            for x in fill[k]:
                if isinstance(x, str) and x.startswith("v_pk_") and "op_sel_hi:[1,0]" not in x.replace("1.0 op_sel_hi:[1,0]", "") and not x.startswith(("v_pk_mov", "v_pk_fma")):
                    out += unpack([x])
                else: out.append(x)
            fill[k] = out
    CH2 = OPT.get("ch2", 0)
    def fmap(n, F):
        if not CH2: return (F * nq(n) // 16, F // 4, F % 4)
        hi, j, e = F >> 3, (F >> 1) & 3, F & 1
        if n < NS: return (e, 2 * e + hi, j)
        return (2 * hi + e, 2 * hi + e, j)
    def bread(n, F):
        sl = n % G2_R
        q, ss, j = fmap(n, F)
        return (f"ds_read_b128 {BR(F % 8)}, v{vRh if sl >= 4 else vL16} offset:{(sl % 4) * G2_SLOT + 4096*ss + 1024*j}", f"b{n}_{F}")
    for k in range(OPT.get("shift", 0)): A("s_nop 0")
    if OPT.get("al2"): A.raw("    ; @align on")
    for F in range(LA): put(bread(0, F))
    stamp(A, 5, 1); stamp(A, 1, 3); stamp(A, 5, 4)
    for n in range(36):
        for F in range(16):
            q, ss, j = fmap(n, F)
            accb = ACCS if n >= 28 else (ACCP if (n < NS and ss & 1) else ACCF)
            c = 16 * n + F
            wv, wl = [], []
            if F % 2 == 0: wl = [f"b{n}_{F}", f"b{n}_{F+1}"]
            if not CH2 and j == 0: wv = [f"A{n}q{q}"]
            if CH2 and F % 8 == 0: wv = [f"A{n}q{q}", f"A{n}q{q+1}"]
            bar = F == 10 and n < 35 and (n % BP == 0 or n in barrier_lg or n in flags or 16 * n + 9 in checks)
            if bar:
                if n % BP == 0: wv += [f"B{m}" for m in range(n + 1, min(n + BP, 35) + 1)]
                wv += flags[n][1] if n in flags else []
                wl += barrier_lg.get(n, [])
            waitfor(vm=wv, lg=wl)
            if bar:
                A("s_barrier")
                if n in flags: flag_set(flags[n][0])
            order = (0, 1) if (F % 2 == 0 or not OPT.get("snake")) else (1, 0)
            m = lambda i: f"v_mfma_f32_16x16x32_bf16 v[{accb+16*i+4*j}:{accb+16*i+4*j+3}], {BR(F % 8)}, {AR(ch0[n] + q, i)}, v[{accb+16*i+4*j}:{accb+16*i+4*j+3}]"
            if CH2:
                F0 = F & ~1; q0 = q - (F & 1)
                ti = (F & 1) ^ ((F >> 1) & 1)
                order = (0, 1) if F % 2 == 0 else (1, 0)
                m = lambda e: f"v_mfma_f32_16x16x32_bf16 v[{accb+16*ti+4*j}:{accb+16*ti+4*j+3}], {BR((F0 + e) % 8)}, {AR(ch0[n] + q0 + e, ti)}, v[{accb+16*ti+4*j}:{accb+16*ti+4*j+3}]"
            nn, nF = (n, F + LA) if F + LA < 16 else (n + 1, F + LA - 16)
            fl = fill.get(c, [])
            h = len(fl) // 2 if OPT.get("gap2") else 0
            A(m(order[0]))
            if nn < 36: put(bread(nn, nF))
            for x in fl[:h]: put(x)
            A(m(order[1]))
            if c in asched:
                for x in aop(*asched[c]): put(x)
            if c in bsched:
                for x in bop(*bsched[c]): put(x)
            for x in extra.get(c, []): put(x)
            for x in fl[h:]: put(x)
            if c in checks:
                bit, mask, va = checks[c]
                A(f"s_cmp_eq_u32 s{sW}, 0"); A(f"s_cbranch_scc0 M_nc{c}")
                poll_check(bit, mask, len(vm) - pmark[c] if va is not None else None, va)
                if bit != F_C: A.label(f"M_nc{c}")
                if bit == F_C:
                    A(f"""
                    s_or_b32 s{sTm}, s2, s{sW}
                    s_cmp_eq_u32 s{sTm}, 0
                    s_cbranch_scc0 M_nobump
                    v_mov_b32 v{vT}, s{sTag}
                    s_mov_b32 s{sTm}, {EPOCH}
                    s_mov_b64 exec, 1
                    buffer_store_dword v{vT}, off, s[{sSF}:{sSF+3}], s{sTm} sc1
                    s_mov_b64 exec, -1
                    """)
                    A.label("M_nobump"); A.label(f"M_nc{c}")
        if n in (3, 7, 11, 19, 31): stamp(A, {3: 2, 7: 3, 11: 4, 19: 5, 31: 6}[n], 3)
        if n in (19, 21, 23, 25, 27, 29): stamp(A, (n - 17) // 2, 5)
        if n in (11, 13, 15, 17, 19, 21): stamp(A, (n - 9) // 2, 6)
    A("s_nop 4")
    for i in range(2):
        for pr in range(2):
            t0 = 16 * i + 8 * pr
            x = vXD + 8 * i + 4 * pr
            for q in range(4):
                t = t0 + 2 * q
                A(f"v_pk_fma_f32 v[{ACCS+t}:{ACCS+t+1}], v[{ACCS+t}:{ACCS+t+1}], v[{ACCF+t}:{ACCF+t+1}], v[{xb0+t}:{xb0+t+1}]")
            for q in range(4):
                A(f"v_cvt_pk_bf16_f32 v{x+q}, v{ACCS+t0+2*q}, v{ACCS+t0+2*q+1}")
            A(f"ds_write_b128 v{vXf2 if pr else vXf}, v[{x}:{x+3}] offset:{2048*i}")
        if i == 0: A(f"s_mov_b32 s{sX0}, 16384"); A(f"s_mov_b32 s{sX0+1}, 32768"); A(f"s_mov_b32 s{sT}, 49152")
        for k in (2 * i, 2 * i + 1):
            A(f"ds_read_b128 v[{tb+4*k}:{tb+4*k+3}], v{vXl} offset:{1024*k}")
    for k in range(4):
        A(f"s_waitcnt lgkmcnt({[5, 4, 1, 0][k]})")
        A(f"buffer_store_dwordx4 v[{tb+4*k}:{tb+4*k+3}], v{vXO}, s[{sSO}:{sSO+3}], {['0', f's{sX0}', f's{sX0+1}', f's{sT}'][k]} offen sc0 sc1 nt")
    stamp(A, 6, 1)
    if OPT["stamp"]:
        A("s_memrealtime s[100:101]")
        A("s_waitcnt lgkmcnt(0)")
        if OPT.get("dbgout"):
            A("s_load_dwordx2 s[20:21], s[0:1], 64"); A("s_waitcnt lgkmcnt(0)")
            srd(A, 16, 20, 21, 256)
            A(f"s_add_u32 s{sT}, s2, 1"); A(f"s_and_b32 s{sT}, s{sT}, 0xfe"); A(f"s_or_b32 s{sT}, s{sT}, s{sW}")
            A(f"s_cmp_eq_u32 s{sT}, 0"); A("s_cbranch_scc0 M_end")
            A(f"s_and_b32 s{sT}, s2, 32"); A(f"v_mov_b32 v0, s{sT}")
            for i, r in enumerate(SREG[1:] + [100]):
                A(f"s_sub_u32 s{sT}, s{r}, s99"); A(f"v_mov_b32 v1, s{sT}"); A(f"buffer_store_dword v1, v0, s[16:19], 0 offen offset:{4*i}")
            A(f"v_mov_b32 v1, s99"); A(f"buffer_store_dword v1, v0, s[16:19], 0 offen offset:28")
            A("s_branch M_end")
        srd(A, 16, 14, 15, 0x10000, STAMP_OFF + 0x10000)
        A(f"s_lshl_b32 s{sT}, s2, 2"); A(f"s_add_u32 s{sT}, s{sT}, s{sW}"); A(f"s_lshl_b32 s{sT}, s{sT}, 6")
        A(f"v_mov_b32 v0, s{sT}")
        for i, r in enumerate(SREG):
            A(f"v_mov_b32 v1, s{r}"); A(f"buffer_store_dword v1, v0, s[16:19], 0 offen offset:{4*i}")
        A(f"v_mov_b32 v1, s100"); A(f"buffer_store_dword v1, v0, s[16:19], 0 offen offset:56")
        A(f"v_mov_b32 v1, s99"); A(f"buffer_store_dword v1, v0, s[16:19], 0 offen offset:60")
    A.label("M_end")
    A("s_endpgm")
    return A.text()

def build():
    K = NAME + "_kernel"
    hdr = open(f"cdna_kernels/{NAME}.s.ref").read().split("; Override")[0]
    out = [hdr.rstrip("\n")]
    if OPT.get("list"):
        out.append(f"; @launch kernel={K} grid=(256,1,1) block=(256,1,1) lds={LDS_BYTES}")
    else:
        out.append(f"; @launch grid=(256,1,1) block=(256,1,1) lds={LDS_BYTES}")
    out.append('.amdgcn_target "amdgcn-amd-amdhsa--gfx950"')
    out.append(".text")
    NO_NOP[0] = OPT['align'] == 2
    body, size = align_kernel(gen())
    for p in check_hazards(body): print("HAZARD", p, file=sys.stderr)
    print("code bytes", size, file=sys.stderr)
    assert size < 65536
    out.append(body.rstrip("\n"))
    out.append(".p2align 8")
    out.append(f".fill {(66560 - size) // 4}, 4, 0xbf810000")
    out.append(f""".section .rodata,"a"
.p2align 6
.amdhsa_kernel {K}
  .amdhsa_next_free_vgpr 512
  .amdhsa_next_free_sgpr 102
  .amdhsa_accum_offset 256
  .amdhsa_group_segment_fixed_size 0
  .amdhsa_kernarg_size 80
  .amdhsa_user_sgpr_count 2
  .amdhsa_user_sgpr_kernarg_segment_ptr 1
  .amdhsa_system_sgpr_workgroup_id_x 1
.end_amdhsa_kernel""")
    return "\n".join(out) + "\n"

if __name__ == "__main__":
    for a in sys.argv[2:]:
        k, v = a.split("="); OPT[k] = int(v)
    WS_BASE = OPT.get('wsb', 0) << 20
    LSTR = OPT.get('lstr', LSTR); FLG_SIZE = 33 * LSTR; EPOCH = 32 * LSTR
    XF_OFF += WS_BASE; HF_OFF += WS_BASE; KVP_OFF += WS_BASE; WT_OFF += WS_BASE; FLG_OFF += WS_BASE; EX_OFF += WS_BASE
    open(sys.argv[1], "w").write(build())
```

```python
import sys, struct, re
from asmlib import *

NAME = "recurrent_scan__linear_attn_block__swiglu_ffn__prompt"
XF_OFF = 0x0
HF_OFF = 0x400000
HF_SIZE = 144 * 131072
KVP_OFF = 0x1600000
KVP_SIZE = 32 * 8 * 6144
WT_OFF = 0x1C00000
WT_SIZE = 144 * 65536
FLG_OFF = 0x2800000
LSTR = 128
FLG_SIZE = 33 * LSTR
EPOCH = 32 * LSTR
STAMP_OFF = 0x3000000
EX_OFF = 0x3400000
EX_SIZE = 256 * 32768

def f2u(x): return struct.unpack("<I", struct.pack("<f", x))[0]
LOG2E = 1.4426950408889634
OPT = dict(stamp=0, align=0, snake=1, unpk=3, e0n=44, gap2=1)

G1_S, G1_SLOT = 6, 20480
CSC = G1_S * G1_SLOT
G2_R, G2_SLOT = 7, 16384
KVL = G2_R * G2_SLOT
FIN = KVL + 26624
XL = FIN + 4096 + 1024
LDS_BYTES = XL + 16384
F_LN, F_WT, F_A, F_A2, F_E, F_B, F_C = 1, 2, 4, 8, 16, 32, 64

def srd(A, d, lo, hi, size, off=0):
    if off:
        A(f"s_add_u32 s{d}, s{lo}, 0x{off:x}")
        A(f"s_addc_u32 s{d+1}, s{hi}, 0")
    else:
        A(f"s_mov_b32 s{d}, s{lo}")
        A(f"s_mov_b32 s{d+1}, s{hi}")
    A(f"s_mov_b32 s{d+2}, 0x{size:x}")
    A(f"s_mov_b32 s{d+3}, 0x00020000")

SREG = [6, 7, 86, 87, 96, 97, 98]
def stamp(A, idx, mode):
    if OPT["stamp"] != mode: return
    A("s_memrealtime s[100:101]" if OPT.get("rt") else "s_memtime s[100:101]")
    A("s_waitcnt lgkmcnt(0)")
    A(f"s_mov_b32 s{SREG[idx]}, s100")

def interleave(A, groups, work):
    per = -(-len(work) // len(groups)); wi = 0
    for grp in groups:
        for l in grp: A(l)
        for l in work[wi:wi + per]: A(l)
        wi += per
    for l in work[wi:]: A(l)

def NT(b): return " nt" if OPT.get("nt", 5) & b else ""
def lines(B): return [l.strip() for l in B.lines]

def gen():
    A = Asm()
    K = NAME + "_kernel"
    A.raw(f".globl {K}\n.p2align 8\n.type {K},@function\n{K}:")
    if OPT["align"]: A.raw("    ; @align on")
    vX, vD, vA0, vA1, vAG, vB0, vB1, vBG, vL16 = 1, [2, 3, 4, 5, 6], 7, 8, 9, 10, 11, 12, 13
    vT = 14
    vPollR, vPv, vCd, vPollW, vPollH, vCs, vDum = 17, 18, 16, 20, 21, 22, 23
    vTq, vTg = 20, 21
    names = ["g0", "u0", "g1", "u1", "k0", "k1", "v0", "v1", "q0", "q1"]
    for t in range(2, 7): names += [f"g{t}", f"u{t}"]
    acc = {}
    nv = 24; na = 0
    for nm in ["k0", "k1", "v0", "v1"] + [f"g{t}" for t in range(7)]:
        for i in range(4):
            acc[(nm, i)] = Reg('v', nv); nv += 4
    for t in range(7):
        for i in range(4):
            if t * 4 + i < 14:
                acc[(f"u{t}", i)] = Reg('v', nv); nv += 4
            else:
                acc[(f"u{t}", i)] = Reg('a', na); na += 4
    for nm in ["q0", "q1"]:
        for i in range(4):
            acc[(nm, i)] = Reg('a', na); na += 4
    assert nv == 256 and na == 88
    XR = lambda s, i: Reg('a', 88 + 16 * s + 4 * i)
    WR = lambda p: Reg('a', 152 + 4 * p)
    accm = acc
    if OPT.get("classic"):
        accm = {}; k = 0
        for nm in names:
            for i in range(4):
                accm[(nm, i)] = Reg('a', 4 * k) if k < 52 else Reg('v', 24 + 4 * (k - 52)); k += 1
        XR = lambda s, i: Reg('v', 136 + 16 * s + 4 * i)
        WR = lambda p: Reg('v', 200 + 4 * p)
    PT = lambda t: Reg('a', 88 + 4 * t)
    CT = lambda k: Reg('a', 208 + 4 * k)
    sSX, sSD = 16, [20, 24, 28, 32, 36]
    sSCs, sSCd, sSF = 40, 72, 92
    sST = [76, 80, 44]
    sW, sHD, sRB, sXo, sWoA, sWoB, sStA, sStB, sM, sR, sCnt = 48, 49, 50, 51, 52, 53, 54, 55, 56, 57, 58
    sSLOT, sREND, sMEND, sM0, sCl, sCs = 59, 60, 61, 62, 63, 3
    sToq, sTog, sFo, sSpin, sTag, sTm = 88, 89, 90, 91, 12, 13
    sT = 64
    uid = [0]; site = [0]
    def flag_set(val):
        uid[0] += 1; L = f"M_fs{uid[0]}"
        A(f"""
        s_cmp_eq_u32 s{sW}, 0
        s_cbranch_scc0 {L}
        v_mov_b32 v{vT}, s{sTag}
        v_mov_b32 v{vT+1}, {val}
        s_mov_b64 exec, 1
        buffer_store_dwordx2 v[{vT}:{vT+1}], off, s[{sSF}:{sSF+3}], s{sFo} sc1
        s_mov_b64 exec, -1
        """)
        A.label(L)
    def poll_issue(vaddr):
        return f"buffer_load_dwordx2 v[{vPv}:{vPv+1}], v{vaddr}, s[{sSF}:{sSF+3}], 0 offen sc1"
    MASK_R, MASK_U = 0x00000000ffffffff, 0xffffffff00000000
    def poll_eval(E, bit):
        E(f"""
        v_xor_b32 v{vT}, s{sTag}, v{vPv}
        v_bfe_u32 v{vT+1}, v{vPv+1}, {bit.bit_length()-1}, 1
        v_xor_b32 v{vT+1}, 1, v{vT+1}
        v_or_b32 v{vT}, v{vT}, v{vT+1}
        v_cmp_ne_u32 vcc, 0, v{vT}
        s_nop 3
        """)
    def repoll(L, va=None, slp=None):
        if slp is None: slp = OPT.get('sleep', 8)
        if OPT["stamp"] == 1:
            A(f"s_add_u32 s96, s96, 0x{1 << (4 * site[0]):x}"); site[0] += 1
        A(f"""
        s_add_u32 s{sSpin}, s{sSpin}, 1
        s_cmp_ge_u32 s{sSpin}, 0x40000
        s_cbranch_scc1 {L}_ok
        s_sleep {slp}
        {poll_issue(vPollR if va is None else va)}
        s_waitcnt vmcnt(0)
        s_branch {L}
        """)
    def poll_check(bit, mask, vm=None, va=None, slp=None):
        uid[0] += 1; L = f"M_pc{uid[0]}"
        if vm is not None: A(f"s_waitcnt vmcnt({vm})")
        A(f"s_mov_b32 s{sSpin}, 0")
        A.label(L)
        poll_eval(A, bit)
        lo, hi = mask & 0xffffffff, mask >> 32
        if hi == 0:
            A(f"s_cmp_eq_u32 vcc_lo, 0")
        elif lo == 0:
            A(f"s_and_b32 s{sTm}, vcc_hi, 0x{hi:x}"); A(f"s_cmp_eq_u32 s{sTm}, 0")
        else:
            A(f"s_and_b32 s{sTm}, vcc_hi, 0x{hi:x}"); A(f"s_or_b32 s{sTm}, s{sTm}, vcc_lo"); A(f"s_cmp_eq_u32 s{sTm}, 0")
        A(f"s_cbranch_scc1 {L}_ok")
        repoll(L, va, slp)
        A.label(L + "_ok")
    def cond_poll(cmp, va):
        uid[0] += 1; L = f"M_cp{uid[0]}"
        return cmp + [f"s_cbranch_scc0 {L}", poll_issue(va), L + ":"]
    def emit(ls):
        for l in ls:
            if l.endswith(":"): A.label(l[:-1])
            else: A(l)
    def lack_mask(E):
        poll_eval(E, F_A)
        E(f"""
        s_lshr_b32 s{sTm}, vcc_lo, 16
        s_or_b32 s{sLack}, s{sTm}, vcc_lo
        s_lshr_b32 s{sTm}, s{sLack}, 8
        s_or_b32 s{sLack}, s{sLack}, s{sTm}
        s_and_b32 s{sLack}, s{sLack}, 0xff
        """)
    def stage_gate(ssig):
        uid[0] += 1; L = f"M_sg{uid[0]}"
        A(f"s_bitcmp0_b32 s{sLack}, s{ssig}")
        A(f"s_cbranch_scc1 {L}_ok")
        A(f"s_mov_b32 s{sSpin}, 0")
        A(poll_issue(vPollR)); A("s_waitcnt vmcnt(0)")
        A.label(L)
        lack_mask(A)
        A(f"s_bitcmp0_b32 s{sLack}, s{ssig}")
        A(f"s_cbranch_scc1 {L}_ok")
        repoll(L)
        A.label(L + "_ok")
    A(f"""
    s_cmp_ge_u32 s2, 256
    s_cbranch_scc1 M_end
    """)
    if OPT.get("scramble"):
        A("s_and_b32 s3, s2, 7"); A("s_lshl_b32 s3, s3, 3"); A("s_bfe_u32 s4, s2, 0x30003"); A("s_and_b32 s2, s2, 0xc0")
        A("s_or_b32 s2, s2, s3"); A("s_or_b32 s2, s2, s4")
    if OPT["stamp"]:
        A("s_memrealtime s[100:101]"); A("s_waitcnt lgkmcnt(0)"); A("s_mov_b32 s99, s100"); A("s_mov_b32 s96, 0")
        A("s_memrealtime s[100:101]" if OPT.get("rt") else "s_memtime s[100:101]"); A("s_waitcnt lgkmcnt(0)"); A(f"s_mov_b32 s{SREG[0]}, s100")
    A(f"""
    s_load_dwordx4 s[68:71], s[0:1], 0
    s_load_dwordx4 s[8:11], s[0:1], 32
    s_load_dwordx4 s[12:15], s[0:1], 64
    s_load_dwordx2 s[84:85], s[0:1], 16
    s_load_dwordx2 s[{sSCs}:{sSCs+1}], s[0:1], 48
    s_getpc_b64 s[{sT+2}:{sT+3}]
    s_and_b32 s{sT+2}, s{sT+2}, 0xffffff00
    s_bfe_u32 s{sT}, s2, 0x30003
    s_lshl_b32 s{sT}, s{sT}, 12
    v_lshrrev_b32 v{vT}, 3, v0
    v_lshlrev_b32 v{vT}, 7, v{vT}
    v_add_u32 v{vT}, s{sT}, v{vT}
    global_load_dword v{vDum}, v{vT}, s[{sT+2}:{sT+3}]
    v_lshrrev_b32 v{vT}, 6, v0
    v_and_b32 v0, 63, v0
    v_readfirstlane_b32 s{sW}, v{vT}
    s_and_b32 s{sT}, s2, 7
    s_lshr_b32 s{sT+1}, s2, 3
    s_and_b32 s{sRB}, s{sT+1}, 7
    s_lshr_b32 s{sT+1}, s{sT+1}, 3
    s_lshl_b32 s{sHD}, s{sT}, 2
    s_add_u32 s{sHD}, s{sHD}, s{sT+1}
    v_lshlrev_b32 v{vL16}, 4, v0
    s_lshl_b32 s{sFo}, s{sRB}, 5
    s_add_u32 s{sFo}, s{sFo}, s{sHD}
    """)
    lX, lF, lS, lR, lA = 32, 48, 80, 88, 112
    A(f"""
    v_and_b32 v{lA}, 7, v0
    v_lshrrev_b32 v{lA+1}, 3, v0
    v_lshlrev_b32 v{lA+2}, 11, v{lA}
    v_lshl_add_u32 v{lA+2}, v{lA+1}, 4, v{lA+2}
    s_lshl_b32 s{sT}, s{sFo}, 14
    s_lshl_b32 s{sT+1}, s{sW}, 9
    s_add_u32 s{sT}, s{sT}, s{sT+1}
    v_add_u32 v{lA+2}, s{sT}, v{lA+2}
    s_waitcnt lgkmcnt(0)
    """)
    srd(A, sSX, 68, 69, 0x400000)
    for n in range(4):
        A(f"buffer_load_dwordx4 v[{lX+4*n}:{lX+4*n+3}], v{lA+2}, s[{sSX}:{sSX+3}], 0 offen offset:{128*n}{NT(4)}")
    A(f"v_and_b32 v{lA+6}, 0xfffff800, v{lA+2}")
    A(f"buffer_load_ushort v{lA+7}, v{lA+6}, s[{sSX}:{sSX+3}], 0 offen")
    A("s_mov_b32 s4, s70"); A("s_mov_b32 s5, s71")
    srd(A, sSF, 14, 15, FLG_SIZE, FLG_OFF)
    A(f"s_mov_b32 s{sT}, {EPOCH}")
    A(f"buffer_load_dword v{vPv}, off, s[{sSF}:{sSF+3}], s{sT} sc1")
    A(f"""
    s_lshr_b32 s{sT}, s2, 3
    s_lshl_b32 s{sT}, s{sT}, 2
    s_add_u32 s{sT}, s{sT}, s{sW}
    s_lshl_b32 s{sT}, s{sT}, 1
    s_and_b32 s{sT+1}, s2, 7
    s_mul_i32 s{sT+2}, s{sT}, 7168
    s_mul_i32 s{sT+3}, s{sT+1}, 896
    s_add_u32 s{sT+2}, s{sT+2}, s{sT+3}
    s_mul_i32 s{sT+3}, s{sT}, 6144
    s_lshl_b32 s{sT+1}, s{sT+1}, 8
    s_add_u32 s{sT+3}, s{sT+3}, s{sT+1}
    v_cmp_le_u32 vcc, 7, v0
    v_lshlrev_b32 v{vTg}, 7, v0
    v_mov_b32 v{vT}, {7168-7*128}
    v_cndmask_b32 v{vT}, 0, v{vT}, vcc
    v_add3_u32 v{vTg}, v{vTg}, v{vT}, s{sT+2}
    v_cmp_le_u32 vcc, 14, v0
    v_mov_b32 v{vT}, 0x70000000
    v_lshrrev_b32 v{vT+1}, 1, v0
    v_cndmask_b32 v{vTg}, v{vTg}, v{vT}, vcc
    v_and_b32 v{vTq}, 1, v0
    v_lshlrev_b32 v{vTq}, 7, v{vTq}
    v_lshl_add_u32 v{vTq}, v{vT+1}, 11, v{vTq}
    v_cmp_le_u32 vcc, 12, v0
    v_add_u32 v{vTq}, s{sT+3}, v{vTq}
    s_mov_b32 s{sToq}, 0
    v_cndmask_b32 v{vTq}, v{vTq}, v{vT}, vcc
    s_mov_b32 s{sTog}, 0
    """)
    srd(A, sST[0], 4, 5, 1024 * 6144)
    srd(A, sST[1], 8, 9, 1024 * 7168)
    srd(A, sST[2], 10, 11, 1024 * 7168)
    def touch(s, b=2):
        v = [vTq, vTg, vTg][s]; so = [sToq, sTog, sTog][s]
        return f"buffer_load_dword v{vDum}, v{v}, s[{sST[s]}:{sST[s]+3}], s{so} offen{NT(b)}"
    TROW = 1
    TS = OPT.get("ts", 4)
    onerow = f"""
        s_lshr_b32 s{sTm}, s2, 3
        s_lshl_b32 s{sTm}, s{sTm}, 2
        s_add_u32 s{sTm}, s{sTm}, s{sW}
        s_sub_u32 s{sTm}, ROW0, s{sTm}
        s_mul_i32 s{sToq}, s{sTm}, 6144
        s_mul_i32 s{sTog}, s{sTm}, 7168
        v_mov_b32 v{vT}, 0x70000000
        v_cmp_le_u32 vcc, 7, v0
        s_nop 1
        v_cndmask_b32 v{vTg}, v{vTg}, v{vT}, vcc
        v_cmp_le_u32 vcc, 6, v0
        s_nop 1
        v_cndmask_b32 v{vTq}, v{vTq}, v{vT}, vcc
        """
    tadv = [f"s_add_u32 s{sToq}, s{sToq}, {128*6144}", f"s_add_u32 s{sTog}, s{sTog}, {128*7168}"]
    A(onerow.replace("ROW0", "0"))
    A(f"v_add_u32 v{vTq}, s{sToq}, v{vTq}"); A(f"v_add_u32 v{vTg}, s{sTog}, v{vTg}")
    A(f"s_mov_b32 s{sToq}, 0"); A(f"s_mov_b32 s{sTog}, 0")
    if TS == 3:
        for k in range(3): A(touch(k))
        for l in tadv: A(l)
    NY = 2 + (3 if TS == 3 else 0)
    stamp(A, 1, 2)
    A(f"""
    v_lshrrev_b32 v{lA+8}, 4, v0
    v_bfe_u32 v{lA+9}, v0, 2, 2
    v_lshl_add_u32 v{lA+10}, v{lA+8}, 3, v{lA+9}
    v_mul_u32_u24 v{lA+10}, 6144, v{lA+10}
    v_bfe_u32 v{lA+11}, v0, 1, 1
    v_and_b32 v{lA+12}, 1, v{lA+8}
    v_xor_b32 v{lA+11}, v{lA+11}, v{lA+12}
    v_lshl_add_u32 v{lA+10}, v{lA+11}, 5, v{lA+10}
    v_and_b32 v{lA+11}, 1, v0
    v_lshl_add_u32 v{lA+10}, v{lA+11}, 4, v{lA+10}
    s_mul_i32 s{sT+2}, s{sW}, 5
    s_and_b32 s{sT+3}, s{sHD}, 1
    s_lshl_b32 s{sT+3}, s{sT+3}, 1
    s_mul_i32 s{sT+4}, s{sHD}, 224
    """)
    t3, t4, t5, t6, t7 = lA + 11, lA + 12, lA + 13, lA + 14, lA + 15
    for i in range(5):
        d = sSD[i]
        A(f"""
        s_add_u32 s{sT+5}, s{sT+2}, {i}
        s_cmp_lt_u32 s{sT+5}, 6
        s_cbranch_scc0 M_gu{i}
        s_lshr_b32 s{sT+6}, s{sT+5}, 1
        s_lshl_b32 s{sT+6}, s{sT+6}, 11
        s_and_b32 s{sT+7}, s{sT+5}, 1
        s_mul_i32 s{sT+7}, s{sT+7}, 24576
        s_add_u32 s{sT+6}, s{sT+6}, s{sT+7}
        s_lshl_b32 s{sT+7}, s{sHD}, 6
        s_add_u32 s{sT+6}, s{sT+6}, s{sT+7}
        v_add_u32 v{vD[i]}, s{sT+6}, v{lA+10}
        s_mov_b32 s{d}, s4
        s_mov_b32 s{d+1}, s5
        s_mov_b32 s{d+2}, {1024*6144}
        s_mov_b32 s{sStA if i == 0 else sStB}, {32*6144}
        s_branch M_dn{i}
        """)
        A.label(f"M_gu{i}")
        A(f"""
        s_sub_u32 s{sT+6}, s{sT+5}, 6
        s_sub_u32 s{sT+7}, s{sT+5}, 13
        s_cmp_lt_u32 s{sT+5}, 13
        s_cselect_b32 s{sT+6}, s{sT+6}, s{sT+7}
        s_cselect_b32 s{d}, s8, s10
        s_cselect_b32 s{d+1}, s9, s11
        s_mov_b32 s{d+2}, {1024*7168}
        s_mov_b32 s{sStA if i == 0 else sStB}, {32*7168}
        s_lshl_b32 s{sT+6}, s{sT+6}, 6
        v_add_u32 v{t3}, s{sT+6}, v0
        v_mul_u32_u24 v{t4}, 4682, v{t3}
        v_lshrrev_b32 v{t4}, 16, v{t4}
        v_mul_u32_u24 v{t5}, 14, v{t4}
        v_sub_u32 v{t5}, v{t3}, v{t5}
        v_add_u32 v{t5}, s{sT+3}, v{t5}
        v_subrev_u32 v{t6}, 14, v{t5}
        v_min_u32 v{t5}, v{t5}, v{t6}
        v_bfe_u32 v{t6}, v{t4}, 2, 2
        v_lshrrev_b32 v{t7}, 4, v{t4}
        v_and_b32 v{t4}, 3, v{t4}
        v_lshl_add_u32 v{t4}, v{t6}, 3, v{t4}
        v_lshl_add_u32 v{t4}, v{t7}, 2, v{t4}
        v_mul_u32_u24 v{t4}, 7168, v{t4}
        v_lshl_add_u32 v{t4}, v{t5}, 4, v{t4}
        v_add_u32 v{vD[i]}, s{sT+4}, v{t4}
        """)
        A.label(f"M_dn{i}")
        if OPT.get("lin"):
            A(f"""
            s_add_u32 s{sT+5}, s{sT+2}, {i}
            s_sub_u32 s{sT+6}, s{sT+5}, 6
            s_sub_u32 s{sT+7}, s{sT+5}, 13
            s_cmp_lt_u32 s{sT+5}, 13
            s_cselect_b32 s{sT+6}, s{sT+6}, s{sT+7}
            s_cmp_lt_u32 s{sT+5}, 6
            s_cselect_b32 s{sT+6}, s{sT+5}, s{sT+6}
            s_cselect_b32 s{sT+7}, 6, 7
            s_mul_i32 s{sT+7}, s{sT+7}, s{sHD}
            s_add_u32 s{sT+6}, s{sT+6}, s{sT+7}
            s_lshl_b32 s{sT+6}, s{sT+6}, 10
            v_add_u32 v{vD[i]}, s{sT+6}, v{vL16}
            """)
        A(f"s_mov_b32 s{d+3}, 0x00020000")
    A("s_mov_b32 s8, s{0}".format(sSX)); A("s_mov_b32 s9, s{0}".format(sSX + 1))
    A(f"""
    s_lshr_b32 s{sT}, s{sFo}, 1
    s_lshl_b32 s{sT}, s{sT}, 10
    s_and_b32 s{sT+1}, s{sFo}, 1
    s_lshl_b32 s{sT+1}, s{sT+1}, 7
    s_add_u32 s{sT}, s{sT}, s{sT+1}
    s_lshl_b32 s{sT+1}, s{sW}, 20
    s_add_u32 s{sT}, s{sT}, s{sT+1}
    v_lshrrev_b32 v{lA+3}, 2, v{lA+1}
    v_lshlrev_b32 v{lA+3}, 17, v{lA+3}
    v_and_b32 v{lA+4}, 3, v{lA+1}
    v_lshl_add_u32 v{lA+3}, v{lA+4}, 8, v{lA+3}
    v_lshl_add_u32 v{lA+3}, v{lA}, 4, v{lA+3}
    v_add_u32 v{lA+3}, s{sT}, v{lA+3}
    v_lshlrev_b32 v{lA+5}, 6, v{lA}
    v_add_u32 v{lA+5}, {CSC}, v{lA+5}
    s_lshl_b32 s{sT}, s{sW}, 4
    v_lshl_add_u32 v{lA+4}, v{lA+8}, 2, v{lA+5}
    v_add_u32 v{lA+4}, s{sT}, v{lA+4}
    """)
    srd(A, sSX, 14, 15, 0x400000, XF_OFF)
    A(f"s_lshr_b32 s{sFo}, s2, 3"); A(f"s_mul_i32 s{sFo}, s{sFo}, {LSTR}"); A(f"s_and_b32 s{sT}, s2, 7"); A(f"s_lshl_b32 s{sT}, s{sT}, 4"); A(f"s_add_u32 s{sFo}, s{sFo}, s{sT}")
    def dma(i):
        return [f"s_add_u32 m0, s{sM}, 0x{1024*(i+1):x}",
                f"buffer_load_dwordx4 v{vD[i]}, s[{sSD[i]}:{sSD[i]+3}], s{sWoA if i == 0 else sWoB} offen lds"]
    def xload(s, i):
        return f"buffer_load_dwordx4 {XR(s, i)}, v{vX}, s[{sSX}:{sSX+3}], s{sXo} offen offset:{1024*i} sc1"
    wadv = [f"s_add_u32 s{sM}, s{sM}, s{sSLOT}", f"s_add_u32 s{sWoA}, s{sWoA}, s{sStA}", f"s_add_u32 s{sWoB}, s{sWoB}, s{sStB}"]
    def wgroups(adv):
        L = []
        for i in range(5):
            m, l = dma(i)
            L.append((wadv if (i == 0 and adv) else []) + [m, "s_nop 0", l])
        return L
    def xgroups(t):
        return [[xload(t, i)] + ([f"s_add_u32 s{sXo}, s{sXo}, 0x20000"] if i == 3 else []) for i in range(4)]
    A(f"""
    s_mov_b32 s{sXo}, 0
    s_mul_i32 s{sM0}, s{sW}, 5120
    s_sub_u32 s{sM0}, s{sM0}, 1024
    s_mov_b32 s{sM}, s{sM0}
    s_mov_b32 s{sWoA}, 0
    s_mov_b32 s{sWoB}, 0
    s_mov_b32 s{sSLOT}, {G1_SLOT}
    """)
    B = Asm()
    B(f"""
    s_lshl_b32 s{sT}, s{sRB}, 14
    s_lshl_b32 s{sT+1}, s{sW}, 12
    s_add_u32 s{sT}, s{sT}, s{sT+1}
    v_add_u32 v{vX}, s{sT}, v{vL16}
    s_lshl_b32 s{sT}, s{sRB}, 3
    v_and_b32 v{vPollR}, 7, v0
    v_bfe_u32 v{t3}, v0, 3, 2
    v_lshl_add_u32 v{vPollR}, v{t3}, 6, v{vPollR}
    v_add_u32 v{vPollR}, s{sT}, v{vPollR}
    v_and_b32 v{vT}, 7, v{vPollR}
    v_lshrrev_b32 v{vPollR}, 3, v{vPollR}
    v_mul_u32_u24 v{vPollR}, {LSTR}, v{vPollR}
    v_lshl_add_u32 v{vPollR}, v{vT}, 4, v{vPollR}
    v_lshrrev_b32 v{t3}, 2, v0
    v_and_b32 v{t4}, 3, v0
    v_lshlrev_b32 v{t4}, 3, v{t4}
    v_lshl_add_u32 v{vB0}, v{t3}, 6, v{t4}
    v_and_b32 v{t5}, 1, v{lA+8}
    v_lshl_add_u32 v{vB0}, v{t5}, 5, v{vB0}
    v_xor_b32 v{vB1}, 32, v{vB0}
    v_mul_u32_u24 v{vBG}, 224, v{t3}
    v_add_u32 v{vBG}, v{vBG}, v{t4}
    v_mov_b32 v{vA0}, v{vB0}
    v_mov_b32 v{vA1}, v{vB1}
    v_mov_b32 v{vAG}, v{vBG}
    s_mov_b32 s{sR}, 0
    s_mov_b32 s{sCnt}, 0
    s_mov_b32 s{sREND}, {G1_S*G1_SLOT}
    s_add_u32 s{sMEND}, s{sM0}, s{sREND}
    """)
    B(f"""
    s_lshl_b32 s{sT}, s2, 2
    s_add_u32 s{sT}, s{sT}, s{sW}
    s_lshl_b32 s{sT}, s{sT}, 10
    v_add_u32 v{vCd}, s{sT}, v{vL16}
    v_lshrrev_b32 v{t3}, 3, v0
    v_and_b32 v{t4}, 7, v0
    v_xor_b32 v{t4}, v{t4}, v{t3}
    v_lshlrev_b32 v{t3}, 11, v{t3}
    v_lshl_add_u32 v{vCs}, v{t4}, 4, v{t3}
    s_lshl_b32 s{sT+2}, s{sW}, 14
    s_and_b32 s{sT+3}, s2, 15
    s_lshl_b32 s{sT+3}, s{sT+3}, 7
    s_add_u32 s{sT+2}, s{sT+2}, s{sT+3}
    s_lshr_b32 s{sT+1}, s2, 4
    s_mul_i32 s{sT}, s{sT+1}, 7
    s_add_u32 s{sCl}, s{sT}, 1
    s_lshr_b32 s{sCl}, s{sCl}, 1
    s_lshl_b32 s{sCl}, s{sCl}, 16
    s_add_u32 s{sCl}, s{sCl}, s{sT+2}
    s_add_u32 s{sT}, s{sT}, 3
    s_lshl_b32 s{sT}, s{sT}, 16
    s_add_u32 s{sT}, s{sT}, s{sT+3}
    s_lshl_b32 s{sT+1}, s{sT+1}, 16
    s_add_u32 s{sT+1}, s{sT+1}, s{sT+2}
    s_add_u32 s{sT+2}, s{sT+1}, 0x100000
    s_mov_b32 s{sCs}, 0x{(-2 << 20) & 0xffffffff:x}
    s_mov_b32 s{sSCs+2}, {3584*2048}
    s_mov_b32 s{sSCs+3}, 0x00020000
    """)
    sT6, sT7, sT8 = sT, sT + 1, sT + 2
    for l in lines(B): A(l)
    zero_all = [f"v_accvgpr_write_b32 a{r}, 0" for r in list(range(88)) + list(range(208, 216))]
    zero_all += [f"v_pk_mov_b32 v[{r}:{r+1}], 0, 0" for r in list(range(144, 256, 2)) + list(range(24, 144, 2))]
    ZE, ZM = OPT.get("ze", 0), OPT.get("zm", 212)
    assert ZE <= 152
    for l in zero_all[:ZE]: A(l)
    lW, lRd, lSt = lA + 4, lA + 5, lA + 3
    for n in range(4):
        A(f"s_waitcnt vmcnt({3-n+NY})")
        for q in range(4):
            s = lX + 4 * n + q; d = lF + 8 * n + 2 * q
            A(f"v_lshlrev_b32 v{d}, 16, v{s}")
            A(f"v_and_b32 v{d+1}, 0xffff0000, v{s}")
    stamp(A, 2, 2)
    A(f"s_waitcnt vmcnt({NY - 1})")
    if TS in (1, 3, 4):
        for k in range(3): A(touch(k, 8))
        for l in tadv: A(l)
    lM, lMb, lT, lQ = lS + 4, lS + 6, 104, 108
    A(f"""
    v_lshlrev_b32 v{lA+7}, 16, v{lA+7}
    v_sub_f32 v{lM}, 0, v{lA+7}
    v_mov_b32 v{lM+1}, v{lM}
    """)
    for q in range(0, 16, 2):
        d0 = (lS, lS + 2) if q == 0 else (lT, lT + 2)
        A(f"v_pk_add_f32 v[{d0[0]}:{d0[0]+1}], v[{lF+2*q}:{lF+2*q+1}], v[{lM}:{lM+1}]")
        A(f"v_pk_add_f32 v[{d0[1]}:{d0[1]+1}], v[{lF+2*q+2}:{lF+2*q+3}], v[{lM}:{lM+1}]")
        if q == 0:
            A(f"v_pk_mul_f32 v[{lQ}:{lQ+1}], v[{lS}:{lS+1}], v[{lS}:{lS+1}]")
            A(f"v_pk_mul_f32 v[{lQ+2}:{lQ+3}], v[{lS+2}:{lS+3}], v[{lS+2}:{lS+3}]")
        else:
            A(f"v_pk_fma_f32 v[{lQ}:{lQ+1}], v[{lT}:{lT+1}], v[{lT}:{lT+1}], v[{lQ}:{lQ+1}]")
            A(f"v_pk_fma_f32 v[{lQ+2}:{lQ+3}], v[{lT+2}:{lT+3}], v[{lT+2}:{lT+3}], v[{lQ+2}:{lQ+3}]")
            A(f"v_pk_add_f32 v[{lS}:{lS+1}], v[{lS}:{lS+1}], v[{lT}:{lT+1}]")
            A(f"v_pk_add_f32 v[{lS+2}:{lS+3}], v[{lS+2}:{lS+3}], v[{lT+2}:{lT+3}]")
    r = lR; r2 = 128
    A(f"""
    v_pk_add_f32 v[{lS}:{lS+1}], v[{lS}:{lS+1}], v[{lS+2}:{lS+3}]
    v_pk_add_f32 v[{lQ}:{lQ+1}], v[{lQ}:{lQ+1}], v[{lQ+2}:{lQ+3}]
    v_add_f32 v{lS}, v{lS}, v{lS+1}
    v_add_f32 v{lQ}, v{lQ}, v{lQ+1}
    s_nop 0
    v_add_f32_dpp v{lS}, v{lS}, v{lS} row_ror:8 row_mask:0xf bank_mask:0xf
    v_add_f32_dpp v{lQ}, v{lQ}, v{lQ} row_ror:8 row_mask:0xf bank_mask:0xf
    ds_write_b32 v{lW}, v{lS}
    ds_write_b32 v{lW}, v{lQ} offset:512
    s_waitcnt lgkmcnt(0)
    s_barrier
    """)
    for k in range(4): A(f"ds_read_b128 v[{r+4*k}:{r+4*k+3}], v{lRd} offset:{16*k}")
    for k in range(4): A(f"ds_read_b128 v[{r2+4*k}:{r2+4*k+3}], v{lRd} offset:{512+16*k}")
    for wait, rr in ((4, r), (0, r2)):
        A(f"s_waitcnt lgkmcnt({wait})")
        A(f"""
        v_pk_add_f32 v[{rr}:{rr+1}], v[{rr}:{rr+1}], v[{rr+2}:{rr+3}]
        v_pk_add_f32 v[{rr+4}:{rr+5}], v[{rr+4}:{rr+5}], v[{rr+6}:{rr+7}]
        v_pk_add_f32 v[{rr+8}:{rr+9}], v[{rr+8}:{rr+9}], v[{rr+10}:{rr+11}]
        v_pk_add_f32 v[{rr+12}:{rr+13}], v[{rr+12}:{rr+13}], v[{rr+14}:{rr+15}]
        v_pk_add_f32 v[{rr}:{rr+1}], v[{rr}:{rr+1}], v[{rr+4}:{rr+5}]
        v_pk_add_f32 v[{rr+8}:{rr+9}], v[{rr+8}:{rr+9}], v[{rr+12}:{rr+13}]
        v_pk_add_f32 v[{rr}:{rr+1}], v[{rr}:{rr+1}], v[{rr+8}:{rr+9}]
        v_add_f32 v{rr}, v{rr}, v{rr+1}
        v_mul_f32 v{rr}, 0x{f2u(1.0/1024):x}, v{rr}
        """)
    A(f"""
    v_add_f32 v{lMb}, v{lA+7}, v{lR}
    v_fma_f32 v{lR}, -v{lR}, v{lR}, v{r2}
    v_cvt_pk_bf16_f32 v{lMb}, v{lMb}, v{lMb}
    v_max_f32 v{lR}, 0, v{lR}
    v_lshlrev_b32 v{lMb}, 16, v{lMb}
    """)
    A(f"""
    v_cvt_pk_bf16_f32 v{lR}, v{lR}, v{lR}
    v_lshlrev_b32 v{lR}, 16, v{lR}
    v_add_f32 v{lR}, 0x{f2u(1e-5):x}, v{lR}
    v_cvt_pk_bf16_f32 v{lR}, v{lR}, v{lR}
    v_lshlrev_b32 v{lR}, 16, v{lR}
    v_sqrt_f32 v{lR}, v{lR}
    s_nop 0
    v_cvt_pk_bf16_f32 v{lR}, v{lR}, v{lR}
    v_lshlrev_b32 v{lR}, 16, v{lR}
    v_rcp_f32 v{lR}, v{lR}
    v_sub_f32 v{lM}, 0, v{lMb}
    v_mov_b32 v{lM+1}, v{lM}
    v_mov_b32 v{lR+1}, v{lR}
    s_mov_b32 s{sT+3}, 0
    """)
    for n in range(4):
        for q in range(4):
            d = lF + 8 * n + 2 * q; o = lX + 4 * n + q
            A(f"v_pk_add_f32 v[{d}:{d+1}], v[{d}:{d+1}], v[{lM}:{lM+1}]")
        for q in range(4):
            d = lF + 8 * n + 2 * q; o = lX + 4 * n + q
            A(f"v_cvt_pk_bf16_f32 v{o}, v{d}, v{d+1}")
        for q in range(4):
            d = lF + 8 * n + 2 * q; o = lX + 4 * n + q
            A(f"v_lshlrev_b32 v{d}, 16, v{o}")
            A(f"v_and_b32 v{d+1}, 0xffff0000, v{o}")
        for q in range(4):
            d = lF + 8 * n + 2 * q
            A(f"v_pk_mul_f32 v[{d}:{d+1}], v[{d}:{d+1}], v[{lR}:{lR+1}]")
        for q in range(4):
            d = lF + 8 * n + 2 * q; o = lX + 4 * n + q
            A(f"v_cvt_pk_bf16_f32 v{o}, v{d}, v{d+1}")
        A(f"buffer_store_dwordx4 v[{lX+4*n}:{lX+4*n+3}], v{lSt}, s[{sSX}:{sSX+3}], s{sT+3} offen sc1")
        A(f"s_add_u32 s{sT+3}, s{sT+3}, 0x40000")
    stamp(A, 3, 2)
    srd(A, sSCd, 14, 15, WT_SIZE, WT_OFF)
    B = Asm()
    for l in zero_all[ZE:ZE + ZM]: B(l)
    interleave(A, wgroups(False), lines(B))
    A("s_waitcnt vmcnt(5)")
    A(f"v_readfirstlane_b32 s{sTag}, v{vPv}")
    A("s_barrier")
    A(f"s_mul_i32 s{sTag}, s{sTag}, 0x9e3779b1")
    A(f"s_add_u32 s{sTag}, s{sTag}, 0x7f4a7c15")
    flag_set(F_LN)
    stamp(A, 4, 2)
    if TS == 1:
        for k in range(3): A(touch(k, 16))
        for l in tadv: A(l)
    interleave(A, wgroups(True) + wgroups(True), zero_all[ZE + ZM:])
    A(f"s_cmp_eq_u32 s{sW}, 0"); A("s_cbranch_scc0 M_lng")
    if OPT.get("pre", 0): A(f"s_sleep {OPT['pre']}")
    A(poll_issue(vPollR))
    poll_check(F_LN, MASK_R, 0, None, OPT.get('lnsleep', 1))
    A.label("M_lng")
    A("s_waitcnt vmcnt(0)")
    A("s_barrier")
    sRT, sCT = 68, 69
    A(f"""
    s_and_b32 s{sT+3}, s2, 7
    s_lshr_b32 s{sRT}, s{sT+3}, 1
    s_lshl_b32 s{sRT}, s{sRT}, 2
    s_bfe_u32 s{sT+6}, s2, 0x20003
    s_add_u32 s{sRT}, s{sRT}, s{sT+6}
    s_and_b32 s{sCT}, s{sT+3}, 1
    s_lshl_b32 s{sCT}, s{sCT}, 3
    s_lshr_b32 s{sT+6}, s2, 5
    s_add_u32 s{sCT}, s{sCT}, s{sT+6}
    """)
    stamp(A, 5, 2)
    for g in xgroups(0) + xgroups(1):
        for l in g: A(l)
    if TS == 4:
        for k in range(3): A(touch(k))
        for l in tadv: A(l)
    def copy_op(s):
        if s % 2: return f"buffer_load_dwordx4 v{vT+1 if s == 1 else vCs}, s[{sSCs}:{sSCs+3}], s{sCl} offen{NT(1)} lds"
        return f"buffer_store_dwordx4 {CT(s // 2)}, v{vCd}, s[{sSCd}:{sSCd+3}], s{sCs} offen sc1"
    def wread(f, a, pos, kh=0, lo=False):
        nm = names[f]
        if nm[0] in "qkv":
            p = "qkv".index(nm[0]); j = int(nm[1])
            addr = vA1 if j else vA0; off = 2048 * p + 1024 * a
        else:
            tl = int(nm[1]); addr = vAG
            off = (6144 if nm[0] == 'g' else 13312) + 3584 * a + 32 * tl
        if lo: addr = {vA0: vB0, vA1: vB1, vAG: vBG}[addr]
        return f"ds_read_b64_tr_b16 {WR(pos).sub(2*a, 2)}, v{addr} offset:{off + G1_SLOT * kh}"
    def mfma(f, k, u, p0, rev):
        ti, hf = k // 2, k % 2
        if ti % 2: hf = 1 - hf
        if rev: ti = 3 - ti
        nm = names[f]; d = acc[(nm, ti)]
        x, w = XR(2 * (u % 2) + hf, ti), WR(p0 + hf)
        if nm[0] in "kv": return f"v_mfma_f32_16x16x32_bf16 {d}, {x}, {w}, {d}"
        return f"v_mfma_f32_16x16x32_bf16 {d}, {w}, {x}, {d}"
    LA = 6
    A(f"""
    s_lshr_b32 s{sT+3}, s{sRT}, 1
    s_lshl_b32 s{sT+3}, s{sT+3}, 3
    v_and_b32 v{vT}, 7, v0
    v_bfe_u32 v{vT+1}, v0, 3, 2
    v_lshl_add_u32 v{vT+1}, v{vT+1}, 6, v{vT}
    v_add_u32 v{vPollR}, s{sT+3}, v{vT+1}
    """)
    A(f"""
    s_and_b32 s{sT+3}, s{sW}, 1
    s_lshl_b32 s{sT+3}, s{sT+3}, 2
    s_lshr_b32 s{sT+6}, s{sW}, 1
    s_add_u32 s{sT+3}, s{sT+3}, s{sT+6}
    s_lshl_b32 s{sT+3}, s{sT+3}, 13
    v_and_b32 v{vT}, 0x7ff, v{vCs}
    v_bfe_u32 v{vT+1}, v0, 3, 2
    v_lshl_add_u32 v{vT}, v{vT+1}, 11, v{vT}
    v_lshrrev_b32 v{vT+1}, 5, v0
    v_lshl_add_u32 v{vT}, v{vT+1}, 14, v{vT}
    v_add_u32 v{vT}, s{sT+3}, v{vT}
    s_getpc_b64 s[4:5]
    s_and_b32 s4, s4, 0xffffff80
    s_bfe_u32 s{sT+3}, s2, 0x30003
    s_lshl_b32 s{sT+3}, s{sT+3}, 2
    s_add_u32 s{sT+3}, s{sT+3}, s{sW}
    s_mul_i32 s{sT+3}, s{sT+3}, 1408
    s_add_u32 s{sT+3}, s{sT+3}, 5120
    v_min_u32 v{vPv}, 10, v0
    v_lshlrev_b32 v{vPv}, 7, v{vPv}
    v_add_u32 v{vPv}, s{sT+3}, v{vPv}
    s_lshr_b32 s{sT+3}, s{sW}, 1
    s_lshl_b32 s{sT+3}, s{sT+3}, 2
    v_and_b32 v{vT+1}, 3, v0
    v_or_b32 v{vT+1}, s{sT+3}, v{vT+1}
    v_bfe_u32 v{vPv+1}, v0, 2, 3
    v_xor_b32 v{vT+1}, v{vT+1}, v{vPv+1}
    v_lshrrev_b32 v{vPv+1}, 2, v0
    v_lshlrev_b32 v{vPv+1}, 7, v{vPv+1}
    v_lshl_add_u32 v{vPv+1}, v{vT+1}, 4, v{vPv+1}
    s_and_b32 s{sT+6}, s{sW}, 1
    s_lshl_b32 s{sT+6}, s{sT+6}, 3
    s_add_u32 s{sT+3}, s{sT+6}, {CSC}
    v_add_u32 v{vPv+1}, s{sT+3}, v{vPv+1}
    s_lshl_b32 s10, s{sRT}, 18
    s_lshl_b32 s{sT+3}, s{sW}, 16
    s_add_u32 s10, s10, s{sT+3}
    s_lshl_b32 s{sT+3}, s{sCT}, 7
    s_add_u32 s10, s10, s{sT+3}
    s_sub_u32 s10, s10, {10*16384}
    s_lshl_b32 s11, s{sW}, 12
    s_add_u32 s11, s11, {XL - 10*1024}
    s_lshl_b32 s{sT+3}, s{sW}, 10
    """)
    for n in range(LA):
        for a in range(2): A(wread(n // 2, a, n % 8, n % 2))
    A(f"s_waitcnt vmcnt({3 if TS == 4 else 0})")
    stamp(A, 6, 2); stamp(A, 1, 1)
    madv = [f"s_add_u32 s{sM}, s{sM}, s{sSLOT}", f"s_add_u32 s{sWoA}, s{sWoA}, s{sStA}", f"s_add_u32 s{sWoB}, s{sWoB}, s{sStB}",
            f"s_cmp_eq_u32 s{sM}, s{sMEND}", f"s_cselect_b32 s{sM}, s{sM0}, s{sM}"]
    def Wop(k, i): return dict(tag=f"W{k}", pre=(madv if i == 0 else []) + [dma(i)[0]], ins=dma(i)[1], post=[])
    def Xop(k, i): return dict(tag=f"X{k}", pre=[], ins=xload(k % 4, i), post=[f"s_add_u32 s{sXo}, s{sXo}, 0x20000"] if i == 3 else [])
    def Sop(j): return dict(tag="S", pre=[], ins=copy_op(2 * j), post=[f"s_add_u32 s{sCs}, s{sCs}, 0x100000"])
    sched = {}
    def place(ops, slots):
        assert len(ops) <= len(slots), (len(ops), len(slots))
        for o, sl in zip(ops, slots): sched[sl] = o
    for u in range(2):
        place([Wop(2 * u + 4, i) for i in range(5)], [(u, g) for g in range(35, 40)])
        place([Wop(2 * u + 3, i) for i in range(5)] + [Xop(2 * u + 2, i) for i in range(4)] + [Xop(2 * u + 3, i) for i in range(4)] + [Sop(u)],
              [(u, g) for g in (1, 3, 4, 6, 7, 9, 10, 11, 13, 14, 15, 17, 18, 19)])
    def xsel(base):
        return [f"s_add_u32 m0, s{sT+3}, {base}", f"s_cmp_ge_u32 s{sCnt}, 5", f"s_cselect_b32 m0, s11, m0",
                f"s_cselect_b32 s{sCl}, s10, s{sCl}", "s_add_u32 s10, s10, 16384", "s_add_u32 s11, s11, 1024"]
    cl0 = dict(tag="C", pre=xsel(CSC), ins=copy_op(1), post=[f"s_add_u32 s{sCl}, s{sCl}, {56 << 16}", f"s_cmp_eq_u32 s{sCnt}, 3",
               f"s_cselect_b32 s{sCl}, s{sT7}, s{sCl}", f"s_cselect_b32 s{sSCs}, s84, s{sSCs}", f"s_cselect_b32 s{sSCs+1}, s85, s{sSCs+1}",
               f"s_cselect_b32 s{sSCs+2}, {1024*2048}, s{sSCs+2}", f"s_cmp_eq_u32 s{sCnt}, 4", f"s_cselect_b32 s{sSCs+2}, 0, s{sSCs+2}"])
    cl1 = dict(tag="C", pre=xsel(CSC + 4096), ins=copy_op(3), post=[])
    place([cl0, cl1], [(0, 21), (0, 23)])
    place([dict(tag="T", pre=[], ins=touch(k), post=[]) for k in range(3)] +
          [dict(tag="T", pre=[], ins=f"global_load_dword v{vDum}, v{vPv}, s[4:5]", post=[])], [(1, g) for g in range(21, 25)])
    order = sorted(sched.keys())
    def vm_at(pos, kind, steps):
        seq = [(-1, k) for k in order] + [(0, k) for k in order if k < pos]
        need = [n for n, (tr, k) in enumerate(seq) if sched[k]["tag"][0] == kind and int(sched[k]["tag"][1:]) + 4 * tr in steps]
        return len(seq) - 1 - max(need)
    for k in range(OPT.get("shift1", 0)): A("s_nop 0")
    if OPT.get("al1"): A.raw("    ; @align on")
    A.label("M_loop1")
    for u in range(2):
        for g in range(40):
            f = g // 2
            if g == 34:
                A(f"s_waitcnt vmcnt({vm_at((u, 34), 'W', (2*u+2, 2*u+3))}) lgkmcnt(8)"); A("s_barrier")
                if u == 0:
                    A(f"s_cmp_eq_u32 s{sCnt}, 6"); A("s_cbranch_scc0 M_l1c")
                    flag_set(F_LN | F_WT); A.label("M_l1c")
            elif g == 0:
                A(f"s_waitcnt vmcnt({vm_at((u, 0), 'X', (2*u, 2*u+1))}) lgkmcnt(8)")
            elif g % 2 == 0:
                A("s_waitcnt lgkmcnt(8)")
            ng = (g + LA) % 40
            pre2, mid, post = [], [], []
            if (u, g) in sched:
                o = sched[(u, g)]; pre2, mid, post = o["pre"], [o["ins"]], o["post"]
            elif g == 26: mid = [f"s_add_u32 s{sR}, s{sR}, {2*G1_SLOT}"]; post = [f"s_cmp_eq_u32 s{sR}, s{sREND}", f"s_cselect_b32 s{sR}, 0, s{sR}"]
            elif g == 33:
                mid = [f"v_add_u32 v{vA0}, s{sR}, v{vB0}", f"v_add_u32 v{vA1}, s{sR}, v{vB1}"]
                post = [f"v_add_u32 v{vAG}, s{sR}, v{vBG}"]
            elif u == 0 and g in (2, 5):
                k = 0 if g == 2 else 1
                mid = [f"ds_read_b64_tr_b16 {CT(k).sub(0, 2)}, v{vPv+1} offset:{4096*k}"]
                post = [f"ds_read_b64_tr_b16 {CT(k).sub(2, 2)}, v{vPv+1} offset:{4096*k + 2048}"]
            elif u == 0 and g == 8:
                mid = [f"v_xor_b32 v{vPv+1}, 0x{CSC ^ (CSC + 8192):x}, v{vPv+1}"]; post = [f"s_xor_b32 s{sT+3}, s{sT+3}, 0x2000"]
            elif u == 0 and g == 20:
                mid = [f"s_cmp_eq_u32 s{sCnt}, 3", f"s_cselect_b64 s[{sT+6}:{sT+7}], -1, 0"]
                post = [f"v_cndmask_b32 v{vT+1}, v{vCs}, v{vT}, s[{sT+6}:{sT+7}]"]
            elif u == 1 and g == 27:
                mid = [f"s_sub_u32 s{sCl}, s{sCl}, {55 << 16}"]; post = [f"s_cmp_eq_u32 s{sCnt}, 2", f"s_cselect_b32 s{sCl}, s{sT6}, s{sCl}"]
            elif u == 1 and g == 28:
                mid = [f"s_cmp_eq_u32 s{sCnt}, 3", f"s_cselect_b32 s{sCl}, s{sT8}, s{sCl}"]
                post = [f"s_cmp_eq_u32 s{sCnt}, 4", f"s_cselect_b32 s{sSCs}, s8, s{sSCs}", f"s_cselect_b32 s{sSCs+1}, s9, s{sSCs+1}",
                        f"s_cselect_b32 s{sSCs+2}, 0x400000, s{sSCs+2}"]
            elif u == 1 and g == 29: mid = [tadv[0]]; post = [tadv[1]]
            elif u == 1 and g == 30: mid = [f"s_add_u32 s{sCnt}, s{sCnt}, 1"]
            mm = lambda i: mfma(f, 4 * (g % 2) + i, u, (g - g % 2) % 8, f % 2)
            if OPT.get("c4"):
                def mm(i):
                    ti, kk = g % 4, i
                    if ti % 2: kk = 3 - kk
                    if (g // 4) % 2: ti = 3 - ti
                    d = acc[(names[2 * (g // 4) + u], ti)]
                    return f"v_mfma_f32_16x16x32_bf16 {d}, {WR((g - g % 4 + kk) % 8)}, {XR(kk, ti)}, {d}"
            A(mm(0))
            A(wread(ng // 2, 0, (g + LA) % 8, ng % 2))
            for l in pre2[:3 if len(pre2) > 3 else 0]: A(l)
            A(mm(1))
            A(wread(ng // 2, 1, (g + LA) % 8, ng % 2))
            for l in pre2[3 if len(pre2) > 3 else 0:]: A(l)
            A(mm(2))
            emit(mid)
            A(mm(3))
            for l in post: A(l)
    A(f"s_cmp_lt_u32 s{sCnt}, 7")
    A("s_cbranch_scc1 M_loop1")
    sSH, sSK, sSXi, sSO = 20, 24, 28, 32
    sNL, sPL, sEPS, sCB, sCL = 36, 38, 40, 41, 42
    sAo, sBo = 43, 44
    sSA, sSB = sSH, sSCd
    vA, vBd = [2, 3, 4, 5], 6
    vRh, vXf, vXf2, vXl = 216, 217, 218, 219
    vXO, vKv, vZ, vFw, vZw, vZr, vFr, vLn = 224, 225, 226, 227, 228, 229, 230, 231
    vk0, vk1, vk2 = 11, 12, 22
    NSL = 14
    AR = lambda ch, i: Reg('a', 144 + 8 * (ch % NSL) + 4 * i)
    vAs, vBds, vPollE = [7, 8], 9, 10
    NS = OPT.get('ns', 28)
    def phi_tile(E, src, tmp, dst):
        b = src
        E(f"v_pk_mul_f32 v[{tmp}:{tmp+1}], v[{b}:{b+1}], s[{sPL}:{sPL+1}]")
        E(f"v_pk_mul_f32 v[{tmp+2}:{tmp+3}], v[{b+2}:{b+3}], s[{sPL}:{sPL+1}]")
        for j in range(4): E(f"v_exp_f32_e64 v{tmp+j}, v{tmp+j} clamp")
        for j in range(4): E(f"v_max_f32 v{b+j}, s{sEPS}, v{b+j}")
        E(f"v_pk_add_f32 v[{b}:{b+1}], v[{b}:{b+1}], v[{tmp}:{tmp+1}]")
        E(f"v_pk_add_f32 v[{b+2}:{b+3}], v[{b+2}:{b+3}], v[{tmp+2}:{tmp+3}]")
        E(f"v_cvt_pk_bf16_f32 v{dst}, v{b}, v{b+1}")
        E(f"v_cvt_pk_bf16_f32 v{dst+1}, v{b+2}, v{b+3}")
    def swiglu_tile(E, tl, i, tmp, dst):
        g = acc[(f"g{tl}", i)].base
        ur = acc[(f"u{tl}", i)]
        if ur.kind == 'a':
            u = tmp + 4
            for j in range(4): E(f"v_accvgpr_read_b32 v{u+j}, a{ur.base+j}")
        else:
            u = ur.base
        E(f"v_pk_mul_f32 v[{tmp}:{tmp+1}], v[{g}:{g+1}], s[{sNL}:{sNL+1}]")
        E(f"v_pk_mul_f32 v[{tmp+2}:{tmp+3}], v[{g+2}:{g+3}], s[{sNL}:{sNL+1}]")
        for j in range(4): E(f"v_exp_f32 v{tmp+j}, v{tmp+j}")
        E(f"v_pk_mul_f32 v[{g}:{g+1}], v[{g}:{g+1}], v[{u}:{u+1}]")
        E(f"v_pk_mul_f32 v[{g+2}:{g+3}], v[{g+2}:{g+3}], v[{u+2}:{u+3}]")
        E(f"v_pk_add_f32 v[{tmp}:{tmp+1}], v[{tmp}:{tmp+1}], 1.0 op_sel_hi:[1,0]")
        E(f"v_pk_add_f32 v[{tmp+2}:{tmp+3}], v[{tmp+2}:{tmp+3}], 1.0 op_sel_hi:[1,0]")
        for j in range(4): E(f"v_rcp_f32 v{tmp+j}, v{tmp+j}")
        E(f"v_pk_mul_f32 v[{g}:{g+1}], v[{g}:{g+1}], v[{tmp}:{tmp+1}]")
        E(f"v_pk_mul_f32 v[{g+2}:{g+3}], v[{g+2}:{g+3}], v[{tmp+2}:{tmp+3}]")
        E(f"v_cvt_pk_bf16_f32 v{dst}, v{g}, v{g+1}")
        E(f"v_cvt_pk_bf16_f32 v{dst+1}, v{g+2}, v{g+3}")
    def swiglu_pair(E, p, tmp):
        for i in range(4):
            o = acc[(f"g{2*p}", i)].base
            swiglu_tile(E, 2 * p, i, tmp, o)
            swiglu_tile(E, 2 * p + 1, i, tmp, o + 2)
            E(f"buffer_store_dwordx4 v[{o}:{o+3}], v{vX}, s[{sSH}:{sSH+3}], s{sCB} offen offset:{1024*i} sc1")
        E(f"s_add_u32 s{sCB}, s{sCB}, {32 << 17}")
    S = Asm()
    srd(S, sSH, 14, 15, HF_SIZE, HF_OFF)
    sh_lines = lines(S)
    S = Asm()
    S(f"""
    s_mov_b32 s{sNL}, 0x{f2u(-LOG2E):x}
    s_mov_b32 s{sNL+1}, 0x{f2u(-LOG2E):x}
    s_mov_b32 s{sPL}, 0x{f2u(LOG2E):x}
    s_mov_b32 s{sPL+1}, 0x{f2u(LOG2E):x}
    s_mov_b32 s{sEPS}, 0x{f2u(1e-6):x}
    s_lshl_b32 s{sCB}, s{sHD}, 17
    s_lshr_b32 s{sCL}, s{sHD}, 1
    s_add_u32 s{sCL}, s{sCL}, 96
    s_lshl_b32 s{sCL}, s{sCL}, 17
    s_and_b32 s{sT}, s{sHD}, 1
    s_lshl_b32 s{sT}, s{sT}, 9
    s_add_u32 s{sCL}, s{sCL}, s{sT}
    s_lshl_b32 s{sT}, s{sW}, 4
    s_add_u32 s{sT}, s{sT}, s{sCT}
    s_lshl_b32 s{sT}, s{sT}, 12
    v_add_u32 v{vBd}, s{sT}, v{vL16}
    s_lshl_b32 s{sM0}, s{sW}, 12
    """)
    pre_lines = lines(S)
    tiles = [(0, f) for f in range(11)] + [(1, f) for f in range(4)] + [(0, f) for f in range(11, 20)] + [(1, f) for f in range(4, 20)]
    items = [(u, f, kh) for u, f in tiles for kh in range(2)]
    assert len(items) == 80 and len(set(items)) == 80
    def wreadL(u, f, kh, a, pos):
        return wread(f, a, pos, kh, lo=(u == 1))
    B = Asm(); swiglu_pair(B, 0, 2); e0 = lines(B)
    if OPT.get('noe0'): e0 = []
    def unpack(ls):
        out = []
        for l in ls:
            m = re.match(r"v_pk_(mul|add)_f32 v\[(\d+):\d+\], v\[(\d+):\d+\], (\S+)", l)
            if not m: out.append(l); continue
            op, d, a, b = m.group(1), int(m.group(2)), int(m.group(3)), m.group(4)
            for k in range(2):
                if b.startswith("v["): bb = "v%d" % (int(b[2:].split(":")[0]) + k)
                elif b.startswith("s["): bb = "s%d" % int(b[2:].split(":")[0])
                else: bb = b
                out.append(f"v_{op}_f32 v{d+k}, {bb}, v{a+k}")
        return out
    if OPT.get('unpk', 0) & 1: e0 = unpack(e0)
    E0_AT, E0_N = 31, OPT.get('e0n', 44)
    S = Asm()
    S(f"""
    v_and_b32 v{vT}, 7, v0
    v_and_b32 v{vT+1}, 15, v0
    v_lshlrev_b32 v{vT+1}, 4, v{vT+1}
    v_add_u32 v{vT+1}, s{sCT}, v{vT+1}
    v_bfe_u32 v{vPollW}, v0, 4, 1
    v_xor_b32 v{vT+1}, v{vT+1}, v{vPollW}
    v_cmp_gt_u32 vcc, 32, v0
    s_and_b32 s{sT+3}, s2, 0xc7
    v_lshlrev_b32 v{vT}, 3, v{vT}
    v_cndmask_b32 v{vPollW}, v{vT+1}, v{vPollR}, vcc
    v_add_u32 v{vT}, s{sT+3}, v{vT}
    s_mov_b32 s{sT+3}, 0x70000000
    v_cndmask_b32 v{vPollH}, v{vT}, v{vPollR}, vcc
    v_and_b32 v{vT}, 7, v{vPollR}
    v_lshrrev_b32 v{vPollR}, 3, v{vPollR}
    v_mul_u32_u24 v{vPollR}, {LSTR}, v{vPollR}
    v_lshl_add_u32 v{vPollR}, v{vT}, 4, v{vPollR}
    v_and_b32 v{vT}, 7, v{vPollW}
    v_lshrrev_b32 v{vPollW}, 3, v{vPollW}
    v_mul_u32_u24 v{vPollW}, {LSTR}, v{vPollW}
    v_lshl_add_u32 v{vPollW}, v{vT}, 4, v{vPollW}
    v_and_b32 v{vT}, 7, v{vPollH}
    v_lshrrev_b32 v{vPollH}, 3, v{vPollH}
    v_mul_u32_u24 v{vPollH}, {LSTR}, v{vPollH}
    v_lshl_add_u32 v{vPollH}, v{vT}, 4, v{vPollH}
    """)
    poll_lines = lines(S)
    lops = [Wop(3, i) for i in range(5)] + [Xop(2, i) for i in range(4)] + [Xop(3, i) for i in range(4)]
    misc = pre_lines
    for n, (st, f, kh) in enumerate(items):
        A.comment(f"last trip item {n}: super-step {st} {names[f]}")
        lg = 8 if n + LA < 80 else max(0, 2 * (80 - n - 2))
        if n == 0: A(f"s_waitcnt vmcnt({vm_at((0, 0), 'X', (0, 1))}) lgkmcnt(8)")
        elif n == 16: A(f"s_waitcnt vmcnt(8) lgkmcnt(8)"); A("s_barrier")
        elif n == 22: A(f"s_waitcnt vmcnt(0) lgkmcnt(8)")
        elif n % 2 == 0: A(f"s_waitcnt lgkmcnt({lg})")
        fill = []
        if n < 13:
            o = lops[n]; fill = o["pre"] + ["s_nop 0", o["ins"]] + o["post"]
        elif n == 13: fill = sh_lines
        elif 14 <= n < 22: fill = poll_lines[len(poll_lines) * (n - 14) // 8: len(poll_lines) * (n - 13) // 8]
        elif n == 27: fill = [f"s_cmp_eq_u32 s{sW}, 0\ns_cbranch_scc0 M_npw\n{poll_issue(vPollW)}", "M_npw:"]
        elif 22 <= n < 27: fill = misc[len(misc) * (n - 22) // 5: len(misc) * (n - 21) // 5]
        elif E0_AT <= n < E0_AT + E0_N:
            c = n - E0_AT
            fill = e0[len(e0) * c // E0_N: len(e0) * (c + 1) // E0_N]
        mm = lambda i: mfma(f, 4 * kh + i, st, (n - kh) % 8, (n // 2) % 2)
        h = (len(fill) + 1) // 2 if (n > 13 and n != 27) else len(fill)
        A(mm(0))
        if n + LA < 80: A(wreadL(*items[n + LA], 0, (n + LA) % 8))
        A(mm(1))
        if n + LA < 80: A(wreadL(*items[n + LA], 1, (n + LA) % 8))
        A(mm(2))
        emit(fill[:h])
        A(mm(3))
        emit(fill[h:])
    if OPT.get("al1") and not OPT["align"]: A.raw("    ; @align off")
    stamp(A, 2, 1); stamp(A, 1, 4)
    A(f"""
    s_load_dwordx2 s[80:81], s[0:1], 56
    s_lshl_b32 s{sT}, s{sRT}, 13
    s_lshl_b32 s{sT+3}, s{sW}, 11
    s_add_u32 s{sT}, s{sT}, s{sT+3}
    v_add_u32 v{vA[0]}, s{sT}, v{vL16}
    v_add_u32 v{vA[1]}, 0x20000, v{vA[0]}
    v_add_u32 v{vA[2]}, 0x40000, v{vA[0]}
    v_add_u32 v{vA[3]}, 0x60000, v{vA[0]}
    s_and_b32 s{sT}, s{sCT}, 1
    s_lshl_b32 s{sT+3}, s{sT}, 18
    v_add_u32 v{vAs[0]}, s{sT+3}, v{vA[0]}
    v_add_u32 v{vAs[1]}, s{sT+3}, v{vA[1]}
    s_lshl_b32 s{sT}, s{sT}, 1
    s_lshr_b32 s{sT+3}, s{sW}, 1
    s_add_u32 s{sT}, s{sT}, s{sT+3}
    s_lshl_b32 s{sT}, s{sT}, 4
    s_and_b32 s{sT+3}, s{sW}, 1
    s_xor_b32 s{sT+3}, s{sT+3}, s{sCT}
    s_add_u32 s{sT}, s{sT}, s{sT+3}
    s_lshl_b32 s{sT}, s{sT}, 12
    v_add_u32 v{vBds}, s{sT}, v{vL16}
    s_lshr_b32 s{sT}, s2, 3
    s_lshr_b32 s{sT+3}, s2, 6
    s_add_u32 s{sT}, s{sT}, s{sT+3}
    s_and_b32 s{sT}, s{sT}, 3
    s_lshl_b32 s{sT}, s{sT}, 3
    s_or_b32 s47, s{sT}, 0x80000
    """)
    srd(A, sSK, 14, 15, KVP_SIZE, KVP_OFF)
    FAK = OPT.get("fak", 3)
    if not FAK: A("s_waitcnt vmcnt(0)")
    A(f"s_cmp_eq_u32 s{sW}, 0"); A("s_cbranch_scc0 M_wtc")
    poll_check(F_WT, MASK_U, 4, vPollW)
    A.label("M_wtc")
    A("s_barrier")
    if not FAK: flag_set(F_LN | F_WT | F_A)
    stamp(A, 2, 4)
    tq = acc[("u0", 0)].base
    LA2 = OPT.get("la2", 3); BP = OPT.get("bp", 2); LB = OPT.get("lb", G2_R - 1)
    vm, lg = [], []
    done = {"vm": -1, "lg": -1}
    pmark = {}
    def put(x):
        line, tag = x if isinstance(x, tuple) else (x, None)
        if line.startswith("@"):
            k, t = line[1:].split()
            waitfor(**{k: [t]}); return
        if line == "#flagA":
            A(f"s_waitcnt vmcnt({len(vm)})")
            A("s_barrier")
            flag_set(F_LN | F_WT | F_A); return
        if line == "#excheck":
            A(f"s_mov_b32 s{sSpin}, 0")
            A.label("M_exc")
            poll_eval(A, 1)
            A(f"""
            s_cmp_eq_u32 vcc_lo, 0
            s_cbranch_scc1 M_exc_ok
            {"s_add_u32 s96, s96, 0x10000000" if OPT["stamp"] == 1 else ""}
            s_add_u32 s{sSpin}, s{sSpin}, 1
            s_cmp_ge_u32 s{sSpin}, 0x40000
            s_cbranch_scc1 M_exc_ok
            s_sleep 1
            {expoll}
            s_waitcnt vmcnt(0)
            s_branch M_exc
            """)
            A.label("M_exc_ok"); return
        if line.startswith("#poll"):
            _, c, va = line.split()
            A(f"s_cmp_eq_u32 s{sW}, 0"); A(f"s_cbranch_scc0 M_np{c}"); A(poll_issue(int(va))); A.label(f"M_np{c}")
            pmark[int(c)] = len(vm); return
        if line.endswith(":"): A.label(line[:-1]); return
        A(line)
        if line.startswith("buffer_"): vm.append(tag)
        elif line.startswith("ds_"): lg.append(tag)
    def waitfor(vm=(), lg=(), _vm=vm, _lg=lg):
        parts = []
        for name, lst, tags, cap in (("vm", _vm, vm, 63), ("lg", _lg, lg, 15)):
            idx = [i for i, t in enumerate(lst) if t in tags]
            assert len(idx) >= 1 or not tags, tags
            if idx and max(idx) > done[name]:
                n = min(len(lst) - 1 - max(idx), cap)
                done[name] = len(lst) - 1 - n
                parts.append(f"{'vmcnt' if name == 'vm' else 'lgkmcnt'}({n})")
        if parts: A("s_waitcnt " + " ".join(parts))
    LEAD = OPT.get("lead", 0)
    sCls = 47
    def perm(r):
        o = list(range(36))
        for lo, hi in ((0, 8), (8, 16), (16, 28), (28, 36)):
            for st in range(lo + LEAD, hi):
                if st % 4 == r and LEAD:
                    o[st - LEAD: st + 1] = [st] + list(range(st - LEAD, st))
        return o
    P = [perm(r) for r in range(4)]
    for r in range(4): assert sorted(P[r]) == list(range(36))
    def soff(dst, m, sh):
        v = [P[r][m] for r in range(4)]
        if OPT.get("same"): v = [m % OPT["same"]] * 4
        if len(set(v)) == 1: return [f"s_mov_b32 s{dst}, 0x{v[0] << sh:x}"]
        lit = sum(x << (8 * r) for r, x in enumerate(v))
        return [f"s_bfe_u32 s{dst}, 0x{lit:x}, s{sCls}", f"s_lshl_b32 s{dst}, s{dst}, {sh}"]
    def bop(m, b):
        pre = soff(sBo, m, 18) + [ f"s_add_u32 m0, s{sM0}, 0x{(m % G2_R) * G2_SLOT:x}", "s_nop 0"] if b == 0 else []
        return pre + [(f"buffer_load_dwordx4 v{vBds if m < NS else vBd}, s[{sSB}:{sSB+3}], s{sBo} offen offset:{1024*b} sc1 lds", f"B{m}")]
    nq = lambda m: 2 if m < NS else 4
    ch0 = [sum(nq(k) for k in range(m)) for m in range(37)]
    aq = [(m, q, i) for m in range(36) for q in range(nq(m)) for i in range(2)]
    def aop(m, q, i):
        pre = soff(sAo, m, 19) if (q == 0 and i == 0) else []
        va = vAs[q] if m < NS else vA[q]
        return pre + [(f"buffer_load_dwordx4 {AR(ch0[m] + q, i)}, v{va}, s[{sSA}:{sSA+3}], s{sAo} offen offset:{1024*i} sc1", f"A{m}q{q}")]
    LAC = OPT.get("lac", 8)
    LACS = OPT.get("lacs", 6)
    NPRE = OPT.get("npre", 6)
    asched = {}; first_at = {}
    k = 2 * NPRE
    for c in range(16 * 36):
        n, F = c // 16, c % 16
        cur = ch0[n] + F * nq(n) // 16
        if F % 4 < 2 and k < len(aq):
            m, q, i = aq[k]
            if ch0[m] + q - cur <= (LACS if m < NS else LAC):
                asched[c] = aq[k]; first_at.setdefault(m, c); k += 1
    assert k == len(aq)
    M1 = OPT.get("m1", 99)
    db = lambda m: LB if m < M1 else max(OPT.get("dmin", 3), LB - 1 - (m - M1) // OPT.get("mstep", 3))
    bsched = {}
    k = 4 * (LB - 1) + 2
    for c in range(16 * 36):
        if c % 4 == 3 and k < 4 * 36:
            m = k // 4
            nb = m - min(db(m), G2_R - 1)
            nb = -(-nb // BP) * BP
            if c >= 16 * nb + 11:
                bsched[c] = (m, k % 4); k += 1
    assert k == 4 * 36
    def check_pos(c):
        n = c // 16 if c % 16 >= 10 else c // 16 - 1
        return 16 * n + 9
    def tagged(ls, tag): return [(l, tag) if l.startswith(("buffer_", "ds_")) else l for l in ls]
    def mix(G, work):
        n = len(G)
        for c, grp in enumerate(G):
            for x in grp: put(x)
            for x in work[len(work) * c // n: len(work) * (c + 1) // n]: put(x)
    B = Asm(); swiglu_pair(B, 1, tq)
    w1 = tagged(lines(B), "h1")
    Gall = [bop(m, b) for m in range(LB) for b in range(4 if m < LB - 1 else 2)]
    NB0 = OPT.get("nb0", len(Gall)); NW0 = len(w1) * OPT.get("w0", 100) // 100
    G, Grest = Gall[:NB0], Gall[NB0:]
    G.insert(len(G) - OPT.get("gp", 3), [f"#poll 0 {vPollR}"])
    if FAK: G.insert(FAK, ["#flagA"])
    mix(G, w1[:NW0])
    stamp(A, 3, 4)
    A("s_waitcnt lgkmcnt(0)")
    srd(A, sSO, 80, 81, 0x400000)
    A(f"s_cmp_eq_u32 s{sW}, 0"); A("s_cbranch_scc0 M_gate")
    poll_check(F_A, MASK_R, len(vm) - pmark[0], None, 2)
    A.label("M_gate")
    waitfor(vm=["B0"])
    A("s_barrier")
    stamp(A, 3, 1); stamp(A, 4, 4)
    ACCF, ACCP, ACCS = 88, 120, 24
    BR = lambda p: Reg('a', 112 + 4 * p)
    t0 = tq + 12
    B = Asm()
    for r in range(ACCF, ACCF + 64, 2): B(f"v_pk_mov_b32 v[{r}:{r+1}], 0, 0")
    kb = acc[("k0", 0)].base; vb = acc[("v0", 0)].base
    zl = lines(B)
    B = Asm()
    for dt in range(2):
        for i in range(4):
            phi_tile(B, kb + 16 * dt + 4 * i, tq, kb + 16 * dt + 8 * (i // 2) + 2 * (i % 2))
    pk = lines(B); NK1 = len(pk) * OPT.get("k1", 100) // 100
    mix([aop(*aq[k]) for k in range(2 * NPRE)] + Grest, w1[NW0:] + ["s_nop 1"] + zl + pk[:NK1])
    fill = {}
    def spread(ls, c0, c1):
        n = c1 - c0
        for c in range(n):
            fill.setdefault(c0 + c, []).extend(ls[len(ls) * c // n: len(ls) * (c + 1) // n])
    vONE = tq + 8
    B = Asm()
    B(f"v_add_u32 v{vRh}, 0x10000, v{vL16}")
    for j in range(4): B(f"v_mov_b32 v{vONE+j}, 0x3f803f80")
    for et in range(2):
        for i in range(4):
            src = vb + 16 * et + 4 * i
            dst = vb + 16 * et + 8 * (i // 2) + 2 * (i % 2)
            B(f"v_cvt_pk_bf16_f32 v{dst}, v{src}, v{src+1}")
            B(f"v_cvt_pk_bf16_f32 v{dst+1}, v{src+2}, v{src+3}")
    B(f"""
    s_mul_i32 s{sT}, s{sW}, 6144
    s_add_u32 s{sT}, s{sT}, {KVL}
    v_add_u32 v{vk0}, s{sT}, v{vL16}
    s_lshl_b32 s{sT}, s{sW}, 10
    """)
    for u in range(2):
        for dt in range(2):
            for et in range(3):
                a = kb + 16 * dt + 8 * u
                b = vb + 16 * et + 8 * u if et < 2 else vONE
                p = PT(dt * 3 + et)
                B(f"v_mfma_f32_16x16x32_bf16 {p}, v[{a}:{a+3}], v[{b}:{b+3}], {'0' if u == 0 else p}")
    B(f"""
    s_add_u32 s{sT+1}, s{sT}, {KVL}
    v_add_u32 v{vk1}, s{sT+1}, v{vL16}
    s_lshl_b32 s{sT+1}, s{sHD}, 3
    s_add_u32 s{sT+1}, s{sT+1}, s{sRB}
    s_mul_i32 s{sT+1}, s{sT+1}, 6144
    v_add_u32 v{vk2}, s{sT}, v{vL16}
    s_add_u32 s{sT+2}, s{sT+1}, 4096
    """)
    ls = pk[NK1:] + lines(B) + [f"s_cmp_lt_u32 s{sW}, 2\ns_cselect_b32 s{sT+2}, s{sT+2}, 0x70000000"]
    ls += [(f"ds_write_b128 v{vk0}, {PT(t)} offset:{1024*t}", "kvw") for t in range(6)]
    spread(ls, 0, 16 + 6)
    barrier_lg = {1: ["kvw"]}
    tb = kb
    def sum4(E, b):
        E(f"v_pk_add_f32 v[{b}:{b+1}], v[{b}:{b+1}], v[{b+4}:{b+5}]")
        E(f"v_pk_add_f32 v[{b+2}:{b+3}], v[{b+2}:{b+3}], v[{b+6}:{b+7}]")
        E(f"v_pk_add_f32 v[{b+8}:{b+9}], v[{b+8}:{b+9}], v[{b+12}:{b+13}]")
        E(f"v_pk_add_f32 v[{b+10}:{b+11}], v[{b+10}:{b+11}], v[{b+14}:{b+15}]")
        E(f"v_pk_add_f32 v[{b}:{b+1}], v[{b}:{b+1}], v[{b+8}:{b+9}]")
        E(f"v_pk_add_f32 v[{b+2}:{b+3}], v[{b+2}:{b+3}], v[{b+10}:{b+11}]")
    ls = [(f"ds_read_b128 v[{tb+4*sw}:{tb+4*sw+3}], v{vk1} offset:{6144*sw}", "kvr") for sw in range(4)]
    ls += [(f"ds_read_b128 v[{tb+16+4*sw}:{tb+16+4*sw+3}], v{vk1} offset:{6144*sw+4096}", "kvr") for sw in range(4)]
    spread(ls, 16 + 10, 32 + 2)
    B = Asm()
    sum4(B, tb)
    B(f"buffer_store_dwordx4 v[{tb}:{tb+3}], v{vk2}, s[{sSK}:{sSK+3}], s{sT+1} offen sc1")
    sum4(B, tb + 16)
    B(f"buffer_store_dwordx4 v[{tb+16}:{tb+19}], v{vk2}, s[{sSK}:{sSK+3}], s{sT+2} offen sc1")
    spread(["@lg kvr"] + tagged(lines(B), "kvs"), 32 + 6, 32 + 12)
    B = Asm(); swiglu_pair(B, 2, tq)
    spread(tagged(lines(B), "h2"), 16 * 2 + 12, 16 * 5 + 8)
    B = Asm()
    B(f"""
    v_and_b32 v{t0}, 15, v0
    v_lshlrev_b32 v{t0+2}, 4, v{t0}
    v_bfe_u32 v{t0+1}, v0, 4, 1
    v_lshl_add_u32 v{t0+2}, v{t0+1}, 10, v{t0+2}
    v_lshrrev_b32 v{t0+1}, 5, v0
    v_lshl_add_u32 v{t0+2}, v{t0+1}, 8, v{t0+2}
    v_sub_u32 v{vLn}, v{vX}, v{vL16}
    v_add_u32 v{vLn}, v{vLn}, v{t0+2}
    v_lshrrev_b32 v{t0+1}, 4, v0
    v_and_b32 v{t0+2}, 7, v0
    v_xor_b32 v{t0+1}, v{t0+1}, v{t0+2}
    v_lshlrev_b32 v{t0+1}, 4, v{t0+1}
    v_lshl_add_u32 v{vXf}, v{t0}, 7, v{t0+1}
    v_lshrrev_b32 v{t0}, 3, v0
    v_xor_b32 v{t0+2}, v{t0+2}, v{t0}
    v_lshlrev_b32 v{t0}, 11, v{t0}
    v_lshl_add_u32 v{vXO}, v{t0+2}, 4, v{t0}
    s_lshl_b32 s{sT}, s{sRT}, 18
    s_lshl_b32 s{sT+3}, s{sW}, 16
    s_add_u32 s{sT}, s{sT}, s{sT+3}
    s_lshl_b32 s{sT+3}, s{sCT}, 7
    s_add_u32 s{sT}, s{sT}, s{sT+3}
    v_add_u32 v{vXO}, s{sT}, v{vXO}
    s_add_u32 s{sT}, s{sM0}, {XL}
    v_add_u32 v{vXf}, s{sT}, v{vXf}
    v_xor_b32 v{vXf2}, 64, v{vXf}
    v_add_u32 v{vXl}, s{sT}, v{vL16}
    s_lshr_b32 s{sT}, s{sW}, 1
    s_add_u32 s{sT}, s{sT}, s{sW}
    s_lshl_b32 s{sT}, s{sT}, 10
    s_mul_i32 s{sT+3}, s{sHD}, 49152
    s_add_u32 s{sT}, s{sT}, s{sT+3}
    v_add_u32 v{vKv}, s{sT}, v{vL16}
    v_and_b32 v{t0}, 7, v0
    v_mul_u32_u24 v{vZ}, 6144, v{t0}
    v_bfe_u32 v{t0}, v0, 3, 2
    v_lshl_add_u32 v{vZ}, v{t0}, 8, v{vZ}
    v_lshrrev_b32 v{t0}, 5, v0
    v_mul_u32_u24 v{t0}, 3072, v{t0}
    v_add3_u32 v{vZ}, v{vZ}, v{t0}, s{sT+3}
    s_and_b32 s{sT}, s{sW}, 1
    s_lshl_b32 s{sT}, s{sT}, 10
    s_lshr_b32 s{sT+3}, s{sW}, 1
    s_lshl_b32 s{sT+3}, s{sT+3}, 3
    s_add_u32 s{sT}, s{sT}, s{sT+3}
    s_add_u32 s{sT}, s{sT}, {FIN}
    v_add_u32 v{vFw}, s{sT}, v{vL16}
    v_bfe_u32 v{t0}, v0, 3, 2
    v_lshlrev_b32 v{t0}, 4, v{t0}
    v_lshrrev_b32 v{t0+1}, 5, v0
    v_lshl_add_u32 v{t0}, v{t0+1}, 3, v{t0}
    v_add_u32 v{vZw}, {FIN+2048}, v{t0}
    v_and_b32 v{t0}, 48, v0
    v_add_u32 v{vZr}, {FIN+2048}, v{t0}
    v_add_u32 v{vFr}, {FIN}, v{vL16}
    """)
    spread(lines(B)[:8], 16 * 1 + 6, 16 * 1 + 12)
    spread([f"v_and_b32 v{t0}, 15, v0"] + lines(B)[8:], 16 * 8, 16 * 10)
    B = Asm()
    for i in (0, 2):
        o = acc[("g6", i)].base
        swiglu_tile(B, 6, i, tq, o)
        swiglu_tile(B, 6, i + 1, tq, o + 2)
        B("s_nop 1")
        B(f"v_permlane16_swap_b32 v{o}, v{o+2}")
        B(f"v_permlane16_swap_b32 v{o+1}, v{o+3}")
        B(f"buffer_store_dwordx4 v[{o}:{o+3}], v{vLn}, s[{sSH}:{sSH+3}], s{sCL} offen offset:{1024*i} sc1")
    spread(tagged(lines(B), "h3"), 16 * 5 + 8, 16 * 7)
    pqb = 240
    B = Asm()
    for i in range(4):
        for dt in range(2):
            qa = acc[(f"q{dt}", i)].base
            for j in range(4): B(f"v_accvgpr_read_b32 v{tq+j}, a{qa+j}")
            phi_tile(B, tq, tq + 4, pqb + 4 * i + 2 * dt)
    spread(lines(B), 16 * 10, 16 * 15)
    kvb, zb, fr, ob = 24, 56, 60, 152
    GB = check_pos(first_at[16]) // 16
    extra = {}
    for r in range(8):
        extra[16 * GB + 12 + 4 * r] = [f"s_mov_b32 s{sT+1}, {6144*r}", (f"buffer_load_dwordx4 v[{kvb+4*r}:{kvb+4*r+3}], v{vKv}, s[{sSK}:{sSK+3}], s{sT+1} offen sc1", "kvg")]
    extra[16 * (GB + 2) + 14] = [(f"buffer_load_dwordx4 v[{zb}:{zb+3}], v{vZ}, s[{sSK}:{sSK+3}], 0 offen offset:2048 sc1", "kvg")]
    B = Asm()
    for st in (16, 8, 4):
        for r in range(0, st, 2):
            B(f"v_pk_add_f32 v[{kvb+r}:{kvb+r+1}], v[{kvb+r}:{kvb+r+1}], v[{kvb+st+r}:{kvb+st+r+1}]")
    for dpp in ("quad_perm:[1,0,3,2]", "quad_perm:[2,3,0,1]", "row_half_mirror"):
        for j in range(4):
            B(f"v_add_f32_dpp v{zb+j}, v{zb+j}, v{zb+j} {dpp} row_mask:0xf bank_mask:0xf")
    B(f"""
    v_cvt_pk_bf16_f32 v{kvb}, v{kvb}, v{kvb+1}
    v_cvt_pk_bf16_f32 v{kvb+1}, v{kvb+2}, v{kvb+3}
    v_cvt_pk_bf16_f32 v{zb}, v{zb}, v{zb+1}
    v_cvt_pk_bf16_f32 v{zb+1}, v{zb+2}, v{zb+3}
    ds_write_b64 v{vFw}, v[{kvb}:{kvb+1}]
    ds_write_b64 v{vZw}, v[{zb}:{zb+1}]
    """)
    spread(["@vm kvg"] + tagged(lines(B), "fw"), 16 * (GB + 4), 16 * (GB + 4) + 7)
    barrier_lg[GB + 4] = ["fw"]
    spread([(f"ds_read_b128 v[{fr}:{fr+3}], v{vFr}", "frr"), (f"ds_read_b128 v[{fr+4}:{fr+7}], v{vFr} offset:1024", "frr"),
            (f"ds_read_b128 v[{fr+8}:{fr+11}], v{vZr}", "frr")], 16 * (GB + 4) + 10, 16 * (GB + 4) + 13)
    B = Asm()
    B(f"s_add_u32 s{sT}, s{sHD}, 112")
    B(f"s_lshl_b32 s{sT}, s{sT}, 17")
    for i in range(4):
        for et in (2, 0, 1):
            d = ob + 12 * i + 4 * et
            B(f"v_mfma_f32_16x16x32_bf16 v[{d}:{d+3}], v[{fr+4*et}:{fr+4*et+3}], v[{pqb+4*i}:{pqb+4*i+3}], 0")
    for i in range(4): B(f"v_add_f32 v{ob+12*i+8}, s{sEPS}, v{ob+12*i+8}")
    for i in range(4): B(f"v_rcp_f32 v{ob+12*i+8}, v{ob+12*i+8}")
    for i in range(4):
        d = ob + 12 * i
        for q in range(4):
            B(f"v_pk_mul_f32 v[{d+2*q}:{d+2*q+1}], v[{d+2*q}:{d+2*q+1}], v[{d+8}:{d+9}] op_sel_hi:[1,0]")
        for q in range(4):
            B(f"v_cvt_pk_bf16_f32 v{d+q}, v{d+2*q}, v{d+2*q+1}")
        B(f"buffer_store_dwordx4 v[{d}:{d+3}], v{vX}, s[{sSH}:{sSH+3}], s{sT} offen offset:{1024*i} sc1")
    spread(["@lg frr"] + tagged(lines(B), "os"), 16 * (GB + 5) + 2, 16 * (GB + 5) + OPT.get("ow", 32))
    spread([f"v_pk_mov_b32 v[{r}:{r+1}], 0, 0" for r in range(ACCS, ACCS + 32, 2)], 16 * 22, 16 * 23)
    sSE = 16
    S = Asm(); srd(S, sSE, 14, 15, EX_SIZE, EX_OFF)
    ls = ["\n".join(lines(S)),
          f"s_lshl_b32 s{sT+1}, s2, 2", f"s_add_u32 s{sT+1}, s{sT+1}, s{sW}", f"s_lshl_b32 s{sT+1}, s{sT+1}, 13",
          f"s_add_u32 s{sT+2}, s{sT+1}, 4096"]
    assert LSTR & (LSTR - 1) == 0
    spread(ls, 16 * (NS - 1), 16 * NS)
    XB = OPT.get("xbf", 1)
    NX = 4 if XB else 8
    if XB:
        ls = []
        for k in range(4):
            for q in range(4): ls.append(f"v_cvt_pk_bf16_f32 v{ACCP+4*k+q}, v{ACCP+8*k+2*q}, v{ACCP+8*k+2*q+1}")
            ls.append((f"buffer_store_dwordx4 v[{ACCP+4*k}:{ACCP+4*k+3}], v{vL16}, s[{sSE}:{sSE+3}], s{sT+1} offen offset:{1024*k} sc1", "ex"))
        spread(ls, 16 * NS + 2, 16 * NS + OPT.get("exs", 14))
    else:
        for k in range(8):
            extra.setdefault(16 * NS + 2 + 4 * k, []).append(
                (f"buffer_store_dwordx4 v[{ACCP+4*k}:{ACCP+4*k+3}], v{vL16}, s[{sSE}:{sSE+3}], s{sT+1+k//4} offen offset:{1024*(k%4)} sc1", "ex"))
    assert XB
    EXG = 16 * NS + OPT.get("exg", 38)
    EXP = EXG + OPT.get("exp", 16)
    EXL = EXP + OPT.get("exc", 16)
    extra.setdefault(EXG, []).extend(["@vm ex", f"v_mov_b32 v{vT}, s{sTag}", f"v_mov_b32 v{vT+1}, 1", "s_mov_b64 exec, 1",
        (f"buffer_store_dwordx2 v[{vT}:{vT+1}], off, s[{sSE}:{sSE+3}], s{sT+2} sc1", "exf"), "s_mov_b64 exec, -1",
        f"s_xor_b32 s{sT+1}, s{sT+1}, {32 << 15}", f"s_xor_b32 s{sT+2}, s{sT+2}, {32 << 15}"])
    expoll = f"buffer_load_dwordx2 v[{vPv}:{vPv+1}], off, s[{sSE}:{sSE+3}], s{sT+2} sc1"
    extra.setdefault(EXP, []).append((expoll, "exp"))
    extra.setdefault(EXL, []).extend(["@vm exp", "#excheck"])
    for k in range(NX):
        extra.setdefault(EXL + 2 * k, []).append(
            (f"buffer_load_dwordx4 v[{ACCP+4*k}:{ACCP+4*k+3}], v{vL16}, s[{sSE}:{sSE+3}], s{sT+1+k//4} offen offset:{1024*(k%4)} sc1", "exl"))
    vXD, tb = 72, 152
    sX0 = 45
    xb0 = 184
    B = Asm()
    if XB:
        for r in range(16):
            B(f"v_lshlrev_b32 v{tb+2*r}, 16, v{ACCP+r}")
            B(f"v_and_b32 v{tb+2*r+1}, 0xffff0000, v{ACCP+r}")
    for r in range(0, 32, 2): B(f"v_pk_add_f32 v[{ACCF+r}:{ACCF+r+1}], v[{ACCF+r}:{ACCF+r+1}], v[{(tb if XB else ACCP)+r}:{(tb if XB else ACCP)+r+1}]")
    for r in range(0, 32, 2): B(f"v_pk_mul_f32 v[{tb+r}:{tb+r+1}], v[{ACCF+r}:{ACCF+r+1}], s[{sNL}:{sNL+1}]")
    for r in range(32): B(f"v_exp_f32 v{tb+r}, v{tb+r}")
    for r in range(0, 32, 2): B(f"v_pk_add_f32 v[{tb+r}:{tb+r+1}], v[{tb+r}:{tb+r+1}], 1.0 op_sel_hi:[1,0]")
    for r in range(32): B(f"v_rcp_f32 v{tb+r}, v{tb+r}")
    for r in range(0, 32, 2): B(f"v_pk_mul_f32 v[{ACCF+r}:{ACCF+r+1}], v[{ACCF+r}:{ACCF+r+1}], v[{tb+r}:{tb+r+1}]")
    S0 = max(EXL + OPT.get("exw", 22), 16 * 28 + 2)
    spread(["@vm exl"] + lines(B), S0, min(S0 + 56, 16 * 36 - 2))
    spread([(f"ds_read_b128 v[{vXD+4*k}:{vXD+4*k+3}], v{vXf2 if k % 2 else vXf} offset:{2048*(k//2)}", "xr") for k in range(4)], 16 * 23, 16 * 23 + 5)
    ls = ["@lg xr"]
    for k in range(4):
        for q in range(4):
            ls.append(f"v_lshlrev_b32 v{xb0+8*k+2*q}, 16, v{vXD+4*k+q}")
            ls.append(f"v_and_b32 v{xb0+8*k+2*q+1}, 0xffff0000, v{vXD+4*k+q}")
    spread(ls, 16 * 24, 16 * 26)
    base = F_LN | F_WT | F_A
    FB, FL, FC = OPT.get("fb", 6), OPT.get("fl", 8), GB + OPT.get("fc", 8)
    F_L = F_E
    flags = {OPT.get("fa2", 0): (base | F_A2, ["h1"]), FB: (base | F_A2 | F_B, ["kvs", "h2"]), FL: (base | F_A2 | F_B | F_L, ["h3"]),
             FC: (base | F_A2 | F_B | F_L | F_C, ["os"])}
    checks = {check_pos(first_at[8]): (F_A2, MASK_R, vPollR), check_pos(first_at[16]): (F_B, MASK_R | MASK_U, vPollH),
              check_pos(first_at[24]): (F_L, MASK_R, vPollR if OPT.get('lp', 0) else None), check_pos(first_at[28]): (F_C, MASK_R, vPollR)}
    print("checks at", sorted((c // 16, c % 16) for c in checks), file=sys.stderr)
    Y = OPT.get("y", 0)
    if Y & 1: checks = {k: v for k, v in checks.items() if v[0] == F_C}
    if Y & 2: flags = {k: v for k, v in flags.items() if k == 19}
    if Y & 4:
        for k in list(extra):
            if any(isinstance(x, tuple) and x[1] == "kvg" for x in extra[k]) and k != 16 * 14 + 14: del extra[k]
    if Y & 8:
        for k in list(extra):
            extra[k] = [x for x in extra[k] if not ((isinstance(x, tuple) and x[1] in ("exl", "exp", "exf")) or x in ("@vm ex", "@vm exp", "#excheck"))]
        for k in fill: fill[k] = [x for x in fill[k] if not ((isinstance(x, tuple) and x[1] == "ex") or x == "@vm exl")]
    if Y & 16:
        for k in fill: fill[k] = [x for x in fill[k] if isinstance(x, tuple) or not x.startswith(("v_exp", "v_rcp"))]
    for c, (bit, mask, va) in checks.items():
        pc = c - OPT.get("pdist", 19)
        if va is not None: extra.setdefault(pc, []).append(f"#poll {c} {va}")
    if OPT.get("unpk", 0) & 2:
        for k in fill:
            out = []
            for x in fill[k]:
                if isinstance(x, str) and x.startswith("v_pk_") and "op_sel_hi:[1,0]" not in x.replace("1.0 op_sel_hi:[1,0]", "") and not x.startswith(("v_pk_mov", "v_pk_fma")):
                    out += unpack([x])
                else: out.append(x)
            fill[k] = out
    CH2 = OPT.get("ch2", 0)
    def fmap(n, F):
        if not CH2: return (F * nq(n) // 16, F // 4, F % 4)
        hi, j, e = F >> 3, (F >> 1) & 3, F & 1
        if n < NS: return (e, 2 * e + hi, j)
        return (2 * hi + e, 2 * hi + e, j)
    def bread(n, F):
        sl = n % G2_R
        q, ss, j = fmap(n, F)
        return (f"ds_read_b128 {BR(F % 8)}, v{vRh if sl >= 4 else vL16} offset:{(sl % 4) * G2_SLOT + 4096*ss + 1024*j}", f"b{n}_{F}")
    for k in range(OPT.get("shift", 0)): A("s_nop 0")
    if OPT.get("al2"): A.raw("    ; @align on")
    for F in range(LA): put(bread(0, F))
    stamp(A, 5, 1); stamp(A, 1, 3); stamp(A, 5, 4)
    for n in range(36):
        for F in range(16):
            q, ss, j = fmap(n, F)
            accb = ACCS if n >= 28 else (ACCP if (n < NS and ss & 1) else ACCF)
            c = 16 * n + F
            wv, wl = [], []
            if F % 2 == 0: wl = [f"b{n}_{F}", f"b{n}_{F+1}"]
            if not CH2 and j == 0: wv = [f"A{n}q{q}"]
            if CH2 and F % 8 == 0: wv = [f"A{n}q{q}", f"A{n}q{q+1}"]
            bar = F == 10 and n < 35 and (n % BP == 0 or n in barrier_lg or n in flags or 16 * n + 9 in checks)
            if bar:
                if n % BP == 0: wv += [f"B{m}" for m in range(n + 1, min(n + BP, 35) + 1)]
                wv += flags[n][1] if n in flags else []
                wl += barrier_lg.get(n, [])
            waitfor(vm=wv, lg=wl)
            if bar:
                A("s_barrier")
                if n in flags: flag_set(flags[n][0])
            order = (0, 1) if (F % 2 == 0 or not OPT.get("snake")) else (1, 0)
            m = lambda i: f"v_mfma_f32_16x16x32_bf16 v[{accb+16*i+4*j}:{accb+16*i+4*j+3}], {BR(F % 8)}, {AR(ch0[n] + q, i)}, v[{accb+16*i+4*j}:{accb+16*i+4*j+3}]"
            if CH2:
                F0 = F & ~1; q0 = q - (F & 1)
                ti = (F & 1) ^ ((F >> 1) & 1)
                order = (0, 1) if F % 2 == 0 else (1, 0)
                m = lambda e: f"v_mfma_f32_16x16x32_bf16 v[{accb+16*ti+4*j}:{accb+16*ti+4*j+3}], {BR((F0 + e) % 8)}, {AR(ch0[n] + q0 + e, ti)}, v[{accb+16*ti+4*j}:{accb+16*ti+4*j+3}]"
            nn, nF = (n, F + LA) if F + LA < 16 else (n + 1, F + LA - 16)
            fl = fill.get(c, [])
            h = len(fl) // 2 if OPT.get("gap2") else 0
            A(m(order[0]))
            if nn < 36: put(bread(nn, nF))
            for x in fl[:h]: put(x)
            A(m(order[1]))
            if c in asched:
                for x in aop(*asched[c]): put(x)
            if c in bsched:
                for x in bop(*bsched[c]): put(x)
            for x in extra.get(c, []): put(x)
            for x in fl[h:]: put(x)
            if c in checks:
                bit, mask, va = checks[c]
                A(f"s_cmp_eq_u32 s{sW}, 0"); A(f"s_cbranch_scc0 M_nc{c}")
                poll_check(bit, mask, len(vm) - pmark[c] if va is not None else None, va)
                if bit != F_C: A.label(f"M_nc{c}")
                if bit == F_C:
                    A(f"""
                    s_or_b32 s{sTm}, s2, s{sW}
                    s_cmp_eq_u32 s{sTm}, 0
                    s_cbranch_scc0 M_nobump
                    v_mov_b32 v{vT}, s{sTag}
                    s_mov_b32 s{sTm}, {EPOCH}
                    s_mov_b64 exec, 1
                    buffer_store_dword v{vT}, off, s[{sSF}:{sSF+3}], s{sTm} sc1
                    s_mov_b64 exec, -1
                    """)
                    A.label("M_nobump"); A.label(f"M_nc{c}")
        if n in (3, 7, 11, 19, 31): stamp(A, {3: 2, 7: 3, 11: 4, 19: 5, 31: 6}[n], 3)
        if n in (19, 21, 23, 25, 27, 29): stamp(A, (n - 17) // 2, 5)
        if n in (11, 13, 15, 17, 19, 21): stamp(A, (n - 9) // 2, 6)
    A("s_nop 4")
    for i in range(2):
        for pr in range(2):
            t0 = 16 * i + 8 * pr
            x = vXD + 8 * i + 4 * pr
            for q in range(4):
                t = t0 + 2 * q
                A(f"v_pk_fma_f32 v[{ACCS+t}:{ACCS+t+1}], v[{ACCS+t}:{ACCS+t+1}], v[{ACCF+t}:{ACCF+t+1}], v[{xb0+t}:{xb0+t+1}]")
            for q in range(4):
                A(f"v_cvt_pk_bf16_f32 v{x+q}, v{ACCS+t0+2*q}, v{ACCS+t0+2*q+1}")
            A(f"ds_write_b128 v{vXf2 if pr else vXf}, v[{x}:{x+3}] offset:{2048*i}")
        if i == 0: A(f"s_mov_b32 s{sX0}, 16384"); A(f"s_mov_b32 s{sX0+1}, 32768"); A(f"s_mov_b32 s{sT}, 49152")
        for k in (2 * i, 2 * i + 1):
            A(f"ds_read_b128 v[{tb+4*k}:{tb+4*k+3}], v{vXl} offset:{1024*k}")
    for k in range(4):
        A(f"s_waitcnt lgkmcnt({[5, 4, 1, 0][k]})")
        A(f"buffer_store_dwordx4 v[{tb+4*k}:{tb+4*k+3}], v{vXO}, s[{sSO}:{sSO+3}], {['0', f's{sX0}', f's{sX0+1}', f's{sT}'][k]} offen sc0 sc1 nt")
    stamp(A, 6, 1)
    if OPT["stamp"]:
        A("s_memrealtime s[100:101]")
        A("s_waitcnt lgkmcnt(0)")
        if OPT.get("amp"):
            a, b, sh = {1: (100, 99, 0), 2: (SREG[1], 99, 2), 3: (SREG[2], SREG[1], 0), 4: (100, SREG[2], 0)}[OPT["amp"]]
            A(f"s_sub_u32 s{sT}, s{a}, s{b}"); A(f"s_lshl_b32 s{sT}, s{sT}, {sh}"); A(f"s_min_u32 s{sT}, s{sT}, 20000")
            A(f"s_mov_b32 s{sT+1}, s100")
            A.label("M_amp")
            A("s_memrealtime s[100:101]"); A("s_waitcnt lgkmcnt(0)")
            A(f"s_sub_u32 s{sT+2}, s100, s{sT+1}"); A(f"s_cmp_lt_u32 s{sT+2}, s{sT}"); A("s_cbranch_scc1 M_amp")
            A("s_branch M_end")
        if OPT.get("dbgout"):
            A("s_load_dwordx2 s[20:21], s[0:1], 64"); A("s_waitcnt lgkmcnt(0)")
            srd(A, 16, 20, 21, 256)
            A(f"s_add_u32 s{sT}, s2, 1"); A(f"s_and_b32 s{sT}, s{sT}, 0xfe"); A(f"s_or_b32 s{sT}, s{sT}, s{sW}")
            A(f"s_cmp_eq_u32 s{sT}, 0"); A("s_cbranch_scc0 M_end")
            A(f"s_and_b32 s{sT}, s2, 32"); A(f"v_mov_b32 v0, s{sT}")
            for i, r in enumerate(SREG[1:] + [100]):
                A(f"s_sub_u32 s{sT}, s{r}, s99"); A(f"v_mov_b32 v1, s{sT}"); A(f"buffer_store_dword v1, v0, s[16:19], 0 offen offset:{4*i}")
            A(f"v_mov_b32 v1, s99"); A(f"buffer_store_dword v1, v0, s[16:19], 0 offen offset:28")
            A("s_branch M_end")
        srd(A, 16, 14, 15, 0x10000, STAMP_OFF + 0x10000)
        A(f"s_lshl_b32 s{sT}, s2, 2"); A(f"s_add_u32 s{sT}, s{sT}, s{sW}"); A(f"s_lshl_b32 s{sT}, s{sT}, 6")
        A(f"v_mov_b32 v0, s{sT}")
        for i, r in enumerate(SREG):
            A(f"v_mov_b32 v1, s{r}"); A(f"buffer_store_dword v1, v0, s[16:19], 0 offen offset:{4*i}")
        A(f"v_mov_b32 v1, s100"); A(f"buffer_store_dword v1, v0, s[16:19], 0 offen offset:56")
        A(f"v_mov_b32 v1, s99"); A(f"buffer_store_dword v1, v0, s[16:19], 0 offen offset:60")
    A.label("M_end")
    A("s_endpgm")
    return A.text()

def build():
    K = NAME + "_kernel"
    hdr = open(f"cdna_kernels/{NAME}.s.ref").read().split("; Override")[0]
    out = [hdr.rstrip("\n")]
    if OPT.get("list"):
        out.append(f"; @launch kernel={K} grid=(256,1,1) block=(256,1,1) lds={LDS_BYTES}")
    else:
        out.append(f"; @launch grid=(256,1,1) block=(256,1,1) lds={LDS_BYTES}")
    out.append('.amdgcn_target "amdgcn-amd-amdhsa--gfx950"')
    out.append(".text")
    NO_NOP[0] = OPT['align'] == 2
    body, size = align_kernel(gen())
    for p in check_hazards(body): print("HAZARD", p, file=sys.stderr)
    print("code bytes", size, file=sys.stderr)
    assert size < 65536
    out.append(body.rstrip("\n"))
    out.append(".p2align 8")
    out.append(f".fill {(66560 - size) // 4}, 4, 0xbf810000")
    out.append(f""".section .rodata,"a"
.p2align 6
.amdhsa_kernel {K}
  .amdhsa_next_free_vgpr 512
  .amdhsa_next_free_sgpr 102
  .amdhsa_accum_offset 256
  .amdhsa_group_segment_fixed_size 0
  .amdhsa_kernarg_size 80
  .amdhsa_user_sgpr_count 2
  .amdhsa_user_sgpr_kernarg_segment_ptr 1
  .amdhsa_system_sgpr_workgroup_id_x 1
.end_amdhsa_kernel""")
    return "\n".join(out) + "\n"

if __name__ == "__main__":
    for a in sys.argv[2:]:
        k, v = a.split("="); OPT[k] = int(v)
    WS_BASE = OPT.get('wsb', 0) << 20
    LSTR = OPT.get('lstr', LSTR); FLG_SIZE = 33 * LSTR; EPOCH = 32 * LSTR
    XF_OFF += WS_BASE; HF_OFF += WS_BASE; KVP_OFF += WS_BASE; WT_OFF += WS_BASE; FLG_OFF += WS_BASE; EX_OFF += WS_BASE
    open(sys.argv[1], "w").write(build())
```

```python
import sys, struct, re
from asmlib import *

NAME = "recurrent_scan__linear_attn_block__swiglu_ffn__prompt"
XF_OFF = 0x0
HF_OFF = 0x400000
HF_SIZE = 144 * 131072
KVP_OFF = 0x1600000
KVP_SIZE = 32 * 8 * 6144
WT_OFF = 0x1C00000
WT_SIZE = 144 * 65536
FLG_OFF = 0x2800000
LSTR = 128
FLG_SIZE = 33 * LSTR
EPOCH = 32 * LSTR
STAMP_OFF = 0x3000000
EX_OFF = 0x3400000
EX_SIZE = 256 * 32768

def f2u(x): return struct.unpack("<I", struct.pack("<f", x))[0]
LOG2E = 1.4426950408889634
OPT = dict(stamp=0, align=0, snake=1, unpk=3, e0n=44, gap2=1)

G1_S, G1_SLOT = 6, 20480
CSC = G1_S * G1_SLOT
G2_R, G2_SLOT = 7, 16384
KVL = G2_R * G2_SLOT
FIN = KVL + 26624
XL = FIN + 4096 + 1024
LDS_BYTES = XL + 16384
F_LN, F_WT, F_A, F_A2, F_E, F_B, F_C = 1, 2, 4, 8, 16, 32, 64

def srd(A, d, lo, hi, size, off=0):
    if off:
        A(f"s_add_u32 s{d}, s{lo}, 0x{off:x}")
        A(f"s_addc_u32 s{d+1}, s{hi}, 0")
    else:
        A(f"s_mov_b32 s{d}, s{lo}")
        A(f"s_mov_b32 s{d+1}, s{hi}")
    A(f"s_mov_b32 s{d+2}, 0x{size:x}")
    A(f"s_mov_b32 s{d+3}, 0x00020000")

SREG = [6, 7, 86, 87, 96, 97, 98]
def stamp(A, idx, mode):
    if OPT["stamp"] != mode: return
    A("s_memrealtime s[100:101]" if OPT.get("rt") else "s_memtime s[100:101]")
    A("s_waitcnt lgkmcnt(0)")
    A(f"s_mov_b32 s{SREG[idx]}, s100")

def interleave(A, groups, work):
    per = -(-len(work) // len(groups)); wi = 0
    for grp in groups:
        for l in grp: A(l)
        for l in work[wi:wi + per]: A(l)
        wi += per
    for l in work[wi:]: A(l)

def NT(b): return " nt" if OPT.get("nt", 5) & b else ""
def lines(B): return [l.strip() for l in B.lines]

def gen():
    A = Asm()
    K = NAME + "_kernel"
    A.raw(f".globl {K}\n.p2align 8\n.type {K},@function\n{K}:")
    if OPT["align"]: A.raw("    ; @align on")
    vX, vD, vA0, vA1, vAG, vB0, vB1, vBG, vL16 = 1, [2, 3, 4, 5, 6], 7, 8, 9, 10, 11, 12, 13
    vT = 14
    vPollR, vPv, vCd, vPollW, vPollH, vCs, vDum = 17, 18, 16, 20, 21, 22, 23
    vTq, vTg = 20, 21
    names = ["g0", "u0", "g1", "u1", "k0", "k1", "v0", "v1", "q0", "q1"]
    for t in range(2, 7): names += [f"g{t}", f"u{t}"]
    acc = {}
    nv = 24; na = 0
    for nm in ["k0", "k1", "v0", "v1"] + [f"g{t}" for t in range(7)]:
        for i in range(4):
            acc[(nm, i)] = Reg('v', nv); nv += 4
    for t in range(7):
        for i in range(4):
            if t * 4 + i < 14:
                acc[(f"u{t}", i)] = Reg('v', nv); nv += 4
            else:
                acc[(f"u{t}", i)] = Reg('a', na); na += 4
    for nm in ["q0", "q1"]:
        for i in range(4):
            acc[(nm, i)] = Reg('a', na); na += 4
    assert nv == 256 and na == 88
    XR = lambda s, i: Reg('a', 88 + 16 * s + 4 * i)
    WR = lambda p: Reg('a', 152 + 4 * p)
    accm = acc
    if OPT.get("classic"):
        accm = {}; k = 0
        for nm in names:
            for i in range(4):
                accm[(nm, i)] = Reg('a', 4 * k) if k < 52 else Reg('v', 24 + 4 * (k - 52)); k += 1
        XR = lambda s, i: Reg('v', 136 + 16 * s + 4 * i)
        WR = lambda p: Reg('v', 200 + 4 * p)
    PT = lambda t: Reg('a', 88 + 4 * t)
    CT = lambda k: Reg('a', 208 + 4 * k)
    sSX, sSD = 16, [20, 24, 28, 32, 36]
    sSCs, sSCd, sSF = 40, 72, 92
    sST = [76, 80, 44]
    sW, sHD, sRB, sXo, sWoA, sWoB, sStA, sStB, sM, sR, sCnt = 48, 49, 50, 51, 52, 53, 54, 55, 56, 57, 58
    sSLOT, sREND, sMEND, sM0, sCl, sCs = 59, 60, 61, 62, 63, 3
    sToq, sTog, sFo, sSpin, sTag, sTm = 88, 89, 90, 91, 12, 13
    sT = 64
    uid = [0]; site = [0]
    def flag_set(val):
        uid[0] += 1; L = f"M_fs{uid[0]}"
        A(f"""
        s_cmp_eq_u32 s{sW}, 0
        s_cbranch_scc0 {L}
        v_mov_b32 v{vT}, s{sTag}
        v_mov_b32 v{vT+1}, {val}
        s_mov_b64 exec, 1
        buffer_store_dwordx2 v[{vT}:{vT+1}], off, s[{sSF}:{sSF+3}], s{sFo} sc1
        s_mov_b64 exec, -1
        """)
        A.label(L)
    def poll_issue(vaddr):
        return f"buffer_load_dwordx2 v[{vPv}:{vPv+1}], v{vaddr}, s[{sSF}:{sSF+3}], 0 offen sc1"
    MASK_R, MASK_U = 0x00000000ffffffff, 0xffffffff00000000
    def poll_eval(E, bit):
        E(f"""
        v_xor_b32 v{vT}, s{sTag}, v{vPv}
        v_bfe_u32 v{vT+1}, v{vPv+1}, {bit.bit_length()-1}, 1
        v_xor_b32 v{vT+1}, 1, v{vT+1}
        v_or_b32 v{vT}, v{vT}, v{vT+1}
        v_cmp_ne_u32 vcc, 0, v{vT}
        s_nop 3
        """)
    def repoll(L, va=None, slp=None):
        if slp is None: slp = OPT.get('sleep', 8)
        if OPT["stamp"] == 1:
            A(f"s_add_u32 s96, s96, 0x{1 << (4 * site[0]):x}"); site[0] += 1
        A(f"""
        s_add_u32 s{sSpin}, s{sSpin}, 1
        s_cmp_ge_u32 s{sSpin}, 0x40000
        s_cbranch_scc1 {L}_ok
        s_sleep {slp}
        {poll_issue(vPollR if va is None else va)}
        s_waitcnt vmcnt(0)
        s_branch {L}
        """)
    def poll_check(bit, mask, vm=None, va=None, slp=None):
        uid[0] += 1; L = f"M_pc{uid[0]}"
        if vm is not None: A(f"s_waitcnt vmcnt({vm})")
        A(f"s_mov_b32 s{sSpin}, 0")
        A.label(L)
        poll_eval(A, bit)
        lo, hi = mask & 0xffffffff, mask >> 32
        if hi == 0:
            A(f"s_cmp_eq_u32 vcc_lo, 0")
        elif lo == 0:
            A(f"s_and_b32 s{sTm}, vcc_hi, 0x{hi:x}"); A(f"s_cmp_eq_u32 s{sTm}, 0")
        else:
            A(f"s_and_b32 s{sTm}, vcc_hi, 0x{hi:x}"); A(f"s_or_b32 s{sTm}, s{sTm}, vcc_lo"); A(f"s_cmp_eq_u32 s{sTm}, 0")
        A(f"s_cbranch_scc1 {L}_ok")
        repoll(L, va, slp)
        A.label(L + "_ok")
    def cond_poll(cmp, va):
        uid[0] += 1; L = f"M_cp{uid[0]}"
        return cmp + [f"s_cbranch_scc0 {L}", poll_issue(va), L + ":"]
    def emit(ls):
        for l in ls:
            if l.endswith(":"): A.label(l[:-1])
            else: A(l)
    def lack_mask(E):
        poll_eval(E, F_A)
        E(f"""
        s_lshr_b32 s{sTm}, vcc_lo, 16
        s_or_b32 s{sLack}, s{sTm}, vcc_lo
        s_lshr_b32 s{sTm}, s{sLack}, 8
        s_or_b32 s{sLack}, s{sLack}, s{sTm}
        s_and_b32 s{sLack}, s{sLack}, 0xff
        """)
    def stage_gate(ssig):
        uid[0] += 1; L = f"M_sg{uid[0]}"
        A(f"s_bitcmp0_b32 s{sLack}, s{ssig}")
        A(f"s_cbranch_scc1 {L}_ok")
        A(f"s_mov_b32 s{sSpin}, 0")
        A(poll_issue(vPollR)); A("s_waitcnt vmcnt(0)")
        A.label(L)
        lack_mask(A)
        A(f"s_bitcmp0_b32 s{sLack}, s{ssig}")
        A(f"s_cbranch_scc1 {L}_ok")
        repoll(L)
        A.label(L + "_ok")
    A(f"""
    s_cmp_ge_u32 s2, 256
    s_cbranch_scc1 M_end
    """)
    if OPT.get("scramble"):
        A("s_and_b32 s3, s2, 7"); A("s_lshl_b32 s3, s3, 3"); A("s_bfe_u32 s4, s2, 0x30003"); A("s_and_b32 s2, s2, 0xc0")
        A("s_or_b32 s2, s2, s3"); A("s_or_b32 s2, s2, s4")
    if OPT["stamp"]:
        A("s_memrealtime s[100:101]"); A("s_waitcnt lgkmcnt(0)"); A("s_mov_b32 s99, s100"); A("s_mov_b32 s96, 0")
        A("s_memrealtime s[100:101]" if OPT.get("rt") else "s_memtime s[100:101]"); A("s_waitcnt lgkmcnt(0)"); A(f"s_mov_b32 s{SREG[0]}, s100")
    A(f"""
    s_load_dwordx4 s[68:71], s[0:1], 0
    s_load_dwordx4 s[8:11], s[0:1], 32
    s_load_dwordx4 s[12:15], s[0:1], 64
    s_load_dwordx2 s[84:85], s[0:1], 16
    s_load_dwordx2 s[{sSCs}:{sSCs+1}], s[0:1], 48
    s_getpc_b64 s[{sT+2}:{sT+3}]
    s_and_b32 s{sT+2}, s{sT+2}, 0xffffff00
    s_bfe_u32 s{sT}, s2, 0x30003
    s_lshl_b32 s{sT}, s{sT}, 12
    v_lshrrev_b32 v{vT}, 3, v0
    v_lshlrev_b32 v{vT}, 7, v{vT}
    v_add_u32 v{vT}, s{sT}, v{vT}
    global_load_dword v{vDum}, v{vT}, s[{sT+2}:{sT+3}]
    v_lshrrev_b32 v{vT}, 6, v0
    v_and_b32 v0, 63, v0
    v_readfirstlane_b32 s{sW}, v{vT}
    s_and_b32 s{sT}, s2, 7
    s_lshr_b32 s{sT+1}, s2, 3
    s_and_b32 s{sRB}, s{sT+1}, 7
    s_lshr_b32 s{sT+1}, s{sT+1}, 3
    s_lshl_b32 s{sHD}, s{sT}, 2
    s_add_u32 s{sHD}, s{sHD}, s{sT+1}
    v_lshlrev_b32 v{vL16}, 4, v0
    s_lshl_b32 s{sFo}, s{sRB}, 5
    s_add_u32 s{sFo}, s{sFo}, s{sHD}
    """)
    lX, lF, lS, lR, lA = 32, 48, 80, 88, 112
    A(f"""
    v_and_b32 v{lA}, 7, v0
    v_lshrrev_b32 v{lA+1}, 3, v0
    v_lshlrev_b32 v{lA+2}, 11, v{lA}
    v_lshl_add_u32 v{lA+2}, v{lA+1}, 4, v{lA+2}
    s_lshl_b32 s{sT}, s{sFo}, 14
    s_lshl_b32 s{sT+1}, s{sW}, 9
    s_add_u32 s{sT}, s{sT}, s{sT+1}
    v_add_u32 v{lA+2}, s{sT}, v{lA+2}
    s_waitcnt lgkmcnt(0)
    """)
    srd(A, sSX, 68, 69, 0x400000)
    for n in range(4):
        A(f"buffer_load_dwordx4 v[{lX+4*n}:{lX+4*n+3}], v{lA+2}, s[{sSX}:{sSX+3}], 0 offen offset:{128*n}{NT(4)}")
    A(f"v_and_b32 v{lA+6}, 0xfffff800, v{lA+2}")
    A(f"buffer_load_ushort v{lA+7}, v{lA+6}, s[{sSX}:{sSX+3}], 0 offen")
    A("s_mov_b32 s4, s70"); A("s_mov_b32 s5, s71")
    srd(A, sSF, 14, 15, FLG_SIZE, FLG_OFF)
    A(f"s_mov_b32 s{sT}, {EPOCH}")
    A(f"buffer_load_dword v{vPv}, off, s[{sSF}:{sSF+3}], s{sT} sc1")
    A(f"""
    s_lshr_b32 s{sT}, s2, 3
    s_lshl_b32 s{sT}, s{sT}, 2
    s_add_u32 s{sT}, s{sT}, s{sW}
    s_lshl_b32 s{sT}, s{sT}, 1
    s_and_b32 s{sT+1}, s2, 7
    s_mul_i32 s{sT+2}, s{sT}, 7168
    s_mul_i32 s{sT+3}, s{sT+1}, 896
    s_add_u32 s{sT+2}, s{sT+2}, s{sT+3}
    s_mul_i32 s{sT+3}, s{sT}, 6144
    s_lshl_b32 s{sT+1}, s{sT+1}, 8
    s_add_u32 s{sT+3}, s{sT+3}, s{sT+1}
    v_cmp_le_u32 vcc, 7, v0
    v_lshlrev_b32 v{vTg}, 7, v0
    v_mov_b32 v{vT}, {7168-7*128}
    v_cndmask_b32 v{vT}, 0, v{vT}, vcc
    v_add3_u32 v{vTg}, v{vTg}, v{vT}, s{sT+2}
    v_cmp_le_u32 vcc, 14, v0
    v_mov_b32 v{vT}, 0x70000000
    v_lshrrev_b32 v{vT+1}, 1, v0
    v_cndmask_b32 v{vTg}, v{vTg}, v{vT}, vcc
    v_and_b32 v{vTq}, 1, v0
    v_lshlrev_b32 v{vTq}, 7, v{vTq}
    v_lshl_add_u32 v{vTq}, v{vT+1}, 11, v{vTq}
    v_cmp_le_u32 vcc, 12, v0
    v_add_u32 v{vTq}, s{sT+3}, v{vTq}
    s_mov_b32 s{sToq}, 0
    v_cndmask_b32 v{vTq}, v{vTq}, v{vT}, vcc
    s_mov_b32 s{sTog}, 0
    """)
    srd(A, sST[0], 4, 5, 1024 * 6144)
    srd(A, sST[1], 8, 9, 1024 * 7168)
    srd(A, sST[2], 10, 11, 1024 * 7168)
    def touch(s, b=2):
        v = [vTq, vTg, vTg][s]; so = [sToq, sTog, sTog][s]
        return f"buffer_load_dword v{vDum}, v{v}, s[{sST[s]}:{sST[s]+3}], s{so} offen{NT(b)}"
    TROW = 1
    TS = OPT.get("ts", 4)
    onerow = f"""
        s_lshr_b32 s{sTm}, s2, 3
        s_lshl_b32 s{sTm}, s{sTm}, 2
        s_add_u32 s{sTm}, s{sTm}, s{sW}
        s_sub_u32 s{sTm}, ROW0, s{sTm}
        s_mul_i32 s{sToq}, s{sTm}, 6144
        s_mul_i32 s{sTog}, s{sTm}, 7168
        v_mov_b32 v{vT}, 0x70000000
        v_cmp_le_u32 vcc, 7, v0
        s_nop 1
        v_cndmask_b32 v{vTg}, v{vTg}, v{vT}, vcc
        v_cmp_le_u32 vcc, 6, v0
        s_nop 1
        v_cndmask_b32 v{vTq}, v{vTq}, v{vT}, vcc
        """
    tadv = [f"s_add_u32 s{sToq}, s{sToq}, {128*6144}", f"s_add_u32 s{sTog}, s{sTog}, {128*7168}"]
    A(onerow.replace("ROW0", "0"))
    A(f"v_add_u32 v{vTq}, s{sToq}, v{vTq}"); A(f"v_add_u32 v{vTg}, s{sTog}, v{vTg}")
    A(f"s_mov_b32 s{sToq}, 0"); A(f"s_mov_b32 s{sTog}, 0")
    if TS == 3:
        for k in range(3): A(touch(k))
        for l in tadv: A(l)
    NY = 2 + (3 if TS == 3 else 0)
    stamp(A, 1, 2)
    A(f"""
    v_lshrrev_b32 v{lA+8}, 4, v0
    v_bfe_u32 v{lA+9}, v0, 2, 2
    v_lshl_add_u32 v{lA+10}, v{lA+8}, 3, v{lA+9}
    v_mul_u32_u24 v{lA+10}, 6144, v{lA+10}
    v_bfe_u32 v{lA+11}, v0, 1, 1
    v_and_b32 v{lA+12}, 1, v{lA+8}
    v_xor_b32 v{lA+11}, v{lA+11}, v{lA+12}
    v_lshl_add_u32 v{lA+10}, v{lA+11}, 5, v{lA+10}
    v_and_b32 v{lA+11}, 1, v0
    v_lshl_add_u32 v{lA+10}, v{lA+11}, 4, v{lA+10}
    s_mul_i32 s{sT+2}, s{sW}, 5
    s_and_b32 s{sT+3}, s{sHD}, 1
    s_lshl_b32 s{sT+3}, s{sT+3}, 1
    s_mul_i32 s{sT+4}, s{sHD}, 224
    """)
    t3, t4, t5, t6, t7 = lA + 11, lA + 12, lA + 13, lA + 14, lA + 15
    for i in range(5):
        d = sSD[i]
        A(f"""
        s_add_u32 s{sT+5}, s{sT+2}, {i}
        s_cmp_lt_u32 s{sT+5}, 6
        s_cbranch_scc0 M_gu{i}
        s_lshr_b32 s{sT+6}, s{sT+5}, 1
        s_lshl_b32 s{sT+6}, s{sT+6}, 11
        s_and_b32 s{sT+7}, s{sT+5}, 1
        s_mul_i32 s{sT+7}, s{sT+7}, 24576
        s_add_u32 s{sT+6}, s{sT+6}, s{sT+7}
        s_lshl_b32 s{sT+7}, s{sHD}, 6
        s_add_u32 s{sT+6}, s{sT+6}, s{sT+7}
        v_add_u32 v{vD[i]}, s{sT+6}, v{lA+10}
        s_mov_b32 s{d}, s4
        s_mov_b32 s{d+1}, s5
        s_mov_b32 s{d+2}, {1024*6144}
        s_mov_b32 s{sStA if i == 0 else sStB}, {32*6144}
        s_branch M_dn{i}
        """)
        A.label(f"M_gu{i}")
        A(f"""
        s_sub_u32 s{sT+6}, s{sT+5}, 6
        s_sub_u32 s{sT+7}, s{sT+5}, 13
        s_cmp_lt_u32 s{sT+5}, 13
        s_cselect_b32 s{sT+6}, s{sT+6}, s{sT+7}
        s_cselect_b32 s{d}, s8, s10
        s_cselect_b32 s{d+1}, s9, s11
        s_mov_b32 s{d+2}, {1024*7168}
        s_mov_b32 s{sStA if i == 0 else sStB}, {32*7168}
        s_lshl_b32 s{sT+6}, s{sT+6}, 6
        v_add_u32 v{t3}, s{sT+6}, v0
        v_mul_u32_u24 v{t4}, 4682, v{t3}
        v_lshrrev_b32 v{t4}, 16, v{t4}
        v_mul_u32_u24 v{t5}, 14, v{t4}
        v_sub_u32 v{t5}, v{t3}, v{t5}
        v_add_u32 v{t5}, s{sT+3}, v{t5}
        v_subrev_u32 v{t6}, 14, v{t5}
        v_min_u32 v{t5}, v{t5}, v{t6}
        v_bfe_u32 v{t6}, v{t4}, 2, 2
        v_lshrrev_b32 v{t7}, 4, v{t4}
        v_and_b32 v{t4}, 3, v{t4}
        v_lshl_add_u32 v{t4}, v{t6}, 3, v{t4}
        v_lshl_add_u32 v{t4}, v{t7}, 2, v{t4}
        v_mul_u32_u24 v{t4}, 7168, v{t4}
        v_lshl_add_u32 v{t4}, v{t5}, 4, v{t4}
        v_add_u32 v{vD[i]}, s{sT+4}, v{t4}
        """)
        A.label(f"M_dn{i}")
        if OPT.get("lin"):
            A(f"""
            s_add_u32 s{sT+5}, s{sT+2}, {i}
            s_sub_u32 s{sT+6}, s{sT+5}, 6
            s_sub_u32 s{sT+7}, s{sT+5}, 13
            s_cmp_lt_u32 s{sT+5}, 13
            s_cselect_b32 s{sT+6}, s{sT+6}, s{sT+7}
            s_cmp_lt_u32 s{sT+5}, 6
            s_cselect_b32 s{sT+6}, s{sT+5}, s{sT+6}
            s_cselect_b32 s{sT+7}, 6, 7
            s_mul_i32 s{sT+7}, s{sT+7}, s{sHD}
            s_add_u32 s{sT+6}, s{sT+6}, s{sT+7}
            s_lshl_b32 s{sT+6}, s{sT+6}, 10
            v_add_u32 v{vD[i]}, s{sT+6}, v{vL16}
            """)
        A(f"s_mov_b32 s{d+3}, 0x00020000")
    A("s_mov_b32 s8, s{0}".format(sSX)); A("s_mov_b32 s9, s{0}".format(sSX + 1))
    A(f"""
    s_lshr_b32 s{sT}, s{sFo}, 1
    s_lshl_b32 s{sT}, s{sT}, 10
    s_and_b32 s{sT+1}, s{sFo}, 1
    s_lshl_b32 s{sT+1}, s{sT+1}, 7
    s_add_u32 s{sT}, s{sT}, s{sT+1}
    s_lshl_b32 s{sT+1}, s{sW}, 20
    s_add_u32 s{sT}, s{sT}, s{sT+1}
    v_lshrrev_b32 v{lA+3}, 2, v{lA+1}
    v_lshlrev_b32 v{lA+3}, 17, v{lA+3}
    v_and_b32 v{lA+4}, 3, v{lA+1}
    v_lshl_add_u32 v{lA+3}, v{lA+4}, 8, v{lA+3}
    v_lshl_add_u32 v{lA+3}, v{lA}, 4, v{lA+3}
    v_add_u32 v{lA+3}, s{sT}, v{lA+3}
    v_lshlrev_b32 v{lA+5}, 6, v{lA}
    v_add_u32 v{lA+5}, {CSC}, v{lA+5}
    s_lshl_b32 s{sT}, s{sW}, 4
    v_lshl_add_u32 v{lA+4}, v{lA+8}, 2, v{lA+5}
    v_add_u32 v{lA+4}, s{sT}, v{lA+4}
    """)
    srd(A, sSX, 14, 15, 0x400000, XF_OFF)
    A(f"s_lshr_b32 s{sFo}, s2, 3"); A(f"s_mul_i32 s{sFo}, s{sFo}, {LSTR}"); A(f"s_and_b32 s{sT}, s2, 7"); A(f"s_lshl_b32 s{sT}, s{sT}, 4"); A(f"s_add_u32 s{sFo}, s{sFo}, s{sT}")
    def dma(i):
        return [f"s_add_u32 m0, s{sM}, 0x{1024*(i+1):x}",
                f"buffer_load_dwordx4 v{vD[i]}, s[{sSD[i]}:{sSD[i]+3}], s{sWoA if i == 0 else sWoB} offen lds"]
    def xload(s, i):
        return f"buffer_load_dwordx4 {XR(s, i)}, v{vX}, s[{sSX}:{sSX+3}], s{sXo} offen offset:{1024*i} sc1"
    wadv = [f"s_add_u32 s{sM}, s{sM}, s{sSLOT}", f"s_add_u32 s{sWoA}, s{sWoA}, s{sStA}", f"s_add_u32 s{sWoB}, s{sWoB}, s{sStB}"]
    def wgroups(adv):
        L = []
        for i in range(5):
            m, l = dma(i)
            L.append((wadv if (i == 0 and adv) else []) + [m, "s_nop 0", l])
        return L
    def xgroups(t):
        return [[xload(t, i)] + ([f"s_add_u32 s{sXo}, s{sXo}, 0x20000"] if i == 3 else []) for i in range(4)]
    A(f"""
    s_mov_b32 s{sXo}, 0
    s_mul_i32 s{sM0}, s{sW}, 5120
    s_sub_u32 s{sM0}, s{sM0}, 1024
    s_mov_b32 s{sM}, s{sM0}
    s_mov_b32 s{sWoA}, 0
    s_mov_b32 s{sWoB}, 0
    s_mov_b32 s{sSLOT}, {G1_SLOT}
    """)
    B = Asm()
    B(f"""
    s_lshl_b32 s{sT}, s{sRB}, 14
    s_lshl_b32 s{sT+1}, s{sW}, 12
    s_add_u32 s{sT}, s{sT}, s{sT+1}
    v_add_u32 v{vX}, s{sT}, v{vL16}
    s_lshl_b32 s{sT}, s{sRB}, 3
    v_and_b32 v{vPollR}, 7, v0
    v_bfe_u32 v{t3}, v0, 3, 2
    v_lshl_add_u32 v{vPollR}, v{t3}, 6, v{vPollR}
    v_add_u32 v{vPollR}, s{sT}, v{vPollR}
    v_and_b32 v{vT}, 7, v{vPollR}
    v_lshrrev_b32 v{vPollR}, 3, v{vPollR}
    v_mul_u32_u24 v{vPollR}, {LSTR}, v{vPollR}
    v_lshl_add_u32 v{vPollR}, v{vT}, 4, v{vPollR}
    v_lshrrev_b32 v{t3}, 2, v0
    v_and_b32 v{t4}, 3, v0
    v_lshlrev_b32 v{t4}, 3, v{t4}
    v_lshl_add_u32 v{vB0}, v{t3}, 6, v{t4}
    v_and_b32 v{t5}, 1, v{lA+8}
    v_lshl_add_u32 v{vB0}, v{t5}, 5, v{vB0}
    v_xor_b32 v{vB1}, 32, v{vB0}
    v_mul_u32_u24 v{vBG}, 224, v{t3}
    v_add_u32 v{vBG}, v{vBG}, v{t4}
    v_mov_b32 v{vA0}, v{vB0}
    v_mov_b32 v{vA1}, v{vB1}
    v_mov_b32 v{vAG}, v{vBG}
    s_mov_b32 s{sR}, 0
    s_mov_b32 s{sCnt}, 0
    s_mov_b32 s{sREND}, {G1_S*G1_SLOT}
    s_add_u32 s{sMEND}, s{sM0}, s{sREND}
    """)
    B(f"""
    s_lshl_b32 s{sT}, s2, 2
    s_add_u32 s{sT}, s{sT}, s{sW}
    s_lshl_b32 s{sT}, s{sT}, 10
    v_add_u32 v{vCd}, s{sT}, v{vL16}
    v_lshrrev_b32 v{t3}, 3, v0
    v_and_b32 v{t4}, 7, v0
    v_xor_b32 v{t4}, v{t4}, v{t3}
    v_lshlrev_b32 v{t3}, 11, v{t3}
    v_lshl_add_u32 v{vCs}, v{t4}, 4, v{t3}
    s_lshl_b32 s{sT+2}, s{sW}, 14
    s_and_b32 s{sT+3}, s2, 15
    s_lshl_b32 s{sT+3}, s{sT+3}, 7
    s_add_u32 s{sT+2}, s{sT+2}, s{sT+3}
    s_lshr_b32 s{sT+1}, s2, 4
    s_mul_i32 s{sT}, s{sT+1}, 7
    s_add_u32 s{sCl}, s{sT}, 1
    s_lshr_b32 s{sCl}, s{sCl}, 1
    s_lshl_b32 s{sCl}, s{sCl}, 16
    s_add_u32 s{sCl}, s{sCl}, s{sT+2}
    s_add_u32 s{sT}, s{sT}, 3
    s_lshl_b32 s{sT}, s{sT}, 16
    s_add_u32 s{sT}, s{sT}, s{sT+3}
    s_lshl_b32 s{sT+1}, s{sT+1}, 16
    s_add_u32 s{sT+1}, s{sT+1}, s{sT+2}
    s_add_u32 s{sT+2}, s{sT+1}, 0x100000
    s_mov_b32 s{sCs}, 0x{(-2 << 20) & 0xffffffff:x}
    s_mov_b32 s{sSCs+2}, {3584*2048}
    s_mov_b32 s{sSCs+3}, 0x00020000
    """)
    sT6, sT7, sT8 = sT, sT + 1, sT + 2
    for l in lines(B): A(l)
    zero_all = [f"v_accvgpr_write_b32 a{r}, 0" for r in list(range(88)) + list(range(208, 216))]
    zero_all += [f"v_pk_mov_b32 v[{r}:{r+1}], 0, 0" for r in list(range(144, 256, 2)) + list(range(24, 144, 2))]
    ZE, ZM = OPT.get("ze", 0), OPT.get("zm", 212)
    assert ZE <= 152
    for l in zero_all[:ZE]: A(l)
    lW, lRd, lSt = lA + 4, lA + 5, lA + 3
    for n in range(4):
        A(f"s_waitcnt vmcnt({3-n+NY})")
        for q in range(4):
            s = lX + 4 * n + q; d = lF + 8 * n + 2 * q
            A(f"v_lshlrev_b32 v{d}, 16, v{s}")
            A(f"v_and_b32 v{d+1}, 0xffff0000, v{s}")
    stamp(A, 2, 2)
    A(f"s_waitcnt vmcnt({NY - 1})")
    if TS in (1, 3, 4):
        for k in range(3): A(touch(k, 8))
        for l in tadv: A(l)
    lM, lMb, lT, lQ = lS + 4, lS + 6, 104, 108
    A(f"""
    v_lshlrev_b32 v{lA+7}, 16, v{lA+7}
    v_sub_f32 v{lM}, 0, v{lA+7}
    v_mov_b32 v{lM+1}, v{lM}
    """)
    for q in range(0, 16, 2):
        d0 = (lS, lS + 2) if q == 0 else (lT, lT + 2)
        A(f"v_pk_add_f32 v[{d0[0]}:{d0[0]+1}], v[{lF+2*q}:{lF+2*q+1}], v[{lM}:{lM+1}]")
        A(f"v_pk_add_f32 v[{d0[1]}:{d0[1]+1}], v[{lF+2*q+2}:{lF+2*q+3}], v[{lM}:{lM+1}]")
        if q == 0:
            A(f"v_pk_mul_f32 v[{lQ}:{lQ+1}], v[{lS}:{lS+1}], v[{lS}:{lS+1}]")
            A(f"v_pk_mul_f32 v[{lQ+2}:{lQ+3}], v[{lS+2}:{lS+3}], v[{lS+2}:{lS+3}]")
        else:
            A(f"v_pk_fma_f32 v[{lQ}:{lQ+1}], v[{lT}:{lT+1}], v[{lT}:{lT+1}], v[{lQ}:{lQ+1}]")
            A(f"v_pk_fma_f32 v[{lQ+2}:{lQ+3}], v[{lT+2}:{lT+3}], v[{lT+2}:{lT+3}], v[{lQ+2}:{lQ+3}]")
            A(f"v_pk_add_f32 v[{lS}:{lS+1}], v[{lS}:{lS+1}], v[{lT}:{lT+1}]")
            A(f"v_pk_add_f32 v[{lS+2}:{lS+3}], v[{lS+2}:{lS+3}], v[{lT+2}:{lT+3}]")
    r = lR; r2 = 128
    A(f"""
    v_pk_add_f32 v[{lS}:{lS+1}], v[{lS}:{lS+1}], v[{lS+2}:{lS+3}]
    v_pk_add_f32 v[{lQ}:{lQ+1}], v[{lQ}:{lQ+1}], v[{lQ+2}:{lQ+3}]
    v_add_f32 v{lS}, v{lS}, v{lS+1}
    v_add_f32 v{lQ}, v{lQ}, v{lQ+1}
    s_nop 0
    v_add_f32_dpp v{lS}, v{lS}, v{lS} row_ror:8 row_mask:0xf bank_mask:0xf
    v_add_f32_dpp v{lQ}, v{lQ}, v{lQ} row_ror:8 row_mask:0xf bank_mask:0xf
    ds_write_b32 v{lW}, v{lS}
    ds_write_b32 v{lW}, v{lQ} offset:512
    s_waitcnt lgkmcnt(0)
    s_barrier
    """)
    for k in range(4): A(f"ds_read_b128 v[{r+4*k}:{r+4*k+3}], v{lRd} offset:{16*k}")
    for k in range(4): A(f"ds_read_b128 v[{r2+4*k}:{r2+4*k+3}], v{lRd} offset:{512+16*k}")
    for wait, rr in ((4, r), (0, r2)):
        A(f"s_waitcnt lgkmcnt({wait})")
        A(f"""
        v_pk_add_f32 v[{rr}:{rr+1}], v[{rr}:{rr+1}], v[{rr+2}:{rr+3}]
        v_pk_add_f32 v[{rr+4}:{rr+5}], v[{rr+4}:{rr+5}], v[{rr+6}:{rr+7}]
        v_pk_add_f32 v[{rr+8}:{rr+9}], v[{rr+8}:{rr+9}], v[{rr+10}:{rr+11}]
        v_pk_add_f32 v[{rr+12}:{rr+13}], v[{rr+12}:{rr+13}], v[{rr+14}:{rr+15}]
        v_pk_add_f32 v[{rr}:{rr+1}], v[{rr}:{rr+1}], v[{rr+4}:{rr+5}]
        v_pk_add_f32 v[{rr+8}:{rr+9}], v[{rr+8}:{rr+9}], v[{rr+12}:{rr+13}]
        v_pk_add_f32 v[{rr}:{rr+1}], v[{rr}:{rr+1}], v[{rr+8}:{rr+9}]
        v_add_f32 v{rr}, v{rr}, v{rr+1}
        v_mul_f32 v{rr}, 0x{f2u(1.0/1024):x}, v{rr}
        """)
    A(f"""
    v_add_f32 v{lMb}, v{lA+7}, v{lR}
    v_fma_f32 v{lR}, -v{lR}, v{lR}, v{r2}
    v_cvt_pk_bf16_f32 v{lMb}, v{lMb}, v{lMb}
    v_max_f32 v{lR}, 0, v{lR}
    v_lshlrev_b32 v{lMb}, 16, v{lMb}
    """)
    A(f"""
    v_cvt_pk_bf16_f32 v{lR}, v{lR}, v{lR}
    v_lshlrev_b32 v{lR}, 16, v{lR}
    v_add_f32 v{lR}, 0x{f2u(1e-5):x}, v{lR}
    v_cvt_pk_bf16_f32 v{lR}, v{lR}, v{lR}
    v_lshlrev_b32 v{lR}, 16, v{lR}
    v_sqrt_f32 v{lR}, v{lR}
    s_nop 0
    v_cvt_pk_bf16_f32 v{lR}, v{lR}, v{lR}
    v_lshlrev_b32 v{lR}, 16, v{lR}
    v_rcp_f32 v{lR}, v{lR}
    v_sub_f32 v{lM}, 0, v{lMb}
    v_mov_b32 v{lM+1}, v{lM}
    v_mov_b32 v{lR+1}, v{lR}
    s_mov_b32 s{sT+3}, 0
    """)
    for n in range(4):
        for q in range(4):
            d = lF + 8 * n + 2 * q; o = lX + 4 * n + q
            A(f"v_pk_add_f32 v[{d}:{d+1}], v[{d}:{d+1}], v[{lM}:{lM+1}]")
        for q in range(4):
            d = lF + 8 * n + 2 * q; o = lX + 4 * n + q
            A(f"v_cvt_pk_bf16_f32 v{o}, v{d}, v{d+1}")
        for q in range(4):
            d = lF + 8 * n + 2 * q; o = lX + 4 * n + q
            A(f"v_lshlrev_b32 v{d}, 16, v{o}")
            A(f"v_and_b32 v{d+1}, 0xffff0000, v{o}")
        for q in range(4):
            d = lF + 8 * n + 2 * q
            A(f"v_pk_mul_f32 v[{d}:{d+1}], v[{d}:{d+1}], v[{lR}:{lR+1}]")
        for q in range(4):
            d = lF + 8 * n + 2 * q; o = lX + 4 * n + q
            A(f"v_cvt_pk_bf16_f32 v{o}, v{d}, v{d+1}")
        A(f"buffer_store_dwordx4 v[{lX+4*n}:{lX+4*n+3}], v{lSt}, s[{sSX}:{sSX+3}], s{sT+3} offen sc1")
        A(f"s_add_u32 s{sT+3}, s{sT+3}, 0x40000")
    stamp(A, 3, 2)
    srd(A, sSCd, 14, 15, WT_SIZE, WT_OFF)
    B = Asm()
    for l in zero_all[ZE:ZE + ZM]: B(l)
    interleave(A, wgroups(False), lines(B))
    A("s_waitcnt vmcnt(5)")
    A(f"v_readfirstlane_b32 s{sTag}, v{vPv}")
    A("s_barrier")
    A(f"s_mul_i32 s{sTag}, s{sTag}, 0x9e3779b1")
    A(f"s_add_u32 s{sTag}, s{sTag}, 0x7f4a7c15")
    flag_set(F_LN)
    stamp(A, 4, 2)
    if TS == 1:
        for k in range(3): A(touch(k, 16))
        for l in tadv: A(l)
    interleave(A, wgroups(True) + wgroups(True), zero_all[ZE + ZM:])
    A(f"s_cmp_eq_u32 s{sW}, 0"); A("s_cbranch_scc0 M_lng")
    if OPT.get("pre", 0): A(f"s_sleep {OPT['pre']}")
    A(poll_issue(vPollR))
    poll_check(F_LN, MASK_R, 0, None, OPT.get('lnsleep', 1))
    A.label("M_lng")
    A("s_waitcnt vmcnt(0)")
    A("s_barrier")
    sRT, sCT = 68, 69
    A(f"""
    s_and_b32 s{sT+3}, s2, 7
    s_lshr_b32 s{sRT}, s{sT+3}, 1
    s_lshl_b32 s{sRT}, s{sRT}, 2
    s_bfe_u32 s{sT+6}, s2, 0x20003
    s_add_u32 s{sRT}, s{sRT}, s{sT+6}
    s_and_b32 s{sCT}, s{sT+3}, 1
    s_lshl_b32 s{sCT}, s{sCT}, 3
    s_lshr_b32 s{sT+6}, s2, 5
    s_add_u32 s{sCT}, s{sCT}, s{sT+6}
    """)
    stamp(A, 5, 2)
    for g in xgroups(0) + xgroups(1):
        for l in g: A(l)
    if TS == 4:
        for k in range(3): A(touch(k))
        for l in tadv: A(l)
    def copy_op(s):
        if s % 2: return f"buffer_load_dwordx4 v{vT+1 if s == 1 else vCs}, s[{sSCs}:{sSCs+3}], s{sCl} offen{NT(1)} lds"
        return f"buffer_store_dwordx4 {CT(s // 2)}, v{vCd}, s[{sSCd}:{sSCd+3}], s{sCs} offen sc1"
    def wread(f, a, pos, kh=0, lo=False):
        nm = names[f]
        if nm[0] in "qkv":
            p = "qkv".index(nm[0]); j = int(nm[1])
            addr = vA1 if j else vA0; off = 2048 * p + 1024 * a
        else:
            tl = int(nm[1]); addr = vAG
            off = (6144 if nm[0] == 'g' else 13312) + 3584 * a + 32 * tl
        if lo: addr = {vA0: vB0, vA1: vB1, vAG: vBG}[addr]
        return f"ds_read_b64_tr_b16 {WR(pos).sub(2*a, 2)}, v{addr} offset:{off + G1_SLOT * kh}"
    def mfma(f, k, u, p0, rev):
        ti, hf = k // 2, k % 2
        if ti % 2: hf = 1 - hf
        if rev: ti = 3 - ti
        nm = names[f]; d = acc[(nm, ti)]
        x, w = XR(2 * (u % 2) + hf, ti), WR(p0 + hf)
        if nm[0] in "kv": return f"v_mfma_f32_16x16x32_bf16 {d}, {x}, {w}, {d}"
        return f"v_mfma_f32_16x16x32_bf16 {d}, {w}, {x}, {d}"
    LA = 6
    A(f"""
    s_lshr_b32 s{sT+3}, s{sRT}, 1
    s_lshl_b32 s{sT+3}, s{sT+3}, 3
    v_and_b32 v{vT}, 7, v0
    v_bfe_u32 v{vT+1}, v0, 3, 2
    v_lshl_add_u32 v{vT+1}, v{vT+1}, 6, v{vT}
    v_add_u32 v{vPollR}, s{sT+3}, v{vT+1}
    """)
    A(f"""
    s_and_b32 s{sT+3}, s{sW}, 1
    s_lshl_b32 s{sT+3}, s{sT+3}, 2
    s_lshr_b32 s{sT+6}, s{sW}, 1
    s_add_u32 s{sT+3}, s{sT+3}, s{sT+6}
    s_lshl_b32 s{sT+3}, s{sT+3}, 13
    v_and_b32 v{vT}, 0x7ff, v{vCs}
    v_bfe_u32 v{vT+1}, v0, 3, 2
    v_lshl_add_u32 v{vT}, v{vT+1}, 11, v{vT}
    v_lshrrev_b32 v{vT+1}, 5, v0
    v_lshl_add_u32 v{vT}, v{vT+1}, 14, v{vT}
    v_add_u32 v{vT}, s{sT+3}, v{vT}
    s_getpc_b64 s[4:5]
    s_and_b32 s4, s4, 0xffffff80
    s_bfe_u32 s{sT+3}, s2, 0x30003
    s_lshl_b32 s{sT+3}, s{sT+3}, 2
    s_add_u32 s{sT+3}, s{sT+3}, s{sW}
    s_mul_i32 s{sT+3}, s{sT+3}, 1408
    s_add_u32 s{sT+3}, s{sT+3}, 5120
    v_min_u32 v{vPv}, 10, v0
    v_lshlrev_b32 v{vPv}, 7, v{vPv}
    v_add_u32 v{vPv}, s{sT+3}, v{vPv}
    s_lshr_b32 s{sT+3}, s{sW}, 1
    s_lshl_b32 s{sT+3}, s{sT+3}, 2
    v_and_b32 v{vT+1}, 3, v0
    v_or_b32 v{vT+1}, s{sT+3}, v{vT+1}
    v_bfe_u32 v{vPv+1}, v0, 2, 3
    v_xor_b32 v{vT+1}, v{vT+1}, v{vPv+1}
    v_lshrrev_b32 v{vPv+1}, 2, v0
    v_lshlrev_b32 v{vPv+1}, 7, v{vPv+1}
    v_lshl_add_u32 v{vPv+1}, v{vT+1}, 4, v{vPv+1}
    s_and_b32 s{sT+6}, s{sW}, 1
    s_lshl_b32 s{sT+6}, s{sT+6}, 3
    s_add_u32 s{sT+3}, s{sT+6}, {CSC}
    v_add_u32 v{vPv+1}, s{sT+3}, v{vPv+1}
    s_lshl_b32 s10, s{sRT}, 18
    s_lshl_b32 s{sT+3}, s{sW}, 16
    s_add_u32 s10, s10, s{sT+3}
    s_lshl_b32 s{sT+3}, s{sCT}, 7
    s_add_u32 s10, s10, s{sT+3}
    s_sub_u32 s10, s10, {10*16384}
    s_lshl_b32 s11, s{sW}, 12
    s_add_u32 s11, s11, {XL - 10*1024}
    s_lshl_b32 s{sT+3}, s{sW}, 10
    """)
    for n in range(LA):
        for a in range(2): A(wread(n // 2, a, n % 8, n % 2))
    A(f"s_waitcnt vmcnt({3 if TS == 4 else 0})")
    stamp(A, 6, 2); stamp(A, 1, 1)
    madv = [f"s_add_u32 s{sM}, s{sM}, s{sSLOT}", f"s_add_u32 s{sWoA}, s{sWoA}, s{sStA}", f"s_add_u32 s{sWoB}, s{sWoB}, s{sStB}",
            f"s_cmp_eq_u32 s{sM}, s{sMEND}", f"s_cselect_b32 s{sM}, s{sM0}, s{sM}"]
    def Wop(k, i): return dict(tag=f"W{k}", pre=(madv if i == 0 else []) + [dma(i)[0]], ins=dma(i)[1], post=[])
    def Xop(k, i): return dict(tag=f"X{k}", pre=[], ins=xload(k % 4, i), post=[f"s_add_u32 s{sXo}, s{sXo}, 0x20000"] if i == 3 else [])
    def Sop(j): return dict(tag="S", pre=[], ins=copy_op(2 * j), post=[f"s_add_u32 s{sCs}, s{sCs}, 0x100000"])
    sched = {}
    def place(ops, slots):
        assert len(ops) <= len(slots), (len(ops), len(slots))
        for o, sl in zip(ops, slots): sched[sl] = o
    for u in range(2):
        place([Wop(2 * u + 4, i) for i in range(5)], [(u, g) for g in range(35, 40)])
        place([Wop(2 * u + 3, i) for i in range(5)] + [Xop(2 * u + 2, i) for i in range(4)] + [Xop(2 * u + 3, i) for i in range(4)] + [Sop(u)],
              [(u, g) for g in (1, 3, 4, 6, 7, 9, 10, 11, 13, 14, 15, 17, 18, 19)])
    def xsel(base):
        return [f"s_add_u32 m0, s{sT+3}, {base}", f"s_cmp_ge_u32 s{sCnt}, 5", f"s_cselect_b32 m0, s11, m0",
                f"s_cselect_b32 s{sCl}, s10, s{sCl}", "s_add_u32 s10, s10, 16384", "s_add_u32 s11, s11, 1024"]
    cl0 = dict(tag="C", pre=xsel(CSC), ins=copy_op(1), post=[f"s_add_u32 s{sCl}, s{sCl}, {56 << 16}", f"s_cmp_eq_u32 s{sCnt}, 3",
               f"s_cselect_b32 s{sCl}, s{sT7}, s{sCl}", f"s_cselect_b32 s{sSCs}, s84, s{sSCs}", f"s_cselect_b32 s{sSCs+1}, s85, s{sSCs+1}",
               f"s_cselect_b32 s{sSCs+2}, {1024*2048}, s{sSCs+2}", f"s_cmp_eq_u32 s{sCnt}, 4", f"s_cselect_b32 s{sSCs+2}, 0, s{sSCs+2}"])
    cl1 = dict(tag="C", pre=xsel(CSC + 4096), ins=copy_op(3), post=[])
    place([cl0, cl1], [(0, 21), (0, 23)])
    place([dict(tag="T", pre=[], ins=touch(k), post=[]) for k in range(3)] +
          [dict(tag="T", pre=[], ins=f"global_load_dword v{vDum}, v{vPv}, s[4:5]", post=[])], [(1, g) for g in range(21, 25)])
    order = sorted(sched.keys())
    def vm_at(pos, kind, steps):
        seq = [(-1, k) for k in order] + [(0, k) for k in order if k < pos]
        need = [n for n, (tr, k) in enumerate(seq) if sched[k]["tag"][0] == kind and int(sched[k]["tag"][1:]) + 4 * tr in steps]
        return len(seq) - 1 - max(need)
    for k in range(OPT.get("shift1", 0)): A("s_nop 0")
    if OPT.get("al1"): A.raw("    ; @align on")
    A.label("M_loop1")
    for u in range(2):
        for g in range(40):
            f = g // 2
            if g == 34:
                A(f"s_waitcnt vmcnt({vm_at((u, 34), 'W', (2*u+2, 2*u+3))}) lgkmcnt(8)"); A("s_barrier")
                if u == 0:
                    A(f"s_cmp_eq_u32 s{sCnt}, 6"); A("s_cbranch_scc0 M_l1c")
                    flag_set(F_LN | F_WT); A.label("M_l1c")
            elif g == 0:
                A(f"s_waitcnt vmcnt({vm_at((u, 0), 'X', (2*u, 2*u+1))}) lgkmcnt(8)")
            elif g % 2 == 0:
                A("s_waitcnt lgkmcnt(8)")
            ng = (g + LA) % 40
            pre2, mid, post = [], [], []
            if (u, g) in sched:
                o = sched[(u, g)]; pre2, mid, post = o["pre"], [o["ins"]], o["post"]
            elif g == 26: mid = [f"s_add_u32 s{sR}, s{sR}, {2*G1_SLOT}"]; post = [f"s_cmp_eq_u32 s{sR}, s{sREND}", f"s_cselect_b32 s{sR}, 0, s{sR}"]
            elif g == 33:
                mid = [f"v_add_u32 v{vA0}, s{sR}, v{vB0}", f"v_add_u32 v{vA1}, s{sR}, v{vB1}"]
                post = [f"v_add_u32 v{vAG}, s{sR}, v{vBG}"]
            elif u == 0 and g in (2, 5):
                k = 0 if g == 2 else 1
                mid = [f"ds_read_b64_tr_b16 {CT(k).sub(0, 2)}, v{vPv+1} offset:{4096*k}"]
                post = [f"ds_read_b64_tr_b16 {CT(k).sub(2, 2)}, v{vPv+1} offset:{4096*k + 2048}"]
            elif u == 0 and g == 8:
                mid = [f"v_xor_b32 v{vPv+1}, 0x{CSC ^ (CSC + 8192):x}, v{vPv+1}"]; post = [f"s_xor_b32 s{sT+3}, s{sT+3}, 0x2000"]
            elif u == 0 and g == 20:
                mid = [f"s_cmp_eq_u32 s{sCnt}, 3", f"s_cselect_b64 s[{sT+6}:{sT+7}], -1, 0"]
                post = [f"v_cndmask_b32 v{vT+1}, v{vCs}, v{vT}, s[{sT+6}:{sT+7}]"]
            elif u == 1 and g == 27:
                mid = [f"s_sub_u32 s{sCl}, s{sCl}, {55 << 16}"]; post = [f"s_cmp_eq_u32 s{sCnt}, 2", f"s_cselect_b32 s{sCl}, s{sT6}, s{sCl}"]
            elif u == 1 and g == 28:
                mid = [f"s_cmp_eq_u32 s{sCnt}, 3", f"s_cselect_b32 s{sCl}, s{sT8}, s{sCl}"]
                post = [f"s_cmp_eq_u32 s{sCnt}, 4", f"s_cselect_b32 s{sSCs}, s8, s{sSCs}", f"s_cselect_b32 s{sSCs+1}, s9, s{sSCs+1}",
                        f"s_cselect_b32 s{sSCs+2}, 0x400000, s{sSCs+2}"]
            elif u == 1 and g == 29: mid = [tadv[0]]; post = [tadv[1]]
            elif u == 1 and g == 30: mid = [f"s_add_u32 s{sCnt}, s{sCnt}, 1"]
            mm = lambda i: mfma(f, 4 * (g % 2) + i, u, (g - g % 2) % 8, f % 2)
            if OPT.get("c4"):
                def mm(i):
                    ti, kk = g % 4, i
                    if ti % 2: kk = 3 - kk
                    if (g // 4) % 2: ti = 3 - ti
                    d = acc[(names[2 * (g // 4) + u], ti)]
                    return f"v_mfma_f32_16x16x32_bf16 {d}, {WR((g - g % 4 + kk) % 8)}, {XR(kk, ti)}, {d}"
            A(mm(0))
            A(wread(ng // 2, 0, (g + LA) % 8, ng % 2))
            for l in pre2[:3 if len(pre2) > 3 else 0]: A(l)
            A(mm(1))
            A(wread(ng // 2, 1, (g + LA) % 8, ng % 2))
            for l in pre2[3 if len(pre2) > 3 else 0:]: A(l)
            A(mm(2))
            emit(mid)
            A(mm(3))
            for l in post: A(l)
    A(f"s_cmp_lt_u32 s{sCnt}, 7")
    A("s_cbranch_scc1 M_loop1")
    sSH, sSK, sSXi, sSO = 20, 24, 28, 32
    sNL, sPL, sEPS, sCB, sCL = 36, 38, 40, 41, 42
    sAo, sBo = 43, 44
    sSA, sSB = sSH, sSCd
    vA, vBd = [2, 3, 4, 5], 6
    vRh, vXf, vXf2, vXl = 216, 217, 218, 219
    vXO, vKv, vZ, vFw, vZw, vZr, vFr, vLn = 224, 225, 226, 227, 228, 229, 230, 231
    vk0, vk1, vk2 = 11, 12, 22
    NSL = 14
    AR = lambda ch, i: Reg('a', 144 + 8 * (ch % NSL) + 4 * i)
    vAs, vBds, vPollE = [7, 8], 9, 10
    NS = OPT.get('ns', 28)
    def phi_tile(E, src, tmp, dst):
        b = src
        E(f"v_pk_mul_f32 v[{tmp}:{tmp+1}], v[{b}:{b+1}], s[{sPL}:{sPL+1}]")
        E(f"v_pk_mul_f32 v[{tmp+2}:{tmp+3}], v[{b+2}:{b+3}], s[{sPL}:{sPL+1}]")
        for j in range(4): E(f"v_exp_f32_e64 v{tmp+j}, v{tmp+j} clamp")
        for j in range(4): E(f"v_max_f32 v{b+j}, s{sEPS}, v{b+j}")
        E(f"v_pk_add_f32 v[{b}:{b+1}], v[{b}:{b+1}], v[{tmp}:{tmp+1}]")
        E(f"v_pk_add_f32 v[{b+2}:{b+3}], v[{b+2}:{b+3}], v[{tmp+2}:{tmp+3}]")
        E(f"v_cvt_pk_bf16_f32 v{dst}, v{b}, v{b+1}")
        E(f"v_cvt_pk_bf16_f32 v{dst+1}, v{b+2}, v{b+3}")
    def swiglu_tile(E, tl, i, tmp, dst):
        g = acc[(f"g{tl}", i)].base
        ur = acc[(f"u{tl}", i)]
        if ur.kind == 'a':
            u = tmp + 4
            for j in range(4): E(f"v_accvgpr_read_b32 v{u+j}, a{ur.base+j}")
        else:
            u = ur.base
        E(f"v_pk_mul_f32 v[{tmp}:{tmp+1}], v[{g}:{g+1}], s[{sNL}:{sNL+1}]")
        E(f"v_pk_mul_f32 v[{tmp+2}:{tmp+3}], v[{g+2}:{g+3}], s[{sNL}:{sNL+1}]")
        for j in range(4): E(f"v_exp_f32 v{tmp+j}, v{tmp+j}")
        E(f"v_pk_mul_f32 v[{g}:{g+1}], v[{g}:{g+1}], v[{u}:{u+1}]")
        E(f"v_pk_mul_f32 v[{g+2}:{g+3}], v[{g+2}:{g+3}], v[{u+2}:{u+3}]")
        E(f"v_pk_add_f32 v[{tmp}:{tmp+1}], v[{tmp}:{tmp+1}], 1.0 op_sel_hi:[1,0]")
        E(f"v_pk_add_f32 v[{tmp+2}:{tmp+3}], v[{tmp+2}:{tmp+3}], 1.0 op_sel_hi:[1,0]")
        for j in range(4): E(f"v_rcp_f32 v{tmp+j}, v{tmp+j}")
        E(f"v_pk_mul_f32 v[{g}:{g+1}], v[{g}:{g+1}], v[{tmp}:{tmp+1}]")
        E(f"v_pk_mul_f32 v[{g+2}:{g+3}], v[{g+2}:{g+3}], v[{tmp+2}:{tmp+3}]")
        E(f"v_cvt_pk_bf16_f32 v{dst}, v{g}, v{g+1}")
        E(f"v_cvt_pk_bf16_f32 v{dst+1}, v{g+2}, v{g+3}")
    def swiglu_pair(E, p, tmp):
        for i in range(4):
            o = acc[(f"g{2*p}", i)].base
            swiglu_tile(E, 2 * p, i, tmp, o)
            swiglu_tile(E, 2 * p + 1, i, tmp, o + 2)
            E(f"buffer_store_dwordx4 v[{o}:{o+3}], v{vX}, s[{sSH}:{sSH+3}], s{sCB} offen offset:{1024*i} sc1")
        E(f"s_add_u32 s{sCB}, s{sCB}, {32 << 17}")
    S = Asm()
    srd(S, sSH, 14, 15, HF_SIZE, HF_OFF)
    sh_lines = lines(S)
    S = Asm()
    S(f"""
    s_mov_b32 s{sNL}, 0x{f2u(-LOG2E):x}
    s_mov_b32 s{sNL+1}, 0x{f2u(-LOG2E):x}
    s_mov_b32 s{sPL}, 0x{f2u(LOG2E):x}
    s_mov_b32 s{sPL+1}, 0x{f2u(LOG2E):x}
    s_mov_b32 s{sEPS}, 0x{f2u(1e-6):x}
    s_lshl_b32 s{sCB}, s{sHD}, 17
    s_lshr_b32 s{sCL}, s{sHD}, 1
    s_add_u32 s{sCL}, s{sCL}, 96
    s_lshl_b32 s{sCL}, s{sCL}, 17
    s_and_b32 s{sT}, s{sHD}, 1
    s_lshl_b32 s{sT}, s{sT}, 9
    s_add_u32 s{sCL}, s{sCL}, s{sT}
    s_lshl_b32 s{sT}, s{sW}, 4
    s_add_u32 s{sT}, s{sT}, s{sCT}
    s_lshl_b32 s{sT}, s{sT}, 12
    v_add_u32 v{vBd}, s{sT}, v{vL16}
    s_lshl_b32 s{sM0}, s{sW}, 12
    """)
    pre_lines = lines(S)
    tiles = [(0, f) for f in range(11)] + [(1, f) for f in range(4)] + [(0, f) for f in range(11, 20)] + [(1, f) for f in range(4, 20)]
    items = [(u, f, kh) for u, f in tiles for kh in range(2)]
    assert len(items) == 80 and len(set(items)) == 80
    def wreadL(u, f, kh, a, pos):
        return wread(f, a, pos, kh, lo=(u == 1))
    B = Asm(); swiglu_pair(B, 0, 2); e0 = lines(B)
    if OPT.get('noe0'): e0 = []
    def unpack(ls):
        out = []
        for l in ls:
            m = re.match(r"v_pk_(mul|add)_f32 v\[(\d+):\d+\], v\[(\d+):\d+\], (\S+)", l)
            if not m: out.append(l); continue
            op, d, a, b = m.group(1), int(m.group(2)), int(m.group(3)), m.group(4)
            for k in range(2):
                if b.startswith("v["): bb = "v%d" % (int(b[2:].split(":")[0]) + k)
                elif b.startswith("s["): bb = "s%d" % int(b[2:].split(":")[0])
                else: bb = b
                out.append(f"v_{op}_f32 v{d+k}, {bb}, v{a+k}")
        return out
    if OPT.get('unpk', 0) & 1: e0 = unpack(e0)
    GS = OPT.get("gsched", 1)
    if GS:
        alt = {2: 14, 3: 15, 4: 22, 5: 23}
        per = 26
        out = []; cnt = 0
        for l in e0:
            if l.startswith("v_"):
                if (cnt // per) % 2:
                    l = re.sub(r"\bv([2-5])\b", lambda m: "v%d" % alt[int(m.group(1))], l)
                cnt += 1
            out.append(l)
        e0 = out
        eins = [Ins(l, 0) for l in e0]
        edone = [False] * len(e0)
        def e_ready(j):
            for i in range(j):
                if not edone[i] and ((eins[i].w & (eins[j].r | eins[j].w)) or (eins[i].r & eins[j].w)): return False
            return True
        def e_take(cap):
            res = []
            while cap > 0:
                first = next((j for j in range(len(e0)) if not edone[j]), None)
                if first is None: break
                cand = [j for j in range(first, min(first + 40, len(e0))) if not edone[j] and e_ready(j)
                        and not any(eins[k].w & eins[j].r for k in res)]
                tr = [j for j in cand if eins[j].is_trans]; pl = [j for j in cand if not eins[j].is_trans]
                if cap >= 2 and tr: j = tr[0]; cap -= 2
                elif pl: j = pl[0]; cap -= 1
                else: break
                edone[j] = True; res.append(j)
            return [e0[j] for j in res]
    E0_AT, E0_N = 31, OPT.get('e0n', 44)
    S = Asm()
    S(f"""
    v_and_b32 v{vT}, 7, v0
    v_and_b32 v{vT+1}, 15, v0
    v_lshlrev_b32 v{vT+1}, 4, v{vT+1}
    v_add_u32 v{vT+1}, s{sCT}, v{vT+1}
    v_bfe_u32 v{vPollW}, v0, 4, 1
    v_xor_b32 v{vT+1}, v{vT+1}, v{vPollW}
    v_cmp_gt_u32 vcc, 32, v0
    s_and_b32 s{sT+3}, s2, 0xc7
    v_lshlrev_b32 v{vT}, 3, v{vT}
    v_cndmask_b32 v{vPollW}, v{vT+1}, v{vPollR}, vcc
    v_add_u32 v{vT}, s{sT+3}, v{vT}
    s_mov_b32 s{sT+3}, 0x70000000
    v_cndmask_b32 v{vPollH}, v{vT}, v{vPollR}, vcc
    v_and_b32 v{vT}, 7, v{vPollR}
    v_lshrrev_b32 v{vPollR}, 3, v{vPollR}
    v_mul_u32_u24 v{vPollR}, {LSTR}, v{vPollR}
    v_lshl_add_u32 v{vPollR}, v{vT}, 4, v{vPollR}
    v_and_b32 v{vT}, 7, v{vPollW}
    v_lshrrev_b32 v{vPollW}, 3, v{vPollW}
    v_mul_u32_u24 v{vPollW}, {LSTR}, v{vPollW}
    v_lshl_add_u32 v{vPollW}, v{vT}, 4, v{vPollW}
    v_and_b32 v{vT}, 7, v{vPollH}
    v_lshrrev_b32 v{vPollH}, 3, v{vPollH}
    v_mul_u32_u24 v{vPollH}, {LSTR}, v{vPollH}
    v_lshl_add_u32 v{vPollH}, v{vT}, 4, v{vPollH}
    """)
    poll_lines = lines(S)
    lops = [Wop(3, i) for i in range(5)] + [Xop(2, i) for i in range(4)] + [Xop(3, i) for i in range(4)]
    misc = pre_lines
    fin_note = []
    for n, (st, f, kh) in enumerate(items):
        A.comment(f"last trip item {n}: super-step {st} {names[f]}")
        lg = 8 if n + LA < 80 else max(0, 2 * (80 - n - 2))
        if n == 0: A(f"s_waitcnt vmcnt({vm_at((0, 0), 'X', (0, 1))}) lgkmcnt(8)")
        elif n == 16: A(f"s_waitcnt vmcnt(8) lgkmcnt(8)"); A("s_barrier")
        elif n == 22: A(f"s_waitcnt vmcnt(0) lgkmcnt(8)")
        elif n % 2 == 0: A(f"s_waitcnt lgkmcnt({lg})")
        fill = []
        if n < 13:
            o = lops[n]; fill = o["pre"] + ["s_nop 0", o["ins"]] + o["post"]
        elif n == 13: fill = sh_lines
        elif 14 <= n < 22: fill = poll_lines[len(poll_lines) * (n - 14) // 8: len(poll_lines) * (n - 13) // 8]
        elif n == 27: fill = [f"s_cmp_eq_u32 s{sW}, 0\ns_cbranch_scc0 M_npw\n{poll_issue(vPollW)}", "M_npw:"]
        elif 22 <= n < 27: fill = misc[len(misc) * (n - 22) // 5: len(misc) * (n - 21) // 5]
        elif E0_AT <= n < E0_AT + E0_N and not GS:
            c = n - E0_AT
            fill = e0[len(e0) * c // E0_N: len(e0) * (c + 1) // E0_N]
        mm = lambda i: mfma(f, 4 * kh + i, st, (n - kh) % 8, (n // 2) % 2)
        h = (len(fill) + 1) // 2 if (n > 13 and n != 27) else len(fill)
        g = GS and n >= E0_AT
        caps = [OPT.get("cap0", 1), OPT.get("cap0", 1), 2, 2 if (n % 2 == 0 or OPT.get("cap3")) else 1]
        A(mm(0))
        if n + LA < 80: A(wreadL(*items[n + LA], 0, (n + LA) % 8))
        if g: emit(e_take(caps[0]))
        A(mm(1))
        if n + LA < 80: A(wreadL(*items[n + LA], 1, (n + LA) % 8))
        if g: emit(e_take(caps[1]))
        A(mm(2))
        emit(fill[:h])
        if g: emit(e_take(caps[2]))
        A(mm(3))
        emit(fill[h:])
        if g: emit(e_take(caps[3]))
        if GS and all(edone) and not fin_note: fin_note.append(n); print("E0 done at item", n, file=sys.stderr)
    if GS:
        left = [e0[j] for j in range(len(e0)) if not edone[j]]
        print("E0 left after L:", len(left), file=sys.stderr)
        for l in left: A(l)
    if OPT.get("al1") and not OPT["align"]: A.raw("    ; @align off")
    stamp(A, 2, 1); stamp(A, 1, 4)
    A(f"""
    s_load_dwordx2 s[80:81], s[0:1], 56
    s_lshl_b32 s{sT}, s{sRT}, 13
    s_lshl_b32 s{sT+3}, s{sW}, 11
    s_add_u32 s{sT}, s{sT}, s{sT+3}
    v_add_u32 v{vA[0]}, s{sT}, v{vL16}
    v_add_u32 v{vA[1]}, 0x20000, v{vA[0]}
    v_add_u32 v{vA[2]}, 0x40000, v{vA[0]}
    v_add_u32 v{vA[3]}, 0x60000, v{vA[0]}
    s_and_b32 s{sT}, s{sCT}, 1
    s_lshl_b32 s{sT+3}, s{sT}, 18
    v_add_u32 v{vAs[0]}, s{sT+3}, v{vA[0]}
    v_add_u32 v{vAs[1]}, s{sT+3}, v{vA[1]}
    s_lshl_b32 s{sT}, s{sT}, 1
    s_lshr_b32 s{sT+3}, s{sW}, 1
    s_add_u32 s{sT}, s{sT}, s{sT+3}
    s_lshl_b32 s{sT}, s{sT}, 4
    s_and_b32 s{sT+3}, s{sW}, 1
    s_xor_b32 s{sT+3}, s{sT+3}, s{sCT}
    s_add_u32 s{sT}, s{sT}, s{sT+3}
    s_lshl_b32 s{sT}, s{sT}, 12
    v_add_u32 v{vBds}, s{sT}, v{vL16}
    s_lshr_b32 s{sT}, s2, 3
    s_lshr_b32 s{sT+3}, s2, 6
    s_add_u32 s{sT}, s{sT}, s{sT+3}
    s_and_b32 s{sT}, s{sT}, 3
    s_lshl_b32 s{sT}, s{sT}, 3
    s_or_b32 s47, s{sT}, 0x80000
    """)
    srd(A, sSK, 14, 15, KVP_SIZE, KVP_OFF)
    FAK = OPT.get("fak", 3)
    if not FAK: A("s_waitcnt vmcnt(0)")
    A(f"s_cmp_eq_u32 s{sW}, 0"); A("s_cbranch_scc0 M_wtc")
    poll_check(F_WT, MASK_U, 4, vPollW)
    A.label("M_wtc")
    A("s_barrier")
    if not FAK: flag_set(F_LN | F_WT | F_A)
    stamp(A, 2, 4)
    tq = acc[("u0", 0)].base
    LA2 = OPT.get("la2", 3); BP = OPT.get("bp", 2); LB = OPT.get("lb", G2_R - 1)
    vm, lg = [], []
    done = {"vm": -1, "lg": -1}
    pmark = {}
    def put(x):
        line, tag = x if isinstance(x, tuple) else (x, None)
        if line.startswith("@"):
            k, t = line[1:].split()
            waitfor(**{k: [t]}); return
        if line == "#flagA":
            A(f"s_waitcnt vmcnt({len(vm)})")
            A("s_barrier")
            flag_set(F_LN | F_WT | F_A); return
        if line == "#excheck":
            A(f"s_mov_b32 s{sSpin}, 0")
            A.label("M_exc")
            poll_eval(A, 1)
            A(f"""
            s_cmp_eq_u32 vcc_lo, 0
            s_cbranch_scc1 M_exc_ok
            {"s_add_u32 s96, s96, 0x10000000" if OPT["stamp"] == 1 else ""}
            s_add_u32 s{sSpin}, s{sSpin}, 1
            s_cmp_ge_u32 s{sSpin}, 0x40000
            s_cbranch_scc1 M_exc_ok
            s_sleep 1
            {expoll}
            s_waitcnt vmcnt(0)
            s_branch M_exc
            """)
            A.label("M_exc_ok"); return
        if line.startswith("#poll"):
            _, c, va = line.split()
            A(f"s_cmp_eq_u32 s{sW}, 0"); A(f"s_cbranch_scc0 M_np{c}"); A(poll_issue(int(va))); A.label(f"M_np{c}")
            pmark[int(c)] = len(vm); return
        if line.endswith(":"): A.label(line[:-1]); return
        A(line)
        if line.startswith("buffer_"): vm.append(tag)
        elif line.startswith("ds_"): lg.append(tag)
    def waitfor(vm=(), lg=(), _vm=vm, _lg=lg):
        parts = []
        for name, lst, tags, cap in (("vm", _vm, vm, 63), ("lg", _lg, lg, 15)):
            idx = [i for i, t in enumerate(lst) if t in tags]
            assert len(idx) >= 1 or not tags, tags
            if idx and max(idx) > done[name]:
                n = min(len(lst) - 1 - max(idx), cap)
                done[name] = len(lst) - 1 - n
                parts.append(f"{'vmcnt' if name == 'vm' else 'lgkmcnt'}({n})")
        if parts: A("s_waitcnt " + " ".join(parts))
    LEAD = OPT.get("lead", 0)
    sCls = 47
    def perm(r):
        o = list(range(36))
        for lo, hi in ((0, 8), (8, 16), (16, 28), (28, 36)):
            for st in range(lo + LEAD, hi):
                if st % 4 == r and LEAD:
                    o[st - LEAD: st + 1] = [st] + list(range(st - LEAD, st))
        return o
    P = [perm(r) for r in range(4)]
    for r in range(4): assert sorted(P[r]) == list(range(36))
    def soff(dst, m, sh):
        v = [P[r][m] for r in range(4)]
        if OPT.get("same"): v = [m % OPT["same"]] * 4
        if len(set(v)) == 1: return [f"s_mov_b32 s{dst}, 0x{v[0] << sh:x}"]
        lit = sum(x << (8 * r) for r, x in enumerate(v))
        return [f"s_bfe_u32 s{dst}, 0x{lit:x}, s{sCls}", f"s_lshl_b32 s{dst}, s{dst}, {sh}"]
    def bop(m, b):
        pre = soff(sBo, m, 18) + [ f"s_add_u32 m0, s{sM0}, 0x{(m % G2_R) * G2_SLOT:x}", "s_nop 0"] if b == 0 else []
        return pre + [(f"buffer_load_dwordx4 v{vBds if m < NS else vBd}, s[{sSB}:{sSB+3}], s{sBo} offen offset:{1024*b} sc1 lds", f"B{m}")]
    nq = lambda m: 2 if m < NS else 4
    ch0 = [sum(nq(k) for k in range(m)) for m in range(37)]
    aq = [(m, q, i) for m in range(36) for q in range(nq(m)) for i in range(2)]
    def aop(m, q, i):
        pre = soff(sAo, m, 19) if (q == 0 and i == 0) else []
        va = vAs[q] if m < NS else vA[q]
        return pre + [(f"buffer_load_dwordx4 {AR(ch0[m] + q, i)}, v{va}, s[{sSA}:{sSA+3}], s{sAo} offen offset:{1024*i} sc1", f"A{m}q{q}")]
    LAC = OPT.get("lac", 8)
    LACS = OPT.get("lacs", 6)
    NPRE = OPT.get("npre", 6)
    asched = {}; first_at = {}
    k = 2 * NPRE
    for c in range(16 * 36):
        n, F = c // 16, c % 16
        cur = ch0[n] + F * nq(n) // 16
        if F % 4 < 2 and k < len(aq):
            m, q, i = aq[k]
            if ch0[m] + q - cur <= (LACS if m < NS else LAC):
                asched[c] = aq[k]; first_at.setdefault(m, c); k += 1
    assert k == len(aq)
    M1 = OPT.get("m1", 99)
    db = lambda m: LB if m < M1 else max(OPT.get("dmin", 3), LB - 1 - (m - M1) // OPT.get("mstep", 3))
    bsched = {}
    k = 4 * (LB - 1) + 2
    for c in range(16 * 36):
        if c % 4 == 3 and k < 4 * 36:
            m = k // 4
            nb = m - min(db(m), G2_R - 1)
            nb = -(-nb // BP) * BP
            if c >= 16 * nb + 11:
                bsched[c] = (m, k % 4); k += 1
    assert k == 4 * 36
    def check_pos(c):
        n = c // 16 if c % 16 >= 10 else c // 16 - 1
        return 16 * n + 9
    def tagged(ls, tag): return [(l, tag) if l.startswith(("buffer_", "ds_")) else l for l in ls]
    def mix(G, work):
        n = len(G)
        for c, grp in enumerate(G):
            for x in grp: put(x)
            for x in work[len(work) * c // n: len(work) * (c + 1) // n]: put(x)
    B = Asm(); swiglu_pair(B, 1, tq)
    w1 = tagged(lines(B), "h1")
    Gall = [bop(m, b) for m in range(LB) for b in range(4 if m < LB - 1 else 2)]
    NB0 = OPT.get("nb0", len(Gall)); NW0 = len(w1) * OPT.get("w0", 100) // 100
    G, Grest = Gall[:NB0], Gall[NB0:]
    G.insert(len(G) - OPT.get("gp", 3), [f"#poll 0 {vPollR}"])
    if FAK: G.insert(FAK, ["#flagA"])
    mix(G, w1[:NW0])
    stamp(A, 3, 4)
    A("s_waitcnt lgkmcnt(0)")
    srd(A, sSO, 80, 81, 0x400000)
    A(f"s_cmp_eq_u32 s{sW}, 0"); A("s_cbranch_scc0 M_gate")
    poll_check(F_A, MASK_R, len(vm) - pmark[0], None, 2)
    A.label("M_gate")
    waitfor(vm=["B0"])
    A("s_barrier")
    stamp(A, 3, 1); stamp(A, 4, 4)
    ACCF, ACCP, ACCS = 88, 120, 24
    BR = lambda p: Reg('a', 112 + 4 * p)
    t0 = tq + 12
    B = Asm()
    for r in range(ACCF, ACCF + 64, 2): B(f"v_pk_mov_b32 v[{r}:{r+1}], 0, 0")
    kb = acc[("k0", 0)].base; vb = acc[("v0", 0)].base
    zl = lines(B)
    B = Asm()
    for dt in range(2):
        for i in range(4):
            phi_tile(B, kb + 16 * dt + 4 * i, tq, kb + 16 * dt + 8 * (i // 2) + 2 * (i % 2))
    pk = lines(B); NK1 = len(pk) * OPT.get("k1", 100) // 100
    mix([aop(*aq[k]) for k in range(2 * NPRE)] + Grest, w1[NW0:] + ["s_nop 1"] + zl + pk[:NK1])
    fill = {}
    def spread(ls, c0, c1):
        n = c1 - c0
        for c in range(n):
            fill.setdefault(c0 + c, []).extend(ls[len(ls) * c // n: len(ls) * (c + 1) // n])
    vONE = tq + 8
    B = Asm()
    B(f"v_add_u32 v{vRh}, 0x10000, v{vL16}")
    for j in range(4): B(f"v_mov_b32 v{vONE+j}, 0x3f803f80")
    for et in range(2):
        for i in range(4):
            src = vb + 16 * et + 4 * i
            dst = vb + 16 * et + 8 * (i // 2) + 2 * (i % 2)
            B(f"v_cvt_pk_bf16_f32 v{dst}, v{src}, v{src+1}")
            B(f"v_cvt_pk_bf16_f32 v{dst+1}, v{src+2}, v{src+3}")
    B(f"""
    s_mul_i32 s{sT}, s{sW}, 6144
    s_add_u32 s{sT}, s{sT}, {KVL}
    v_add_u32 v{vk0}, s{sT}, v{vL16}
    s_lshl_b32 s{sT}, s{sW}, 10
    """)
    for u in range(2):
        for dt in range(2):
            for et in range(3):
                a = kb + 16 * dt + 8 * u
                b = vb + 16 * et + 8 * u if et < 2 else vONE
                p = PT(dt * 3 + et)
                B(f"v_mfma_f32_16x16x32_bf16 {p}, v[{a}:{a+3}], v[{b}:{b+3}], {'0' if u == 0 else p}")
    B(f"""
    s_add_u32 s{sT+1}, s{sT}, {KVL}
    v_add_u32 v{vk1}, s{sT+1}, v{vL16}
    s_lshl_b32 s{sT+1}, s{sHD}, 3
    s_add_u32 s{sT+1}, s{sT+1}, s{sRB}
    s_mul_i32 s{sT+1}, s{sT+1}, 6144
    v_add_u32 v{vk2}, s{sT}, v{vL16}
    s_add_u32 s{sT+2}, s{sT+1}, 4096
    """)
    ls = pk[NK1:] + lines(B) + [f"s_cmp_lt_u32 s{sW}, 2\ns_cselect_b32 s{sT+2}, s{sT+2}, 0x70000000"]
    ls += [(f"ds_write_b128 v{vk0}, {PT(t)} offset:{1024*t}", "kvw") for t in range(6)]
    spread(ls, 0, 16 + 6)
    barrier_lg = {1: ["kvw"]}
    tb = kb
    def sum4(E, b):
        E(f"v_pk_add_f32 v[{b}:{b+1}], v[{b}:{b+1}], v[{b+4}:{b+5}]")
        E(f"v_pk_add_f32 v[{b+2}:{b+3}], v[{b+2}:{b+3}], v[{b+6}:{b+7}]")
        E(f"v_pk_add_f32 v[{b+8}:{b+9}], v[{b+8}:{b+9}], v[{b+12}:{b+13}]")
        E(f"v_pk_add_f32 v[{b+10}:{b+11}], v[{b+10}:{b+11}], v[{b+14}:{b+15}]")
        E(f"v_pk_add_f32 v[{b}:{b+1}], v[{b}:{b+1}], v[{b+8}:{b+9}]")
        E(f"v_pk_add_f32 v[{b+2}:{b+3}], v[{b+2}:{b+3}], v[{b+10}:{b+11}]")
    ls = [(f"ds_read_b128 v[{tb+4*sw}:{tb+4*sw+3}], v{vk1} offset:{6144*sw}", "kvr") for sw in range(4)]
    ls += [(f"ds_read_b128 v[{tb+16+4*sw}:{tb+16+4*sw+3}], v{vk1} offset:{6144*sw+4096}", "kvr") for sw in range(4)]
    spread(ls, 16 + 10, 32 + 2)
    B = Asm()
    sum4(B, tb)
    B(f"buffer_store_dwordx4 v[{tb}:{tb+3}], v{vk2}, s[{sSK}:{sSK+3}], s{sT+1} offen sc1")
    sum4(B, tb + 16)
    B(f"buffer_store_dwordx4 v[{tb+16}:{tb+19}], v{vk2}, s[{sSK}:{sSK+3}], s{sT+2} offen sc1")
    spread(["@lg kvr"] + tagged(lines(B), "kvs"), 32 + 6, 32 + 12)
    B = Asm(); swiglu_pair(B, 2, tq)
    spread(tagged(lines(B), "h2"), 16 * 2 + 12, 16 * 5 + 8)
    B = Asm()
    B(f"""
    v_and_b32 v{t0}, 15, v0
    v_lshlrev_b32 v{t0+2}, 4, v{t0}
    v_bfe_u32 v{t0+1}, v0, 4, 1
    v_lshl_add_u32 v{t0+2}, v{t0+1}, 10, v{t0+2}
    v_lshrrev_b32 v{t0+1}, 5, v0
    v_lshl_add_u32 v{t0+2}, v{t0+1}, 8, v{t0+2}
    v_sub_u32 v{vLn}, v{vX}, v{vL16}
    v_add_u32 v{vLn}, v{vLn}, v{t0+2}
    v_lshrrev_b32 v{t0+1}, 4, v0
    v_and_b32 v{t0+2}, 7, v0
    v_xor_b32 v{t0+1}, v{t0+1}, v{t0+2}
    v_lshlrev_b32 v{t0+1}, 4, v{t0+1}
    v_lshl_add_u32 v{vXf}, v{t0}, 7, v{t0+1}
    v_lshrrev_b32 v{t0}, 3, v0
    v_xor_b32 v{t0+2}, v{t0+2}, v{t0}
    v_lshlrev_b32 v{t0}, 11, v{t0}
    v_lshl_add_u32 v{vXO}, v{t0+2}, 4, v{t0}
    s_lshl_b32 s{sT}, s{sRT}, 18
    s_lshl_b32 s{sT+3}, s{sW}, 16
    s_add_u32 s{sT}, s{sT}, s{sT+3}
    s_lshl_b32 s{sT+3}, s{sCT}, 7
    s_add_u32 s{sT}, s{sT}, s{sT+3}
    v_add_u32 v{vXO}, s{sT}, v{vXO}
    s_add_u32 s{sT}, s{sM0}, {XL}
    v_add_u32 v{vXf}, s{sT}, v{vXf}
    v_xor_b32 v{vXf2}, 64, v{vXf}
    v_add_u32 v{vXl}, s{sT}, v{vL16}
    s_lshr_b32 s{sT}, s{sW}, 1
    s_add_u32 s{sT}, s{sT}, s{sW}
    s_lshl_b32 s{sT}, s{sT}, 10
    s_mul_i32 s{sT+3}, s{sHD}, 49152
    s_add_u32 s{sT}, s{sT}, s{sT+3}
    v_add_u32 v{vKv}, s{sT}, v{vL16}
    v_and_b32 v{t0}, 7, v0
    v_mul_u32_u24 v{vZ}, 6144, v{t0}
    v_bfe_u32 v{t0}, v0, 3, 2
    v_lshl_add_u32 v{vZ}, v{t0}, 8, v{vZ}
    v_lshrrev_b32 v{t0}, 5, v0
    v_mul_u32_u24 v{t0}, 3072, v{t0}
    v_add3_u32 v{vZ}, v{vZ}, v{t0}, s{sT+3}
    s_and_b32 s{sT}, s{sW}, 1
    s_lshl_b32 s{sT}, s{sT}, 10
    s_lshr_b32 s{sT+3}, s{sW}, 1
    s_lshl_b32 s{sT+3}, s{sT+3}, 3
    s_add_u32 s{sT}, s{sT}, s{sT+3}
    s_add_u32 s{sT}, s{sT}, {FIN}
    v_add_u32 v{vFw}, s{sT}, v{vL16}
    v_bfe_u32 v{t0}, v0, 3, 2
    v_lshlrev_b32 v{t0}, 4, v{t0}
    v_lshrrev_b32 v{t0+1}, 5, v0
    v_lshl_add_u32 v{t0}, v{t0+1}, 3, v{t0}
    v_add_u32 v{vZw}, {FIN+2048}, v{t0}
    v_and_b32 v{t0}, 48, v0
    v_add_u32 v{vZr}, {FIN+2048}, v{t0}
    v_add_u32 v{vFr}, {FIN}, v{vL16}
    """)
    spread(lines(B)[:8], 16 * 1 + 6, 16 * 1 + 12)
    spread([f"v_and_b32 v{t0}, 15, v0"] + lines(B)[8:], 16 * 8, 16 * 10)
    B = Asm()
    for i in (0, 2):
        o = acc[("g6", i)].base
        swiglu_tile(B, 6, i, tq, o)
        swiglu_tile(B, 6, i + 1, tq, o + 2)
        B("s_nop 1")
        B(f"v_permlane16_swap_b32 v{o}, v{o+2}")
        B(f"v_permlane16_swap_b32 v{o+1}, v{o+3}")
        B(f"buffer_store_dwordx4 v[{o}:{o+3}], v{vLn}, s[{sSH}:{sSH+3}], s{sCL} offen offset:{1024*i} sc1")
    spread(tagged(lines(B), "h3"), 16 * 5 + 8, 16 * 7)
    pqb = 240
    B = Asm()
    for i in range(4):
        for dt in range(2):
            qa = acc[(f"q{dt}", i)].base
            for j in range(4): B(f"v_accvgpr_read_b32 v{tq+j}, a{qa+j}")
            phi_tile(B, tq, tq + 4, pqb + 4 * i + 2 * dt)
    spread(lines(B), 16 * 10, 16 * 15)
    kvb, zb, fr, ob = 24, 56, 60, 152
    GB = check_pos(first_at[16]) // 16
    extra = {}
    for r in range(8):
        extra[16 * GB + 12 + 4 * r] = [f"s_mov_b32 s{sT+1}, {6144*r}", (f"buffer_load_dwordx4 v[{kvb+4*r}:{kvb+4*r+3}], v{vKv}, s[{sSK}:{sSK+3}], s{sT+1} offen sc1", "kvg")]
    extra[16 * (GB + 2) + 14] = [(f"buffer_load_dwordx4 v[{zb}:{zb+3}], v{vZ}, s[{sSK}:{sSK+3}], 0 offen offset:2048 sc1", "kvg")]
    B = Asm()
    for st in (16, 8, 4):
        for r in range(0, st, 2):
            B(f"v_pk_add_f32 v[{kvb+r}:{kvb+r+1}], v[{kvb+r}:{kvb+r+1}], v[{kvb+st+r}:{kvb+st+r+1}]")
    for dpp in ("quad_perm:[1,0,3,2]", "quad_perm:[2,3,0,1]", "row_half_mirror"):
        for j in range(4):
            B(f"v_add_f32_dpp v{zb+j}, v{zb+j}, v{zb+j} {dpp} row_mask:0xf bank_mask:0xf")
    B(f"""
    v_cvt_pk_bf16_f32 v{kvb}, v{kvb}, v{kvb+1}
    v_cvt_pk_bf16_f32 v{kvb+1}, v{kvb+2}, v{kvb+3}
    v_cvt_pk_bf16_f32 v{zb}, v{zb}, v{zb+1}
    v_cvt_pk_bf16_f32 v{zb+1}, v{zb+2}, v{zb+3}
    ds_write_b64 v{vFw}, v[{kvb}:{kvb+1}]
    ds_write_b64 v{vZw}, v[{zb}:{zb+1}]
    """)
    spread(["@vm kvg"] + tagged(lines(B), "fw"), 16 * (GB + 4), 16 * (GB + 4) + 7)
    barrier_lg[GB + 4] = ["fw"]
    spread([(f"ds_read_b128 v[{fr}:{fr+3}], v{vFr}", "frr"), (f"ds_read_b128 v[{fr+4}:{fr+7}], v{vFr} offset:1024", "frr"),
            (f"ds_read_b128 v[{fr+8}:{fr+11}], v{vZr}", "frr")], 16 * (GB + 4) + 10, 16 * (GB + 4) + 13)
    B = Asm()
    B(f"s_add_u32 s{sT}, s{sHD}, 112")
    B(f"s_lshl_b32 s{sT}, s{sT}, 17")
    for i in range(4):
        for et in (2, 0, 1):
            d = ob + 12 * i + 4 * et
            B(f"v_mfma_f32_16x16x32_bf16 v[{d}:{d+3}], v[{fr+4*et}:{fr+4*et+3}], v[{pqb+4*i}:{pqb+4*i+3}], 0")
    for i in range(4): B(f"v_add_f32 v{ob+12*i+8}, s{sEPS}, v{ob+12*i+8}")
    for i in range(4): B(f"v_rcp_f32 v{ob+12*i+8}, v{ob+12*i+8}")
    for i in range(4):
        d = ob + 12 * i
        for q in range(4):
            B(f"v_pk_mul_f32 v[{d+2*q}:{d+2*q+1}], v[{d+2*q}:{d+2*q+1}], v[{d+8}:{d+9}] op_sel_hi:[1,0]")
        for q in range(4):
            B(f"v_cvt_pk_bf16_f32 v{d+q}, v{d+2*q}, v{d+2*q+1}")
        B(f"buffer_store_dwordx4 v[{d}:{d+3}], v{vX}, s[{sSH}:{sSH+3}], s{sT} offen offset:{1024*i} sc1")
    spread(["@lg frr"] + tagged(lines(B), "os"), 16 * (GB + 5) + 2, 16 * (GB + 5) + OPT.get("ow", 32))
    spread([f"v_pk_mov_b32 v[{r}:{r+1}], 0, 0" for r in range(ACCS, ACCS + 32, 2)], 16 * 22, 16 * 23)
    sSE = 16
    S = Asm(); srd(S, sSE, 14, 15, EX_SIZE, EX_OFF)
    ls = ["\n".join(lines(S)),
          f"s_lshl_b32 s{sT+1}, s2, 2", f"s_add_u32 s{sT+1}, s{sT+1}, s{sW}", f"s_lshl_b32 s{sT+1}, s{sT+1}, 13",
          f"s_add_u32 s{sT+2}, s{sT+1}, 4096"]
    assert LSTR & (LSTR - 1) == 0
    spread(ls, 16 * (NS - 1), 16 * NS)
    XB = OPT.get("xbf", 1)
    NX = 4 if XB else 8
    if XB:
        ls = []
        for k in range(4):
            for q in range(4): ls.append(f"v_cvt_pk_bf16_f32 v{ACCP+4*k+q}, v{ACCP+8*k+2*q}, v{ACCP+8*k+2*q+1}")
            ls.append((f"buffer_store_dwordx4 v[{ACCP+4*k}:{ACCP+4*k+3}], v{vL16}, s[{sSE}:{sSE+3}], s{sT+1} offen offset:{1024*k} sc1", "ex"))
        spread(ls, 16 * NS + 2, 16 * NS + OPT.get("exs", 14))
    else:
        for k in range(8):
            extra.setdefault(16 * NS + 2 + 4 * k, []).append(
                (f"buffer_store_dwordx4 v[{ACCP+4*k}:{ACCP+4*k+3}], v{vL16}, s[{sSE}:{sSE+3}], s{sT+1+k//4} offen offset:{1024*(k%4)} sc1", "ex"))
    assert XB
    EXG = 16 * NS + OPT.get("exg", 38)
    EXP = EXG + OPT.get("exp", 16)
    EXL = EXP + OPT.get("exc", 16)
    extra.setdefault(EXG, []).extend(["@vm ex", f"v_mov_b32 v{vT}, s{sTag}", f"v_mov_b32 v{vT+1}, 1", "s_mov_b64 exec, 1",
        (f"buffer_store_dwordx2 v[{vT}:{vT+1}], off, s[{sSE}:{sSE+3}], s{sT+2} sc1", "exf"), "s_mov_b64 exec, -1",
        f"s_xor_b32 s{sT+1}, s{sT+1}, {32 << 15}", f"s_xor_b32 s{sT+2}, s{sT+2}, {32 << 15}"])
    expoll = f"buffer_load_dwordx2 v[{vPv}:{vPv+1}], off, s[{sSE}:{sSE+3}], s{sT+2} sc1"
    extra.setdefault(EXP, []).append((expoll, "exp"))
    extra.setdefault(EXL, []).extend(["@vm exp", "#excheck"])
    for k in range(NX):
        extra.setdefault(EXL + 2 * k, []).append(
            (f"buffer_load_dwordx4 v[{ACCP+4*k}:{ACCP+4*k+3}], v{vL16}, s[{sSE}:{sSE+3}], s{sT+1+k//4} offen offset:{1024*(k%4)} sc1", "exl"))
    vXD, tb = 72, 152
    sX0 = 45
    xb0 = 184
    B = Asm()
    if XB:
        for r in range(16):
            B(f"v_lshlrev_b32 v{tb+2*r}, 16, v{ACCP+r}")
            B(f"v_and_b32 v{tb+2*r+1}, 0xffff0000, v{ACCP+r}")
    for r in range(0, 32, 2): B(f"v_pk_add_f32 v[{ACCF+r}:{ACCF+r+1}], v[{ACCF+r}:{ACCF+r+1}], v[{(tb if XB else ACCP)+r}:{(tb if XB else ACCP)+r+1}]")
    for r in range(0, 32, 2): B(f"v_pk_mul_f32 v[{tb+r}:{tb+r+1}], v[{ACCF+r}:{ACCF+r+1}], s[{sNL}:{sNL+1}]")
    for r in range(32): B(f"v_exp_f32 v{tb+r}, v{tb+r}")
    for r in range(0, 32, 2): B(f"v_pk_add_f32 v[{tb+r}:{tb+r+1}], v[{tb+r}:{tb+r+1}], 1.0 op_sel_hi:[1,0]")
    for r in range(32): B(f"v_rcp_f32 v{tb+r}, v{tb+r}")
    for r in range(0, 32, 2): B(f"v_pk_mul_f32 v[{ACCF+r}:{ACCF+r+1}], v[{ACCF+r}:{ACCF+r+1}], v[{tb+r}:{tb+r+1}]")
    S0 = max(EXL + OPT.get("exw", 22), 16 * 28 + 2)
    spread(["@vm exl"] + lines(B), S0, min(S0 + 56, 16 * 36 - 2))
    spread([(f"ds_read_b128 v[{vXD+4*k}:{vXD+4*k+3}], v{vXf2 if k % 2 else vXf} offset:{2048*(k//2)}", "xr") for k in range(4)], 16 * 23, 16 * 23 + 5)
    ls = ["@lg xr"]
    for k in range(4):
        for q in range(4):
            ls.append(f"v_lshlrev_b32 v{xb0+8*k+2*q}, 16, v{vXD+4*k+q}")
            ls.append(f"v_and_b32 v{xb0+8*k+2*q+1}, 0xffff0000, v{vXD+4*k+q}")
    spread(ls, 16 * 24, 16 * 26)
    base = F_LN | F_WT | F_A
    FB, FL, FC = OPT.get("fb", 6), OPT.get("fl", 8), GB + OPT.get("fc", 8)
    F_L = F_E
    flags = {OPT.get("fa2", 0): (base | F_A2, ["h1"]), FB: (base | F_A2 | F_B, ["kvs", "h2"]), FL: (base | F_A2 | F_B | F_L, ["h3"]),
             FC: (base | F_A2 | F_B | F_L | F_C, ["os"])}
    checks = {check_pos(first_at[8]): (F_A2, MASK_R, vPollR), check_pos(first_at[16]): (F_B, MASK_R | MASK_U, vPollH),
              check_pos(first_at[24]): (F_L, MASK_R, vPollR if OPT.get('lp', 0) else None), check_pos(first_at[28]): (F_C, MASK_R, vPollR)}
    print("checks at", sorted((c // 16, c % 16) for c in checks), file=sys.stderr)
    Y = OPT.get("y", 0)
    if Y & 1: checks = {k: v for k, v in checks.items() if v[0] == F_C}
    if Y & 2: flags = {k: v for k, v in flags.items() if k == 19}
    if Y & 4:
        for k in list(extra):
            if any(isinstance(x, tuple) and x[1] == "kvg" for x in extra[k]) and k != 16 * 14 + 14: del extra[k]
    if Y & 8:
        for k in list(extra):
            extra[k] = [x for x in extra[k] if not ((isinstance(x, tuple) and x[1] in ("exl", "exp", "exf")) or x in ("@vm ex", "@vm exp", "#excheck"))]
        for k in fill: fill[k] = [x for x in fill[k] if not ((isinstance(x, tuple) and x[1] == "ex") or x == "@vm exl")]
    if Y & 16:
        for k in fill: fill[k] = [x for x in fill[k] if isinstance(x, tuple) or not x.startswith(("v_exp", "v_rcp"))]
    for c, (bit, mask, va) in checks.items():
        pc = c - OPT.get("pdist", 19)
        if va is not None: extra.setdefault(pc, []).append(f"#poll {c} {va}")
    if OPT.get("unpk", 0) & 2:
        for k in fill:
            out = []
            for x in fill[k]:
                if isinstance(x, str) and x.startswith("v_pk_") and "op_sel_hi:[1,0]" not in x.replace("1.0 op_sel_hi:[1,0]", "") and not x.startswith(("v_pk_mov", "v_pk_fma")):
                    out += unpack([x])
                else: out.append(x)
            fill[k] = out
    CH2 = OPT.get("ch2", 0)
    def fmap(n, F):
        if not CH2: return (F * nq(n) // 16, F // 4, F % 4)
        hi, j, e = F >> 3, (F >> 1) & 3, F & 1
        if n < NS: return (e, 2 * e + hi, j)
        return (2 * hi + e, 2 * hi + e, j)
    def bread(n, F):
        sl = n % G2_R
        q, ss, j = fmap(n, F)
        return (f"ds_read_b128 {BR(F % 8)}, v{vRh if sl >= 4 else vL16} offset:{(sl % 4) * G2_SLOT + 4096*ss + 1024*j}", f"b{n}_{F}")
    for k in range(OPT.get("shift", 0)): A("s_nop 0")
    if OPT.get("al2"): A.raw("    ; @align on")
    for F in range(LA): put(bread(0, F))
    stamp(A, 5, 1); stamp(A, 1, 3); stamp(A, 5, 4)
    for n in range(36):
        for F in range(16):
            q, ss, j = fmap(n, F)
            accb = ACCS if n >= 28 else (ACCP if (n < NS and ss & 1) else ACCF)
            c = 16 * n + F
            wv, wl = [], []
            if F % 2 == 0: wl = [f"b{n}_{F}", f"b{n}_{F+1}"]
            if not CH2 and j == 0: wv = [f"A{n}q{q}"]
            if CH2 and F % 8 == 0: wv = [f"A{n}q{q}", f"A{n}q{q+1}"]
            bar = F == 10 and n < 35 and (n % BP == 0 or n in barrier_lg or n in flags or 16 * n + 9 in checks)
            if bar:
                if n % BP == 0: wv += [f"B{m}" for m in range(n + 1, min(n + BP, 35) + 1)]
                wv += flags[n][1] if n in flags else []
                wl += barrier_lg.get(n, [])
            waitfor(vm=wv, lg=wl)
            if bar:
                A("s_barrier")
                if n in flags: flag_set(flags[n][0])
            order = (0, 1) if (F % 2 == 0 or not OPT.get("snake")) else (1, 0)
            m = lambda i: f"v_mfma_f32_16x16x32_bf16 v[{accb+16*i+4*j}:{accb+16*i+4*j+3}], {BR(F % 8)}, {AR(ch0[n] + q, i)}, v[{accb+16*i+4*j}:{accb+16*i+4*j+3}]"
            if CH2:
                F0 = F & ~1; q0 = q - (F & 1)
                ti = (F & 1) ^ ((F >> 1) & 1)
                order = (0, 1) if F % 2 == 0 else (1, 0)
                m = lambda e: f"v_mfma_f32_16x16x32_bf16 v[{accb+16*ti+4*j}:{accb+16*ti+4*j+3}], {BR((F0 + e) % 8)}, {AR(ch0[n] + q0 + e, ti)}, v[{accb+16*ti+4*j}:{accb+16*ti+4*j+3}]"
            nn, nF = (n, F + LA) if F + LA < 16 else (n + 1, F + LA - 16)
            fl = fill.get(c, [])
            h = len(fl) // 2 if OPT.get("gap2") else 0
            A(m(order[0]))
            if nn < 36: put(bread(nn, nF))
            for x in fl[:h]: put(x)
            A(m(order[1]))
            if c in asched:
                for x in aop(*asched[c]): put(x)
            if c in bsched:
                for x in bop(*bsched[c]): put(x)
            for x in extra.get(c, []): put(x)
            for x in fl[h:]: put(x)
            if c in checks:
                bit, mask, va = checks[c]
                A(f"s_cmp_eq_u32 s{sW}, 0"); A(f"s_cbranch_scc0 M_nc{c}")
                poll_check(bit, mask, len(vm) - pmark[c] if va is not None else None, va)
                if bit != F_C: A.label(f"M_nc{c}")
                if bit == F_C:
                    A(f"""
                    s_or_b32 s{sTm}, s2, s{sW}
                    s_cmp_eq_u32 s{sTm}, 0
                    s_cbranch_scc0 M_nobump
                    v_mov_b32 v{vT}, s{sTag}
                    s_mov_b32 s{sTm}, {EPOCH}
                    s_mov_b64 exec, 1
                    buffer_store_dword v{vT}, off, s[{sSF}:{sSF+3}], s{sTm} sc1
                    s_mov_b64 exec, -1
                    """)
                    A.label("M_nobump"); A.label(f"M_nc{c}")
        if n in (3, 7, 11, 19, 31): stamp(A, {3: 2, 7: 3, 11: 4, 19: 5, 31: 6}[n], 3)
        if n in (19, 21, 23, 25, 27, 29): stamp(A, (n - 17) // 2, 5)
        if n in (11, 13, 15, 17, 19, 21): stamp(A, (n - 9) // 2, 6)
    A("s_nop 4")
    for i in range(2):
        for pr in range(2):
            t0 = 16 * i + 8 * pr
            x = vXD + 8 * i + 4 * pr
            for q in range(4):
                t = t0 + 2 * q
                A(f"v_pk_fma_f32 v[{ACCS+t}:{ACCS+t+1}], v[{ACCS+t}:{ACCS+t+1}], v[{ACCF+t}:{ACCF+t+1}], v[{xb0+t}:{xb0+t+1}]")
            for q in range(4):
                A(f"v_cvt_pk_bf16_f32 v{x+q}, v{ACCS+t0+2*q}, v{ACCS+t0+2*q+1}")
            A(f"ds_write_b128 v{vXf2 if pr else vXf}, v[{x}:{x+3}] offset:{2048*i}")
        if i == 0: A(f"s_mov_b32 s{sX0}, 16384"); A(f"s_mov_b32 s{sX0+1}, 32768"); A(f"s_mov_b32 s{sT}, 49152")
        for k in (2 * i, 2 * i + 1):
            A(f"ds_read_b128 v[{tb+4*k}:{tb+4*k+3}], v{vXl} offset:{1024*k}")
    for k in range(4):
        A(f"s_waitcnt lgkmcnt({[5, 4, 1, 0][k]})")
        A(f"buffer_store_dwordx4 v[{tb+4*k}:{tb+4*k+3}], v{vXO}, s[{sSO}:{sSO+3}], {['0', f's{sX0}', f's{sX0+1}', f's{sT}'][k]} offen sc0 sc1 nt")
    stamp(A, 6, 1)
    if OPT["stamp"]:
        A("s_memrealtime s[100:101]")
        A("s_waitcnt lgkmcnt(0)")
        if OPT.get("amp"):
            a, b, sh = {1: (100, 99, 0), 2: (SREG[1], 99, 2), 3: (SREG[2], SREG[1], 0), 4: (100, SREG[2], 0)}[OPT["amp"]]
            A(f"s_sub_u32 s{sT}, s{a}, s{b}"); A(f"s_lshl_b32 s{sT}, s{sT}, {sh}"); A(f"s_min_u32 s{sT}, s{sT}, 20000")
            A(f"s_mov_b32 s{sT+1}, s100")
            A.label("M_amp")
            A("s_memrealtime s[100:101]"); A("s_waitcnt lgkmcnt(0)")
            A(f"s_sub_u32 s{sT+2}, s100, s{sT+1}"); A(f"s_cmp_lt_u32 s{sT+2}, s{sT}"); A("s_cbranch_scc1 M_amp")
            A("s_branch M_end")
        if OPT.get("dbgout"):
            A("s_load_dwordx2 s[20:21], s[0:1], 64"); A("s_waitcnt lgkmcnt(0)")
            srd(A, 16, 20, 21, 256)
            A(f"s_add_u32 s{sT}, s2, 1"); A(f"s_and_b32 s{sT}, s{sT}, 0xfe"); A(f"s_or_b32 s{sT}, s{sT}, s{sW}")
            A(f"s_cmp_eq_u32 s{sT}, 0"); A("s_cbranch_scc0 M_end")
            A(f"s_and_b32 s{sT}, s2, 32"); A(f"v_mov_b32 v0, s{sT}")
            for i, r in enumerate(SREG[1:] + [100]):
                A(f"s_sub_u32 s{sT}, s{r}, s99"); A(f"v_mov_b32 v1, s{sT}"); A(f"buffer_store_dword v1, v0, s[16:19], 0 offen offset:{4*i}")
            A(f"v_mov_b32 v1, s99"); A(f"buffer_store_dword v1, v0, s[16:19], 0 offen offset:28")
            A("s_branch M_end")
        srd(A, 16, 14, 15, 0x10000, STAMP_OFF + 0x10000)
        A(f"s_lshl_b32 s{sT}, s2, 2"); A(f"s_add_u32 s{sT}, s{sT}, s{sW}"); A(f"s_lshl_b32 s{sT}, s{sT}, 6")
        A(f"v_mov_b32 v0, s{sT}")
        for i, r in enumerate(SREG):
            A(f"v_mov_b32 v1, s{r}"); A(f"buffer_store_dword v1, v0, s[16:19], 0 offen offset:{4*i}")
        A(f"v_mov_b32 v1, s100"); A(f"buffer_store_dword v1, v0, s[16:19], 0 offen offset:56")
        A(f"v_mov_b32 v1, s99"); A(f"buffer_store_dword v1, v0, s[16:19], 0 offen offset:60")
    A.label("M_end")
    A("s_endpgm")
    return A.text()

def build():
    K = NAME + "_kernel"
    hdr = open(f"cdna_kernels/{NAME}.s.ref").read().split("; Override")[0]
    out = [hdr.rstrip("\n")]
    if OPT.get("list"):
        out.append(f"; @launch kernel={K} grid=(256,1,1) block=(256,1,1) lds={LDS_BYTES}")
    else:
        out.append(f"; @launch grid=(256,1,1) block=(256,1,1) lds={LDS_BYTES}")
    out.append('.amdgcn_target "amdgcn-amd-amdhsa--gfx950"')
    out.append(".text")
    NO_NOP[0] = OPT['align'] == 2
    body, size = align_kernel(gen())
    for p in check_hazards(body): print("HAZARD", p, file=sys.stderr)
    print("code bytes", size, file=sys.stderr)
    assert size < 65536
    out.append(body.rstrip("\n"))
    out.append(".p2align 8")
    out.append(f".fill {(66560 - size) // 4}, 4, 0xbf810000")
    out.append(f""".section .rodata,"a"
.p2align 6
.amdhsa_kernel {K}
  .amdhsa_next_free_vgpr 512
  .amdhsa_next_free_sgpr 102
  .amdhsa_accum_offset 256
  .amdhsa_group_segment_fixed_size 0
  .amdhsa_kernarg_size 80
  .amdhsa_user_sgpr_count 2
  .amdhsa_user_sgpr_kernarg_segment_ptr 1
  .amdhsa_system_sgpr_workgroup_id_x 1
.end_amdhsa_kernel""")
    return "\n".join(out) + "\n"

if __name__ == "__main__":
    for a in sys.argv[2:]:
        k, v = a.split("="); OPT[k] = int(v)
    WS_BASE = OPT.get('wsb', 0) << 20
    LSTR = OPT.get('lstr', LSTR); FLG_SIZE = 33 * LSTR; EPOCH = 32 * LSTR
    XF_OFF += WS_BASE; HF_OFF += WS_BASE; KVP_OFF += WS_BASE; WT_OFF += WS_BASE; FLG_OFF += WS_BASE; EX_OFF += WS_BASE
    open(sys.argv[1], "w").write(build())
```
